```python
import torch

def _softmax(x, axis=-1):
    return torch.softmax(x, dim=axis)
def _gelu(x):
    return torch.nn.functional.gelu(x, approximate="tanh")
def _silu(x):
    return torch.nn.functional.silu(x)
def _sigmoid(x):
    return torch.sigmoid(x)
def _layernorm(x, axis=-1, eps=1e-5):
    m = x.mean(dim=axis, keepdim=True)
    v = x.var(dim=axis, keepdim=True, unbiased=False)
    return (x - m) / torch.sqrt(v + eps)
def _scatter_add(tgt, idx, src, axis=0):
    return tgt.clone().index_add_(axis, idx, src)
def _segment_sum(src, seg, n):
    out = torch.zeros((n,) + src.shape[1:], dtype=src.dtype)
    return out.index_add_(0, seg, src)
def _pad(x, pw):
    flat = tuple(v for pair in reversed(pw) for v in pair)
    return torch.nn.functional.pad(x, flat)

kernel_name = 'recurrent_scan__linear_kernel_hedgehog__dense_activation_relu__prompt'

def setup_inputs():

    _w = (lambda a: (lambda t: t.to(torch.bfloat16) if t.is_floating_point() else t)(torch.as_tensor(a)))
    def _A_setup():
        B, S, D, H = 1, 2048, 576, 32
        Dh = D // H
        return {
            "x": _w((lambda *s: torch.randn(*s, dtype=torch.bfloat16) * 0.05)(B, S, D)),
            "wqkv": _w((lambda *s: torch.randn(*s, dtype=torch.bfloat16) * 0.2)(D, 3 * D)),
            "w_phi": _w((lambda *s: torch.randn(*s, dtype=torch.bfloat16) * 0.2)(H, Dh, Dh) * (Dh ** -0.5)),
            "wo": _w((lambda *s: torch.randn(*s, dtype=torch.bfloat16) * 0.05)(D, D)),
        }
    _A_in = _A_setup()

    def _B_setup():
        B, S, D, Dff = 1, 2048, 576, 4608
        return {
            "x": _w((lambda *s: torch.randn(*s, dtype=torch.bfloat16) * 0.05)(B, S, D)),
            "w1": _w((lambda *s: torch.randn(*s, dtype=torch.bfloat16) * 0.05)(D, Dff)),
            "w2": _w((lambda *s: torch.randn(*s, dtype=torch.bfloat16) * 0.05)(Dff, D)),
        }
    _B_in = _B_setup()

    return {
        "A_x": _A_in["x"],
        "A_wqkv": _A_in["wqkv"],
        "A_w_phi": _A_in["w_phi"],
        "A_wo": _A_in["wo"],
        "B_x": _B_in["x"],
        "B_w1": _B_in["w1"],
        "B_w2": _B_in["w2"],
    }

def reference(A_x, A_wqkv, A_w_phi, A_wo, B_x, B_w1, B_w2):
    def _A_ref(x, wqkv, w_phi, wo):
        B, S, D = x.shape
        H = 32; Dh = D // H
        qkv = (lambda x, *d: x.permute(*d))((x @ wqkv).reshape(B, S, 3, H, Dh), 2, 0, 3, 1, 4)
        q, k, v = qkv[0], qkv[1], qkv[2]
        pq = torch.einsum("bhsd,hdf->bhsf", q, w_phi)
        pk = torch.einsum("bhsd,hdf->bhsf", k, w_phi)
        phi_q = torch.concatenate([_softmax(pq, axis=-1), _softmax(-pq, axis=-1)], axis=-1)
        phi_k = torch.concatenate([_softmax(pk, axis=-1), _softmax(-pk, axis=-1)], axis=-1)
        kv = torch.einsum("bhsf,bhsd->bhfd", phi_k, v)
        z  = torch.einsum("bhsf->bhf", phi_k)
        num = torch.einsum("bhqf,bhfd->bhqd", phi_q, kv)
        den = torch.einsum("bhqf,bhf->bhq", phi_q, z)[..., None] + 1e-6
        o = num / den
        return (lambda x, *d: x.permute(*d))(o, 0, 2, 1, 3).reshape(B, S, D) @ wo

    def _B_ref(x, w1, w2):
        h = torch.einsum("bsd,df->bsf", x, w1)
        zero = torch.zeros_like(h)
        h = torch.maximum(h, zero)
        return torch.einsum("bsf,fd->bsd", h, w2)

    x = A_x
    xn = _layernorm(x, axis=-1)
    s = _A_ref(xn, A_wqkv, A_w_phi, A_wo)
    g = _silu(_B_ref(xn, B_w1, B_w2))
    return x + s * g
```

```python
import re

REG_RE = re.compile(r'^(-|\|)?(v|a|s)(\d+)$')
RNG_RE = re.compile(r'^(v|a|s)\[(\d+):(\d+)\]$')


def regs_of(op):
    op = op.strip()
    if op.startswith('-'):
        op = op[1:]
    if op.startswith('abs(') and op.endswith(')'):
        op = op[4:-1]
    if op.startswith('|') and op.endswith('|'):
        op = op[1:-1]
    m = RNG_RE.match(op)
    if m:
        return [(m.group(1), i) for i in range(int(m.group(2)), int(m.group(3)) + 1)]
    m = re.match(r'^(v|a|s)(\d+)$', op)
    if m:
        return [(m.group(1), int(m.group(2)))]
    if op == 'vcc':
        return [('x', 'vcc')]
    if op in ('exec', 'exec_lo', 'exec_hi'):
        return [('x', 'exec')]
    if op == 'm0':
        return [('x', 'm0')]
    return []


TRANS = ('v_exp_f32', 'v_log_f32', 'v_rcp_f32', 'v_rsq_f32', 'v_sqrt_f32')


class I:
    __slots__ = ('text', 'op', 'kind', 'rd', 'wr', 'tok', 'need', 'cost', 'gap', 'maybe', 'srcc', 'wide', 'glue', 'comment', 'nslots')

    def __init__(self, text, tok=None, need=None, gap=0, maybe=False, glue=False):
        self.text = text
        self.tok = tok
        self.need = need
        self.gap = gap
        self.maybe = maybe
        self.glue = glue
        self.srcc = set()
        self.wide = False
        self.parse()

    def parse(self):
        t = self.text.strip()
        if t.endswith(':') or t.startswith('.') or t.startswith(';'):
            self.op = t; self.kind = 'label'; self.rd = set(); self.wr = set(); self.cost = 0
            return
        parts = t.split(None, 1)
        op = parts[0]
        self.op = op
        rest = parts[1] if len(parts) > 1 else ''
        ops = [o.strip() for o in rest.split(',')] if rest else []
        mods = ''
        if ops:
            lp = ops[-1].split(None, 1)
            ops[-1] = lp[0]
            mods = lp[1] if len(lp) > 1 else ''
        R = [regs_of(o) for o in ops]
        rd = set(); wr = set()
        allr = lambda lst: set(x for l in lst for x in l)
        cost = 1
        if op == 'WAIT':
            kind = 'wait'; cost = 1
        elif op.startswith('v_mfma'):
            kind = 'mfma32' if '32x32' in op else 'mfma16'
            wr = set(R[0]); rd = allr(R[1:]); self.srcc = set(R[3]); cost = 2
        elif op.startswith('buffer_load'):
            if ' lds' in (' ' + mods + ' ') or mods.endswith('lds'):
                kind = 'dma'; rd = allr(R) | {('x', 'm0')}
            else:
                kind = 'vload'; wr = set(R[0]); rd = allr(R[1:])
                if 'd16' in op: rd |= set(R[0])
        elif op.startswith('buffer_store') or op.startswith('buffer_atomic'):
            kind = 'vstore'; rd = allr(R)
            self.wide = 'x4' in op or 'x3' in op
            if op.startswith('buffer_atomic') and 'sc0' in mods:
                wr = set(R[0]); kind = 'vload'
        elif op.startswith('ds_read'):
            kind = 'dsr'; wr = set(R[0]); rd = allr(R[1:])
        elif op.startswith('ds_write'):
            kind = 'dsw'; rd = allr(R)
        elif op.startswith('s_load'):
            kind = 'smem'; wr = set(R[0]); rd = allr(R[1:])
        elif op in ('s_memtime', 's_memrealtime'):
            kind = 'smem'; wr = set(R[0])
        elif op == 's_waitcnt':
            kind = 'rawwait'
        elif op == 's_barrier':
            kind = 'barrier'
        elif op == 's_nop':
            kind = 'nop'; cost = int(ops[0]) + 1
        elif op in ('s_endpgm', 's_branch', 's_setprio', 's_sleep'):
            kind = 'sctl'
        elif op.startswith('s_cbranch'):
            kind = 'sctl'
            if 'vcc' in op: rd = {('x', 'vcc')}
            if 'scc' in op: rd = {('x', 'scc')}
            if 'exec' in op: rd = {('x', 'exec')}
        elif op.startswith('s_cmp') or op.startswith('s_bitcmp'):
            kind = 'salu'; rd = allr(R); wr = {('x', 'scc')}
        elif op.startswith('s_'):
            kind = 'salu'; wr = set(R[0]); rd = allr(R[1:])
            if op.startswith(('s_addc', 's_subb', 's_cselect')): rd |= {('x', 'scc')}
            if 'saveexec' in op: rd |= {('x', 'exec')}; wr |= {('x', 'exec')}
            if op.startswith(('s_addk', 's_mulk')): rd |= set(R[0])
            if not op.startswith(('s_mov', 's_getpc', 's_mul', 's_cselect', 's_getreg')): wr |= {('x', 'scc')}
        elif op.startswith('v_'):
            kind = 'valu'
            base = op.replace('_e32', '').replace('_e64', '')
            if base in TRANS:
                kind = 'trans'; cost = 2
            if base.startswith('v_permlane'):
                kind = 'perm'; cost = 2; wr = allr(R); rd = allr(R)
            elif base.startswith('v_cmp'):
                wr = set(R[0]); rd = allr(R[1:])
            elif base.startswith(('v_readfirstlane', 'v_readlane')):
                kind = 'rfl'; wr = set(R[0]); rd = allr(R[1:])
            elif base.startswith('v_writelane'):
                wr = set(R[0]); rd = allr(R)
            else:
                wr = set(R[0]); rd = allr(R[1:])
                if base.startswith(('v_fmac', 'v_dot2c')): rd |= set(R[0])
                if base.startswith(('v_add_co', 'v_sub_co')):
                    wr |= set(R[1]); rd = allr(R[2:])
                if base.startswith(('v_pk_', 'v_dot2')) and 'i16' not in base: kind = 'valu_pk'
        else:
            raise ValueError('unknown instruction: ' + t)
        self.kind = kind; self.rd = rd; self.wr = wr; self.cost = cost

    def __repr__(self):
        return self.text


def W(*toks):
    i = I('WAIT'); i.need = list(toks); return i


VALU_KINDS = ('valu', 'trans', 'perm', 'rfl', 'valu_pk')
VM_KINDS = ('dma', 'vload', 'vstore')
DS_KINDS = ('dsr', 'dsw')


def as_list(x):
    if x is None: return []
    if isinstance(x, (list, tuple, set)): return list(x)
    return [x]


def resolve_waits(prog, stats=None, lenient=False):
    out = []
    vm = []
    lg = []
    seen_tok = set()
    smem_pending = set()

    def cnt_after(q, idx):
        return sum(1 for o in q[idx + 1:] if not o.maybe)

    for ins in prog:
        nv = None; nl = None
        touched = ins.rd | ins.wr
        need = as_list(ins.need)
        for t in need:
            assert lenient or t in seen_tok, f'wait on unknown token {t} at {ins.text}'
        for q, name in ((vm, 'vm'), (lg, 'lg')):
            last = -1
            for k, o in enumerate(q):
                if (o.wr & touched) or (need and set(as_list(o.tok)) & set(need)):
                    last = k
            if last >= 0:
                n = cnt_after(q, last)
                if name == 'vm': nv = min(n, 63)
                else: nl = min(n, 15)
        if smem_pending & touched and ins.kind != 'rawwait':
            raise AssertionError('use of pending smem register without wait: ' + ins.text)
        if ins.kind == 'rawwait':
            m = re.search(r'vmcnt\((\d+)\)', ins.text)
            if m:
                n = int(m.group(1)); assert n == 0 or not any(o.maybe for o in vm)
                vm = vm[len(vm) - n:] if n else []
            m = re.search(r'lgkmcnt\((\d+)\)', ins.text)
            if m:
                n = int(m.group(1))
                lg = lg[len(lg) - n:] if n and len(lg) > n else (lg if n else [])
                if n == 0: smem_pending = set()
            out.append(ins); continue
        if nv is not None or nl is not None:
            s = 's_waitcnt'
            if nv is not None:
                s += f' vmcnt({nv})'
                k = len(vm); c = 0
                while k > 0 and (c < nv or False):
                    k -= 1
                    if not vm[k].maybe: c += 1
                vm = vm[k:] if nv else []
            if nl is not None:
                assert not smem_pending, 'counted lgkm wait with smem pending: ' + ins.text
                s += f' lgkmcnt({nl})'
                lg = lg[len(lg) - nl:] if nl else []
            w = I(s)
            out.append(w)
            if stats is not None and ins.kind != 'wait': stats['auto_waits'] = stats.get('auto_waits', 0) + 1
        if ins.kind == 'wait':
            continue
        out.append(ins)
        if ins.kind in VM_KINDS:
            vm.append(ins)
            assert len(vm) <= 80
        elif ins.kind in DS_KINDS:
            lg.append(ins)
        elif ins.kind == 'smem':
            smem_pending |= ins.wr
        for t in as_list(ins.tok): seen_tok.add(t)
    return out


def pad_hazards(prog, stats=None):
    out = []
    pos = 0
    last_valu_w = {}
    last_trans_w = {}
    last_mfma_w = {}
    last_mfma_c = {}
    last_store = {}
    last_m0 = -100
    last_dl_w = {}
    last_exec_valu = -100
    for ins in prog:
        if ins.kind == 'label':
            out.append(ins); continue
        need = 0

        def req(p, n):
            nonlocal need
            need = max(need, p + n + 1 - pos)
        k = ins.kind
        isv = k in VALU_KINDS
        ismf = k in ('mfma32', 'mfma16')
        for r in ins.rd:
            if r in last_valu_w:
                p = last_valu_w[r]
                if ismf: req(p, 2)
                if k == 'perm': req(p, 2)
                if k == 'rfl' and r[0] == 'v': req(p, 1)
                if r[0] == 's' or r == ('x', 'vcc'):
                    if k in VM_KINDS: req(p, 5)
                    if isv: req(p, 2)
                    if k == 'sctl' or k == 'salu': req(p, 1)
            if r in last_trans_w and (isv or ismf or k in VM_KINDS or k in DS_KINDS): req(last_trans_w[r], 1)
            if r in last_dl_w and (isv or ismf or k in VM_KINDS or k in DS_KINDS): req(last_dl_w[r], 3)
        for r in (ins.rd | ins.wr):
            if r in last_mfma_w:
                p, ps, dst = last_mfma_w[r]
                big = 12 if ps == 8 else 8
                if ismf:
                    myps = 8 if k == 'mfma32' else 4
                    if r in ins.srcc:
                        if ins.srcc == dst and myps == ps and r not in (ins.rd - ins.srcc):
                            pass
                        else:
                            req(p, big - 2)
                    if r in ins.rd and r not in ins.srcc: req(p, big)
                    if r in ins.wr and r not in ins.rd: req(p, big - 2)
                elif isv or k in VM_KINDS or k in DS_KINDS:
                    req(p, big)
        if isv:
            for r in ins.wr:
                if r in last_mfma_c:
                    p, ps = last_mfma_c[r]; req(p, 7 if ps == 8 else 3)
                if r in last_dl_w: req(last_dl_w[r], 3)
        for r in ins.wr:
            if r in last_store: req(last_store[r], 2 if isv else 1)
        if k == 'dma': req(last_m0, 1)
        if need > 0:
            assert need <= 16
            out.append(I(f's_nop {need - 1}')); pos += need
            if stats is not None:
                stats['nops'] = stats.get('nops', 0) + need
                stats.setdefault('nop_sites', []).append((need, ins.text))
        out.append(ins)
        if isv:
            for r in ins.wr:
                last_valu_w[r] = pos
                last_mfma_w.pop(r, None)
                if k == 'trans': last_trans_w[r] = pos
                else: last_trans_w.pop(r, None)
                if ins.op.startswith('v_dot2'): last_dl_w[r] = pos
                else: last_dl_w.pop(r, None)
        elif ismf:
            ps = 8 if k == 'mfma32' else 4
            for r in ins.wr:
                last_mfma_w[r] = (pos, ps, frozenset(ins.wr)); last_valu_w.pop(r, None)
            for r in ins.srcc: last_mfma_c[r] = (pos, ps)
        else:
            for r in ins.wr:
                last_valu_w.pop(r, None)
        if ('x', 'm0') in ins.wr: last_m0 = pos
        if k == 'vstore' and ins.wide:
            for r in regs_of(ins.text.split(None, 1)[1].split(',')[0]): last_store[r] = pos
        pos += ins.cost if k == 'nop' else 1
    return out


class Stream:
    def __init__(self, name, items=None, start=0, rate=99):
        self.name = name; self.items = list(items or []); self.start = start; self.rate = rate
        self.idx = 0; self.last_step = -10**9

    def add(self, x, **kw):
        if isinstance(x, str):
            for line in x.split('\n'):
                if line.strip(): self.items.append(I(line.strip(), **kw)); kw.pop('gap', None)
        elif isinstance(x, list):
            self.items.extend(x)
        else:
            self.items.append(x)
        return self

    def done(self):
        return self.idx >= len(self.items)


class Step:
    def __init__(self, mf, pre=None, post=None, cap=None):
        self.mf = mf; self.pre = list(pre or []); self.post = list(post or [])
        self.cap = cap


def schedule(steps, streams, base=0, overfill=None, log=None):
    out = []
    for n, st in enumerate(steps):
        g = base + n
        out.extend(st.pre)
        used = sum(i.cost for i in st.pre)
        cap = st.cap if st.cap is not None else (8 if st.mf.kind == 'mfma32' else 4)
        out.append(st.mf); used += st.mf.cost
        out.extend(st.post); used += sum(i.cost for i in st.post)
        progress = True
        taken = {}
        while progress:
            progress = False
            for s in streams:
                if s.done() or g < s.start: continue
                it = s.items[s.idx]
                if it.gap and g < s.last_step + it.gap: continue
                if taken.get(s.name, 0) >= s.rate: continue
                j = s.idx + 1
                while j < len(s.items) and s.items[j].glue: j += 1
                grp = s.items[s.idx:j]
                c = sum(x.cost for x in grp)
                extra = sum((8 if x.kind == 'mfma32' else 4) for x in grp if x.kind in ('mfma32', 'mfma16'))
                if used + c > cap + extra and not (overfill and overfill(s, g, used, cap)): continue
                out.extend(grp); used += c; cap += extra
                s.idx = j; s.last_step = g; taken[s.name] = taken.get(s.name, 0) + c
                progress = True
                break
        if log is not None: log.append((g, used, cap))
    return out


def flush(stream):
    r = stream.items[stream.idx:]
    stream.idx = len(stream.items)
    return r


def estimate(prog):
    t = 0; pipe = 0
    for i in prog:
        if i.kind in ('mfma32', 'mfma16'):
            t = max(t, pipe); pipe = t + (32 if i.kind == 'mfma32' else 16); t += 8
        elif i.kind == 'valu_pk':
            t = max(t, pipe) + 4
        else:
            t += 4 * i.cost
    return max(t, pipe)
```

```python
import sys, os
sys.path.insert(0, os.path.dirname(os.path.abspath(__file__)))
from asmlib import *

NAME = 'recurrent_scan__linear_kernel_hedgehog__dense_activation_relu__prompt'

SLOT = 36864
E = 147456
E2 = E + 5120
RSA = E + 12288
DUMMY = E + 0x3800
OUTB = 8192
OOB = 0x80000000
FL_H, FL_KV, FL_O, FL_Y = 0x0, 0x8000, 0x9000, 0x10000
WS_KV, WS_OM, WS_OX, WS_Y, WS_H, WS_TS, WS_DUMP = 0x20000, 0x200000, 0x400000, 0x500000, 0x1000000, 0x3000000, 0x4000000
WS_SIZE = 268435456
X, QKV, PHI, WO, W1, W2, OUT, DBG, WS = 4, 8, 12, 16, 20, 24, 28, 32, 36
srd = lambda n: f's[{n}:{n+3}]'
SIZES = {X: 2359296, QKV: 1990656, PHI: 20736, WO: 663552, W1: 5308416, W2: 5308416, OUT: 2359296, DBG: 256, WS: WS_SIZE}
KOFF = {X: 0, QKV: 8, PHI: 16, WO: 24, W1: 40, W2: 48, OUT: 56, DBG: 64, WS: 72}
soW1, soQ, soW2 = 40, 49, 58
sW, sR, sJ, sQ, sJJ, sWL, sXB = 67, 68, 69, 70, 71, 72, 73
sHown, sHp = 74, 75
sKVown, sKVj, sOMown, sOXown, sOMc, sOXc, sYp, sYc = 78, 79, 80, 81, 82, 83, 84, 85
sFH, sFKV, sFO, sFY = 86, 87, 88, 89
sT0, sT1, sT2, sT3 = 90, 91, 92, 93
sL2E, sWO = 94, 95
sM = 96
sHH = 98
sSPIN = 100
sGW = 66
sT4 = 101
vL16 = 1
vA = 2
vW1 = 11
vQ = 12
vS = 16
vP = 19
vF0, vONE, vRS = 22, 23, 24
vT = 25
ACC = (32, 48)
vH = 64
RING = 144
aPHI = 184
PARK0 = 208

LOG2E = 0x3fb8aa3b


class Cfg:
    rot = 1
    order = ['G', 'Ta', 'Tb', 'Tc', 'Td', 'G', 'G', 'G', 'G', 'G', 'G', 'G', 'G']
    D = 5
    we = 2
    Dh = 10
    NBf = 10
    leadH = 3
    flagA = 4
    ps = 5
    ts = False
    spin = 20000
    stop = None
    pref = True
    skip = ''
    pfA = 2
    pfB = 1
    pfW2 = 5
    pfWO = 15
    pfH = 1

    def __init__(self, **kw):
        for k, v in kw.items():
            assert hasattr(self, k), k
            setattr(self, k, v)


def L(text, **kw):
    r = []
    for line in text.split('\n'):
        line = line.strip()
        if line:
            r.append(I(line, **kw)); kw.pop('gap', None)
    return r


def glue(lst):
    for x in lst[1:]: x.glue = True
    return lst


class Gen:
    def __init__(self, cfg):
        self.c = cfg
        self.p = []
        self.slow = []
        self.park = {}
        self.nts = 0
        self.notes = []

    def E(self, x, **kw):
        if isinstance(x, str): self.p.extend(L(x, **kw))
        elif isinstance(x, list): self.p.extend(x)
        else: self.p.append(x)

    def parkw(self, name, v):
        a = PARK0 + len(self.park); assert a < 256
        self.park[name] = a
        self.E(f'v_accvgpr_write_b32 a{a}, v{v}')

    def unpark(self, name, v):
        return I(f'v_accvgpr_read_b32 v{v}, a{self.park[name]}')

    def stamp(self, name=''):
        if not self.c.ts: return []
        k = self.nts; self.nts += 1; self.notes.append(name); assert k < 58
        return glue(L(f's_memtime s[0:1]\ns_waitcnt lgkmcnt(0)\nv_writelane_b32 v{vONE}, s0, {k+1}'))

    @staticmethod
    def rng(base_reg, off):
        for k, b in ((0, 0), (1, 55296), (2, 110592)):
            if b <= off and off - b <= 65535 - 512:
                return base_reg + k, off - b
        raise AssertionError(off)

    def poll(self, name, srdn, vaddr, soff, expect, reg):
        ld = f'buffer_load_dword v{reg}, v{vaddr}, {srd(srdn)}, {soff} offen sc1'
        chk = [W(name)] + L(f'v_cmp_ne_u32 vcc, {expect}, v{reg}\ns_cbranch_vccnz SLOW_{name}\nBACK_{name}:')
        self.slow.append(f'''SLOW_{name}:
s_mov_b32 s{sSPIN}, 0
LOOP_{name}:
{ld}
s_add_u32 s{sSPIN}, s{sSPIN}, 1
s_waitcnt vmcnt(0)
v_cmp_ne_u32 vcc, {expect}, v{reg}
s_nop 1
s_cbranch_vccz BACK_{name}
s_cmp_lt_u32 s{sSPIN}, {self.c.spin}
s_cbranch_scc1 LOOP_{name}
s_branch BACK_{name}''')
        return I(ld, tok=name), glue(chk)

    def plan_slots(self):
        c = self.c
        n = 13 + 9 + 4
        logical = {}
        for i in range(4): logical[i] = i
        loadp = {}
        free = []
        stag = None
        nxt = 4
        for p in range(1, 23):
            free.append(logical[p - 1])
            if p == c.ps:
                stag = free.pop(0); continue
            if p == c.ps + 2: free.append(stag)
            while free and nxt < n and nxt <= p + 3:
                logical[nxt] = free.pop(0); loadp[nxt] = p; nxt += 1
        assert nxt == n, (nxt, loadp)
        perm = {logical[22 + g]: g for g in range(4)}
        self.slot = {i: perm[logical[i]] * SLOT for i in logical}
        self.slotS = perm[stag] * SLOT
        self.loadp = loadp

    def dma_item(self, i):
        c = self.c
        out = []
        tok = f'T{i}'
        pre = []
        if i < 13:
            kind = c.order[i]
            if kind == 'G':
                tau = c.order[:i].count('G')
                va = lambda k: vW1; R = W1; so = lambda k: f's{soW1+k}'
                if tau > 0: pre = L(f'v_add_u32 v{vW1}, 64, v{vW1}')
            else:
                vq = vQ + ['Ta', 'Tb', 'Tc', 'Td'].index(kind)
                va = lambda k: vq; R = QKV; so = lambda k: f's{soQ+k}'
        elif i < 22:
            va = lambda k: vA + k; R = W2; so = lambda k: f's{soW2+i-13}'
        else:
            va = lambda k: vA + k; R = WO; so = lambda k: f's{sWO}'
            if i > 22: pre = L(f's_add_u32 s{sWO}, s{sWO}, {128*1152}')
        if pre: out.append(pre)
        for k in range(9):
            if k % 4 == 0:
                out.append(L(f's_add_u32 m0, s{sWL}, {self.slot[i] + k*1024}'))
            out.append([I(f'buffer_load_dwordx4 v{va(k)}, {srd(R)}, {so(k)} offen offset:{(k%4)*1024} lds', tok=tok)])
        return out

    def prologue(self):
        c = self.c; E_ = self.E
        if c.ts: E_('s_memrealtime s[90:91]\ns_memtime s[92:93]')
        E_('s_cmp_ge_u32 s2, 256\ns_cbranch_scc1 L_end')
        for R in (X, W1, QKV, WS, PHI, W2, WO, OUT, DBG):
            E_(f's_load_dwordx2 s[{R}:{R+1}], s[0:1], {KOFF[R]}')
        if c.pref:
            E_('s_getpc_b64 s[40:41]\nPCREF:\ns_mov_b32 s42, CODE_END-PCREF\ns_mov_b32 s43, 0x20000')
            E_('s_lshr_b32 s3, s2, 3\nv_lshlrev_b32 v25, 5, v0\nv_add_u32 v25, s3, v25\nv_lshlrev_b32 v25, 7, v25')
            E_('buffer_load_dword v63, v25, s[40:43], 0 offen', tok='pref')
        E_(f'v_lshrrev_b32 v26, 6, v0\nv_and_b32 v25, 63, v0\nv_lshlrev_b32 v{vL16}, 4, v25')
        E_(f'v_readfirstlane_b32 s{sW}, v26')
        E_(f's_and_b32 s3, s2, 1\ns_lshl_b32 s3, s3, 3\ns_lshr_b32 s{sR}, s2, 5\ns_add_u32 s{sR}, s{sR}, s3')
        E_(f's_bfe_u32 s{sQ}, s2, 0x20001\ns_bfe_u32 s{sJJ}, s2, 0x20003\ns_lshl_b32 s{sJ}, s{sQ}, 2\ns_add_u32 s{sJ}, s{sJ}, s{sJJ}')
        E_(f's_mul_i32 s{sWL}, s{sW}, 9216')
        E_(f's_lshl_b32 s3, s{sR}, 2\ns_add_u32 s3, s3, s{sW}\ns_mul_i32 s{sXB}, s3, 36864')
        for R in SIZES:
            E_(f's_mov_b32 s{R+2}, {SIZES[R]}\ns_mov_b32 s{R+3}, 0x20000')
        for i in range(9):
            E_(f'v_add_u32 v26, {64*i}, v25' if i else 'v_mov_b32 v26, v25')
            E_(f'v_mul_u32_u24 v27, 3641, v26\nv_lshrrev_b32 v27, 16, v27\nv_mul_u32_u24 v27, 864, v27\nv_lshl_add_u32 v{vA+i}, v26, 4, v27')
            if i % 4: E_(f'v_subrev_u32 v{vA+i}, {(i%4)*1024}, v{vA+i}')
        rot = {0: None, 1: sJJ, 2: sQ}[c.rot]
        for sg in range(4):
            if rot is None: E_(f's_add_u32 s{58+sg}, s{sXB}, {288*sg}')
            else: E_(f's_add_u32 s3, s{rot}, {sg}\ns_and_b32 s3, s3, 3\ns_mul_i32 s3, s3, 288\ns_add_u32 s{58+sg}, s{sXB}, s3')
        E_(f's_lshr_b32 s3, s2, 3\ns_lshl_b32 s3, s3, 2\ns_add_u32 s{sGW}, s3, s{sW}')
        pfa = L(f's_lshr_b32 s62, s{sGW}, 1\ns_and_b32 s63, s{sGW}, 1\ns_mul_i32 s64, s62, {9*9216}\ns_mul_i32 s3, s63, 1152\ns_add_u32 s64, s64, s3\ns_mul_i32 s3, s{sQ}, 2304\ns_add_u32 s64, s64, s3')
        pfa += L('v_lshrrev_b32 v32, 1, v25\nv_mul_u32_u24 v32, 9216, v32\nv_and_b32 v33, 1, v25\nv_lshl_add_u32 v32, v33, 9, v32')
        pfa += L(f's_mul_i32 s3, s63, 41\nv_add_u32 v33, s3, v25\nv_min_u32 v33, 80, v33\nv_mul_u32_u24 v34, 7282, v33\nv_lshrrev_b32 v34, 16, v34\nv_mul_u32_u24 v35, 9, v34\nv_sub_u32 v33, v33, v35')
        pfa += L('v_mul_u32_u24 v35, 86, v33\nv_lshrrev_b32 v35, 8, v35\nv_mul_u32_u24 v34, 3456, v34\nv_lshl_add_u32 v34, v33, 7, v34\nv_mul_u32_u24 v35, 768, v35\nv_add_u32 v33, v34, v35')
        pfa += L(f's_mul_i32 s65, s62, {9*3456}\ns_mul_i32 s3, s{sQ}, 288\ns_and_b32 s3, s3, 0xffffff80\ns_add_u32 s65, s65, s3')
        pfa += L(f's_mov_b64 exec, 0x3ffff\nbuffer_load_dword a255, v32, {srd(W1)}, s64 offen\ns_mov_b32 exec_lo, -1\ns_mov_b32 exec_hi, 0x1ff\nbuffer_load_dword a254, v33, {srd(QKV)}, s65 offen\ns_mov_b64 exec, -1')
        pfb = L('v_min_u32 v36, 62, v25\nv_mul_u32_u24 v34, 9363, v36\nv_lshrrev_b32 v34, 16, v34\nv_mul_u32_u24 v35, 7, v34\nv_sub_u32 v35, v36, v35\nv_mul_u32_u24 v34, 9216, v34')
        pfb += L('v_cmp_le_u32 vcc, 3, v35\nv_lshl_add_u32 v34, v35, 7, v34\nv_mov_b32 v35, 128\nv_mov_b32 v36, 256\nv_cndmask_b32 v35, v35, v36, vcc\nv_add_u32 v62, v34, v35\nv_add_u32 v62, s64, v62')
        self.pfb_ld = L(f'buffer_load_dword a253, v62, {srd(W1)}, 0 offen')
        E_('s_waitcnt lgkmcnt(0)')
        if c.pfA == 1: E_(pfa)
        for sg in range(4):
            for k in range(9):
                if k % 4 == 0: E_(f's_add_u32 m0, s{sWL}, {self.slot[sg] + k*1024}')
                E_(I(f'buffer_load_dwordx4 v{vA+k}, {srd(X)}, s{58+sg} offen offset:{(k%4)*1024} lds', tok=f'x{sg}'))
            if c.pfA == 2 and sg == 0: E_(pfa)
        if c.pfA == 3: E_(pfa)
        if c.pfA == 0 and c.pfB: E_(pfa[:7])
        if c.pfB: E_(pfb)
        if c.pfB == 1: E_(self.pfb_ld)
        E_(f'v_mov_b32 v{vONE}, 1')
        if c.ts: E_(f'v_writelane_b32 v{vONE}, s90, 60\nv_writelane_b32 v{vONE}, s92, 61')
        E_(self.stamp('xiss'))
        l, t, hh, n, g, r4, c4, tb = 25, 32, 33, 34, 35, 36, 37, 38
        a, b, d = 39, 40, 41
        E_(f'v_and_b32 v{t}, 31, v{l}\nv_lshrrev_b32 v{hh}, 5, v{l}\nv_and_b32 v{n}, 15, v{l}\nv_lshrrev_b32 v{g}, 4, v{l}')
        E_(f'v_bfe_u32 v{r4}, v{l}, 2, 2\nv_and_b32 v{c4}, 3, v{l}\nv_bfe_u32 v{tb}, v{l}, 4, 1')
        E_(f's_mov_b32 s{sHH}, 0\ns_mov_b32 s{sHH+1}, -1\ns_mov_b32 s{sL2E}, {LOG2E}')
        E_(f'v_mov_b32 v{a}, {OOB}\nv_cmp_eq_u32 vcc, 0, v{l}\nv_cndmask_b32 v{vF0}, v{a}, v{l}, vcc')
        if rot is None: E_(f's_mov_b32 s3, s{sW}')
        else: E_(f's_add_u32 s3, s{sW}, s{rot}\ns_and_b32 s3, s3, 3')
        E_(f's_mul_i32 s{sT0}, s3, {144*9216}\ns_mul_i32 s{sT1}, s{sJ}, 576\ns_add_u32 s{sT0}, s{sT0}, s{sT1}')
        E_(f's_mul_i32 s{sT2}, s3, {144*3456}\ns_mul_i32 s{sT1}, s{sJ}, 72\ns_add_u32 s{sT2}, s{sT2}, s{sT1}')
        for k in range(9):
            E_(f's_add_u32 s{soW1+k}, s{sT0}, {k*16*9216 - (k%4)*1024}')
            E_(f's_add_u32 s{soQ+k}, s{sT2}, {k*16*3456 - (k%4)*1024}')
        E_(f'v_lshrrev_b32 v{a}, 2, v{l}\nv_lshlrev_b32 v{b}, 4, v{c4}')
        E_(f'v_mul_u32_u24 v{d}, 9216, v{a}\nv_add_u32 v{vW1}, v{d}, v{b}')
        E_(f'v_mul_u32_u24 v{d}, 3456, v{a}\nv_add_u32 v{vQ+3}, v{d}, v{b}\nv_add_u32 v{vQ}, 1152, v{vQ+3}\nv_add_u32 v{vQ+2}, 2304, v{vQ+3}')
        E_(f'v_mov_b32 v{a}, 1216\nv_mov_b32 v{b}, 2360\nv_cmp_eq_u32 vcc, 1, v{c4}\nv_cndmask_b32 v{a}, v{a}, v{b}, vcc')
        E_(f'v_cmp_eq_u32 vcc, 2, v{c4}\nv_cndmask_b32 v{a}, v{a}, 64, vcc')
        E_(f'v_mov_b32 v{b}, {OOB}\nv_cmp_eq_u32 vcc, 3, v{c4}\nv_cndmask_b32 v{a}, v{a}, v{b}, vcc\nv_add_u32 v{vQ+1}, v{a}, v{d}')
        E_(f's_lshl_b32 s3, s{sR}, 4\ns_add_u32 s3, s3, s{sJ}\ns_lshl_b32 s3, s3, 2\ns_add_u32 s3, s3, s{sW}\ns_mul_i32 s3, s3, 18432\ns_add_u32 s{sHown}, s3, {WS_H}')
        E_(f's_lshl_b32 s3, s{sR}, 2\ns_add_u32 s3, s3, s{sQ}\ns_lshl_b32 s3, s3, 2\ns_add_u32 s3, s3, s{sW}\ns_lshl_b32 s3, s3, 7')
        E_(f's_lshl_b32 s{sT0}, s{sJJ}, 2\ns_add_u32 s{sFH}, s3, s{sT0}')
        E_(f's_lshl_b32 s3, s{sR}, 2\ns_add_u32 s3, s3, s{sW}')
        E_(f's_lshl_b32 s{sT0}, s{sJ}, 6\ns_add_u32 s{sT0}, s{sT0}, s3\ns_lshl_b32 s{sT0}, s{sT0}, 2\ns_add_u32 s{sFKV}, s{sT0}, {FL_KV}')
        E_(f's_lshl_b32 s{sT0}, s3, 5\ns_add_u32 s{sT0}, s{sT0}, s{sJ}\ns_lshl_b32 s{sT0}, s{sT0}, 2\ns_add_u32 s{sFO}, s{sT0}, {FL_O}')
        E_(f's_lshl_b32 s{sT0}, s3, 4\ns_add_u32 s{sT0}, s{sT0}, s{sJ}\ns_lshl_b32 s{sT0}, s{sT0}, 11\ns_add_u32 s{sOMown}, s{sT0}, {WS_OM}')
        E_(f's_lshl_b32 s{sT0}, s3, 12\ns_lshr_b32 s{sT1}, s{sJ}, 3\ns_lshl_b32 s{sT1}, s{sT1}, 11\ns_add_u32 s{sT0}, s{sT0}, s{sT1}')
        E_(f's_lshl_b32 s{sT1}, s{sJJ}, 9\ns_add_u32 s{sT0}, s{sT0}, s{sT1}\ns_and_b32 s{sT1}, s{sQ}, 1\ns_lshl_b32 s{sT1}, s{sT1}, 3\ns_add_u32 s{sT0}, s{sT0}, s{sT1}\ns_add_u32 s{sOXown}, s{sT0}, {WS_OX}')
        E_(f's_lshl_b32 s3, s{sR}, 2\ns_add_u32 s3, s3, s{sJJ}\ns_lshl_b32 s3, s3, 2')
        E_(f's_add_u32 s{sT0}, s3, s{sW}\ns_lshl_b32 s{sT1}, s{sT0}, 5\ns_add_u32 s{sT1}, s{sT1}, s{sQ}\ns_lshl_b32 s{sT1}, s{sT1}, 2\ns_add_u32 s{sFY}, s{sT1}, {FL_Y}')
        E_(f's_lshl_b32 s{sT0}, s{sT0}, 2\ns_add_u32 s{sT0}, s{sT0}, s{sQ}\ns_mul_i32 s{sT0}, s{sT0}, 10240\ns_add_u32 s{sYp}, s{sT0}, {WS_Y}')
        E_(f's_add_u32 s{sT0}, s3, s{sQ}\ns_mul_i32 s{sT0}, s{sT0}, 40960\ns_and_b32 s{sT1}, s{sW}, 1\ns_mul_i32 s{sT1}, s{sT1}, 5120\ns_add_u32 s{sT0}, s{sT0}, s{sT1}')
        E_(f's_lshr_b32 s{sT1}, s{sW}, 1\ns_lshl_b32 s{sT1}, s{sT1}, 11\ns_add_u32 s{sT0}, s{sT0}, s{sT1}\ns_add_u32 s{sYc}, s{sT0}, {WS_Y}')
        E_(f'v_mov_b32 v44, 0\nv_mov_b32 v45, 0\nv_mov_b32 v46, 0\nv_mov_b32 v47, 0')
        E_(f'buffer_store_dword v44, v{vF0}, {srd(WS)}, s{sFH} offen sc1', tok='clr')
        E_(f'buffer_store_dword v44, v{vF0}, {srd(WS)}, s{sFH} offen offset:16 sc1', tok='clr')
        for s_ in (sFKV, sFO, sFY):
            E_(f'buffer_store_dword v44, v{vF0}, {srd(WS)}, s{s_} offen sc1', tok='clr')
        E_(f'v_lshlrev_b32 v{a}, 4, v0\nv_add_u32 v{a}, {E}, v{a}')
        self.parkw('zf', a)
        for k in range(3): E_(f'ds_write_b128 v{a}, v[44:47] offset:{4096*k}', tok='zf0')
        h_, d_, a5, col = 42, 43, 44, 45
        E_(f'v_mul_u32_u24 v{h_}, 729, v0\nv_lshrrev_b32 v{h_}, 16, v{h_}\nv_mul_u32_u24 v{a}, 90, v{h_}\nv_sub_u32 v{a}, v0, v{a}')
        E_(f'v_mul_u32_u24 v{d_}, 205, v{a}\nv_lshrrev_b32 v{d_}, 10, v{d_}\nv_mul_u32_u24 v{b}, 5, v{d_}\nv_sub_u32 v{a5}, v{a}, v{b}')
        E_(f'v_mul_u32_u24 v{a}, 648, v{h_}\nv_mul_u32_u24 v{b}, 36, v{d_}\nv_add_u32 v{a}, v{a}, v{b}\nv_lshl_add_u32 v{a}, v{a5}, 3, v{a}')
        E_(f's_mul_i32 s3, s{sJ}, 1296\nv_add_u32 v{a}, s3, v{a}')
        E_(f'v_mov_b32 v{b}, {OOB}\nv_cmp_gt_u32 s[{sM}:{sM+1}], 180, v0' if False else f'v_mov_b32 v{b}, {OOB}\nv_cmp_gt_u32 vcc, 180, v0')
        E_(f'v_cndmask_b32 v{a}, v{b}, v{a}, vcc')
        E_(f'buffer_load_dword v28, v{a}, {srd(PHI)}, 0 offen', tok='wphi')
        E_(f'buffer_load_dword v29, v{a}, {srd(PHI)}, 0 offen offset:4', tok='wphi')
        E_(f'v_mul_u32_u24 v{col}, 18, v{h_}\nv_add_u32 v{col}, v{col}, v{d_}')
        E_(f'v_and_b32 v{a}, 0x33, v{col}\nv_and_b32 v{b}, 4, v{col}\nv_lshl_or_b32 v{a}, v{b}, 1, v{a}\nv_bfe_u32 v{b}, v{col}, 3, 1\nv_lshl_or_b32 v{a}, v{b}, 2, v{a}')
        self.image_addr(a, h_, a5, 30, 31, 46, 47, 'v0', 180)
        E_(f'v_lshl_add_u32 v{a}, v{hh}, 3, v{r4}')
        E_(f'v_lshlrev_b32 v{b}, 6, v{a}\nv_lshl_add_u32 v{d}, v{tb}, 5, v{b}\nv_lshl_add_u32 v{vS}, v{c4}, 3, v{d}')
        E_(f'v_add_u32 v{vS+1}, 55296, v{vS}\nv_add_u32 v{vS+2}, 110592, v{vS}')
        E_(f'v_lshl_add_u32 v{d}, v{tb}, 3, v{b}\nv_lshrrev_b32 v44, 1, v{c4}\nv_lshl_add_u32 v{d}, v44, 5, v{d}\nv_and_b32 v44, 1, v{c4}\nv_lshl_add_u32 v{vP}, v44, 4, v{d}')
        E_(f'v_add_u32 v{vP+1}, 55296, v{vP}\nv_add_u32 v{vP+2}, 110592, v{vP}')
        E_(f'v_lshlrev_b32 v{b}, 5, v{a}\nv_lshl_add_u32 v{b}, v{c4}, 3, v{b}\nv_mul_u32_u24 v{d}, 2688, v{tb}\nv_add_u32 v{b}, v{b}, v{d}\nv_add_u32 v{b}, {E2}, v{b}')
        self.parkw('Ex', b)
        E_(f'v_bfe_u32 v{a}, v{l}, 2, 1\nv_cmp_eq_u32 vcc, v{a}, v{hh}\nv_and_b32 v{b}, 1, v{l}\nv_lshlrev_b32 v{b}, 4, v{b}\nv_mov_b32 v{d}, 0x3f80\nv_lshlrev_b32 v{b}, v{b}, v{d}')
        E_(f'v_cndmask_b32 v{b}, 0, v{b}, vcc\nv_cmp_eq_u32 vcc, 0, v{tb}\nv_bfe_u32 v{a}, v{l}, 3, 1\nv_bfe_u32 v{d}, v{l}, 1, 1\nv_cndmask_b32 v{b}, 0, v{b}, vcc\nv_lshl_add_u32 v{a}, v{a}, 1, v{d}')
        for k in range(4):
            E_(f'v_cmp_eq_u32 vcc, {k}, v{a}\ns_nop 1\nv_cndmask_b32 v{48+k}, 0, v{b}, vcc')
        E_(f'v_mul_u32_u24 v{a}, 288, v{t}\nv_lshl_add_u32 v{a}, v{hh}, 4, v{a}\nv_add_u32 v26, s{sWL}, v{a}\nv_add_u32 v27, 73728, v26')
        for k in range(8): E_(f'v_mov_b32 v{52+k}, 0')
        E_(f's_mov_b32 s{sT4}, 0x3f803f80')
        later = self.prologue_later(l, t, hh, n, g, r4, c4, tb, a, b, d)
        nl = len(later)
        for sg in range(4):
            E_(self.stamp(f'pre{sg}'))
            E_(W(f'x{sg}'))
            E_(self.stamp(f'x{sg}'))
            for k in range(9):
                off = self.slot[sg] + 32 * k
                base, o = (26, off) if off < 65536 else (27, off - 73728)
                assert 0 <= o < 65536
                E_(I(f'ds_read_b128 v[{64+36*sg+4*k}:{64+36*sg+4*k+3}], v{base} offset:{o}', tok=f'xr{sg}'))
            dots = []
            for k in range(36):
                xr = 64 + 36 * sg + k
                dots.append(I(f'v_dot2c_f32_bf16 v{52+(k&3)}, s{sT4}, v{xr}'))
                dots.append(I(f'v_dot2c_f32_bf16 v{56+(k&3)}, v{xr}, v{xr}'))
            dm = [x for grp in self.dma_item(sg) for x in grp]
            E_(dots[:40]); E_(W(f'xr{sg}'))
            rest = dots[40:]
            for k, x in enumerate(dm):
                E_(x); E_(rest[2*k:2*k+2])
            E_(rest[2*len(dm):])
            if sg == 3 and c.pfB == 2: E_(self.pfb_ld)
            E_(self.stamp(f'dot{sg}'))
            if sg < 3:
                E_(later[nl * sg // 3: nl * (sg + 1) // 3])
        E_('v_add_f32 v52, v52, v53\nv_add_f32 v54, v54, v55\nv_add_f32 v56, v56, v57\nv_add_f32 v58, v58, v59\nv_add_f32 v52, v52, v54\nv_add_f32 v56, v56, v58')
        E_('v_mov_b32 v53, v52\nv_mov_b32 v57, v56\nv_permlane32_swap_b32 v52, v53\nv_permlane32_swap_b32 v56, v57')
        E_('v_add_f32 v52, v52, v53\nv_add_f32 v56, v56, v57')
        inv = 0x3ae38e39
        E_(f'v_mul_f32 v52, {inv}, v52\nv_cvt_pk_bf16_f32 v53, v52, v52\nv_and_b32 v53, 0xffff0000, v53\nv_xor_b32 v208, 0x80000000, v53')
        for k in range(1, 8): E_(f'v_mov_b32 v{208+k}, v208')
        self.conv_mf = lambda s: I(f'v_mfma_f32_32x32x16_bf16 v[{224+16*(s&1)}:{239+16*(s&1)}], v[48:51], v[{64+4*s}:{67+4*s}], v[208:223]')
        E_(self.conv_mf(0)); E_(self.conv_mf(1))
        E_(f'v_mul_f32 v56, {inv}, v56\nv_fma_f32 v56, -v52, v52, v56\nv_max_f32 v56, 0, v56\nv_cvt_pk_bf16_f32 v56, v56, v56\nv_and_b32 v56, 0xffff0000, v56')
        E_(f'v_add_f32 v56, 0x3727c5ac, v56\nv_cvt_pk_bf16_f32 v56, v56, v56\nv_and_b32 v56, 0xffff0000, v56\nv_sqrt_f32 v56, v56')
        E_(f'v_cvt_pk_bf16_f32 v56, v56, v56\nv_and_b32 v56, 0xffff0000, v56\nv_rcp_f32 v{vRS}, v56')
        E_(self.unpark('rsw', 25))
        E_(I(f'ds_write_b32 v25, v{vRS}', tok='rsw'))
        E_(self.conv_cvt(0))

    def conv_cvt(self, s):
        D = 224 + 16 * (s & 1); xr = 64 + 4 * s
        r = [I(f'v_cvt_pk_bf16_f32 v{xr+k}, v{D+2*k}, v{D+2*k+1}') for k in range(4)]
        r += [I(f'v_accvgpr_write_b32 a{4*s+k}, v{xr+k}') for k in range(4)]
        return r

    def image_addr(self, rho, h_, cc, o1, o2, t1, t2, idx, lim, add=None):
        E_ = self.E
        E_(f'v_lshlrev_b32 v{t1}, 6, v{rho}\nv_lshl_add_u32 v{t1}, v{cc}, 4, v{t1}\nv_lshl_add_u32 v{t1}, v{h_}, 3, v{t1}\nv_add_u32 v{t1}, {E}, v{t1}')
        E_(f'v_lshlrev_b32 v{t2}, 5, v{rho}\nv_lshl_add_u32 v{t2}, v{h_}, 4, v{t2}\nv_add_u32 v{t2}, {E2}, v{t2}')
        E_(f'v_cmp_gt_u32 vcc, 4, v{cc}\ns_nop 1\nv_cndmask_b32 v{o1}, v{t2}, v{t1}, vcc\nv_add_u32 v{t2}, {2688+8}, v{t2}\nv_cndmask_b32 v{o2}, v{t2}, v{t1}, vcc')
        if add is not None:
            E_(f'v_add_u32 v{o1}, v{o1}, v{add}\nv_add_u32 v{o2}, v{o2}, v{add}')
        if lim is not None:
            E_(f'v_mov_b32 v{t1}, {DUMMY}\nv_cmp_gt_u32 vcc, {lim}, {idx}\ns_nop 1\nv_cndmask_b32 v{o1}, v{t1}, v{o1}, vcc\nv_cndmask_b32 v{o2}, v{t1}, v{o2}, vcc')

    def prologue_later(self, l, t, hh, n, g, r4, c4, tb, a, b, d):
        save = self.p; self.p = []
        E_ = self.E; c = self.c
        e1, e2, e3, e4 = 42, 43, 44, 45
        E_(f's_lshl_b32 s3, s{sW}, 7\ns_add_u32 s3, s3, {RSA}\nv_lshlrev_b32 v{a}, 2, v{t}\nv_add_u32 v{a}, s3, v{a}')
        self.parkw('rsw', a)
        E_(f's_and_b32 s{sT2}, s{sW}, 1\ns_lshr_b32 s{sT3}, s{sW}, 1')
        E_(f's_lshl_b32 s3, s{sT2}, 4\nv_add_u32 v{e4}, s3, v{n}')
        E_(f's_lshl_b32 s3, s{sQ}, 7\ns_add_u32 s3, s3, {RSA}\nv_lshlrev_b32 v{a}, 2, v{e4}\nv_add_u32 v{a}, s3, v{a}')
        self.parkw('rsr', a)
        E_(f's_mul_i32 s3, s{sW}, {32*232}\ns_add_u32 s3, s3, {self.slotS}\nv_mul_u32_u24 v{a}, 232, v{t}\nv_add_u32 v{a}, s3, v{a}')
        E_(f'v_mul_u32_u24 v{b}, 72, v{hh}\nv_add_u32 v{b}, v{a}, v{b}'); self.parkw('stP', b)
        E_(f'v_lshl_add_u32 v{b}, v{hh}, 3, v{a}'); self.parkw('stV1', b)
        E_(f'v_lshl_add_u32 v{b}, v{hh}, 4, v{a}'); self.parkw('stV2', b)
        E_(f'v_lshl_add_u32 v{b}, v{hh}, 5, v{a}'); self.parkw('stV3', b)
        E_(f'v_lshl_add_u32 v{e1}, v{g}, 2, v{r4}')
        E_(f'v_mul_u32_u24 v{a}, 232, v{e1}\nv_lshl_add_u32 v{a}, v{c4}, 3, v{a}')
        E_(f's_mul_i32 s{sT0}, s{sT2}, 32\ns_mul_i32 s{sT1}, s{sT3}, 48\ns_add_u32 s{sT0}, s{sT0}, s{sT1}\ns_mul_i32 s{sT1}, s{sT2}, s{sT3}\ns_mul_i32 s{sT1}, s{sT1}, 40\ns_sub_u32 s{sT0}, s{sT0}, s{sT1}\ns_add_u32 s{sT0}, s{sT0}, {144 + self.slotS}')
        E_(f'v_add_u32 v{b}, s{sT0}, v{a}'); self.parkw('kvA', b)
        E_(f's_mul_i32 s{sT0}, s{sT3}, 72\ns_add_u32 s{sT0}, s{sT0}, {self.slotS}\nv_add_u32 v{b}, s{sT0}, v{a}'); self.parkw('kvB', b)
        E_(f'v_mul_u32_u24 v{a}, 288, v{e1}\nv_lshl_add_u32 v{a}, v{c4}, 3, v{a}'); self.parkw('G', a)
        E_(f'v_mul_u32_u24 v{a}, 576, v{g}\nv_mov_b32 v{b}, 2304\nv_mov_b32 v{d}, {OOB}\nv_cmp_eq_u32 vcc, 0, v{g}\ns_nop 1\nv_cndmask_b32 v{b}, v{d}, v{b}, vcc')
        E_(f's_cmp_eq_u32 s{sT2}, 1\ns_cselect_b64 s[{sM}:{sM+1}], -1, 0\nv_cndmask_b32 v{a}, v{a}, v{b}, s[{sM}:{sM+1}]\nv_lshl_add_u32 v{a}, v{n}, 4, v{a}'); self.parkw('K0', a)
        E_(f'v_cmp_gt_u32 vcc, 4, v{n}\ns_nop 1\nv_cndmask_b32 v{a}, v{d}, v{a}, vcc'); self.parkw('K2', a)
        E_(f's_lshl_b32 s3, s{sJ}, 4\ns_mul_i32 s{sKVj}, s3, 6144\ns_add_u32 s{sKVj}, s{sKVj}, {WS_KV}\ns_mul_i32 s3, s{sR}, 6144\ns_add_u32 s{sKVown}, s{sKVj}, s3')
        E_(f's_mul_i32 s3, s{sT3}, 2880\ns_add_u32 s{sKVown}, s{sKVown}, s3')
        E_(f'v_lshlrev_b32 v{a}, 3, v0\nv_add_u32 v{a}, 4096, v{a}\nv_cmp_gt_u32 vcc, 208, v0\ns_nop 1\nv_cndmask_b32 v{a}, v{d}, v{a}, vcc'); self.parkw('kr2', a)
        for nm in ('a', 'b'):
            if nm == 'a': E_(f'v_mov_b32 v{e1}, v0')
            else: E_(f'v_lshrrev_b32 v{e1}, 1, v0\nv_add_u32 v{e1}, 256, v{e1}')
            E_(f'v_cmp_le_u32 vcc, 180, v{e1}\ns_nop 1\nv_cndmask_b32 v{e2}, 0, 1, vcc')
            E_(f'v_mul_u32_u24 v{a}, 180, v{e2}\nv_sub_u32 v{a}, v{e1}, v{a}\nv_mul_u32_u24 v{e3}, 1821, v{a}\nv_lshrrev_b32 v{e3}, 16, v{e3}')
            E_(f'v_mul_u32_u24 v{b}, 36, v{e3}\nv_sub_u32 v{a}, v{a}, v{b}')
            E_(f'v_lshrrev_b32 v{b}, 3, v{a}\nv_and_b32 v{a}, 7, v{a}\nv_lshl_add_u32 v{a}, v{b}, 4, v{a}\nv_lshl_add_u32 v{a}, v{e2}, 3, v{a}')
            if nm == 'a':
                self.image_addr(a, e2, e3, b, d, 46, 47, None, None)
            else:
                E_(f'v_and_b32 v{e1}, 1, v0\nv_lshlrev_b32 v{e1}, 2, v{e1}')
                self.image_addr(a, e2, e3, b, d, 46, 47, 'v0', 208, add=e1)
            self.parkw('im1' + nm, b); self.parkw('im2' + nm, d)
        E_(f'v_lshlrev_b32 v{a}, 4, v{t}\nv_lshl_add_u32 v{a}, v{hh}, 2, v{a}'); self.parkw('oxs', a)
        E_(f'v_and_b32 v{a}, 1, v{g}\nv_lshl_add_u32 v{b}, v{a}, 5, v{e4}\nv_lshlrev_b32 v{b}, 4, v{b}\nv_lshl_add_u32 v{b}, v{hh}, 10, v{b}'); self.parkw('omc', b)
        E_(f'v_lshlrev_b32 v{b}, 4, v{e4}\nv_lshl_add_u32 v{b}, v{g}, 9, v{b}'); self.parkw('oxc', b)
        E_(f's_lshl_b32 s3, s{sR}, 2\ns_add_u32 s3, s3, s{sQ}\ns_lshl_b32 s{sOMc}, s3, 15\ns_add_u32 s{sOMc}, s{sOMc}, {WS_OM}\ns_lshl_b32 s{sOXc}, s3, 12\ns_add_u32 s{sOXc}, s{sOXc}, {WS_OX}')
        E_(f's_lshl_b32 s{sT0}, s{sT3}, 7')
        E_(f'v_mul_u32_u24 v{b}, 20, v{a}\nv_lshl_add_u32 v{b}, v{hh}, 3, v{b}\nv_add_u32 v{b}, v{b}, v{r4}\nv_mul_u32_u24 v{b}, 288, v{b}\nv_lshl_add_u32 v{b}, v{c4}, 3, v{b}\nv_add_u32 v{b}, s{sT0}, v{b}'); self.parkw('Sm', b)
        E_(f'v_mul_u32_u24 v{b}, 36, v{g}\nv_add_u32 v{b}, v{b}, v{r4}\nv_add_u32 v{b}, 16, v{b}\nv_mul_u32_u24 v{b}, 288, v{b}\nv_lshl_add_u32 v{b}, v{c4}, 3, v{b}\nv_add_u32 v{b}, s{sT0}, v{b}'); self.parkw('Sx', b)
        E_(f'v_mul_u32_u24 v{b}, 288, v{e4}\nv_lshl_add_u32 v{b}, v{g}, 3, v{b}\nv_add_u32 v{b}, s{sT0}, v{b}'); self.parkw('Xt', b)
        E_(f's_lshl_b32 s3, s{sW}, 8\nv_add_u32 v{e1}, s3, v{l}')
        for i in range(4):
            E_(f'v_add_u32 v{a}, {64*i}, v{e1}' if i else f'v_mov_b32 v{a}, v{e1}')
            E_(f'v_mul_u32_u24 v{b}, 3641, v{a}\nv_lshrrev_b32 v{b}, 16, v{b}\nv_mul_u32_u24 v{b}, 864, v{b}\nv_lshl_add_u32 v{b}, v{a}, 4, v{b}')
            if i: E_(f'v_subrev_u32 v{b}, {1024*i}, v{b}')
            self.parkw(f'E{i}', b)
        E_(f's_min_u32 s3, s{sW}, 2\ns_add_u32 s3, s3, 15\ns_lshl_b32 s3, s3, 6\nv_add_u32 v{a}, s3, v{l}')
        E_(f'v_mul_u32_u24 v{b}, 3641, v{a}\nv_lshrrev_b32 v{b}, 16, v{b}\nv_mul_u32_u24 v{b}, 864, v{b}\nv_lshl_add_u32 v{b}, v{a}, 4, v{b}'); self.parkw('wrap', b)
        for k in range(3):
            E_(f's_add_u32 s3, s{sJJ}, {k+1}\ns_and_b32 s3, s3, 3\ns_sub_u32 s3, s3, s{sJJ}\ns_mul_i32 s3, s3, {4*18432}\ns_add_u32 s{sHp+k}, s{sHown}, s3')
        E_(f's_mul_i32 s{sT0}, s{sJJ}, 288\ns_mul_i32 s{sT1}, s{sQ}, {1152*1152}\ns_add_u32 s{sT0}, s{sT0}, s{sT1}')
        for u in range(9):
            dst = soW2 + u
            if u <= 2:
                E_(f's_add_u32 s3, s{sW}, {4*u}\ns_lshl_b32 s3, s3, 5\ns_mul_i32 s{sT1}, s{sJJ}, 288\ns_add_u32 s{dst}, s3, s{sT1}')
            if u >= 2:
                tgt = dst if u > 2 else sT2
                E_(f's_add_i32 s3, s{sW}, {4*u-9}\ns_mul_i32 s{sT1}, s3, 43\ns_lshr_b32 s{sT1}, s{sT1}, 7')
                E_(f's_mul_i32 s{sT3}, s{sT1}, 3\ns_sub_u32 s3, s3, s{sT3}\ns_add_u32 s3, s3, s{sJJ}\ns_add_u32 s3, s3, 1\ns_and_b32 s3, s3, 3')
                E_(f's_mul_i32 s3, s3, 288\ns_lshl_b32 s{sT1}, s{sT1}, 5\ns_add_u32 s{tgt}, s3, s{sT1}')
                if u == 2: E_(f's_cmp_eq_u32 s{sW}, 0\ns_cselect_b32 s{dst}, s{dst}, s{sT2}')
            E_(f's_mul_i32 s{dst}, s{dst}, 1152\ns_add_u32 s{dst}, s{dst}, s{sT0}')
        E_(f's_mul_i32 s3, s{sW}, {32*1152}\ns_mul_i32 s{sWO}, s{sJJ}, 288\ns_add_u32 s{sWO}, s{sWO}, s3')
        r = self.p; self.p = save
        return r

    def g1_reads(self, i, s):
        kind = self.c.order[i]
        base = vP if kind == 'G' else vS
        gs = 36 * i + s
        b = RING + 4 * (gs % (self.c.D + 2))
        off = self.slot[i] + 1024 * s
        r = []
        for k in range(2):
            reg, o = self.rng(base, off)
            r.append(I(f'ds_read_b64_tr_b16 a[{b+2*k}:{b+2*k+1}], v{reg} offset:{o+256*k}', tok=f'f{gs}'))
        return r

    def g2_half(self, u, hf):
        ct, ks, rd = hf >> 3, (hf >> 1) & 3, hf & 1
        f = 36 * u + 4 * ct + ks
        b = RING + 4 * ((f + self.ring0) % self.c.NBf) + 2 * rd
        reg, o = self.rng(self.vG, self.slot[13 + u] + ks * 9216 + rd * 4608 + ct * 32)
        return I(f'ds_read_b64_tr_b16 a[{b}:{b+1}], v{reg} offset:{o}', tok=f'g{f}')

    def g1_steps(self):
        c = self.c; D = c.D
        steps = []
        for i in range(13):
            acc = ACC[i & 1]
            for s in range(36):
                gs = 36 * i + s
                b = RING + 4 * (gs % (D + 2))
                cc = '0' if s == 0 else f'v[{acc}:{acc+15}]'
                mf = I(f'v_mfma_f32_32x32x16_bf16 v[{acc}:{acc+15}], a[{b}:{b+3}], a[{4*s}:{4*s+3}], {cc}')
                pre = []
                if gs % c.we == 0:
                    pre = [W(*[f'f{x}' for x in range(gs, min(gs + c.we, 468))])]
                post = []
                ns = s + D
                if ns < 36: post += self.g1_reads(i, ns)
                elif i < 12: post += self.g1_reads(i + 1, ns - 36)
                else:
                    k = ns - 36
                    lo = c.Dh * k // D; hi = c.Dh * (k + 1) // D
                    post += [self.g2_half(0, h) for h in range(lo, hi)]
                if ns == 35:
                    post += [W(f'T{i+1}', *self.bar_need.get(i, []))] + L('s_barrier')
                cap = None
                if i == 0:
                    if s + 2 < 36: post.append(self.conv_mf(s + 2))
                    if s + 1 < 36: post += self.conv_cvt(s + 1)
                    cap = 16 if s + 2 < 36 else 8
                steps.append(Step(mf, pre, post, cap))
        return steps

    def epi_G(self, tau, acc):
        h = vH + 8 * tau
        r = [I(f'v_cvt_pk_bf16_f32 v{h+k}, v{acc+2*k}, v{acc+2*k+1}') for k in range(8)]
        r += [I(f'v_pk_max_i16 v{h+k}, v{h+k}, 0') for k in range(8)]
        r += [I(f'v_permlane16_swap_b32 v{h+k}, v{h+4+k}') for k in range(4)]
        if tau and tau % 2 == 0: r += L(f's_add_u32 s{sHown}, s{sHown}, 4096')
        for tg in range(2):
            r.append(I(f'buffer_store_dwordx4 v[{h+4*tg}:{h+4*tg+3}], v{vL16}, {srd(WS)}, s{sHown} offen offset:{(tau&1)*2048+tg*1024} sc1', tok=f'h{tau}'))
        return r

    PK = {'Ta': 136, 'Tb': 144, 'Tc': 152, 'Td': 160}

    def epi_Q(self, kind, acc):
        pk = self.PK[kind]
        n = 12 if kind == 'Tb' else 16
        r = []
        for k in range(0, n, 2):
            r += L(f'v_mul_f32 v{acc+k}, v{vRS}, v{acc+k}\nv_mul_f32 v{acc+k+1}, v{vRS}, v{acc+k+1}')
        for k in range(n // 2):
            r.append(I(f'v_cvt_pk_bf16_f32 v{pk+k}, v{acc+2*k}, v{acc+2*k+1}'))
        if kind == 'Tb': r += L(f'v_mov_b32 v{pk+6}, 0\nv_mov_b32 v{pk+7}, 0')
        return r

    def pmfma(self, which, P):
        m = self.PK['Ta' if which == 'k' else 'Td']
        B = [m, m + 4, self.PK['Tb'] + (0 if which == 'k' else 4)]
        r = []
        for s in range(3):
            r.append(I(f'v_mfma_f32_32x32x16_bf16 v[{P}:{P+15}], a[{aPHI+4*s}:{aPHI+4*s+3}], v[{B[s]}:{B[s]+3}], ' + ('0' if s == 0 else f'v[{P}:{P+15}]')))
        for s in range(3):
            r.append(I(f'v_mfma_f32_16x16x32_bf16 v[{P+16}:{P+19}], a[{aPHI+12+4*s}:{aPHI+12+4*s+3}], v[{B[s]}:{B[s]+3}], ' + ('0' if s == 0 else f'v[{P+16}:{P+19}]')))
        return r

    def softmax(self, P, EP, PHIo, T, norm_first, keepS=None):
        p = [P + k for k in range(18)]
        mx, mn, s1, s2 = T, T + 1, T + 2, T + 3
        r = []
        a = [f'v_max3_f32 v{mx}, v{p[0]}, v{p[1]}, v{p[2]}'] + [f'v_max3_f32 v{mx}, v{mx}, v{p[k]}, v{p[k+1]}' for k in range(3, 17, 2)] + [f'v_max_f32 v{mx}, v{mx}, v{p[17]}']
        b = [x.replace('max', 'min').replace(f'v{mx}', f'v{mn}') for x in a]
        for x, y in zip(a, b): r += L(x + '\n' + y)
        r[0].gap = 3
        r += L(f'v_mul_f32 v{mx}, 0xbfb8aa3b, v{mx}\nv_mul_f32 v{mn}, {LOG2E}, v{mn}')
        for k in range(18):
            r += L(f'v_fma_f32 v{EP+k}, v{p[k]}, s{sL2E}, v{mx}\nv_fma_f32 v{p[k]}, v{p[k]}, -s{sL2E}, v{mn}')
            r += L(f'v_exp_f32 v{EP+k}, v{EP+k}\nv_exp_f32 v{p[k]}, v{p[k]}')
            if k == 2:
                r += L(f'v_add_f32 v{s1}, v{EP}, v{EP+1}\nv_add_f32 v{s2}, v{p[0]}, v{p[1]}')
            elif k > 2:
                r += L(f'v_add_f32 v{s1}, v{s1}, v{EP+k-1}\nv_add_f32 v{s2}, v{s2}, v{p[k-1]}')
        r += L(f'v_add_f32 v{s1}, v{s1}, v{EP+17}\nv_add_f32 v{s2}, v{s2}, v{p[17]}')
        if norm_first:
            r += L(f'v_rcp_f32 v{s1}, v{s1}\nv_rcp_f32 v{s2}, v{s2}')
            for k in range(0, 18, 2):
                r += L(f'v_mul_f32 v{EP+k}, v{s1}, v{EP+k}\nv_mul_f32 v{EP+k+1}, v{s1}, v{EP+k+1}\nv_cvt_pk_bf16_f32 v{PHIo+k//2}, v{EP+k}, v{EP+k+1}')
        else:
            r += L(f'v_rcp_f32 v{s2}, v{s2}\nv_mul_f32 v{keepS}, 0x358637bd, v{s1}')
            for k in range(0, 18, 2):
                r += L(f'v_cvt_pk_bf16_f32 v{PHIo+k//2}, v{EP+k}, v{EP+k+1}')
            r += L(f'v_mul_f32 v{s2}, v{s1}, v{s2}')
        for k in range(0, 18, 2):
            r += L(f'v_mul_f32 v{p[k]}, v{s2}, v{p[k]}\nv_mul_f32 v{p[k+1]}, v{s2}, v{p[k+1]}\nv_cvt_pk_bf16_f32 v{PHIo+9+k//2}, v{p[k]}, v{p[k+1]}')
        return r

    def build_streams(self):
        c = self.c
        P0 = lambda p: 36 * p if p <= 13 else 468 + 72 * (p - 13)
        bar = lambda p: (36 * p + 35 - c.D) if p < 13 else (468 + 72 * (p - 13) + 71 - c.Dh)
        self.bar_need = {}
        need = lambda p, t: self.bar_need.setdefault(p, []).append(t)
        S = {}
        dma = Stream('dma')
        items = []
        for i in sorted(self.loadp):
            p = self.loadp[i]
            if p > 21: continue
            same = [x for x in self.loadp if self.loadp[x] == p]
            idx = same.index(i)
            span = (bar(p) - 1 - P0(p)) // len(same)
            grps = self.dma_item(i)
            nd = sum(1 for gg in grps if gg[0].kind == 'dma')
            k = 0
            for gg in grps:
                st = P0(p) + idx * span + (k * span) // nd
                if gg[0].kind == 'dma': k += 1
                else: st = max(st - 1, P0(p))
                items.append((st, gg))
        S['dma'] = TimedStream('dma', items)
        epi = []; pend = []
        gpos = [i for i in range(13) if c.order[i] == 'G']
        for i in range(13):
            acc = ACC[i & 1]
            r = self.epi_G(gpos.index(i), acc) if c.order[i] == 'G' else self.epi_Q(c.order[i], acc)
            st = P0(i + 1) + (2 if i < 12 else 4)
            epi += [(st, [x]) for x in r]
            if i < 11: epi.append(('deadline', P0(i + 2) - 1))
            epi += pend; pend = []
            if c.order[i] == 'G' and gpos.index(i) in (c.flagA, 8):
                tau = gpos.index(i)
                off = 0 if tau == c.flagA else 16
                pend.append((P0(i + 2) + 8, glue([W(*[f'h{x}' for x in range(tau + 1)]), I(f'buffer_store_dword v{vONE}, v{vF0}, {srd(WS)}, s{sFH} offen offset:{off} sc1', tok='flag')])))
        S['epi'] = TimedStream('epi', epi + pend)
        pos = {k: c.order.index(k) for k in ('Ta', 'Tb', 'Tc', 'Td')}
        m = []
        A = lambda st, x: m.extend((st, [y]) for y in (L(x) if isinstance(x, str) else x))
        G = lambda st, x: m.append((st, glue(x)))
        A(P0(1), [W('wphi'), I('ds_write_b64 v30, v[28:29]', tok='wimg'), I('ds_write_b64 v31, v[28:29]', tok='wimg')])
        need(1, 'wimg'); m.append(('deadline', bar(1)))
        A(P0(1), [self.unpark('rsr', 28), I('ds_read_b32 v28, v28', tok='rsr'), self.unpark('Ex', 29)])
        A(P0(1) + 6, [W('rsr'), I(f'v_accvgpr_write_b32 a{self.park["rsr"]}, v28')])
        st = bar(1) + 1
        for s in range(3):
            reg, o = self.rng(vS, E + 1024 * s)
            for k in range(2):
                A(st, [I(f'ds_read_b64_tr_b16 a[{aPHI+4*s+2*k}:{aPHI+4*s+2*k+1}], v{reg} offset:{o+256*k}', tok='wfr')])
                A(st, [I(f'ds_read_b64_tr_b16 a[{aPHI+12+4*s+2*k}:{aPHI+12+4*s+2*k+1}], v29 offset:{512*s+128*k}', tok='wfr')])
        need(2, 'wfr'); m.append(('deadline', bar(2)))
        A(bar(2) + 1, [self.unpark('zf', 25)] + L('v_mov_b32 v28, 0\nv_mov_b32 v29, 0\nv_mov_b32 v30, 0\nv_mov_b32 v31, 0'))
        A(bar(2) + 1, [I(f'ds_write_b128 v25, v[28:31] offset:{4096*k}', tok='zf1') for k in range(3)])
        need(3, 'zf1'); m.append(('deadline', bar(3)))
        S['misc'] = TimedStream('misc', m)
        m = []
        PK_ = self.PK
        Pk, EPk, PHk, Tk = 168, 188, 206, 224
        kready = P0(max(pos['Ta'], pos['Tb']) + 1) + 10
        A(kready, [W('wfr')])
        for x in self.pmfma('k', Pk): A(kready, [x])
        A(kready, self.softmax(Pk, EPk, PHk, Tk, True))
        st = P0(c.ps)
        assert c.ps > pos['Tc'] + 0
        A(st, [self.unpark('stP', 25), self.unpark('stV1', 26), self.unpark('stV2', 27), self.unpark('stV3', 28)])
        for k in range(9): A(st, [I(f'ds_write_b64 v25, v[{PHk+2*k}:{PHk+2*k+1}] offset:{8*k}', tok='stg')])
        st = max(st, P0(pos['Tc'] + 1) + 12)
        tc = PK_['Tc']; tbb = PK_['Tb']; hm = f's[{sHH}:{sHH+1}]'
        A(st, [I(f'ds_write_b64 v26, v[{tc}:{tc+1}] offset:144', tok='stg'), I(f'ds_write_b64 v26, v[{tc+2}:{tc+3}] offset:160', tok='stg'), I(f'ds_write_b64 v26, v[{tc+6}:{tc+7}] offset:200', tok='stg')])
        A(st, f'v_mov_b32 v29, 0x3f80\nv_cndmask_b32 v30, v29, v{tbb+2}, {hm}\nv_cndmask_b32 v31, v{tc+5}, v{tbb+3}, {hm}\nv_cndmask_b32 v{tc+5}, v29, v{tc+5}, {hm}')
        A(st, [I(f'ds_write_b64 v28, v[30:31] offset:184', tok='stg'), I(f'ds_write_b64 v27, v[{tc+4}:{tc+5}] offset:176', tok='stg')])
        need(c.ps, 'stg')
        m.append(('deadline', bar(c.ps)))
        KA, KB, KD = 188, 204, 168
        st = bar(c.ps) + 1
        A(st, [self.unpark('kvA', 25), self.unpark('kvB', 26)])
        rdA = lambda ks: [I(f'ds_read_b64_tr_b16 v[{KA+4*ks+2*rd}:{KA+4*ks+2*rd+1}], v25 offset:{ks*7424+rd*3712}', tok=f'kva{ks}') for rd in range(2)]
        rdB = lambda x: [I(f'ds_read_b64_tr_b16 v[{KB+4*(x%6)+2*rd}:{KB+4*(x%6)+2*rd+1}], v26 offset:{(x%4)*7424+rd*3712+32*(x//4)}', tok=f'kvb{x}') for rd in range(2)]
        for ks in range(4): A(st, rdA(ks) + rdB(ks))
        for x in range(12):
            ft, ks = x // 4, x % 4
            mf = I(f'v_mfma_f32_16x16x32_bf16 v[{KD+4*ft}:{KD+4*ft+3}], v[{KA+4*ks}:{KA+4*ks+3}], v[{KB+4*(x%6)}:{KB+4*(x%6)+3}], ' + ('0' if ks == 0 else f'v[{KD+4*ft}:{KD+4*ft+3}]'))
            G(st, [W(f'kvb{x}', f'kva{ks}'), mf])
            if x + 4 < 12: A(st, rdB(x + 4))
        need(c.ps + 1, 'kvb11')
        m.append(('deadline', bar(c.ps + 1)))
        A(st, [self.unpark('K0', 25), self.unpark('K2', 26)])
        x = [I(f'buffer_store_dwordx4 v[{KD+4*ft}:{KD+4*ft+3}], v{25 if ft < 2 else 26}, {srd(WS)}, s{sKVown} offen offset:{256*ft} sc1', tok='kvst') for ft in range(3)]
        x[0].gap = 2
        A(st, x)
        Pq, EPq, PHq, Tq, SQ = 168, 136, 232, 154, 252
        st = max(st, P0(pos['Td'] + 1) + 12)
        for x in self.pmfma('q', Pq): A(st, [x])
        sm = self.softmax(Pq, EPq, PHq, Tq, False, keepS=SQ)
        n1 = 60
        A(st, sm[:n1])
        G(st, [W('kvst'), I(f'buffer_store_dword v{vONE}, v{vF0}, {srd(WS)}, s{sFKV} offen sc1', tok='flag')])
        A(st, f'v_lshlrev_b32 v25, 1, v{vL16}\nv_and_b32 v25, 0xe0, v25')
        ld, chk = self.poll('cnt', DBG, 25, '0', 32, 26)
        A(st, [ld]); A(st, sm[n1:n1 + 50]); G(st, chk)
        A(st, f'v_lshrrev_b32 v25, 2, v{vL16}\ns_and_b32 s{sT0}, s{sFKV}, 0xffffff00')
        ld, chk = self.poll('kvf', WS, 25, f's{sT0}', 1, 26)
        A(st, [ld]); A(st, sm[n1 + 50:n1 + 90]); G(st, chk)
        LB, AC = 188, 160
        A(st, [self.unpark('kr2', 26), I('v_lshlrev_b32 v25, 4, v0')])

        def kvload(r_):
            b = LB + 6 * (r_ % 7)
            x = [I(f'buffer_load_dwordx4 v[{b}:{b+3}], v25, {srd(WS)}, s{sKVj} offen sc1', tok=f'kr{r_}'),
                 I(f'buffer_load_dwordx2 v[{b+4}:{b+5}], v26, {srd(WS)}, s{sKVj} offen sc1', tok=f'kr{r_}')]
            if r_ < 15: x += L(f's_add_u32 s{sKVj}, s{sKVj}, 6144')
            return x

        def kvsum(r_):
            b = LB + 6 * (r_ % 7)
            if r_ == 0: return [W('kr0')] + [I(f'v_mov_b32 v{AC+k}, v{b+k}') for k in range(6)]
            return [W(f'kr{r_}')] + [I(f'v_add_f32 v{AC+k}, v{AC+k}, v{b+k}') for k in range(6)]
        rest = sm[n1 + 90:]
        for r_ in range(7): A(st, kvload(r_))
        A(st, rest)
        A(st, f'v_mov_b32 v{PHq+18}, 0\nv_mov_b32 v{PHq+19}, 0')
        first = True
        for r_ in range(16):
            x = kvsum(r_)
            if r_ in (0, 7, 14): x[0].gap = c_gap(self.c, r_)
            A(st, x)
            if r_ + 7 < 16: A(st, kvload(r_ + 7))
        A(st, [self.unpark('im1a', 25), self.unpark('im2a', 26), self.unpark('im1b', 27), self.unpark('im2b', 28)])
        A(st, f'v_cvt_pk_bf16_f32 v{AC}, v{AC}, v{AC+1}\nv_cvt_pk_bf16_f32 v{AC+1}, v{AC+2}, v{AC+3}\nv_cvt_pk_bf16_f32 v{AC+2}, v{AC+4}, v{AC+5}')
        A(st, [I(f'ds_write_b64 v25, v[{AC}:{AC+1}]', tok='kimg'), I(f'ds_write_b64 v26, v[{AC}:{AC+1}]', tok='kimg'),
               I(f'ds_write_b32 v27, v{AC+2}', tok='kimg'), I(f'ds_write_b32 v28, v{AC+2}', tok='kimg')])
        pk = self.c_pk = 12
        need(pk, 'kimg')
        m.append(('deadline', bar(pk)))
        OF, OD = 64 + 0, 208
        st = bar(pk) + 1
        A(st, [self.unpark('Ex', 29)])
        ofr = lambda x: 168 + 4 * x if False else aPHI + 4 * (x % 6)
        seq = []
        for sg in range(5):
            reg, o = self.rng(vS, E + 1024 * sg)
            seq.append(('m', sg, [I(f'ds_read_b64_tr_b16 a[{ofr(2*sg)+2*k}:{ofr(2*sg)+2*k+1}], v{reg} offset:{o+256*k}', tok=f'of{2*sg}') for k in range(2)]))
            seq.append(('x', sg, [I(f'ds_read_b64_tr_b16 a[{ofr(2*sg+1)+2*k}:{ofr(2*sg+1)+2*k+1}], v29 offset:{512*sg+128*k}', tok=f'of{2*sg+1}') for k in range(2)]))
        for x in range(4): A(st, seq[x][2])
        for x in range(10):
            kind, sg, _ = seq[x]
            fr = ofr(x); Bq = PHq + 4 * sg
            if kind == 'm':
                mf = I(f'v_mfma_f32_32x32x16_bf16 v[{OD}:{OD+15}], a[{fr}:{fr+3}], v[{Bq}:{Bq+3}], ' + ('0' if sg == 0 else f'v[{OD}:{OD+15}]'))
            else:
                mf = I(f'v_mfma_f32_16x16x32_bf16 v[{OD+16}:{OD+19}], a[{fr}:{fr+3}], v[{Bq}:{Bq+3}], ' + ('0' if sg == 0 else f'v[{OD+16}:{OD+19}]'))
            G(st, [W(f'of{x}'), mf])
            if x + 4 < 10: A(st, seq[x + 4][2])
        self.po = pk + 1
        need(self.po, 'of9')
        m.append(('deadline', bar(self.po)))
        X0 = OD + 16
        x = L(f'v_cndmask_b32 v228, v{X0+2}, v{X0}, {hm}\nv_add_f32 v228, v228, v{SQ}\nv_rcp_f32 v228, v228\nv_cndmask_b32 v{X0}, v{X0}, v{X0+2}, {hm}\nv_cndmask_b32 v{X0+1}, v{X0+1}, v{X0+3}, {hm}')
        x[0].gap = 4
        A(st, x)
        for k in range(9):
            A(st, f'v_mul_f32 v{OD+2*k}, v228, v{OD+2*k}\nv_mul_f32 v{OD+2*k+1}, v228, v{OD+2*k+1}\nv_cvt_pk_bf16_f32 v{PHq+k}, v{OD+2*k}, v{OD+2*k+1}')
        A(st, [self.unpark('oxs', 25)])
        A(st, [I(f'buffer_store_dwordx4 v[{PHq+4*k}:{PHq+4*k+3}], v{vL16}, {srd(WS)}, s{sOMown} offen offset:{1024*k} sc1', tok='ost') for k in range(2)])
        A(st, [I(f'buffer_store_dword v{PHq+8}, v25, {srd(WS)}, s{sOXown} offen sc1', tok='ost')])
        x = glue([W('ost'), I(f'buffer_store_dword v{vONE}, v{vF0}, {srd(WS)}, s{sFO} offen sc1', tok='flag')])
        x[0].gap = 60
        m.append((st, x))
        S['att'] = TimedStream('att', m)

        m = []
        self.vG = 12
        st = P0(max(self.loadp.get(pos[k], 0) for k in pos) + 1)
        A(st, [self.unpark('G', 12)] + L('v_add_u32 v13, 55296, v12\nv_add_u32 v14, 110592, v12'))
        vHL = 15
        pA = 11
        A(P0(pA), f'v_lshrrev_b32 v{vHL}, 2, v{vL16}\nv_and_b32 v{vHL}, 12, v{vHL}\ns_and_b32 s56, s{sFH}, 0xffffff80')
        ld, chk = self.poll('hA', WS, vHL, 's56', 1, 11)
        assert max(self.loadp[i] for i in range(4, 13)) < pA
        A(P0(pA) + 16, [ld]); G(P0(12) - 2, chk)
        ldB, chkB = self.poll('hB', WS, vHL, 's57', 1, 11)
        tau_done = -1
        vHA = 21
        vHA = vRS
        A(P0(12), f'v_mov_b32 v{vHA}, v{vL16}')
        curt = 0
        polledB = False
        for n_ in range(9, 36):
            u = n_ // 4
            mm = n_ - 9; tau = mm // 3; pe = mm % 3
            p = 13 + u - c.leadH
            e = mm % 18
            if p <= 12: st = P0(12) + 2 * e + 3
            else: st = P0(p) + 2 + 14 * (n_ % 4)
            if n_ >= 27: st = max(st, 468 + 72 * ((n_ - 18) // 4 + 1))
            if tau > c.flagA and not polledB:
                polledB = True
                A(st - 40, f's_add_u32 s57, s56, 16'); A(st - 40, [ldB]); G(st - 1, chkB)
            if tau // 2 != curt:
                curt = tau // 2
                A(st, f'v_add_u32 v{vHA}, 4096, v{vHA}')
            for tg in range(2):
                A(st, [I(f'buffer_load_dwordx4 a[{8*e+4*tg}:{8*e+4*tg+3}], v{vHA}, {srd(WS)}, s{sHp+pe} offen offset:{(tau&1)*2048+tg*1024} sc1', tok=f'ph{n_}')])
        S['peer'] = TimedStream('peer', m)

        def dma_insert(st, groups):
            it = S['dma'].items
            k = 0
            while k < len(it) and (it[k][0] == 'deadline' or it[k][0] <= st): k += 1
            it[k:k] = [(st, gg) for gg in groups]
        one = lambda x: [[y] for y in (L(x) if isinstance(x, str) else x)]
        gwc = f's_lshr_b32 s49, s2, 3\ns_lshl_b32 s49, s49, 2\ns_add_u32 s49, s49, s{sW}\n'
        dma_insert(P0(2), one(f'v_lshlrev_b32 v253, 3, v{vL16}'))
        if c.pfW2:
            dma_insert(bar(c.pfW2) - 1, one(gwc + f's_mul_i32 s49, s49, {81*128}\ns_mul_i32 s50, s{sQ}, {1152*1152}\ns_add_u32 s49, s49, s50\ns_add_u32 s50, s49, 8192')
                       + one(f'buffer_load_dword v254, v253, {srd(W2)}, s49 offen'))
            dma_insert(bar(c.pfW2 + 1) - 1, [glue(L(f's_mov_b64 exec, 0x1ffff\nbuffer_load_dword v255, v253, {srd(W2)}, s50 offen\ns_mov_b64 exec, -1'))])
        if c.pfWO:
            dma_insert(bar(c.pfWO) - 1, one(gwc + f's_mul_i32 s49, s49, {81*64}\ns_and_b32 s49, s49, 0xffffff80\ns_min_u32 s49, s49, {663552-41*128}')
                       + [glue(L(f's_mov_b32 exec_hi, 0x1ff\nbuffer_load_dword v254, v253, {srd(WO)}, s49 offen\ns_mov_b64 exec, -1'))])
        m = []
        px = self.po + 1
        st = bar(px - 1) + 1
        xd = lambda k: I(f'buffer_load_dwordx4 v{vA+k}, {srd(X)}, s{sXB} offen offset:{k*1024} lds', tok='xt')
        dma_insert(st, one(f's_lshl_b32 s49, s{sR}, 2\ns_add_u32 s49, s49, s{sQ}\ns_lshl_b32 s49, s49, 2\ns_add_u32 s49, s49, s{sW}\ns_mul_i32 s{sXB}, s49, 9216\ns_mul_i32 s49, s{sJJ}, 288\ns_add_u32 s{sXB}, s{sXB}, s49')
                   + one(f's_mul_i32 s50, s{sW}, 2304\ns_add_u32 m0, s50, {E}')
                   + [glue(L('s_mov_b64 exec, 0xffff') + [xd(2)] + L('s_mov_b64 exec, -1'))] + one([xd(0), xd(1)]))
        need(px + 1, 'xt')
        st = bar(px + 1) + 1
        XR = 52
        A(st, [self.unpark('Xt', 62)] + L(f'v_add_u32 v63, {E}, v62\nv_add_u32 v62, {OUTB}, v62'))
        A(st, [I(f'ds_read_b64 v[{XR+2*k}:{XR+2*k+1}], v63 offset:{32*k}', tok='xr') for k in range(5)])
        need(px + 2, 'xr'); m.append(('deadline', bar(px + 2)))
        st = bar(px + 2) + 1
        dma_insert(st, one([self.unpark(f'E{k}', 40 + k) for k in range(4)])
                   + one(f's_mul_i32 s51, s{sJJ}, 288\ns_add_u32 s51, s51, {512*1152}\ns_lshl_b32 s52, s{sW}, 12\ns_add_u32 m0, s52, {E}')
                   + one([I(f'buffer_load_dwordx4 v{40+k}, {srd(WO)}, s51 offen offset:{1024*k} lds', tok='woE') for k in range(4)]))
        A(st, [self.unpark('wrap', 63), self.unpark('Sm', 32), self.unpark('Sx', 36), self.unpark('rsr', 50), self.unpark('omc', 44), self.unpark('oxc', 45)])
        A(st, 'v_add_u32 v33, 55296, v32\nv_add_u32 v34, 110592, v32\nv_add_u32 v37, 55296, v36\nv_add_u32 v38, 110592, v36')
        A(st, f'v_subrev_u32 v35, {568*288-768-15*36*288}, v32\nv_add_u32 v39, {15*36*288}, v32\ns_mov_b32 s{sM}, 0\ns_mov_b32 s{sM+1}, 0xffff0000\nv_cndmask_b32 v35, v39, v35, s[{sM}:{sM+1}]')
        po = 13 + 6
        assert bar(px + 2) + 40 < P0(po)
        st = max(st, P0(po) - 40)
        A(st, f'v_lshrrev_b32 v46, 2, v{vL16}\nv_and_b32 v46, 60, v46\ns_lshl_b32 s53, s{sR}, 2\ns_add_u32 s53, s53, s{sQ}\ns_lshl_b32 s53, s53, 7\ns_add_u32 s53, s53, {FL_O}')
        ld, chk = self.poll('of', WS, 46, 's53', 1, 47)
        A(st, [ld]); G(P0(po), chk)
        for j_ in range(16):
            st = P0(po) + 1 + 8 * j_
            if j_ and j_ % 2 == 0: A(st, f's_add_u32 s{sOMc}, s{sOMc}, 4096')
            A(st, [I(f'buffer_load_dwordx4 a[{184+4*j_}:{187+4*j_}], v44, {srd(WS)}, s{sOMc} offen offset:{(j_&1)*2048} sc1', tok=f'o{j_}')])
        for e in range(2):
            A(st, [I(f'buffer_load_dwordx4 a[{248+4*e}:{251+4*e}], v45, {srd(WS)}, s{sOXc} offen offset:{e*2048} sc1', tok=f'o{16+e}')])
        S['prep'] = TimedStream('prep', m)
        need(20, 'T22')
        m = []
        A(P0(21), f's_add_u32 s54, s{sYp}, 4096\ns_add_u32 s55, s{sYp}, 8192')
        for pr in range(5):
            for tg in range(2):
                a0 = 136 + 36 * tg + 8 * pr
                last = 2 * pr + 1 if pr < 4 else 8
                st = P0(21) + 8 * last + 4 * tg + 3 + 3
                nn = 4 if pr < 4 else 2
                A(st, [I(f'v_cvt_pk_bf16_f32 v{a0+k}, v{a0+2*k}, v{a0+2*k+1}') for k in range(nn)])
                blk = 5 * tg + pr
                so = [sYp, 54, 55][blk // 4]
                op = 'buffer_store_dwordx4' if nn == 4 else 'buffer_store_dwordx2'
                A(st, [I(f'{op} v[{a0}:{a0+nn-1}], v{vL16}, {srd(WS)}, s{so} offen offset:{(blk%4)*1024} sc1', tok='yst')])
        S['ypk'] = TimedStream('ypk', m)
        return S

    def g2_steps(self):
        c = self.c
        steps = []
        for u in range(9):
            for k in range(72):
                ct, tg, ks = k >> 3, (k >> 2) & 1, k & 3
                f = 36 * u + 4 * ct + ks
                fr = RING + 4 * ((f + self.ring0) % c.NBf)
                n_ = 4 * u + ks
                if n_ < 9: B = f'v[{vH+8*n_+4*tg}:{vH+8*n_+4*tg+3}]'
                else:
                    e = (n_ - 9) % 18; B = f'a[{8*e+4*tg}:{8*e+4*tg+3}]'
                acc = 136 + 36 * tg + 4 * ct
                cc = '0' if (u == 0 and ks == 0) else f'v[{acc}:{acc+3}]'
                mf = I(f'v_mfma_f32_16x16x32_bf16 v[{acc}:{acc+3}], a[{fr}:{fr+3}], {B}, {cc}')
                pre = []
                if tg == 0 and ks % 2 == 0:
                    tk = [f'g{f}', f'g{f+1}']
                    if ct == 0 and ks == 0: tk += [f'ph{x}' for x in range(max(9, 4 * u), 4 * u + 4)]
                    pre = [W(*tk)]
                post = []
                hf = k + c.Dh
                if hf < 72: post.append(self.g2_half(u, hf))
                elif u < 8: post.append(self.g2_half(u + 1, hf - 72))
                else:
                    pass
                if hf == 71:
                    if u < 8: post += [W(f'T{14+u}', *self.bar_need.get(13 + u, []))] + L('s_barrier')
                steps.append(Step(mf, pre, post))
        return steps

    def s_reads(self, x):
        st, lam = self.sorder[x // 5], x % 5
        b = 72 + 4 * (x % 18)
        r = []
        for rd in range(2):
            if st < 16:
                off = st * 36 * 288 + rd * 4 * 288 + lam * 32
                if st == 15: reg, o = 35, off - 15 * 36 * 288
                else: reg, o = self.rng(32, off)
            else:
                reg, o = self.rng(36, (8 * (st - 16) + 4 * rd) * 36 * 288 + lam * 32)
            r.append(I(f'ds_read_b64_tr_b16 a[{b+2*rd}:{b+2*rd+1}], v{reg} offset:{o}', tok=f's{x}'))
        return r

    def tail(self, S):
        c = self.c; E_ = self.E
        SA = 64
        YL = 84
        XR = 52
        self.sorder = [0, 1, 2, 3, 4, 5, 6, 7, 16, 8, 9, 10, 11, 12, 13, 14, 17, 15]
        nmid = 11 * 5
        E_(flush(S['ypk']))
        E_(self.stamp('U8'))
        for x in range(5): E_(self.s_reads(x))
        E_(W('s4', 'T23')); E_('s_barrier')
        E_(self.stamp('B1'))
        dm = [x for grp in self.dma_item(25) for x in grp]
        dm += L(f's_min_u32 s{sT2}, s{sW}, 2\ns_lshl_b32 m0, s{sT2}, 10\ns_nop 0') + [I(f'buffer_load_dwordx4 v63, {srd(WO)}, s51 offen lds', tok='wrap')]
        Ds = 6
        for x in range(5, Ds): E_(self.s_reads(x))
        side = list(dm)
        yflag = [W('yst'), I(f'buffer_store_dword v{vONE}, v{vF0}, {srd(WS)}, s{sFY} offen sc1', tok='flag')]
        for x in range(90):
            st, lam = self.sorder[x // 5], x % 5
            fr = 72 + 4 * (x % 18); acc = SA + 4 * lam
            E_(W(f's{x}', f'o{st}'))
            E_(f'v_mfma_f32_16x16x32_bf16 v[{acc}:{acc+3}], a[{fr}:{fr+3}], a[{184+4*st}:{187+4*st}], ' + ('0' if x < 5 else f'v[{acc}:{acc+3}]'))
            if x + Ds == nmid:
                E_(self.stamp('s49')); E_(W('T25', 'wrap', 'woE')); E_('s_barrier'); E_(self.stamp('B3'))
            if x + Ds == 35:
                E_(self.stamp('s29')); E_(W('T24')); E_('s_barrier'); E_(self.stamp('B2'))
            if x + Ds < 90: E_(self.s_reads(x + Ds))
            if side: E_(side.pop(0))
            if x == 30: E_(yflag); E_(self.stamp('yfl'))
        E_(self.stamp('s89'))
        E_(f'v_lshrrev_b32 v25, 2, v{vL16}\nv_and_b32 v25, 12, v25')
        E_(f's_lshl_b32 s3, s{sR}, 2\ns_add_u32 s3, s3, s{sJJ}\ns_lshl_b32 s3, s3, 2\ns_add_u32 s3, s3, s{sQ}\ns_lshl_b32 s3, s3, 7\ns_add_u32 s{sT0}, s3, {FL_Y}')
        ld, chk = self.poll('yf', WS, 25, f's{sT0}', 1, 26)
        E_(ld)
        XU = 136
        for k in range(10):
            E_(f'v_lshlrev_b32 v{XU+2*k}, 16, v{XR+k}\nv_and_b32 v{XU+2*k+1}, 0xffff0000, v{XR+k}')
        E_(f'v_mul_f32 v48, 0xbfb8aa3b, v50\nv_mov_b32 v49, v48\nv_mov_b32 v51, v50')
        for k in range(10):
            E_(f'v_pk_mul_f32 v[{SA+2*k}:{SA+2*k+1}], v[{SA+2*k}:{SA+2*k+1}], v[50:51]')
        E_(f's_mov_b32 s{sT1}, 0x3f80\ns_mov_b32 s{sT2}, 0x3f800000')
        E_(chk)
        E_(self.stamp('ypoll'))
        for i in range(3):
            for q_ in range(4):
                if i == 0 and q_: pass
                b = YL + 12 * q_ + 4 * i
                so = [sYc, sT0, sT3, sT4][q_]
                if i == 0 and q_: E_(f's_add_u32 s{so}, s{sYc}, {10240*q_}')
                E_(I(f'buffer_load_dwordx4 v[{b}:{b+3}], v{vL16}, {srd(WS)}, s{so} offen offset:{1024*i} sc1', tok=f'y{i}'))
        if c.ts: E_(W('y2')); E_(self.stamp('yld'))
        Y = 160; Tm = 184; OUTR = 208
        for lam in range(5):
            y = Y + 4 * lam; tm = Tm + 4 * lam
            for q_ in range(4):
                for dw in range(2):
                    src = YL + 12 * q_ + 2 * lam + dw
                    for hi in range(2):
                        d_ = y + 2 * dw + hi
                        if q_ == 0:
                            E_(f'v_lshlrev_b32 v{d_}, 16, v{src}' if hi == 0 else f'v_and_b32 v{d_}, 0xffff0000, v{src}')
                        else:
                            E_(f'v_dot2c_f32_bf16 v{d_}, s{sT2 if hi else sT1}, v{src}')
            if lam > 0: self.final_b(lam - 1, Y, Tm, XU, OUTR)
            for k in range(2):
                E_(f'v_pk_mul_f32 v[{tm+2*k}:{tm+2*k+1}], v[{y+2*k}:{y+2*k+1}], v[48:49]')
            for k in range(2):
                E_(f'v_pk_mul_f32 v[{y+2*k}:{y+2*k+1}], v[{y+2*k}:{y+2*k+1}], v[{SA+4*lam+2*k}:{SA+4*lam+2*k+1}]')
            for k in range(4): E_(f'v_exp_f32 v{tm+k}, v{tm+k}')
        self.final_b(4, Y, Tm, XU, OUTR)
        E_(self.stamp('fin'))
        E_(W('ow')); E_('s_barrier')
        E_(f's_mul_i32 s3, s{sW}, 2304\ns_add_u32 s3, s3, {OUTB}\nv_add_u32 v25, s3, v{vL16}')
        for k in range(3): E_(I(f'ds_read_b128 v[{224+4*k}:{227+4*k}], v25 offset:{1024*k}', tok=f'or{k}'))
        for k in range(2): E_(I(f'buffer_store_dwordx4 v[{224+4*k}:{227+4*k}], v{vA+k}, {srd(OUT)}, s{sXB} offen offset:{1024*k}', tok='out'))
        E_(W('or2'))
        E_('s_mov_b64 exec, 0xffff')
        E_(I(f'buffer_store_dwordx4 v[232:235], v{vA+2}, {srd(OUT)}, s{sXB} offen offset:2048', tok='out'))
        E_('s_mov_b64 exec, -1')

    def final_b(self, lam, Y, Tm, XU, OUTR):
        E_ = self.E
        y = Y + 4 * lam; tm = Tm + 4 * lam
        for k in range(2): E_(f'v_pk_add_f32 v[{tm+2*k}:{tm+2*k+1}], v[{tm+2*k}:{tm+2*k+1}], 1.0 op_sel_hi:[1,0]')
        for k in range(4): E_(f'v_rcp_f32 v{tm+k}, v{tm+k}')
        for k in range(2): E_(f'v_pk_fma_f32 v[{y+2*k}:{y+2*k+1}], v[{y+2*k}:{y+2*k+1}], v[{tm+2*k}:{tm+2*k+1}], v[{XU+4*lam+2*k}:{XU+4*lam+2*k+1}]')
        for k in range(2): E_(f'v_cvt_pk_bf16_f32 v{OUTR+2*lam+k}, v{y+2*k}, v{y+2*k+1}')
        E_(I(f'ds_write_b64 v62, v[{OUTR+2*lam}:{OUTR+2*lam+1}] offset:{32*lam}', tok='ow'))

    def build(self):
        c = self.c; E_ = self.E
        assert c.D + 2 <= 10 and c.NBf <= 10
        self.plan_slots()
        if c.ts: pass
        self.prologue()
        S = self.build_streams()
        self.ring0 = self.pick_ring0()
        E_(self.stamp('stat'))
        E_(W('T0', 'zf0', 'rsw', 'clr')); E_('s_barrier')
        E_(self.stamp('T0'))
        E_(f'v_mov_b32 v25, {OOB}\ns_and_b32 s3, s2, 7\ns_lshl_b32 s3, s3, 5\nv_mov_b32 v26, s3\nv_cmp_eq_u32 vcc, 0, v0')
        for s in range(c.D): E_(self.g1_reads(0, s))
        E_(f'v_cndmask_b32 v25, v25, v26, vcc')
        E_(I(f'buffer_atomic_add v{vONE}, v25, {srd(DBG)}, 0 offen sc1', tok='atom'))
        steps = self.g1_steps() + self.g2_steps()
        sk = c.skip.split()
        def drop(pred, names=None):
            for nm, st_ in S.items():
                if names and nm not in names: continue
                new = []
                for it in st_.items:
                    if it[0] == 'deadline': new.append(it); continue
                    gg = [x for x in it[1] if not pred(x)]
                    if gg: new.append((it[0], gg))
                st_.items = new
        for nm in sk:
            if nm in S: S[nm].items = []
        if sk:
            drop(lambda x: x.kind == 'label' or x.op.startswith('s_cbranch') or x.op.startswith('v_cmp_ne'))
            self.slow = []
        if 'hst' in sk: drop(lambda x: x.kind == 'vstore', ['epi'])
        if 'peerld' in sk: drop(lambda x: x.kind == 'vload', ['peer'])
        if 'oload' in sk: drop(lambda x: x.kind == 'vload', ['prep'])
        if 'dmaq' in sk: drop(lambda x: x.kind == 'dma', ['dma'])
        if 'attvm' in sk: drop(lambda x: x.kind in ('vstore', 'vload'), ['att'])
        if 'attds' in sk: drop(lambda x: x.kind in ('dsr', 'dsw'), ['att'])
        if 'attvalu' in sk: drop(lambda x: x.kind in ('valu', 'trans') and 'accvgpr' not in x.op and not (x.wr & {('v', 25), ('v', 26)}), ['att'])
        if 'sc1' in sk:
            for st_ in S.values():
                for it in st_.items:
                    if it[0] != 'deadline':
                        for x in it[1]: x.text = x.text.replace(' sc1', '')
        if 'bar' in sk:
            for st_ in steps: st_.post = [x for x in st_.post if x.kind != 'barrier']
        order = [S[k] for k in ('dma', 'epi', 'ypk', 'peer', 'misc', 'att', 'prep')]
        self.log = []
        body = schedule_timed(steps, order, log=self.log, stamps={36 * p: (lambda p=p: self.stamp(f'p{p-1}')) for p in range(1, 14)} | {468 + 72 * u: (lambda u=u: self.stamp(f'U{u-1}')) for u in range(1, 9)})
        E_(body)
        for s in order:
            if s.name != 'ypk': assert s.done(), (s.name, s.idx, len(s.items))
        self.tail(S)
        if c.ts:
            E_(W('out')); E_(self.stamp('out'))
            E_(f's_memrealtime s[0:1]\ns_waitcnt lgkmcnt(0)\nv_writelane_b32 v{vONE}, s0, 62')
            E_(f's_lshl_b32 s3, s2, 2\ns_add_u32 s3, s3, s{sW}\ns_lshl_b32 s3, s3, 8\ns_add_u32 s3, s3, {WS_TS}\nv_lshrrev_b32 v25, 2, v{vL16}')
            E_(f'buffer_store_dword v{vONE}, v25, {srd(WS)}, s3 offen')
        stats = {}
        prog = resolve_waits(self.p, stats, lenient=bool(c.skip))
        prog = pad_hazards(prog, stats)
        self.stats = stats
        self.prog = prog
        return prog

    def pick_ring0(self):
        c = self.c; NB = c.D + 2
        best = None
        for r0 in range(c.NBf):
            ok = True
            for k in range(c.D):
                lo = c.Dh * k // c.D; hi = c.Dh * (k + 1) // c.D
                busy = {(x % NB) for x in range(468 - c.D + k + 1, 468)}
                for h in range(0, hi):
                    f = 4 * (h >> 3) + ((h >> 1) & 3)
                    if (f + r0) % c.NBf in busy: ok = False
            if ok: best = r0; break
        assert best is not None
        return best

    def text(self):
        hdr = open('cdna_kernels/' + NAME + '.s.ref').read().split('\n')
        top = [x for x in hdr if x.startswith(';') and not x.startswith('; @launch')]
        out = top + ['; @launch grid=(256,1,1) block=(256,1,1) lds=163840',
                     '.amdgcn_target "amdgcn-amd-amdhsa--gfx950"', '.text', f'.globl {NAME}_kernel', '.p2align 8',
                     f'.type {NAME}_kernel,@function', f'{NAME}_kernel:']
        body = [i.text for i in self.prog]
        out += body
        out += ['L_end:', 's_endpgm'] + self.slow + ['CODE_END:', 's_endpgm']
        out += ['.section .rodata,"a"', '.p2align 6', f'.amdhsa_kernel {NAME}_kernel', '  .amdhsa_next_free_vgpr 512', '  .amdhsa_next_free_sgpr 102',
                '  .amdhsa_accum_offset 256', '  .amdhsa_group_segment_fixed_size 0', '  .amdhsa_kernarg_size 80', '  .amdhsa_user_sgpr_count 2',
                '  .amdhsa_user_sgpr_kernarg_segment_ptr 1', '  .amdhsa_system_sgpr_workgroup_id_x 1', '.end_amdhsa_kernel']
        return '\n'.join(out) + '\n'


def c_gap(c, r_):
    return {0: 30, 7: 20, 14: 20}[r_]


class TimedStream:
    def __init__(self, name, items):
        self.name = name; self.items = items; self.idx = 0; self.last_step = -10**9

    def done(self):
        while self.idx < len(self.items) and self.items[self.idx][0] == 'deadline': self.idx += 1
        return self.idx >= len(self.items)

    def next_deadline(self):
        cost = 0
        for it in self.items[self.idx:]:
            if it[0] == 'deadline': return it[1], cost
            cost += sum(x.cost for x in it[1])
        return None, cost


def flush(s):
    r = [x for it in s.items[s.idx:] if it[0] != 'deadline' for x in it[1]]
    s.idx = len(s.items)
    return r


def schedule_timed(steps, streams, log=None, stamps=None):
    out = []
    m0_owner = None
    for g, st in enumerate(steps):
        if stamps and g in stamps: out.extend(stamps[g]())
        out.extend(st.pre)
        used = sum(i.cost for i in st.pre)
        cap = st.cap if st.cap is not None else (8 if st.mf.kind == 'mfma32' else 4)
        out.append(st.mf); used += st.mf.cost
        forced = 0
        for s in streams:
            dl, cost = s.next_deadline()
            if dl is not None and dl <= g:
                while s.items[s.idx][0] != 'deadline':
                    assert s.items[s.idx][0] <= g, (s.name, s.items[s.idx], g)
                    out.extend(s.items[s.idx][1]); forced += sum(x.cost for x in s.items[s.idx][1]); s.idx += 1
                s.idx += 1; s.last_step = g
        used += forced
        out.extend(st.post); used += sum(i.cost for i in st.post)
        progress = True
        while progress:
            progress = False
            for s in streams:
                if s.idx < len(s.items) and s.items[s.idx][0] == 'deadline':
                    s.idx += 1
                if s.idx >= len(s.items): continue
                t0, grp = s.items[s.idx]
                if t0 == 'deadline' or g < t0: continue
                if grp[0].gap and g < s.last_step + grp[0].gap: continue
                c = sum(x.cost for x in grp)
                extra = sum((8 if x.kind == 'mfma32' else 4) for x in grp if x.kind in ('mfma32', 'mfma16'))
                late = (s.name in ('dma', 'ypk') and g >= t0 + 2) or (c > 3 and used < cap) or (c >= 2 and used < cap and st.mf.kind == 'mfma16')
                if used + c > cap + extra and not late: continue
                out.extend(grp); used += c; cap += extra
                s.idx += 1; s.last_step = g
                progress = True
                break
        if log is not None: log.append((g, used, cap, forced, {s.name: s.idx for s in streams}))
    return out


if __name__ == '__main__':
    kw = {}
    for a in sys.argv[2:]:
        k, v = a.split('='); kw[k] = eval(v)
    g = Gen(Cfg(**kw)); g.build()
    open(sys.argv[1], 'w').write(g.text())
    print('instrs', len(g.prog), 'est clk', estimate(g.prog), {k: v for k, v in g.stats.items() if k != 'nop_sites'})
    over = [(x[0], x[1], x[2], x[3]) for x in g.log if x[1] > x[2]]
    print('overfull steps', len(over), 'excess slots', sum(x[1] - x[2] for x in over), over[:40])
    print('slots', g.slot, g.slotS, g.loadp, 'ring0', g.ring0, 'parked', len(g.park))
```

```python
import re, sys, time
import numpy as np
from asmlib import *

U = np.uint32


def bf16_round(f):
    u = np.ascontiguousarray(f, dtype=np.float32).view(U)
    r = ((u + U(0x7fff) + ((u >> U(16)) & U(1))) >> U(16)).astype(U)
    nan = np.isnan(f)
    if nan.any(): r = np.where(nan, U(0x7fc0), r)
    return r


def bf2f(u16):
    return (u16.astype(U) << U(16)).view(np.float32)


class Sim:
    def __init__(self, prog, bufs, nwg=256, seed=0, check=True, wsmax=0x3100000):
        self.prog = prog; self.nwg = nwg; NW = self.NW = nwg * 4
        rng = np.random.default_rng(seed)
        self.V = rng.integers(0, 2**32, (512, NW, 64), dtype=U)
        self.S = rng.integers(0, 2**32, (128, NW), dtype=U)
        self.lds = rng.integers(0, 2**32, (nwg, 40960), dtype=U)
        self.V[0] = (np.arange(NW)[:, None] % 4) * 64 + np.arange(64)[None, :]
        self.S[2] = np.arange(NW) // 4
        self.exec = np.ones((NW, 64), bool)
        self.scc = np.zeros(NW, bool)
        self.bufs = bufs
        self.wg = (np.arange(NW) // 4)[:, None]
        self.wid = np.arange(NW)
        self.lane = np.arange(64)[None, :]
        self.check = check
        self.vm = []; self.lg = []
        self.epoch = 0
        n = 40960
        self.w_wave = np.full(n, -1, np.int8); self.w_op = np.full(n, -1, np.int32)
        self.r_ep = np.full((4, n), -1, np.int32); self.r_op = np.full((4, n), -1, np.int32)
        self.op_ret = {}
        nd = wsmax // 4
        self.wprod = np.full(nd, -1, np.int16); self.wret = np.full(nd, 2**30, np.int32); self.wiss = np.zeros(nd, np.int32)
        self.known = np.zeros((NW, NW), np.int32)
        self.polled = {}
        self.errors = []
        l = np.arange(64)
        self.idx = 0

    def err(self, msg):
        self.errors.append((self.idx, self.prog[self.idx].text, msg))
        if len(self.errors) <= 30: print('ERR', self.idx, self.prog[self.idx].text, '::', msg)

    def reg(self, o):
        m = re.match(r'^(v|a)(\d+)$', o)
        return int(m.group(2)) + (256 if m.group(1) == 'a' else 0)

    def rng_(self, o):
        m = re.match(r'^(v|a|s)\[(\d+):(\d+)\]$', o)
        if m: return int(m.group(2)) + (256 if m.group(1) == 'a' else 0), int(m.group(3)) - int(m.group(2)) + 1
        m = re.match(r'^(v|a|s)(\d+)$', o)
        return int(m.group(2)) + (256 if m.group(1) == 'a' else 0), 1

    def const(self, o):
        if re.match(r'^-?\d+\.\d+$', o): return np.float32(float(o)).view(U)
        return U(int(o, 0) & 0xffffffff)

    def sval(self, o):
        if o == 'm0': return self.S[124]
        if o[0] == 's' and o[1:].isdigit(): return self.S[int(o[1:])]
        if o.startswith('CODE_END'): return np.full(self.NW, 65536, U)
        return np.full(self.NW, self.const(o), U)

    def sset(self, o, v):
        if o == 'm0': self.S[124] = v
        else: self.S[int(o[1:])] = v

    def vu(self, o):
        if o[0] in 'va' and o[1:].isdigit(): return self.V[self.reg(o)]
        if o[0] == 's' and o[1:].isdigit(): return self.S[int(o[1:])][:, None]
        return self.const(o)

    def vf(self, o):
        neg = o.startswith('-') and not o[1].isdigit()
        if neg: o = o[1:]
        x = np.asarray(self.vu(o)).view(np.float32)
        return -x if neg else x

    def vset(self, o, val):
        r = self.reg(o) if isinstance(o, str) else o
        val = np.asarray(val)
        if val.dtype == np.float32: val = val.view(U)
        if self.exec_all: self.V[r] = val
        else: self.V[r] = np.where(self.exec, val, self.V[r])

    def mask_get(self, o):
        b = 106 if o == 'vcc' else self.rng_(o)[0]
        lo = (self.S[b][:, None] >> np.arange(32, dtype=U)[None, :]) & 1
        hi = (self.S[b + 1][:, None] >> np.arange(32, dtype=U)[None, :]) & 1
        return np.concatenate([lo, hi], 1).astype(bool)

    def mask_set(self, o, m):
        b = 106 if o == 'vcc' else self.rng_(o)[0]
        m = m & self.exec
        w = (U(1) << np.arange(32, dtype=U))[None, :]
        self.S[b] = (m[:, :32] * w).sum(1, dtype=np.uint64).astype(U)
        self.S[b + 1] = (m[:, 32:] * w).sum(1, dtype=np.uint64).astype(U)

    def gaddr(self, ops, mods, nbytes):
        va, R, so = ops
        b = self.rng_(R)[0]
        hi = self.S[b + 1]
        if int(hi[0]) == 0xc0de: return None, None, None
        slot = int(hi[0]) - 16
        assert (hi == hi[0]).all() and 0 <= slot < 10 and (self.S[b] == 0).all(), 'bad srd'
        assert (self.S[b + 3] == 0x20000).all()
        nrec = int(self.S[b + 2][0])
        m = re.search(r'offset:(\d+)', mods); imm = int(m.group(1)) if m else 0
        voff = self.V[self.reg(va)].astype(np.int64) + imm
        tot = voff + self.sval(so).astype(np.int64)[:, None]
        ok = (voff + nbytes <= nrec) & self.exec
        bad = ok & (tot + nbytes > nrec)
        if bad.any(): self.err(f'global OOB via soffset max={tot[bad].max()} nrec={nrec}')
        amb = (~ok) & self.exec & (voff < 0x40000000)
        if amb.any(): self.err(f'unintended voffset OOB {voff[amb].max()} nrec={nrec}')
        if (tot[ok] % 4).any(): self.err('misaligned global')
        ok &= ~bad
        return slot, np.where(ok, tot, 0) // 4, ok

    def lds_rd_check(self, dw):
        if not self.check: return
        for w in range(4):
            a = dw[w].ravel()
            ww = self.w_wave[a]; wo = self.w_op[a]
            for op in np.unique(wo):
                sel = wo == op
                if op < 0:
                    continue
                ret = self.op_ret.get(int(op))
                if ret is None: self.err(f'LDS read of unretired write op{op} {self.prog[op].text}')
                elif ret >= self.epoch and (ww[sel] != w).any(): self.err(f'LDS read without barrier, writer op{op} {self.prog[op].text}')
            self.r_ep[w, a] = self.epoch; self.r_op[w, a] = self.idx

    def lds_wr_check(self, dw, act, data, dma):
        if not self.check: return
        for w in range(4):
            a = dw[w][act[w]].ravel(); d = data[w][act[w]].ravel()
            keep = (a < (0x24000 + 0x3800) // 4) | (a >= (0x24000 + 0x3810) // 4)
            a = a[keep]; d = d[keep]
            for w2 in range(4):
                ro = self.r_op[w2, a]
                for op in np.unique(ro):
                    if op < 0: continue
                    ret = self.op_ret.get(int(op))
                    if w2 == w:
                        if dma and ret is None: self.err(f'DMA over own unretired read op{op} {self.prog[op].text}')
                    else:
                        ep = self.r_ep[w2, a][ro == op].max()
                        if ep >= self.epoch: self.err(f'LDS WAR without barrier vs op{op} {self.prog[op].text}')
                        elif not dma and (ret is None or ret >= self.epoch): self.err(f'LDS WAR (unretired read) vs op{op} {self.prog[op].text}')
            wo = self.w_op[a]; ww = self.w_wave[a]
            for op in np.unique(wo):
                if op < 0: continue
                sel = (wo == op)
                ret = self.op_ret.get(int(op))
                other = sel & (ww != w)
                if op == self.idx:
                    if (self.lds[0, a[other]] != d[other]).any(): self.err('same-op WAW with different data')
                    continue
                if other.any() and (ret is None or ret >= self.epoch):
                    if (self.lds[0, a[other]] != d[other]).any(): self.err(f'LDS WAW without barrier vs op{op} {self.prog[op].text}')
                own = sel & (ww == w)
                if own.any() and ret is None and (dma or self.prog[op].kind == 'dma'): self.err(f'own WAW unordered vs op{op} {self.prog[op].text}')
            self.lds[0, a] = d
            self.w_wave[a] = w; self.w_op[a] = self.idx

    def retire(self, q, n):
        while len(q) > n:
            op, info = q.pop(0)
            self.op_ret[op] = self.epoch
            if info is not None:
                self.wret[info] = self.idx

    def mat(self, r, n=4):
        x = self.V[r:r + n]
        lo = (x << U(16)).view(np.float32); hi = (x & U(0xffff0000)).view(np.float32)
        return np.stack([lo, hi], -1).transpose(1, 2, 0, 3).reshape(self.NW, 64, 2 * n)

    def run(self, stop=None, hooks=None):
        t0 = time.time()
        for idx, ins in enumerate(self.prog):
            self.idx = idx
            if hooks and idx in hooks: hooks[idx](self)
            if stop is not None and idx >= stop: break
            self.exec_all = bool(self.exec.all())
            self.step(ins)
        print('sim done', time.time() - t0, 's; errors', len(self.errors))

    def step(self, ins):
        t = ins.text.strip()
        if ins.kind == 'label': return
        parts = t.split(None, 1); op = parts[0]
        rest = parts[1] if len(parts) > 1 else ''
        if op.startswith('s_waitcnt'):
            m = re.search(r'vmcnt\((\d+)\)', t)
            if m: self.retire(self.vm, int(m.group(1)))
            m = re.search(r'lgkmcnt\((\d+)\)', t)
            if m: self.retire(self.lg, int(m.group(1)))
            return
        mm = re.search(r'\s(op_sel\S*.*)$', rest)
        pkmods = ''
        if mm: pkmods = mm.group(1); rest = rest[:mm.start()]
        ops = [o.strip() for o in rest.split(',')] if rest else []
        mods = ''
        if ops:
            lp = ops[-1].split(None, 1); ops[-1] = lp[0]; mods = lp[1] if len(lp) > 1 else ''
        V = self.V; S = self.S; vu = self.vu; vf = self.vf; vs = self.vset
        with np.errstate(all='ignore'):
            if op == 's_barrier': self.epoch += 1
            elif op in ('s_nop', 's_setprio'): pass
            elif op == 's_cbranch_scc1': assert not self.scc.any()
            elif op == 's_cbranch_vccnz':
                if (S[106] | S[107]).any(): self.err('poll not satisfied in program order')
                nm = ops[0][5:]
                if nm != 'cnt':
                    assert 'cnt' in self.polled_ok
                    a = self.polled[nm]
                    np.maximum.at(self.known, (np.repeat(self.wid, 64), self.wprod[a].ravel()), self.wiss[a].ravel())
                self.polled_ok = getattr(self, 'polled_ok', set()) | {nm}
            elif op == 's_load_dwordx2':
                b = self.rng_(ops[0])[0]; S[b] = 0; S[b + 1] = 16 + int(ops[2]) // 8
            elif op == 's_getpc_b64':
                b = self.rng_(ops[0])[0]; S[b] = 0; S[b + 1] = 0xc0de
            elif op in ('s_memtime', 's_memrealtime'):
                b = self.rng_(ops[0])[0]; S[b] = self.idx; S[b + 1] = 0
            elif op == 's_mov_b32' and ops[0].startswith('exec_'):
                v = int(ops[1], 0) & 0xffffffff; o = 32 if ops[0] == 'exec_hi' else 0
                self.exec = self.exec.copy(); self.exec[:, o:o + 32] = np.array([(v >> k) & 1 for k in range(32)], bool)
            elif op == 's_mov_b32': self.sset(ops[0], self.sval(ops[1]))
            elif op == 's_mov_b64':
                assert ops[0] == 'exec'
                v = int(ops[1], 0) & (2**64 - 1)
                self.exec = np.tile(np.array([(v >> k) & 1 for k in range(64)], bool), (self.NW, 1))
            elif op == 's_cselect_b64':
                b = self.rng_(ops[0])[0]
                v = np.where(self.scc, self.sval(ops[1]), self.sval(ops[2])); S[b] = v; S[b + 1] = v
            elif op == 's_cselect_b32': self.sset(ops[0], np.where(self.scc, self.sval(ops[1]), self.sval(ops[2])))
            elif op.startswith('s_cmp'):
                a, b = self.sval(ops[0]), self.sval(ops[1])
                self.scc = {'ge': a >= b, 'eq': a == b, 'lt': a < b}[op.split('_')[2]]
            elif op.startswith('s_'):
                a, b = self.sval(ops[1]), self.sval(ops[2])
                if op in ('s_add_u32', 's_add_i32'): r = a + b
                elif op == 's_sub_u32': r = a - b
                elif op == 's_mul_i32': r = a * b
                elif op == 's_and_b32': r = a & b
                elif op == 's_lshl_b32': r = a << (b & U(31))
                elif op == 's_lshr_b32': r = a >> (b & U(31))
                elif op == 's_min_u32': r = np.minimum(a, b)
                elif op == 's_bfe_u32': r = (a >> (b & U(31))) & ((U(1) << ((b >> U(16)) & U(31))) - U(1))
                else: raise ValueError(t)
                self.sset(ops[0], r.astype(U))
            elif op.startswith('v_mfma'):
                assert self.exec_all
                d, nd = self.rng_(ops[0])
                A = self.mat(self.rng_(ops[1])[0]); B = self.mat(self.rng_(ops[2])[0])
                n = 32 if '32x32' in op else 16
                kg = 64 // n
                A = A.reshape(self.NW, kg, n, 8).transpose(0, 2, 1, 3).reshape(self.NW, n, kg * 8)
                B = B.reshape(self.NW, kg, n, 8).transpose(0, 1, 3, 2).reshape(self.NW, kg * 8, n)
                D = np.matmul(A, B)
                if n == 32: D = D.reshape(self.NW, 4, 2, 4, 32).transpose(1, 3, 0, 2, 4).reshape(16, self.NW, 64)
                else: D = D.reshape(self.NW, 4, 4, 16).transpose(2, 0, 1, 3).reshape(4, self.NW, 64)
                if ops[3] != '0':
                    c = self.rng_(ops[3])[0]; D = D + V[c:c + nd].view(np.float32)
                V[d:d + nd] = np.ascontiguousarray(D).view(U)
            elif op.startswith('ds_read'):
                d, nd = self.rng_(ops[0])
                m = re.search(r'offset:(\d+)', mods); imm = int(m.group(1)) if m else 0
                a = V[self.reg(ops[1])].astype(np.int64) + imm
                if (a + 4 * nd > 163840).any(): self.err('LDS OOB read')
                if (a % (4 * min(nd, 2) if nd < 4 else 16)).any(): self.err('LDS misaligned read')
                a = (a // 4)[..., None] + np.arange(nd)
                self.lds_rd_check(a[:4])
                x = self.lds[self.wg[..., None], a]
                if 'tr_b16' in op:
                    assert self.exec_all
                    e = np.stack([x & U(0xffff), x >> U(16)], -1).reshape(self.NW, 4, 4, 4, 4)
                    e = e.transpose(0, 1, 3, 4, 2).reshape(self.NW, 64, 4)
                    x = np.stack([e[..., 0] | (e[..., 1] << U(16)), e[..., 2] | (e[..., 3] << U(16))], -1)
                for k in range(nd): vs(d + k, x[..., k])
                self.lg.append((self.idx, None))
            elif op.startswith('ds_write'):
                s, ns = self.rng_(ops[1])
                m = re.search(r'offset:(\d+)', mods); imm = int(m.group(1)) if m else 0
                a = V[self.reg(ops[0])].astype(np.int64) + imm
                if (a + 4 * ns > 163840).any(): self.err('LDS OOB write')
                if (a % (4 * ns)).any(): self.err('LDS misaligned write')
                a = (a // 4)[..., None] + np.arange(ns)
                data = V[s:s + ns].transpose(1, 2, 0)
                self.lds_wr_check(a[:4], self.exec[:4], data[:4], False)
                wg = np.broadcast_to(self.wg[..., None], a.shape)
                self.lds[wg[self.exec], a[self.exec]] = data[self.exec]
                self.lg.append((self.idx, None))
            elif op.startswith('buffer_load'):
                lds = ins.kind == 'dma'
                n = {'dword': 1, 'dwordx2': 2, 'dwordx4': 4}[op.split('_')[2]]
                slot, a, ok = self.gaddr(ops[-3:], mods, 4 * n)
                if slot is None:
                    self.vm.append((self.idx, None)); return
                a = a[..., None] + np.arange(n)
                x = np.where(ok[..., None], self.bufs[slot][a], U(0))
                if slot == 9 and self.check:
                    assert 'sc1' in mods
                    if a[ok].max() < 0x20000 // 4:
                        self.polled[ins.tok] = a[..., 0]
                    else:
                        okk = np.broadcast_to(ok[..., None], a.shape)
                        cons = np.broadcast_to(self.wid[:, None, None], a.shape)[okk]
                        aa = a[okk]; pr = self.wprod[aa]
                        un = pr < 0
                        if un.any() and not ins.tok.startswith('y2'): self.err(f'load of unwritten ws {un.sum()}')
                        bad = (~un) & (self.known[cons, pr] <= self.wret[aa])
                        if bad.any(): self.err(f'hand-off not covered by a checked flag: {bad.sum()}')
                if lds:
                    m = re.search(r'offset:(\d+)', mods); imm = int(m.group(1)) if m else 0
                    la = (S[124].astype(np.int64)[:, None] + imm + 16 * self.lane) // 4
                    if (la * 4 + 16 > 163840)[self.exec].any(): self.err('DMA LDS OOB')
                    la = la[..., None] + np.arange(4)
                    self.lds_wr_check(la[:4], self.exec[:4], x[:4], True)
                    wg = np.broadcast_to(self.wg[..., None], la.shape)
                    self.lds[wg[self.exec], la[self.exec]] = x[self.exec]
                else:
                    d, nd = self.rng_(ops[0])
                    for k in range(nd): vs(d + k, x[..., k])
                self.vm.append((self.idx, None))
            elif op.startswith('buffer_store'):
                s, ns = self.rng_(ops[0])
                slot, a, ok = self.gaddr(ops[-3:], mods, 4 * ns)
                assert slot >= 7
                a = a[..., None] + np.arange(ns)
                data = V[s:s + ns].transpose(1, 2, 0)
                self.bufs[slot][a[ok]] = data[ok]
                info = None
                if slot == 9:
                    info = a[ok].ravel()
                    self.wprod[info] = np.broadcast_to(self.wid[:, None, None], a.shape)[ok].ravel()
                    self.wret[info] = 2**30; self.wiss[info] = self.idx
                self.vm.append((self.idx, info))
            elif op == 'buffer_atomic_add':
                slot, a, ok = self.gaddr(ops[-3:], mods, 4)
                np.add.at(self.bufs[slot], a[ok], V[self.reg(ops[0])][ok])
                self.vm.append((self.idx, None))
            elif op == 'v_readfirstlane_b32': self.sset(ops[0], V[self.reg(ops[1])][:, 0])
            elif op == 'v_writelane_b32': V[self.reg(ops[0])][:, int(ops[2])] = self.sval(ops[1])
            elif op in ('v_mov_b32', 'v_accvgpr_read_b32', 'v_accvgpr_write_b32'):
                vs(ops[0], np.broadcast_to(vu(ops[1]), (self.NW, 64)).copy())
            elif op.startswith('v_cmp'):
                a, b = vu(ops[1]), vu(ops[2])
                r = {'eq': a == b, 'ne': a != b, 'gt': a > b, 'le': a <= b, 'lt': a < b, 'ge': a >= b}[op.split('_')[2]]
                self.mask_set(ops[0], np.broadcast_to(r, (self.NW, 64)))
            elif op == 'v_cndmask_b32': vs(ops[0], np.where(self.mask_get(ops[3]), vu(ops[2]), vu(ops[1])).astype(U))
            elif op == 'v_permlane32_swap_b32':
                a, b = self.reg(ops[0]), self.reg(ops[1])
                tmp = V[a][:, 32:].copy(); V[a][:, 32:] = V[b][:, :32]; V[b][:, :32] = tmp
            elif op == 'v_permlane16_swap_b32':
                a, b = self.reg(ops[0]), self.reg(ops[1])
                for h in (0, 32):
                    tmp = V[a][:, h + 16:h + 32].copy(); V[a][:, h + 16:h + 32] = V[b][:, h:h + 16]; V[b][:, h:h + 16] = tmp
            elif op == 'v_cvt_pk_bf16_f32':
                vs(ops[0], bf16_round(vf(ops[1])) | (bf16_round(vf(ops[2])) << U(16)))
            elif op == 'v_pk_max_i16':
                assert ops[2] == '0'
                x = vu(ops[1])
                vs(ops[0], np.where(x & U(0x8000), U(0), x & U(0xffff)) | np.where(x & U(0x80000000), U(0), x & U(0xffff0000)))
            elif op == 'v_dot2c_f32_bf16':
                a, b = np.asarray(vu(ops[1])), np.asarray(vu(ops[2]))
                f = lambda x: ((x << U(16)).view(np.float32), (x & U(0xffff0000)).view(np.float32))
                (al, ah), (bl, bh) = f(a), f(b)
                vs(ops[0], (vf(ops[0]) + al * bl + ah * bh).astype(np.float32))
            elif op.startswith('v_pk_') and op.endswith('f32'):
                d = self.rng_(ops[0])[0]
                def g(o, k):
                    if o[0] == 'v': return V[self.rng_(o)[0] + k].view(np.float32)
                    assert pkmods == 'op_sel_hi:[1,0]'
                    return np.float32(float(o))
                r = []
                for k in range(2):
                    if 'mul' in op: r.append(g(ops[1], k) * g(ops[2], k))
                    elif 'add' in op: r.append(g(ops[1], k) + g(ops[2], k))
                    else: r.append(g(ops[1], k) * g(ops[2], k) + g(ops[3], k))
                vs(d, r[0]); vs(d + 1, r[1])
            elif op.endswith('_f32'):
                x = [vf(o) for o in ops[1:]]
                r = {'v_add_f32': lambda: x[0] + x[1], 'v_mul_f32': lambda: x[0] * x[1], 'v_max_f32': lambda: np.maximum(x[0], x[1]),
                     'v_min_f32': lambda: np.minimum(x[0], x[1]), 'v_fma_f32': lambda: (x[0].astype(np.float64) * x[1] + x[2]).astype(np.float32),
                     'v_max3_f32': lambda: np.maximum(np.maximum(x[0], x[1]), x[2]), 'v_min3_f32': lambda: np.minimum(np.minimum(x[0], x[1]), x[2]),
                     'v_exp_f32': lambda: np.exp2(x[0]), 'v_rcp_f32': lambda: np.float32(1) / x[0], 'v_sqrt_f32': lambda: np.sqrt(x[0]),
                     'v_sub_f32': lambda: x[0] - x[1]}[op]()
                vs(ops[0], np.broadcast_to(r.astype(np.float32), (self.NW, 64)))
            else:
                x = [np.asarray(vu(o)) for o in ops[1:]]
                m24 = U(0xffffff)
                r = {'v_and_b32': lambda: x[0] & x[1], 'v_or_b32': lambda: x[0] | x[1], 'v_xor_b32': lambda: x[0] ^ x[1],
                     'v_add_u32': lambda: x[0] + x[1], 'v_sub_u32': lambda: x[0] - x[1], 'v_subrev_u32': lambda: x[1] - x[0],
                     'v_lshlrev_b32': lambda: x[1] << (x[0] & U(31)), 'v_lshrrev_b32': lambda: x[1] >> (x[0] & U(31)),
                     'v_mul_u32_u24': lambda: (x[0] & m24) * (x[1] & m24), 'v_lshl_add_u32': lambda: (x[0] << x[1]) + x[2],
                     'v_lshl_or_b32': lambda: (x[0] << x[1]) | x[2], 'v_and_or_b32': lambda: (x[0] & x[1]) | x[2],
                     'v_min_u32': lambda: np.minimum(x[0], x[1]), 'v_bfe_u32': lambda: (x[0] >> x[1]) & ((U(1) << x[2]) - U(1))}[op]()
                vs(ops[0], np.broadcast_to(r.astype(U), (self.NW, 64)))


def bf(x): return bf2f(bf16_round(x))


def make_inputs(seed):
    rng = np.random.default_rng(seed)
    rn = lambda sh, sc: bf(bf(rng.standard_normal(sh).astype(np.float32)) * np.float32(sc))
    x = rn((2048, 576), 0.05); wqkv = rn((576, 1728), 0.2); wphi = bf(rn((32, 18, 18), 0.2) * np.float32(18 ** -0.5))
    wo = rn((576, 576), 0.05); bx = rn((2048, 576), 0.05); w1 = rn((576, 4608), 0.05); w2 = rn((4608, 576), 0.05)
    return [x, wqkv, wphi, wo, bx, w1, w2]


def pack(a):
    u = bf16_round(a).astype(np.uint16).ravel()
    return u.view(U).copy()


def emu(inp):
    x, wqkv, wphi, wo, _, w1, w2 = inp
    R = {}
    m = x.mean(-1, keepdims=True); v = (x * x).mean(-1, keepdims=True) - m * m
    mb = bf(m); sd = bf(np.sqrt(bf(bf(v) + np.float32(1e-5)))); rs = 1 / sd
    d = bf(x - mb)
    R['d'] = d; R['rs'] = rs
    h = bf(np.maximum(d @ w1, 0)); R['h'] = h
    R['yp'] = np.stack([bf(h[:, q * 1152:(q + 1) * 1152] @ w2[q * 1152:(q + 1) * 1152]) for q in range(4)])
    y = R['yp'].sum(0) * rs
    qkv = bf((d @ wqkv) * rs).reshape(2048, 3, 32, 18).transpose(1, 2, 0, 3)
    sm = lambda p: np.exp(p - p.max(-1, keepdims=True)) / np.exp(p - p.max(-1, keepdims=True)).sum(-1, keepdims=True)
    pq = qkv[0] @ wphi; pk = qkv[1] @ wphi
    phq = bf(np.concatenate([sm(pq), sm(-pq)], -1)); phk = bf(np.concatenate([sm(pk), sm(-pk)], -1))
    v1 = np.concatenate([qkv[2], np.ones((32, 2048, 1), np.float32)], -1)
    R['kvp'] = np.einsum('hrsf,hrsd->rhfd', phk.reshape(32, 16, 128, 36), v1.reshape(32, 16, 128, 19))
    kv = bf(R['kvp'].sum(0))
    nd = phq @ kv
    o = bf(nd[..., :18] / (nd[..., 18:] + 1e-6)).transpose(1, 0, 2).reshape(2048, 576); R['o'] = o
    s = o @ wo
    R['out'] = bf(x + s * y / (1 + np.exp(-y)))
    return R


def unpack_ws(ws):
    from kern import WS_H, WS_KV, WS_OM, WS_OX, WS_Y
    R = {}
    b16 = lambda off, n: bf2f(ws[off // 4: off // 4 + n].view(np.uint16))
    h = b16(WS_H, 1024 * 4608).reshape(16, 16, 4, 9, 2, 4, 16, 2, 4)
    R['h'] = h.transpose(0, 2, 4, 6, 1, 3, 7, 5, 8).reshape(2048, 4608)
    kv = ws[WS_KV // 4: WS_KV // 4 + 256 * 1536].view(np.float32).reshape(16, 16, 1536)[:, :, :1440].reshape(16, 16, 2, 5, 36, 4)
    kv = kv.transpose(1, 0, 2, 4, 3, 5).reshape(16, 16, 2, 36, 20)
    A = kv[:, :, 0, :, :19]
    B = np.concatenate([kv[:, :, 1, :, 18:20], kv[:, :, 1, :, :16], kv[:, :, 1, :, 16:17]], -1)
    R['kvp'] = np.stack([A, B], 2).reshape(16, 32, 36, 19)
    om = b16(WS_OM, 64 * 16 * 512).reshape(64, 16, 2, 2, 32, 8)
    ox = b16(WS_OX, 64 * 1024).reshape(64, 2, 4, 32, 2, 4)
    o = np.zeros((64, 32, 16, 36), np.float32)
    mm = om.transpose(0, 4, 1, 3, 2, 5).reshape(64, 32, 16, 2, 16)
    o[..., 0:16] = mm[..., 0, :]; o[..., 20:36] = mm[..., 1, :]
    o[..., 16:20] = ox.transpose(0, 3, 1, 4, 2, 5).reshape(64, 32, 16, 4)
    R['o'] = o.reshape(2048, 576)
    y = b16(WS_Y, 1024 * 2560).reshape(16, 4, 4, 4, 2, 5, 4, 16, 2, 4)
    y = y.transpose(3, 0, 2, 4, 7, 1, 5, 8, 6, 9).reshape(4, 2048, 4, 10, 16)[:, :, :, :9]
    R['yp'] = y.reshape(4, 2048, 576)
    return R


def compare(R, G):
    for k in ('h', 'kvp', 'o', 'yp', 'out'):
        a, b = R[k], G[k]
        d = a - b
        print(f'{k:4s} relL2={np.sqrt((d*d).sum()/(a*a).sum()):.5f} maxabs={np.abs(d).max():.5f} ref_rms={np.sqrt((a*a).mean()):.4f} nan={np.isnan(b).sum()}')


if __name__ == '__main__':
    from kern import Gen, Cfg
    kw = {}
    for a in sys.argv[1:]:
        k, v = a.split('='); kw[k] = eval(v)
    g = Gen(Cfg(**kw)); prog = g.build()
    inp = make_inputs(0)
    rng = np.random.default_rng(5)
    bufs = [pack(a) for a in inp] + [rng.integers(0, 2**32, 2048 * 288, dtype=U), np.zeros(64, U), rng.integers(0, 2**32, 0x3100000 // 4, dtype=U)]
    bufs[9][:0x20000 // 4] = 1
    s = Sim(prog, bufs)
    s.run()
    G = unpack_ws(bufs[9]); G['out'] = bf2f(bufs[7].view(np.uint16)).reshape(2048, 576)
    compare(emu(inp), G)
```

```python
import sys, os
sys.path.insert(0, os.path.dirname(os.path.abspath(__file__)))
from asmlib import *

NAME = 'recurrent_scan__linear_kernel_hedgehog__dense_activation_relu__prompt'

SLOT = 36864
E = 147456
E2 = E + 5120
RSA = E + 12288
DUMMY = E + 0x3800
OUTB = 8192
OOB = 0x80000000
FL_H, FL_KV, FL_O, FL_Y = 0x0, 0x8000, 0x9000, 0x10000
WS_KV, WS_OM, WS_OX, WS_Y, WS_H, WS_TS, WS_DUMP = 0x20000, 0x200000, 0x400000, 0x500000, 0x1000000, 0x3000000, 0x4000000
WS_SIZE = 268435456
X, QKV, PHI, WO, W1, W2, OUT, DBG, WS = 4, 8, 12, 16, 20, 24, 28, 32, 36
srd = lambda n: f's[{n}:{n+3}]'
SIZES = {X: 2359296, QKV: 1990656, PHI: 20736, WO: 663552, W1: 5308416, W2: 5308416, OUT: 2359296, DBG: 256, WS: WS_SIZE}
KOFF = {X: 0, QKV: 8, PHI: 16, WO: 24, W1: 40, W2: 48, OUT: 56, DBG: 64, WS: 72}
soW1, soQ, soW2 = 40, 49, 58
sW, sR, sJ, sQ, sJJ, sWL, sXB = 67, 68, 69, 70, 71, 72, 73
sHown, sHp = 74, 75
sKVown, sKVj, sOMown, sOXown, sOMc, sOXc, sYp, sYc = 78, 79, 80, 81, 82, 83, 84, 85
sFH, sFKV, sFO, sFY = 86, 87, 88, 89
sT0, sT1, sT2, sT3 = 90, 91, 92, 93
sL2E, sWO = 94, 95
sM = 96
sHH = 98
sSPIN = 100
sGW = 66
sT4 = 101
vL16 = 1
vA = 2
vW1 = 11
vQ = 12
vS = 16
vP = 19
vF0, vONE, vRS = 22, 23, 24
vT = 25
ACC = (32, 48)
vH = 64
RING = 144
aPHI = 184
PARK0 = 208

LOG2E = 0x3fb8aa3b


class Cfg:
    rot = 1
    order = ['G', 'Ta', 'Tb', 'Tc', 'Td', 'G', 'G', 'G', 'G', 'G', 'G', 'G', 'G']
    D = 5
    we = 2
    Dh = 10
    NBf = 10
    leadH = 3
    flagA = 4
    ps = 5
    ts = False
    spin = 20000
    stop = None
    pref = True
    skip = ''
    pfA = 2
    pfB = 1
    pfW2 = 5
    pfWO = 15
    dbg = None
    pfH = 1

    def __init__(self, **kw):
        for k, v in kw.items():
            assert hasattr(self, k), k
            setattr(self, k, v)


def L(text, **kw):
    r = []
    for line in text.split('\n'):
        line = line.strip()
        if line:
            r.append(I(line, **kw)); kw.pop('gap', None)
    return r


def glue(lst):
    for x in lst[1:]: x.glue = True
    return lst


class Gen:
    def __init__(self, cfg):
        self.c = cfg
        self.p = []
        self.slow = []
        self.park = {}
        self.nts = 0
        self.notes = []

    def E(self, x, **kw):
        if isinstance(x, str): self.p.extend(L(x, **kw))
        elif isinstance(x, list): self.p.extend(x)
        else: self.p.append(x)

    def parkw(self, name, v):
        a = PARK0 + len(self.park); assert a < 256
        self.park[name] = a
        self.E(f'v_accvgpr_write_b32 a{a}, v{v}')

    def unpark(self, name, v):
        return I(f'v_accvgpr_read_b32 v{v}, a{self.park[name]}')

    def stamp(self, name=''):
        if not self.c.ts: return []
        k = self.nts; self.nts += 1; self.notes.append(name); assert k < 58
        return glue(L(f's_memtime s[0:1]\ns_waitcnt lgkmcnt(0)\nv_writelane_b32 v{vONE}, s0, {k+1}'))

    @staticmethod
    def rng(base_reg, off):
        for k, b in ((0, 0), (1, 55296), (2, 110592)):
            if b <= off and off - b <= 65535 - 512:
                return base_reg + k, off - b
        raise AssertionError(off)

    def poll(self, name, srdn, vaddr, soff, expect, reg):
        ld = f'buffer_load_dword v{reg}, v{vaddr}, {srd(srdn)}, {soff} offen sc1'
        chk = [W(name)] + L(f'v_cmp_ne_u32 vcc, {expect}, v{reg}\ns_cbranch_vccnz SLOW_{name}\nBACK_{name}:')
        self.slow.append(f'''SLOW_{name}:
s_mov_b32 s{sSPIN}, 0
LOOP_{name}:
{ld}
s_add_u32 s{sSPIN}, s{sSPIN}, 1
s_waitcnt vmcnt(0)
v_cmp_ne_u32 vcc, {expect}, v{reg}
s_nop 1
s_cbranch_vccz BACK_{name}
s_cmp_lt_u32 s{sSPIN}, {self.c.spin}
s_cbranch_scc1 LOOP_{name}
s_branch BACK_{name}''')
        return I(ld, tok=name), glue(chk)

    def plan_slots(self):
        c = self.c
        n = 13 + 9 + 4
        logical = {}
        for i in range(4): logical[i] = i
        loadp = {}
        free = []
        stag = None
        nxt = 4
        for p in range(1, 23):
            free.append(logical[p - 1])
            if p == c.ps:
                stag = free.pop(0); continue
            if p == c.ps + 2: free.append(stag)
            while free and nxt < n and nxt <= p + 3:
                logical[nxt] = free.pop(0); loadp[nxt] = p; nxt += 1
        assert nxt == n, (nxt, loadp)
        perm = {logical[22 + g]: g for g in range(4)}
        self.slot = {i: perm[logical[i]] * SLOT for i in logical}
        self.slotS = perm[stag] * SLOT
        self.loadp = loadp

    def dma_item(self, i):
        c = self.c
        out = []
        tok = f'T{i}'
        pre = []
        if i < 13:
            kind = c.order[i]
            if kind == 'G':
                tau = c.order[:i].count('G')
                va = lambda k: vW1; R = W1; so = lambda k: f's{soW1+k}'
                if tau > 0: pre = L(f'v_add_u32 v{vW1}, 64, v{vW1}')
            else:
                vq = vQ + ['Ta', 'Tb', 'Tc', 'Td'].index(kind)
                va = lambda k: vq; R = QKV; so = lambda k: f's{soQ+k}'
        elif i < 22:
            va = lambda k: vA + k; R = W2; so = lambda k: f's{soW2+i-13}'
        else:
            va = lambda k: vA + k; R = WO; so = lambda k: f's{sWO}'
            if i > 22: pre = L(f's_add_u32 s{sWO}, s{sWO}, {128*1152}')
        if pre: out.append(pre)
        for k in range(9):
            if k % 4 == 0:
                out.append(L(f's_add_u32 m0, s{sWL}, {self.slot[i] + k*1024}'))
            out.append([I(f'buffer_load_dwordx4 v{va(k)}, {srd(R)}, {so(k)} offen offset:{(k%4)*1024} lds', tok=tok)])
        return out

    def prologue(self):
        c = self.c; E_ = self.E
        if c.ts: E_('s_memrealtime s[90:91]\ns_memtime s[92:93]')
        E_('s_cmp_ge_u32 s2, 256\ns_cbranch_scc1 L_end')
        for R in (X, W1, QKV, WS, PHI, W2, WO, OUT, DBG):
            E_(f's_load_dwordx2 s[{R}:{R+1}], s[0:1], {KOFF[R]}')
        if c.pref:
            E_('s_getpc_b64 s[40:41]\nPCREF:\ns_mov_b32 s42, CODE_END-PCREF\ns_mov_b32 s43, 0x20000')
            E_('s_lshr_b32 s3, s2, 3\nv_lshlrev_b32 v25, 5, v0\nv_add_u32 v25, s3, v25\nv_lshlrev_b32 v25, 7, v25')
            E_('buffer_load_dword v63, v25, s[40:43], 0 offen', tok='pref')
        E_(f'v_lshrrev_b32 v26, 6, v0\nv_and_b32 v25, 63, v0\nv_lshlrev_b32 v{vL16}, 4, v25')
        E_(f'v_readfirstlane_b32 s{sW}, v26')
        E_(f's_and_b32 s3, s2, 1\ns_lshl_b32 s3, s3, 3\ns_lshr_b32 s{sR}, s2, 5\ns_add_u32 s{sR}, s{sR}, s3')
        E_(f's_bfe_u32 s{sQ}, s2, 0x20001\ns_bfe_u32 s{sJJ}, s2, 0x20003\ns_lshl_b32 s{sJ}, s{sQ}, 2\ns_add_u32 s{sJ}, s{sJ}, s{sJJ}')
        E_(f's_mul_i32 s{sWL}, s{sW}, 9216')
        E_(f's_lshl_b32 s3, s{sR}, 2\ns_add_u32 s3, s3, s{sW}\ns_mul_i32 s{sXB}, s3, 36864')
        for R in SIZES:
            E_(f's_mov_b32 s{R+2}, {SIZES[R]}\ns_mov_b32 s{R+3}, 0x20000')
        for i in range(9):
            E_(f'v_add_u32 v26, {64*i}, v25' if i else 'v_mov_b32 v26, v25')
            E_(f'v_mul_u32_u24 v27, 3641, v26\nv_lshrrev_b32 v27, 16, v27\nv_mul_u32_u24 v27, 864, v27\nv_lshl_add_u32 v{vA+i}, v26, 4, v27')
            if i % 4: E_(f'v_subrev_u32 v{vA+i}, {(i%4)*1024}, v{vA+i}')
        rot = {0: None, 1: sJJ, 2: sQ}[c.rot]
        for sg in range(4):
            if rot is None: E_(f's_add_u32 s{58+sg}, s{sXB}, {288*sg}')
            else: E_(f's_add_u32 s3, s{rot}, {sg}\ns_and_b32 s3, s3, 3\ns_mul_i32 s3, s3, 288\ns_add_u32 s{58+sg}, s{sXB}, s3')
        E_(f's_lshr_b32 s3, s2, 3\ns_lshl_b32 s3, s3, 2\ns_add_u32 s{sGW}, s3, s{sW}')
        pfa = L(f's_lshr_b32 s62, s{sGW}, 1\ns_and_b32 s63, s{sGW}, 1\ns_mul_i32 s64, s62, {9*9216}\ns_mul_i32 s3, s63, 1152\ns_add_u32 s64, s64, s3\ns_mul_i32 s3, s{sQ}, 2304\ns_add_u32 s64, s64, s3')
        pfa += L('v_lshrrev_b32 v32, 1, v25\nv_mul_u32_u24 v32, 9216, v32\nv_and_b32 v33, 1, v25\nv_lshl_add_u32 v32, v33, 9, v32')
        pfa += L(f's_mul_i32 s3, s63, 41\nv_add_u32 v33, s3, v25\nv_min_u32 v33, 80, v33\nv_mul_u32_u24 v34, 7282, v33\nv_lshrrev_b32 v34, 16, v34\nv_mul_u32_u24 v35, 9, v34\nv_sub_u32 v33, v33, v35')
        pfa += L('v_mul_u32_u24 v35, 86, v33\nv_lshrrev_b32 v35, 8, v35\nv_mul_u32_u24 v34, 3456, v34\nv_lshl_add_u32 v34, v33, 7, v34\nv_mul_u32_u24 v35, 768, v35\nv_add_u32 v33, v34, v35')
        pfa += L(f's_mul_i32 s65, s62, {9*3456}\ns_mul_i32 s3, s{sQ}, 288\ns_and_b32 s3, s3, 0xffffff80\ns_add_u32 s65, s65, s3')
        pfa += L(f's_mov_b64 exec, 0x3ffff\nbuffer_load_dword a255, v32, {srd(W1)}, s64 offen\ns_mov_b32 exec_lo, -1\ns_mov_b32 exec_hi, 0x1ff\nbuffer_load_dword a254, v33, {srd(QKV)}, s65 offen\ns_mov_b64 exec, -1')
        pfb = L('v_min_u32 v36, 62, v25\nv_mul_u32_u24 v34, 9363, v36\nv_lshrrev_b32 v34, 16, v34\nv_mul_u32_u24 v35, 7, v34\nv_sub_u32 v35, v36, v35\nv_mul_u32_u24 v34, 9216, v34')
        pfb += L('v_cmp_le_u32 vcc, 3, v35\nv_lshl_add_u32 v34, v35, 7, v34\nv_mov_b32 v35, 128\nv_mov_b32 v36, 256\nv_cndmask_b32 v35, v35, v36, vcc\nv_add_u32 v62, v34, v35\nv_add_u32 v62, s64, v62')
        self.pfb_ld = L(f'buffer_load_dword a253, v62, {srd(W1)}, 0 offen')
        E_('s_waitcnt lgkmcnt(0)')
        if c.pfA == 1: E_(pfa)
        for sg in range(4):
            for k in range(9):
                if k % 4 == 0: E_(f's_add_u32 m0, s{sWL}, {self.slot[sg] + k*1024}')
                E_(I(f'buffer_load_dwordx4 v{vA+k}, {srd(X)}, s{58+sg} offen offset:{(k%4)*1024} lds', tok=f'x{sg}'))
            if c.pfA == 2 and sg == 0: E_(pfa)
        if c.pfA == 3: E_(pfa)
        if c.pfA == 0 and c.pfB: E_(pfa[:7])
        if c.pfB: E_(pfb)
        if c.pfB == 1: E_(self.pfb_ld)
        E_(f'v_mov_b32 v{vONE}, 1')
        if c.ts: E_(f'v_writelane_b32 v{vONE}, s90, 60\nv_writelane_b32 v{vONE}, s92, 61')
        E_(self.stamp('xiss'))
        l, t, hh, n, g, r4, c4, tb = 25, 32, 33, 34, 35, 36, 37, 38
        a, b, d = 39, 40, 41
        E_(f'v_and_b32 v{t}, 31, v{l}\nv_lshrrev_b32 v{hh}, 5, v{l}\nv_and_b32 v{n}, 15, v{l}\nv_lshrrev_b32 v{g}, 4, v{l}')
        E_(f'v_bfe_u32 v{r4}, v{l}, 2, 2\nv_and_b32 v{c4}, 3, v{l}\nv_bfe_u32 v{tb}, v{l}, 4, 1')
        E_(f's_mov_b32 s{sHH}, 0\ns_mov_b32 s{sHH+1}, -1\ns_mov_b32 s{sL2E}, {LOG2E}')
        E_(f'v_mov_b32 v{a}, {OOB}\nv_cmp_eq_u32 vcc, 0, v{l}\nv_cndmask_b32 v{vF0}, v{a}, v{l}, vcc')
        if rot is None: E_(f's_mov_b32 s3, s{sW}')
        else: E_(f's_add_u32 s3, s{sW}, s{rot}\ns_and_b32 s3, s3, 3')
        E_(f's_mul_i32 s{sT0}, s3, {144*9216}\ns_mul_i32 s{sT1}, s{sJ}, 576\ns_add_u32 s{sT0}, s{sT0}, s{sT1}')
        E_(f's_mul_i32 s{sT2}, s3, {144*3456}\ns_mul_i32 s{sT1}, s{sJ}, 72\ns_add_u32 s{sT2}, s{sT2}, s{sT1}')
        for k in range(9):
            E_(f's_add_u32 s{soW1+k}, s{sT0}, {k*16*9216 - (k%4)*1024}')
            E_(f's_add_u32 s{soQ+k}, s{sT2}, {k*16*3456 - (k%4)*1024}')
        E_(f'v_lshrrev_b32 v{a}, 2, v{l}\nv_lshlrev_b32 v{b}, 4, v{c4}')
        E_(f'v_mul_u32_u24 v{d}, 9216, v{a}\nv_add_u32 v{vW1}, v{d}, v{b}')
        E_(f'v_mul_u32_u24 v{d}, 3456, v{a}\nv_add_u32 v{vQ+3}, v{d}, v{b}\nv_add_u32 v{vQ}, 1152, v{vQ+3}\nv_add_u32 v{vQ+2}, 2304, v{vQ+3}')
        E_(f'v_mov_b32 v{a}, 1216\nv_mov_b32 v{b}, 2360\nv_cmp_eq_u32 vcc, 1, v{c4}\nv_cndmask_b32 v{a}, v{a}, v{b}, vcc')
        E_(f'v_cmp_eq_u32 vcc, 2, v{c4}\nv_cndmask_b32 v{a}, v{a}, 64, vcc')
        E_(f'v_mov_b32 v{b}, {OOB}\nv_cmp_eq_u32 vcc, 3, v{c4}\nv_cndmask_b32 v{a}, v{a}, v{b}, vcc\nv_add_u32 v{vQ+1}, v{a}, v{d}')
        E_(f's_lshl_b32 s3, s{sR}, 4\ns_add_u32 s3, s3, s{sJ}\ns_lshl_b32 s3, s3, 2\ns_add_u32 s3, s3, s{sW}\ns_mul_i32 s3, s3, 18432\ns_add_u32 s{sHown}, s3, {WS_H}')
        E_(f's_lshl_b32 s3, s{sR}, 2\ns_add_u32 s3, s3, s{sQ}\ns_lshl_b32 s3, s3, 2\ns_add_u32 s3, s3, s{sW}\ns_lshl_b32 s3, s3, 7')
        E_(f's_lshl_b32 s{sT0}, s{sJJ}, 2\ns_add_u32 s{sFH}, s3, s{sT0}')
        E_(f's_lshl_b32 s3, s{sR}, 2\ns_add_u32 s3, s3, s{sW}')
        E_(f's_lshl_b32 s{sT0}, s{sJ}, 6\ns_add_u32 s{sT0}, s{sT0}, s3\ns_lshl_b32 s{sT0}, s{sT0}, 2\ns_add_u32 s{sFKV}, s{sT0}, {FL_KV}')
        E_(f's_lshl_b32 s{sT0}, s3, 5\ns_add_u32 s{sT0}, s{sT0}, s{sJ}\ns_lshl_b32 s{sT0}, s{sT0}, 2\ns_add_u32 s{sFO}, s{sT0}, {FL_O}')
        E_(f's_lshl_b32 s{sT0}, s3, 4\ns_add_u32 s{sT0}, s{sT0}, s{sJ}\ns_lshl_b32 s{sT0}, s{sT0}, 11\ns_add_u32 s{sOMown}, s{sT0}, {WS_OM}')
        E_(f's_lshl_b32 s{sT0}, s3, 12\ns_lshr_b32 s{sT1}, s{sJ}, 3\ns_lshl_b32 s{sT1}, s{sT1}, 11\ns_add_u32 s{sT0}, s{sT0}, s{sT1}')
        E_(f's_lshl_b32 s{sT1}, s{sJJ}, 9\ns_add_u32 s{sT0}, s{sT0}, s{sT1}\ns_and_b32 s{sT1}, s{sQ}, 1\ns_lshl_b32 s{sT1}, s{sT1}, 3\ns_add_u32 s{sT0}, s{sT0}, s{sT1}\ns_add_u32 s{sOXown}, s{sT0}, {WS_OX}')
        E_(f's_lshl_b32 s3, s{sR}, 2\ns_add_u32 s3, s3, s{sJJ}\ns_lshl_b32 s3, s3, 2')
        E_(f's_add_u32 s{sT0}, s3, s{sW}\ns_lshl_b32 s{sT1}, s{sT0}, 5\ns_add_u32 s{sT1}, s{sT1}, s{sQ}\ns_lshl_b32 s{sT1}, s{sT1}, 2\ns_add_u32 s{sFY}, s{sT1}, {FL_Y}')
        E_(f's_lshl_b32 s{sT0}, s{sT0}, 2\ns_add_u32 s{sT0}, s{sT0}, s{sQ}\ns_mul_i32 s{sT0}, s{sT0}, 10240\ns_add_u32 s{sYp}, s{sT0}, {WS_Y}')
        E_(f's_add_u32 s{sT0}, s3, s{sQ}\ns_mul_i32 s{sT0}, s{sT0}, 40960\ns_and_b32 s{sT1}, s{sW}, 1\ns_mul_i32 s{sT1}, s{sT1}, 5120\ns_add_u32 s{sT0}, s{sT0}, s{sT1}')
        E_(f's_lshr_b32 s{sT1}, s{sW}, 1\ns_lshl_b32 s{sT1}, s{sT1}, 11\ns_add_u32 s{sT0}, s{sT0}, s{sT1}\ns_add_u32 s{sYc}, s{sT0}, {WS_Y}')
        E_(f'v_mov_b32 v44, 0\nv_mov_b32 v45, 0\nv_mov_b32 v46, 0\nv_mov_b32 v47, 0')
        E_(f'buffer_store_dword v44, v{vF0}, {srd(WS)}, s{sFH} offen sc1', tok='clr')
        E_(f'buffer_store_dword v44, v{vF0}, {srd(WS)}, s{sFH} offen offset:16 sc1', tok='clr')
        for s_ in (sFKV, sFO, sFY):
            E_(f'buffer_store_dword v44, v{vF0}, {srd(WS)}, s{s_} offen sc1', tok='clr')
        E_(f'v_lshlrev_b32 v{a}, 4, v0\nv_add_u32 v{a}, {E}, v{a}')
        self.parkw('zf', a)
        for k in range(3): E_(f'ds_write_b128 v{a}, v[44:47] offset:{4096*k}', tok='zf0')
        h_, d_, a5, col = 42, 43, 44, 45
        E_(f'v_mul_u32_u24 v{h_}, 729, v0\nv_lshrrev_b32 v{h_}, 16, v{h_}\nv_mul_u32_u24 v{a}, 90, v{h_}\nv_sub_u32 v{a}, v0, v{a}')
        E_(f'v_mul_u32_u24 v{d_}, 205, v{a}\nv_lshrrev_b32 v{d_}, 10, v{d_}\nv_mul_u32_u24 v{b}, 5, v{d_}\nv_sub_u32 v{a5}, v{a}, v{b}')
        E_(f'v_mul_u32_u24 v{a}, 648, v{h_}\nv_mul_u32_u24 v{b}, 36, v{d_}\nv_add_u32 v{a}, v{a}, v{b}\nv_lshl_add_u32 v{a}, v{a5}, 3, v{a}')
        E_(f's_mul_i32 s3, s{sJ}, 1296\nv_add_u32 v{a}, s3, v{a}')
        E_(f'v_mov_b32 v{b}, {OOB}\nv_cmp_gt_u32 s[{sM}:{sM+1}], 180, v0' if False else f'v_mov_b32 v{b}, {OOB}\nv_cmp_gt_u32 vcc, 180, v0')
        E_(f'v_cndmask_b32 v{a}, v{b}, v{a}, vcc')
        E_(f'buffer_load_dword v28, v{a}, {srd(PHI)}, 0 offen', tok='wphi')
        E_(f'buffer_load_dword v29, v{a}, {srd(PHI)}, 0 offen offset:4', tok='wphi')
        E_(f'v_mul_u32_u24 v{col}, 18, v{h_}\nv_add_u32 v{col}, v{col}, v{d_}')
        E_(f'v_and_b32 v{a}, 0x33, v{col}\nv_and_b32 v{b}, 4, v{col}\nv_lshl_or_b32 v{a}, v{b}, 1, v{a}\nv_bfe_u32 v{b}, v{col}, 3, 1\nv_lshl_or_b32 v{a}, v{b}, 2, v{a}')
        self.image_addr(a, h_, a5, 30, 31, 46, 47, 'v0', 180)
        E_(f'v_lshl_add_u32 v{a}, v{hh}, 3, v{r4}')
        E_(f'v_lshlrev_b32 v{b}, 6, v{a}\nv_lshl_add_u32 v{d}, v{tb}, 5, v{b}\nv_lshl_add_u32 v{vS}, v{c4}, 3, v{d}')
        E_(f'v_add_u32 v{vS+1}, 55296, v{vS}\nv_add_u32 v{vS+2}, 110592, v{vS}')
        E_(f'v_lshl_add_u32 v{d}, v{tb}, 3, v{b}\nv_lshrrev_b32 v44, 1, v{c4}\nv_lshl_add_u32 v{d}, v44, 5, v{d}\nv_and_b32 v44, 1, v{c4}\nv_lshl_add_u32 v{vP}, v44, 4, v{d}')
        E_(f'v_add_u32 v{vP+1}, 55296, v{vP}\nv_add_u32 v{vP+2}, 110592, v{vP}')
        E_(f'v_lshlrev_b32 v{b}, 5, v{a}\nv_lshl_add_u32 v{b}, v{c4}, 3, v{b}\nv_mul_u32_u24 v{d}, 2688, v{tb}\nv_add_u32 v{b}, v{b}, v{d}\nv_add_u32 v{b}, {E2}, v{b}')
        self.parkw('Ex', b)
        E_(f'v_bfe_u32 v{a}, v{l}, 2, 1\nv_cmp_eq_u32 vcc, v{a}, v{hh}\nv_and_b32 v{b}, 1, v{l}\nv_lshlrev_b32 v{b}, 4, v{b}\nv_mov_b32 v{d}, 0x3f80\nv_lshlrev_b32 v{b}, v{b}, v{d}')
        E_(f'v_cndmask_b32 v{b}, 0, v{b}, vcc\nv_cmp_eq_u32 vcc, 0, v{tb}\nv_bfe_u32 v{a}, v{l}, 3, 1\nv_bfe_u32 v{d}, v{l}, 1, 1\nv_cndmask_b32 v{b}, 0, v{b}, vcc\nv_lshl_add_u32 v{a}, v{a}, 1, v{d}')
        for k in range(4):
            E_(f'v_cmp_eq_u32 vcc, {k}, v{a}\ns_nop 1\nv_cndmask_b32 v{48+k}, 0, v{b}, vcc')
        E_(f'v_mul_u32_u24 v{a}, 288, v{t}\nv_lshl_add_u32 v{a}, v{hh}, 4, v{a}\nv_add_u32 v26, s{sWL}, v{a}\nv_add_u32 v27, 73728, v26')
        for k in range(8): E_(f'v_mov_b32 v{52+k}, 0')
        E_(f's_mov_b32 s{sT4}, 0x3f803f80')
        later = self.prologue_later(l, t, hh, n, g, r4, c4, tb, a, b, d)
        nl = len(later)
        for sg in range(4):
            E_(self.stamp(f'pre{sg}'))
            E_(W(f'x{sg}'))
            E_(self.stamp(f'x{sg}'))
            for k in range(9):
                off = self.slot[sg] + 32 * k
                base, o = (26, off) if off < 65536 else (27, off - 73728)
                assert 0 <= o < 65536
                E_(I(f'ds_read_b128 v[{64+36*sg+4*k}:{64+36*sg+4*k+3}], v{base} offset:{o}', tok=f'xr{sg}'))
            dots = []
            for k in range(36):
                xr = 64 + 36 * sg + k
                dots.append(I(f'v_dot2c_f32_bf16 v{52+(k&3)}, s{sT4}, v{xr}'))
                dots.append(I(f'v_dot2c_f32_bf16 v{56+(k&3)}, v{xr}, v{xr}'))
            dm = [x for grp in self.dma_item(sg) for x in grp]
            E_(dots[:40]); E_(W(f'xr{sg}'))
            rest = dots[40:]
            for k, x in enumerate(dm):
                E_(x); E_(rest[2*k:2*k+2])
            E_(rest[2*len(dm):])
            if sg == 3 and c.pfB == 2: E_(self.pfb_ld)
            E_(self.stamp(f'dot{sg}'))
            if sg < 3:
                E_(later[nl * sg // 3: nl * (sg + 1) // 3])
        E_('v_add_f32 v52, v52, v53\nv_add_f32 v54, v54, v55\nv_add_f32 v56, v56, v57\nv_add_f32 v58, v58, v59\nv_add_f32 v52, v52, v54\nv_add_f32 v56, v56, v58')
        E_('v_mov_b32 v53, v52\nv_mov_b32 v57, v56\nv_permlane32_swap_b32 v52, v53\nv_permlane32_swap_b32 v56, v57')
        E_('v_add_f32 v52, v52, v53\nv_add_f32 v56, v56, v57')
        inv = 0x3ae38e39
        E_(f'v_mul_f32 v52, {inv}, v52\nv_cvt_pk_bf16_f32 v53, v52, v52\nv_and_b32 v53, 0xffff0000, v53\nv_xor_b32 v208, 0x80000000, v53')
        for k in range(1, 8): E_(f'v_mov_b32 v{208+k}, v208')
        self.conv_mf = lambda s: I(f'v_mfma_f32_32x32x16_bf16 v[{224+16*(s&1)}:{239+16*(s&1)}], v[48:51], v[{64+4*s}:{67+4*s}], v[208:223]')
        E_(self.conv_mf(0)); E_(self.conv_mf(1))
        E_(f'v_mul_f32 v56, {inv}, v56\nv_fma_f32 v56, -v52, v52, v56\nv_max_f32 v56, 0, v56\nv_cvt_pk_bf16_f32 v56, v56, v56\nv_and_b32 v56, 0xffff0000, v56')
        E_(f'v_add_f32 v56, 0x3727c5ac, v56\nv_cvt_pk_bf16_f32 v56, v56, v56\nv_and_b32 v56, 0xffff0000, v56\nv_sqrt_f32 v56, v56')
        E_(f'v_cvt_pk_bf16_f32 v56, v56, v56\nv_and_b32 v56, 0xffff0000, v56\nv_rcp_f32 v{vRS}, v56')
        E_(self.unpark('rsw', 25))
        E_(I(f'ds_write_b32 v25, v{vRS}', tok='rsw'))
        E_(self.conv_cvt(0))

    def conv_cvt(self, s):
        D = 224 + 16 * (s & 1); xr = 64 + 4 * s
        r = [I(f'v_cvt_pk_bf16_f32 v{xr+k}, v{D+2*k}, v{D+2*k+1}') for k in range(4)]
        r += [I(f'v_accvgpr_write_b32 a{4*s+k}, v{xr+k}') for k in range(4)]
        return r

    def image_addr(self, rho, h_, cc, o1, o2, t1, t2, idx, lim, add=None):
        E_ = self.E
        E_(f'v_lshlrev_b32 v{t1}, 6, v{rho}\nv_lshl_add_u32 v{t1}, v{cc}, 4, v{t1}\nv_lshl_add_u32 v{t1}, v{h_}, 3, v{t1}\nv_add_u32 v{t1}, {E}, v{t1}')
        E_(f'v_lshlrev_b32 v{t2}, 5, v{rho}\nv_lshl_add_u32 v{t2}, v{h_}, 4, v{t2}\nv_add_u32 v{t2}, {E2}, v{t2}')
        E_(f'v_cmp_gt_u32 vcc, 4, v{cc}\ns_nop 1\nv_cndmask_b32 v{o1}, v{t2}, v{t1}, vcc\nv_add_u32 v{t2}, {2688+8}, v{t2}\nv_cndmask_b32 v{o2}, v{t2}, v{t1}, vcc')
        if add is not None:
            E_(f'v_add_u32 v{o1}, v{o1}, v{add}\nv_add_u32 v{o2}, v{o2}, v{add}')
        if lim is not None:
            E_(f'v_mov_b32 v{t1}, {DUMMY}\nv_cmp_gt_u32 vcc, {lim}, {idx}\ns_nop 1\nv_cndmask_b32 v{o1}, v{t1}, v{o1}, vcc\nv_cndmask_b32 v{o2}, v{t1}, v{o2}, vcc')

    def prologue_later(self, l, t, hh, n, g, r4, c4, tb, a, b, d):
        save = self.p; self.p = []
        E_ = self.E; c = self.c
        e1, e2, e3, e4 = 42, 43, 44, 45
        E_(f's_lshl_b32 s3, s{sW}, 7\ns_add_u32 s3, s3, {RSA}\nv_lshlrev_b32 v{a}, 2, v{t}\nv_add_u32 v{a}, s3, v{a}')
        self.parkw('rsw', a)
        E_(f's_and_b32 s{sT2}, s{sW}, 1\ns_lshr_b32 s{sT3}, s{sW}, 1')
        E_(f's_lshl_b32 s3, s{sT2}, 4\nv_add_u32 v{e4}, s3, v{n}')
        E_(f's_lshl_b32 s3, s{sQ}, 7\ns_add_u32 s3, s3, {RSA}\nv_lshlrev_b32 v{a}, 2, v{e4}\nv_add_u32 v{a}, s3, v{a}')
        self.parkw('rsr', a)
        E_(f's_mul_i32 s3, s{sW}, {32*232}\ns_add_u32 s3, s3, {self.slotS}\nv_mul_u32_u24 v{a}, 232, v{t}\nv_add_u32 v{a}, s3, v{a}')
        E_(f'v_mul_u32_u24 v{b}, 72, v{hh}\nv_add_u32 v{b}, v{a}, v{b}'); self.parkw('stP', b)
        E_(f'v_lshl_add_u32 v{b}, v{hh}, 3, v{a}'); self.parkw('stV1', b)
        E_(f'v_lshl_add_u32 v{b}, v{hh}, 4, v{a}'); self.parkw('stV2', b)
        E_(f'v_lshl_add_u32 v{b}, v{hh}, 5, v{a}'); self.parkw('stV3', b)
        E_(f'v_lshl_add_u32 v{e1}, v{g}, 2, v{r4}')
        E_(f'v_mul_u32_u24 v{a}, 232, v{e1}\nv_lshl_add_u32 v{a}, v{c4}, 3, v{a}')
        E_(f's_mul_i32 s{sT0}, s{sT2}, 32\ns_mul_i32 s{sT1}, s{sT3}, 48\ns_add_u32 s{sT0}, s{sT0}, s{sT1}\ns_mul_i32 s{sT1}, s{sT2}, s{sT3}\ns_mul_i32 s{sT1}, s{sT1}, 40\ns_sub_u32 s{sT0}, s{sT0}, s{sT1}\ns_add_u32 s{sT0}, s{sT0}, {144 + self.slotS}')
        E_(f'v_add_u32 v{b}, s{sT0}, v{a}'); self.parkw('kvA', b)
        E_(f's_mul_i32 s{sT0}, s{sT3}, 72\ns_add_u32 s{sT0}, s{sT0}, {self.slotS}\nv_add_u32 v{b}, s{sT0}, v{a}'); self.parkw('kvB', b)
        E_(f'v_mul_u32_u24 v{a}, 288, v{e1}\nv_lshl_add_u32 v{a}, v{c4}, 3, v{a}'); self.parkw('G', a)
        E_(f'v_mul_u32_u24 v{a}, 576, v{g}\nv_mov_b32 v{b}, 2304\nv_mov_b32 v{d}, {OOB}\nv_cmp_eq_u32 vcc, 0, v{g}\ns_nop 1\nv_cndmask_b32 v{b}, v{d}, v{b}, vcc')
        E_(f's_cmp_eq_u32 s{sT2}, 1\ns_cselect_b64 s[{sM}:{sM+1}], -1, 0\nv_cndmask_b32 v{a}, v{a}, v{b}, s[{sM}:{sM+1}]\nv_lshl_add_u32 v{a}, v{n}, 4, v{a}'); self.parkw('K0', a)
        E_(f'v_cmp_gt_u32 vcc, 4, v{n}\ns_nop 1\nv_cndmask_b32 v{a}, v{d}, v{a}, vcc'); self.parkw('K2', a)
        E_(f's_lshl_b32 s3, s{sJ}, 4\ns_mul_i32 s{sKVj}, s3, 6144\ns_add_u32 s{sKVj}, s{sKVj}, {WS_KV}\ns_mul_i32 s3, s{sR}, 6144\ns_add_u32 s{sKVown}, s{sKVj}, s3')
        E_(f's_mul_i32 s3, s{sT3}, 2880\ns_add_u32 s{sKVown}, s{sKVown}, s3')
        E_(f'v_lshlrev_b32 v{a}, 3, v0\nv_add_u32 v{a}, 4096, v{a}\nv_cmp_gt_u32 vcc, 208, v0\ns_nop 1\nv_cndmask_b32 v{a}, v{d}, v{a}, vcc'); self.parkw('kr2', a)
        for nm in ('a', 'b'):
            if nm == 'a': E_(f'v_mov_b32 v{e1}, v0')
            else: E_(f'v_lshrrev_b32 v{e1}, 1, v0\nv_add_u32 v{e1}, 256, v{e1}')
            E_(f'v_cmp_le_u32 vcc, 180, v{e1}\ns_nop 1\nv_cndmask_b32 v{e2}, 0, 1, vcc')
            E_(f'v_mul_u32_u24 v{a}, 180, v{e2}\nv_sub_u32 v{a}, v{e1}, v{a}\nv_mul_u32_u24 v{e3}, 1821, v{a}\nv_lshrrev_b32 v{e3}, 16, v{e3}')
            E_(f'v_mul_u32_u24 v{b}, 36, v{e3}\nv_sub_u32 v{a}, v{a}, v{b}')
            E_(f'v_lshrrev_b32 v{b}, 3, v{a}\nv_and_b32 v{a}, 7, v{a}\nv_lshl_add_u32 v{a}, v{b}, 4, v{a}\nv_lshl_add_u32 v{a}, v{e2}, 3, v{a}')
            if nm == 'a':
                self.image_addr(a, e2, e3, b, d, 46, 47, None, None)
            else:
                E_(f'v_and_b32 v{e1}, 1, v0\nv_lshlrev_b32 v{e1}, 2, v{e1}')
                self.image_addr(a, e2, e3, b, d, 46, 47, 'v0', 208, add=e1)
            self.parkw('im1' + nm, b); self.parkw('im2' + nm, d)
        E_(f'v_lshlrev_b32 v{a}, 4, v{t}\nv_lshl_add_u32 v{a}, v{hh}, 2, v{a}'); self.parkw('oxs', a)
        E_(f'v_and_b32 v{a}, 1, v{g}\nv_lshl_add_u32 v{b}, v{a}, 5, v{e4}\nv_lshlrev_b32 v{b}, 4, v{b}\nv_lshl_add_u32 v{b}, v{hh}, 10, v{b}'); self.parkw('omc', b)
        E_(f'v_lshlrev_b32 v{b}, 4, v{e4}\nv_lshl_add_u32 v{b}, v{g}, 9, v{b}'); self.parkw('oxc', b)
        E_(f's_lshl_b32 s3, s{sR}, 2\ns_add_u32 s3, s3, s{sQ}\ns_lshl_b32 s{sOMc}, s3, 15\ns_add_u32 s{sOMc}, s{sOMc}, {WS_OM}\ns_lshl_b32 s{sOXc}, s3, 12\ns_add_u32 s{sOXc}, s{sOXc}, {WS_OX}')
        E_(f's_lshl_b32 s{sT0}, s{sT3}, 7')
        E_(f'v_mul_u32_u24 v{b}, 20, v{a}\nv_lshl_add_u32 v{b}, v{hh}, 3, v{b}\nv_add_u32 v{b}, v{b}, v{r4}\nv_mul_u32_u24 v{b}, 288, v{b}\nv_lshl_add_u32 v{b}, v{c4}, 3, v{b}\nv_add_u32 v{b}, s{sT0}, v{b}'); self.parkw('Sm', b)
        E_(f'v_mul_u32_u24 v{b}, 36, v{g}\nv_add_u32 v{b}, v{b}, v{r4}\nv_add_u32 v{b}, 16, v{b}\nv_mul_u32_u24 v{b}, 288, v{b}\nv_lshl_add_u32 v{b}, v{c4}, 3, v{b}\nv_add_u32 v{b}, s{sT0}, v{b}'); self.parkw('Sx', b)
        E_(f'v_mul_u32_u24 v{b}, 288, v{e4}\nv_lshl_add_u32 v{b}, v{g}, 3, v{b}\nv_add_u32 v{b}, s{sT0}, v{b}'); self.parkw('Xt', b)
        E_(f's_lshl_b32 s3, s{sW}, 8\nv_add_u32 v{e1}, s3, v{l}')
        for i in range(4):
            E_(f'v_add_u32 v{a}, {64*i}, v{e1}' if i else f'v_mov_b32 v{a}, v{e1}')
            E_(f'v_mul_u32_u24 v{b}, 3641, v{a}\nv_lshrrev_b32 v{b}, 16, v{b}\nv_mul_u32_u24 v{b}, 864, v{b}\nv_lshl_add_u32 v{b}, v{a}, 4, v{b}')
            if i: E_(f'v_subrev_u32 v{b}, {1024*i}, v{b}')
            self.parkw(f'E{i}', b)
        E_(f's_min_u32 s3, s{sW}, 2\ns_add_u32 s3, s3, 15\ns_lshl_b32 s3, s3, 6\nv_add_u32 v{a}, s3, v{l}')
        E_(f'v_mul_u32_u24 v{b}, 3641, v{a}\nv_lshrrev_b32 v{b}, 16, v{b}\nv_mul_u32_u24 v{b}, 864, v{b}\nv_lshl_add_u32 v{b}, v{a}, 4, v{b}'); self.parkw('wrap', b)
        for k in range(3):
            E_(f's_add_u32 s3, s{sJJ}, {k+1}\ns_and_b32 s3, s3, 3\ns_sub_u32 s3, s3, s{sJJ}\ns_mul_i32 s3, s3, {4*18432}\ns_add_u32 s{sHp+k}, s{sHown}, s3')
        E_(f's_mul_i32 s{sT0}, s{sJJ}, 288\ns_mul_i32 s{sT1}, s{sQ}, {1152*1152}\ns_add_u32 s{sT0}, s{sT0}, s{sT1}')
        for u in range(9):
            dst = soW2 + u
            if u <= 2:
                E_(f's_add_u32 s3, s{sW}, {4*u}\ns_lshl_b32 s3, s3, 5\ns_mul_i32 s{sT1}, s{sJJ}, 288\ns_add_u32 s{dst}, s3, s{sT1}')
            if u >= 2:
                tgt = dst if u > 2 else sT2
                E_(f's_add_i32 s3, s{sW}, {4*u-9}\ns_mul_i32 s{sT1}, s3, 43\ns_lshr_b32 s{sT1}, s{sT1}, 7')
                E_(f's_mul_i32 s{sT3}, s{sT1}, 3\ns_sub_u32 s3, s3, s{sT3}\ns_add_u32 s3, s3, s{sJJ}\ns_add_u32 s3, s3, 1\ns_and_b32 s3, s3, 3')
                E_(f's_mul_i32 s3, s3, 288\ns_lshl_b32 s{sT1}, s{sT1}, 5\ns_add_u32 s{tgt}, s3, s{sT1}')
                if u == 2: E_(f's_cmp_eq_u32 s{sW}, 0\ns_cselect_b32 s{dst}, s{dst}, s{sT2}')
            E_(f's_mul_i32 s{dst}, s{dst}, 1152\ns_add_u32 s{dst}, s{dst}, s{sT0}')
        E_(f's_mul_i32 s3, s{sW}, {32*1152}\ns_mul_i32 s{sWO}, s{sJJ}, 288\ns_add_u32 s{sWO}, s{sWO}, s3')
        r = self.p; self.p = save
        return r

    def g1_reads(self, i, s):
        kind = self.c.order[i]
        base = vP if kind == 'G' else vS
        gs = 36 * i + s
        b = RING + 4 * (gs % (self.c.D + 2))
        off = self.slot[i] + 1024 * s
        r = []
        for k in range(2):
            reg, o = self.rng(base, off)
            r.append(I(f'ds_read_b64_tr_b16 a[{b+2*k}:{b+2*k+1}], v{reg} offset:{o+256*k}', tok=f'f{gs}'))
        return r

    def g2_half(self, u, hf):
        ct, ks, rd = hf >> 3, (hf >> 1) & 3, hf & 1
        f = 36 * u + 4 * ct + ks
        b = RING + 4 * ((f + self.ring0) % self.c.NBf) + 2 * rd
        reg, o = self.rng(self.vG, self.slot[13 + u] + ks * 9216 + rd * 4608 + ct * 32)
        return I(f'ds_read_b64_tr_b16 a[{b}:{b+1}], v{reg} offset:{o}', tok=f'g{f}')

    def g1_steps(self):
        c = self.c; D = c.D
        steps = []
        for i in range(13):
            acc = ACC[i & 1]
            for s in range(36):
                gs = 36 * i + s
                b = RING + 4 * (gs % (D + 2))
                cc = '0' if s == 0 else f'v[{acc}:{acc+15}]'
                mf = I(f'v_mfma_f32_32x32x16_bf16 v[{acc}:{acc+15}], a[{b}:{b+3}], a[{4*s}:{4*s+3}], {cc}')
                pre = []
                if gs % c.we == 0:
                    pre = [W(*[f'f{x}' for x in range(gs, min(gs + c.we, 468))])]
                post = []
                ns = s + D
                if ns < 36: post += self.g1_reads(i, ns)
                elif i < 12: post += self.g1_reads(i + 1, ns - 36)
                else:
                    k = ns - 36
                    lo = c.Dh * k // D; hi = c.Dh * (k + 1) // D
                    post += [self.g2_half(0, h) for h in range(lo, hi)]
                if ns == 35:
                    post += [W(f'T{i+1}', *self.bar_need.get(i, []))] + L('s_barrier')
                cap = None
                if i == 0:
                    if s + 2 < 36: post.append(self.conv_mf(s + 2))
                    if s + 1 < 36: post += self.conv_cvt(s + 1)
                    cap = 16 if s + 2 < 36 else 8
                steps.append(Step(mf, pre, post, cap))
        return steps

    def epi_G(self, tau, acc):
        h = vH + 8 * tau
        r = [I(f'v_cvt_pk_bf16_f32 v{h+k}, v{acc+2*k}, v{acc+2*k+1}') for k in range(8)]
        r += [I(f'v_pk_max_i16 v{h+k}, v{h+k}, 0') for k in range(8)]
        r += [I(f'v_permlane16_swap_b32 v{h+k}, v{h+4+k}') for k in range(4)]
        if tau and tau % 2 == 0: r += L(f's_add_u32 s{sHown}, s{sHown}, 4096')
        for tg in range(2):
            r.append(I(f'buffer_store_dwordx4 v[{h+4*tg}:{h+4*tg+3}], v{vL16}, {srd(WS)}, s{sHown} offen offset:{(tau&1)*2048+tg*1024} sc1', tok=f'h{tau}'))
        return r

    PK = {'Ta': 136, 'Tb': 144, 'Tc': 152, 'Td': 160}

    def epi_Q(self, kind, acc):
        pk = self.PK[kind]
        n = 12 if kind == 'Tb' else 16
        r = []
        for k in range(0, n, 2):
            r += L(f'v_mul_f32 v{acc+k}, v{vRS}, v{acc+k}\nv_mul_f32 v{acc+k+1}, v{vRS}, v{acc+k+1}')
        for k in range(n // 2):
            r.append(I(f'v_cvt_pk_bf16_f32 v{pk+k}, v{acc+2*k}, v{acc+2*k+1}'))
        if kind == 'Tb': r += L(f'v_mov_b32 v{pk+6}, 0\nv_mov_b32 v{pk+7}, 0')
        return r

    def pmfma(self, which, P):
        m = self.PK['Ta' if which == 'k' else 'Td']
        B = [m, m + 4, self.PK['Tb'] + (0 if which == 'k' else 4)]
        r = []
        for s in range(3):
            r.append(I(f'v_mfma_f32_32x32x16_bf16 v[{P}:{P+15}], a[{aPHI+4*s}:{aPHI+4*s+3}], v[{B[s]}:{B[s]+3}], ' + ('0' if s == 0 else f'v[{P}:{P+15}]')))
        for s in range(3):
            r.append(I(f'v_mfma_f32_16x16x32_bf16 v[{P+16}:{P+19}], a[{aPHI+12+4*s}:{aPHI+12+4*s+3}], v[{B[s]}:{B[s]+3}], ' + ('0' if s == 0 else f'v[{P+16}:{P+19}]')))
        return r

    def softmax(self, P, EP, PHIo, T, norm_first, keepS=None):
        p = [P + k for k in range(18)]
        mx, mn, s1, s2 = T, T + 1, T + 2, T + 3
        r = []
        a = [f'v_max3_f32 v{mx}, v{p[0]}, v{p[1]}, v{p[2]}'] + [f'v_max3_f32 v{mx}, v{mx}, v{p[k]}, v{p[k+1]}' for k in range(3, 17, 2)] + [f'v_max_f32 v{mx}, v{mx}, v{p[17]}']
        b = [x.replace('max', 'min').replace(f'v{mx}', f'v{mn}') for x in a]
        for x, y in zip(a, b): r += L(x + '\n' + y)
        r[0].gap = 3
        r += L(f'v_mul_f32 v{mx}, 0xbfb8aa3b, v{mx}\nv_mul_f32 v{mn}, {LOG2E}, v{mn}')
        for k in range(18):
            r += L(f'v_fma_f32 v{EP+k}, v{p[k]}, s{sL2E}, v{mx}\nv_fma_f32 v{p[k]}, v{p[k]}, -s{sL2E}, v{mn}')
            r += L(f'v_exp_f32 v{EP+k}, v{EP+k}\nv_exp_f32 v{p[k]}, v{p[k]}')
            if k == 2:
                r += L(f'v_add_f32 v{s1}, v{EP}, v{EP+1}\nv_add_f32 v{s2}, v{p[0]}, v{p[1]}')
            elif k > 2:
                r += L(f'v_add_f32 v{s1}, v{s1}, v{EP+k-1}\nv_add_f32 v{s2}, v{s2}, v{p[k-1]}')
        r += L(f'v_add_f32 v{s1}, v{s1}, v{EP+17}\nv_add_f32 v{s2}, v{s2}, v{p[17]}')
        if norm_first:
            r += L(f'v_rcp_f32 v{s1}, v{s1}\nv_rcp_f32 v{s2}, v{s2}')
            for k in range(0, 18, 2):
                r += L(f'v_mul_f32 v{EP+k}, v{s1}, v{EP+k}\nv_mul_f32 v{EP+k+1}, v{s1}, v{EP+k+1}\nv_cvt_pk_bf16_f32 v{PHIo+k//2}, v{EP+k}, v{EP+k+1}')
        else:
            r += L(f'v_rcp_f32 v{s2}, v{s2}\nv_mul_f32 v{keepS}, 0x358637bd, v{s1}')
            for k in range(0, 18, 2):
                r += L(f'v_cvt_pk_bf16_f32 v{PHIo+k//2}, v{EP+k}, v{EP+k+1}')
            r += L(f'v_mul_f32 v{s2}, v{s1}, v{s2}')
        for k in range(0, 18, 2):
            r += L(f'v_mul_f32 v{p[k]}, v{s2}, v{p[k]}\nv_mul_f32 v{p[k+1]}, v{s2}, v{p[k+1]}\nv_cvt_pk_bf16_f32 v{PHIo+9+k//2}, v{p[k]}, v{p[k+1]}')
        return r

    def build_streams(self):
        c = self.c
        P0 = lambda p: 36 * p if p <= 13 else 468 + 72 * (p - 13)
        bar = lambda p: (36 * p + 35 - c.D) if p < 13 else (468 + 72 * (p - 13) + 71 - c.Dh)
        self.bar_need = {}
        need = lambda p, t: self.bar_need.setdefault(p, []).append(t)
        S = {}
        dma = Stream('dma')
        items = []
        for i in sorted(self.loadp):
            p = self.loadp[i]
            if p > 21: continue
            same = [x for x in self.loadp if self.loadp[x] == p]
            idx = same.index(i)
            span = (bar(p) - 1 - P0(p)) // len(same)
            grps = self.dma_item(i)
            nd = sum(1 for gg in grps if gg[0].kind == 'dma')
            k = 0
            for gg in grps:
                st = P0(p) + idx * span + (k * span) // nd
                if gg[0].kind == 'dma': k += 1
                else: st = max(st - 1, P0(p))
                items.append((st, gg))
        S['dma'] = TimedStream('dma', items)
        epi = []; pend = []
        gpos = [i for i in range(13) if c.order[i] == 'G']
        for i in range(13):
            acc = ACC[i & 1]
            r = self.epi_G(gpos.index(i), acc) if c.order[i] == 'G' else self.epi_Q(c.order[i], acc)
            st = P0(i + 1) + (2 if i < 12 else 4)
            epi += [(st, [x]) for x in r]
            if i < 11: epi.append(('deadline', P0(i + 2) - 1))
            epi += pend; pend = []
            if c.order[i] == 'G' and gpos.index(i) in (c.flagA, 8):
                tau = gpos.index(i)
                off = 0 if tau == c.flagA else 16
                pend.append((P0(i + 2) + 8, glue([W(*[f'h{x}' for x in range(tau + 1)]), I(f'buffer_store_dword v{vONE}, v{vF0}, {srd(WS)}, s{sFH} offen offset:{off} sc1', tok='flag')])))
        S['epi'] = TimedStream('epi', epi + pend)
        pos = {k: c.order.index(k) for k in ('Ta', 'Tb', 'Tc', 'Td')}
        m = []
        A = lambda st, x: m.extend((st, [y]) for y in (L(x) if isinstance(x, str) else x))
        G = lambda st, x: m.append((st, glue(x)))
        A(P0(1), [W('wphi'), I('ds_write_b64 v30, v[28:29]', tok='wimg'), I('ds_write_b64 v31, v[28:29]', tok='wimg')])
        need(1, 'wimg'); m.append(('deadline', bar(1)))
        A(P0(1), [self.unpark('rsr', 28), I('ds_read_b32 v28, v28', tok='rsr'), self.unpark('Ex', 29)])
        A(P0(1) + 6, [W('rsr'), I(f'v_accvgpr_write_b32 a{self.park["rsr"]}, v28')])
        st = bar(1) + 1
        for s in range(3):
            reg, o = self.rng(vS, E + 1024 * s)
            for k in range(2):
                A(st, [I(f'ds_read_b64_tr_b16 a[{aPHI+4*s+2*k}:{aPHI+4*s+2*k+1}], v{reg} offset:{o+256*k}', tok='wfr')])
                A(st, [I(f'ds_read_b64_tr_b16 a[{aPHI+12+4*s+2*k}:{aPHI+12+4*s+2*k+1}], v29 offset:{512*s+128*k}', tok='wfr')])
        need(2, 'wfr'); m.append(('deadline', bar(2)))
        A(bar(2) + 1, [self.unpark('zf', 25)] + L('v_mov_b32 v28, 0\nv_mov_b32 v29, 0\nv_mov_b32 v30, 0\nv_mov_b32 v31, 0'))
        A(bar(2) + 1, [I(f'ds_write_b128 v25, v[28:31] offset:{4096*k}', tok='zf1') for k in range(3)])
        need(3, 'zf1'); m.append(('deadline', bar(3)))
        S['misc'] = TimedStream('misc', m)
        m = []
        PK_ = self.PK
        Pk, EPk, PHk, Tk = 168, 188, 206, 224
        kready = P0(max(pos['Ta'], pos['Tb']) + 1) + 10
        A(kready, [W('wfr')])
        for x in self.pmfma('k', Pk): A(kready, [x])
        A(kready, self.softmax(Pk, EPk, PHk, Tk, True))
        st = P0(c.ps)
        assert c.ps > pos['Tc'] + 0
        A(st, [self.unpark('stP', 25), self.unpark('stV1', 26), self.unpark('stV2', 27), self.unpark('stV3', 28)])
        for k in range(9): A(st, [I(f'ds_write_b64 v25, v[{PHk+2*k}:{PHk+2*k+1}] offset:{8*k}', tok='stg')])
        st = max(st, P0(pos['Tc'] + 1) + 12)
        tc = PK_['Tc']; tbb = PK_['Tb']; hm = f's[{sHH}:{sHH+1}]'
        A(st, [I(f'ds_write_b64 v26, v[{tc}:{tc+1}] offset:144', tok='stg'), I(f'ds_write_b64 v26, v[{tc+2}:{tc+3}] offset:160', tok='stg'), I(f'ds_write_b64 v26, v[{tc+6}:{tc+7}] offset:200', tok='stg')])
        A(st, f'v_mov_b32 v29, 0x3f80\nv_cndmask_b32 v30, v29, v{tbb+2}, {hm}\nv_cndmask_b32 v31, v{tc+5}, v{tbb+3}, {hm}\nv_cndmask_b32 v{tc+5}, v29, v{tc+5}, {hm}')
        A(st, [I(f'ds_write_b64 v28, v[30:31] offset:184', tok='stg'), I(f'ds_write_b64 v27, v[{tc+4}:{tc+5}] offset:176', tok='stg')])
        need(c.ps, 'stg')
        m.append(('deadline', bar(c.ps)))
        KA, KB, KD = 188, 204, 168
        st = bar(c.ps) + 1
        A(st, [self.unpark('kvA', 25), self.unpark('kvB', 26)])
        rdA = lambda ks: [I(f'ds_read_b64_tr_b16 v[{KA+4*ks+2*rd}:{KA+4*ks+2*rd+1}], v25 offset:{ks*7424+rd*3712}', tok=f'kva{ks}') for rd in range(2)]
        rdB = lambda x: [I(f'ds_read_b64_tr_b16 v[{KB+4*(x%6)+2*rd}:{KB+4*(x%6)+2*rd+1}], v26 offset:{(x%4)*7424+rd*3712+32*(x//4)}', tok=f'kvb{x}') for rd in range(2)]
        for ks in range(4): A(st, rdA(ks) + rdB(ks))
        for x in range(12):
            ft, ks = x // 4, x % 4
            mf = I(f'v_mfma_f32_16x16x32_bf16 v[{KD+4*ft}:{KD+4*ft+3}], v[{KA+4*ks}:{KA+4*ks+3}], v[{KB+4*(x%6)}:{KB+4*(x%6)+3}], ' + ('0' if ks == 0 else f'v[{KD+4*ft}:{KD+4*ft+3}]'))
            G(st, [W(f'kvb{x}', f'kva{ks}'), mf])
            if x + 4 < 12: A(st, rdB(x + 4))
        need(c.ps + 1, 'kvb11')
        m.append(('deadline', bar(c.ps + 1)))
        A(st, [self.unpark('K0', 25), self.unpark('K2', 26)])
        x = [I(f'buffer_store_dwordx4 v[{KD+4*ft}:{KD+4*ft+3}], v{25 if ft < 2 else 26}, {srd(WS)}, s{sKVown} offen offset:{256*ft} sc1', tok='kvst') for ft in range(3)]
        x[0].gap = 2
        A(st, x)
        Pq, EPq, PHq, Tq, SQ = 168, 136, 232, 154, 252
        st = max(st, P0(pos['Td'] + 1) + 12)
        for x in self.pmfma('q', Pq): A(st, [x])
        sm = self.softmax(Pq, EPq, PHq, Tq, False, keepS=SQ)
        n1 = 60
        A(st, sm[:n1])
        G(st, [W('kvst'), I(f'buffer_store_dword v{vONE}, v{vF0}, {srd(WS)}, s{sFKV} offen sc1', tok='flag')])
        A(st, f'v_lshlrev_b32 v25, 1, v{vL16}\nv_and_b32 v25, 0xe0, v25')
        ld, chk = self.poll('cnt', DBG, 25, '0', 32, 26)
        A(st, [ld]); A(st, sm[n1:n1 + 50]); G(st, chk)
        A(st, f'v_lshrrev_b32 v25, 2, v{vL16}\ns_and_b32 s{sT0}, s{sFKV}, 0xffffff00')
        ld, chk = self.poll('kvf', WS, 25, f's{sT0}', 1, 26)
        A(st, [ld]); A(st, sm[n1 + 50:n1 + 90]); G(st, chk)
        LB, AC = 188, 160
        A(st, [self.unpark('kr2', 26), I('v_lshlrev_b32 v25, 4, v0')])

        def kvload(r_):
            b = LB + 6 * (r_ % 7)
            x = [I(f'buffer_load_dwordx4 v[{b}:{b+3}], v25, {srd(WS)}, s{sKVj} offen sc1', tok=f'kr{r_}'),
                 I(f'buffer_load_dwordx2 v[{b+4}:{b+5}], v26, {srd(WS)}, s{sKVj} offen sc1', tok=f'kr{r_}')]
            if r_ < 15: x += L(f's_add_u32 s{sKVj}, s{sKVj}, 6144')
            return x

        def kvsum(r_):
            b = LB + 6 * (r_ % 7)
            if r_ == 0: return [W('kr0')] + [I(f'v_mov_b32 v{AC+k}, v{b+k}') for k in range(6)]
            return [W(f'kr{r_}')] + [I(f'v_add_f32 v{AC+k}, v{AC+k}, v{b+k}') for k in range(6)]
        rest = sm[n1 + 90:]
        for r_ in range(7): A(st, kvload(r_))
        A(st, rest)
        A(st, f'v_mov_b32 v{PHq+18}, 0\nv_mov_b32 v{PHq+19}, 0')
        first = True
        for r_ in range(16):
            x = kvsum(r_)
            if r_ in (0, 7, 14): x[0].gap = c_gap(self.c, r_)
            A(st, x)
            if r_ + 7 < 16: A(st, kvload(r_ + 7))
        A(st, [self.unpark('im1a', 25), self.unpark('im2a', 26), self.unpark('im1b', 27), self.unpark('im2b', 28)])
        A(st, f'v_cvt_pk_bf16_f32 v{AC}, v{AC}, v{AC+1}\nv_cvt_pk_bf16_f32 v{AC+1}, v{AC+2}, v{AC+3}\nv_cvt_pk_bf16_f32 v{AC+2}, v{AC+4}, v{AC+5}')
        A(st, [I(f'ds_write_b64 v25, v[{AC}:{AC+1}]', tok='kimg'), I(f'ds_write_b64 v26, v[{AC}:{AC+1}]', tok='kimg'),
               I(f'ds_write_b32 v27, v{AC+2}', tok='kimg'), I(f'ds_write_b32 v28, v{AC+2}', tok='kimg')])
        pk = self.c_pk = 12
        need(pk, 'kimg')
        m.append(('deadline', bar(pk)))
        OF, OD = 64 + 0, 208
        st = bar(pk) + 1
        A(st, [self.unpark('Ex', 29)])
        ofr = lambda x: 168 + 4 * x if False else aPHI + 4 * (x % 6)
        seq = []
        for sg in range(5):
            reg, o = self.rng(vS, E + 1024 * sg)
            seq.append(('m', sg, [I(f'ds_read_b64_tr_b16 a[{ofr(2*sg)+2*k}:{ofr(2*sg)+2*k+1}], v{reg} offset:{o+256*k}', tok=f'of{2*sg}') for k in range(2)]))
            seq.append(('x', sg, [I(f'ds_read_b64_tr_b16 a[{ofr(2*sg+1)+2*k}:{ofr(2*sg+1)+2*k+1}], v29 offset:{512*sg+128*k}', tok=f'of{2*sg+1}') for k in range(2)]))
        for x in range(4): A(st, seq[x][2])
        for x in range(10):
            kind, sg, _ = seq[x]
            fr = ofr(x); Bq = PHq + 4 * sg
            if kind == 'm':
                mf = I(f'v_mfma_f32_32x32x16_bf16 v[{OD}:{OD+15}], a[{fr}:{fr+3}], v[{Bq}:{Bq+3}], ' + ('0' if sg == 0 else f'v[{OD}:{OD+15}]'))
            else:
                mf = I(f'v_mfma_f32_16x16x32_bf16 v[{OD+16}:{OD+19}], a[{fr}:{fr+3}], v[{Bq}:{Bq+3}], ' + ('0' if sg == 0 else f'v[{OD+16}:{OD+19}]'))
            G(st, [W(f'of{x}'), mf])
            if x + 4 < 10: A(st, seq[x + 4][2])
        self.po = pk + 1
        need(self.po, 'of9')
        m.append(('deadline', bar(self.po)))
        X0 = OD + 16
        x = L(f'v_cndmask_b32 v228, v{X0+2}, v{X0}, {hm}\nv_add_f32 v228, v228, v{SQ}\nv_rcp_f32 v228, v228\nv_cndmask_b32 v{X0}, v{X0}, v{X0+2}, {hm}\nv_cndmask_b32 v{X0+1}, v{X0+1}, v{X0+3}, {hm}')
        x[0].gap = 4
        A(st, x)
        for k in range(9):
            A(st, f'v_mul_f32 v{OD+2*k}, v228, v{OD+2*k}\nv_mul_f32 v{OD+2*k+1}, v228, v{OD+2*k+1}\nv_cvt_pk_bf16_f32 v{PHq+k}, v{OD+2*k}, v{OD+2*k+1}')
        A(st, [self.unpark('oxs', 25)])
        A(st, [I(f'buffer_store_dwordx4 v[{PHq+4*k}:{PHq+4*k+3}], v{vL16}, {srd(WS)}, s{sOMown} offen offset:{1024*k} sc1', tok='ost') for k in range(2)])
        A(st, [I(f'buffer_store_dword v{PHq+8}, v25, {srd(WS)}, s{sOXown} offen sc1', tok='ost')])
        x = glue([W('ost'), I(f'buffer_store_dword v{vONE}, v{vF0}, {srd(WS)}, s{sFO} offen sc1', tok='flag')])
        x[0].gap = 60
        m.append((st, x))
        S['att'] = TimedStream('att', m)

        m = []
        self.vG = 12
        st = P0(max(self.loadp.get(pos[k], 0) for k in pos) + 1)
        A(st, [self.unpark('G', 12)] + L('v_add_u32 v13, 55296, v12\nv_add_u32 v14, 110592, v12'))
        vHL = 15
        pA = 11
        A(P0(pA), f'v_lshrrev_b32 v{vHL}, 2, v{vL16}\nv_and_b32 v{vHL}, 12, v{vHL}\ns_and_b32 s56, s{sFH}, 0xffffff80')
        ld, chk = self.poll('hA', WS, vHL, 's56', 1, 11)
        assert max(self.loadp[i] for i in range(4, 13)) < pA
        A(P0(pA) + 16, [ld]); G(P0(12) - 2, chk)
        ldB, chkB = self.poll('hB', WS, vHL, 's57', 1, 11)
        tau_done = -1
        vHA = 21
        vHA = vRS
        A(P0(12), f'v_mov_b32 v{vHA}, v{vL16}')
        curt = 0
        polledB = False
        for n_ in range(9, 36):
            u = n_ // 4
            mm = n_ - 9; tau = mm // 3; pe = mm % 3
            p = 13 + u - c.leadH
            e = mm % 18
            if p <= 12: st = P0(12) + 2 * e + 3
            else: st = P0(p) + 2 + 14 * (n_ % 4)
            if n_ >= 27: st = max(st, 468 + 72 * ((n_ - 18) // 4 + 1))
            if tau > c.flagA and not polledB:
                polledB = True
                A(st - 40, f's_add_u32 s57, s56, 16'); A(st - 40, [ldB]); G(st - 1, chkB)
            if tau // 2 != curt:
                curt = tau // 2
                A(st, f'v_add_u32 v{vHA}, 4096, v{vHA}')
            for tg in range(2):
                A(st, [I(f'buffer_load_dwordx4 a[{8*e+4*tg}:{8*e+4*tg+3}], v{vHA}, {srd(WS)}, s{sHp+pe} offen offset:{(tau&1)*2048+tg*1024} sc1', tok=f'ph{n_}')])
        S['peer'] = TimedStream('peer', m)

        def dma_insert(st, groups):
            it = S['dma'].items
            k = 0
            while k < len(it) and (it[k][0] == 'deadline' or it[k][0] <= st): k += 1
            it[k:k] = [(st, gg) for gg in groups]
        one = lambda x: [[y] for y in (L(x) if isinstance(x, str) else x)]
        gwc = f's_lshr_b32 s49, s2, 3\ns_lshl_b32 s49, s49, 2\ns_add_u32 s49, s49, s{sW}\n'
        dma_insert(P0(2), one(f'v_lshlrev_b32 v253, 3, v{vL16}'))
        if c.pfW2:
            dma_insert(bar(c.pfW2) - 1, one(gwc + f's_mul_i32 s49, s49, {81*128}\ns_mul_i32 s50, s{sQ}, {1152*1152}\ns_add_u32 s49, s49, s50\ns_add_u32 s50, s49, 8192')
                       + one(f'buffer_load_dword v254, v253, {srd(W2)}, s49 offen'))
            dma_insert(bar(c.pfW2 + 1) - 1, [glue(L(f's_mov_b64 exec, 0x1ffff\nbuffer_load_dword v255, v253, {srd(W2)}, s50 offen\ns_mov_b64 exec, -1'))])
        if c.pfWO:
            dma_insert(bar(c.pfWO) - 1, one(gwc + f's_mul_i32 s49, s49, {81*64}\ns_and_b32 s49, s49, 0xffffff80\ns_min_u32 s49, s49, {663552-41*128}')
                       + [glue(L(f's_mov_b32 exec_hi, 0x1ff\nbuffer_load_dword v254, v253, {srd(WO)}, s49 offen\ns_mov_b64 exec, -1'))])
        m = []
        px = self.po + 1
        st = bar(px - 1) + 1
        xd = lambda k: I(f'buffer_load_dwordx4 v{vA+k}, {srd(X)}, s{sXB} offen offset:{k*1024} lds', tok='xt')
        dma_insert(st, one(f's_lshl_b32 s49, s{sR}, 2\ns_add_u32 s49, s49, s{sQ}\ns_lshl_b32 s49, s49, 2\ns_add_u32 s49, s49, s{sW}\ns_mul_i32 s{sXB}, s49, 9216\ns_mul_i32 s49, s{sJJ}, 288\ns_add_u32 s{sXB}, s{sXB}, s49')
                   + one(f's_mul_i32 s50, s{sW}, 2304\ns_add_u32 m0, s50, {E}')
                   + [glue(L('s_mov_b64 exec, 0xffff') + [xd(2)] + L('s_mov_b64 exec, -1'))] + one([xd(0), xd(1)]))
        need(px + 1, 'xt')
        st = bar(px + 1) + 1
        XR = 52
        A(st, [self.unpark('Xt', 62)] + L(f'v_add_u32 v63, {E}, v62\nv_add_u32 v62, {OUTB}, v62'))
        A(st, [I(f'ds_read_b64 v[{XR+2*k}:{XR+2*k+1}], v63 offset:{32*k}', tok='xr') for k in range(5)])
        need(px + 2, 'xr'); m.append(('deadline', bar(px + 2)))
        st = bar(px + 2) + 1
        dma_insert(st, one([self.unpark(f'E{k}', 40 + k) for k in range(4)])
                   + one(f's_mul_i32 s51, s{sJJ}, 288\ns_add_u32 s51, s51, {512*1152}\ns_lshl_b32 s52, s{sW}, 12\ns_add_u32 m0, s52, {E}')
                   + one([I(f'buffer_load_dwordx4 v{40+k}, {srd(WO)}, s51 offen offset:{1024*k} lds', tok='woE') for k in range(4)]))
        A(st, [self.unpark('wrap', 63), self.unpark('Sm', 32), self.unpark('Sx', 36), self.unpark('rsr', 50), self.unpark('omc', 44), self.unpark('oxc', 45)])
        A(st, 'v_add_u32 v33, 55296, v32\nv_add_u32 v34, 110592, v32\nv_add_u32 v37, 55296, v36\nv_add_u32 v38, 110592, v36')
        A(st, f'v_subrev_u32 v35, {568*288-768-15*36*288}, v32\nv_add_u32 v39, {15*36*288}, v32\ns_mov_b32 s{sM}, 0\ns_mov_b32 s{sM+1}, 0xffff0000\nv_cndmask_b32 v35, v39, v35, s[{sM}:{sM+1}]')
        po = 13 + 6
        assert bar(px + 2) + 40 < P0(po)
        st = max(st, P0(po) - 40)
        A(st, f'v_lshrrev_b32 v46, 2, v{vL16}\nv_and_b32 v46, 60, v46\ns_lshl_b32 s53, s{sR}, 2\ns_add_u32 s53, s53, s{sQ}\ns_lshl_b32 s53, s53, 7\ns_add_u32 s53, s53, {FL_O}')
        ld, chk = self.poll('of', WS, 46, 's53', 1, 47)
        A(st, [ld]); G(P0(po), chk)
        for j_ in range(16):
            st = P0(po) + 1 + 8 * j_
            if j_ and j_ % 2 == 0: A(st, f's_add_u32 s{sOMc}, s{sOMc}, 4096')
            A(st, [I(f'buffer_load_dwordx4 a[{184+4*j_}:{187+4*j_}], v44, {srd(WS)}, s{sOMc} offen offset:{(j_&1)*2048} sc1', tok=f'o{j_}')])
        for e in range(2):
            A(st, [I(f'buffer_load_dwordx4 a[{248+4*e}:{251+4*e}], v45, {srd(WS)}, s{sOXc} offen offset:{e*2048} sc1', tok=f'o{16+e}')])
        S['prep'] = TimedStream('prep', m)
        need(20, 'T22')
        m = []
        A(P0(21), f's_add_u32 s54, s{sYp}, 4096\ns_add_u32 s55, s{sYp}, 8192')
        for pr in range(5):
            for tg in range(2):
                a0 = 136 + 36 * tg + 8 * pr
                last = 2 * pr + 1 if pr < 4 else 8
                st = P0(21) + 8 * last + 4 * tg + 3 + 3
                nn = 4 if pr < 4 else 2
                A(st, [I(f'v_cvt_pk_bf16_f32 v{a0+k}, v{a0+2*k}, v{a0+2*k+1}') for k in range(nn)])
                blk = 5 * tg + pr
                so = [sYp, 54, 55][blk // 4]
                op = 'buffer_store_dwordx4' if nn == 4 else 'buffer_store_dwordx2'
                A(st, [I(f'{op} v[{a0}:{a0+nn-1}], v{vL16}, {srd(WS)}, s{so} offen offset:{(blk%4)*1024} sc1', tok='yst')])
        S['ypk'] = TimedStream('ypk', m)
        return S

    def g2_steps(self):
        c = self.c
        steps = []
        for u in range(9):
            for k in range(72):
                ct, tg, ks = k >> 3, (k >> 2) & 1, k & 3
                f = 36 * u + 4 * ct + ks
                fr = RING + 4 * ((f + self.ring0) % c.NBf)
                n_ = 4 * u + ks
                if n_ < 9: B = f'v[{vH+8*n_+4*tg}:{vH+8*n_+4*tg+3}]'
                else:
                    e = (n_ - 9) % 18; B = f'a[{8*e+4*tg}:{8*e+4*tg+3}]'
                acc = 136 + 36 * tg + 4 * ct
                cc = '0' if (u == 0 and ks == 0) else f'v[{acc}:{acc+3}]'
                mf = I(f'v_mfma_f32_16x16x32_bf16 v[{acc}:{acc+3}], a[{fr}:{fr+3}], {B}, {cc}')
                pre = []
                if tg == 0 and ks % 2 == 0:
                    tk = [f'g{f}', f'g{f+1}']
                    if ct == 0 and ks == 0: tk += [f'ph{x}' for x in range(max(9, 4 * u), 4 * u + 4)]
                    pre = [W(*tk)]
                post = []
                hf = k + c.Dh
                if hf < 72: post.append(self.g2_half(u, hf))
                elif u < 8: post.append(self.g2_half(u + 1, hf - 72))
                else:
                    pass
                if hf == 71:
                    if u < 8: post += [W(f'T{14+u}', *self.bar_need.get(13 + u, []))] + L('s_barrier')
                steps.append(Step(mf, pre, post))
        return steps

    def s_reads(self, x):
        st, lam = self.sorder[x // 5], x % 5
        b = 72 + 4 * (x % 18)
        r = []
        for rd in range(2):
            if st < 16:
                off = st * 36 * 288 + rd * 4 * 288 + lam * 32
                if st == 15: reg, o = 35, off - 15 * 36 * 288
                else: reg, o = self.rng(32, off)
            else:
                reg, o = self.rng(36, (8 * (st - 16) + 4 * rd) * 36 * 288 + lam * 32)
            r.append(I(f'ds_read_b64_tr_b16 a[{b+2*rd}:{b+2*rd+1}], v{reg} offset:{o}', tok=f's{x}'))
        return r

    def tail(self, S):
        c = self.c; E_ = self.E
        SA = 64
        YL = 84
        XR = 52
        self.sorder = [0, 1, 2, 3, 4, 5, 6, 7, 16, 8, 9, 10, 11, 12, 13, 14, 17, 15]
        nmid = 11 * 5
        E_(flush(S['ypk']))
        E_(self.stamp('U8'))
        for x in range(5): E_(self.s_reads(x))
        E_(W('s4', 'T23')); E_('s_barrier')
        E_(self.stamp('B1'))
        dm = [x for grp in self.dma_item(25) for x in grp]
        dm += L(f's_min_u32 s{sT2}, s{sW}, 2\ns_lshl_b32 m0, s{sT2}, 10\ns_nop 0') + [I(f'buffer_load_dwordx4 v63, {srd(WO)}, s51 offen lds', tok='wrap')]
        Ds = 6
        for x in range(5, Ds): E_(self.s_reads(x))
        side = list(dm)
        yflag = [W('yst'), I(f'buffer_store_dword v{vONE}, v{vF0}, {srd(WS)}, s{sFY} offen sc1', tok='flag')]
        for x in range(90):
            st, lam = self.sorder[x // 5], x % 5
            fr = 72 + 4 * (x % 18); acc = SA + 4 * lam
            E_(W(f's{x}', f'o{st}'))
            E_(f'v_mfma_f32_16x16x32_bf16 v[{acc}:{acc+3}], a[{fr}:{fr+3}], a[{184+4*st}:{187+4*st}], ' + ('0' if x < 5 else f'v[{acc}:{acc+3}]'))
            if x + Ds == nmid:
                E_(self.stamp('s49')); E_(W('T25', 'wrap', 'woE')); E_('s_barrier'); E_(self.stamp('B3'))
            if x + Ds == 35:
                E_(self.stamp('s29')); E_(W('T24')); E_('s_barrier'); E_(self.stamp('B2'))
            if x + Ds < 90: E_(self.s_reads(x + Ds))
            if side: E_(side.pop(0))
            if x == 30: E_(yflag); E_(self.stamp('yfl'))
        E_(self.stamp('s89'))
        E_(f'v_lshrrev_b32 v25, 2, v{vL16}\nv_and_b32 v25, 12, v25')
        E_(f's_lshl_b32 s3, s{sR}, 2\ns_add_u32 s3, s3, s{sJJ}\ns_lshl_b32 s3, s3, 2\ns_add_u32 s3, s3, s{sQ}\ns_lshl_b32 s3, s3, 7\ns_add_u32 s{sT0}, s3, {FL_Y}')
        ld, chk = self.poll('yf', WS, 25, f's{sT0}', 1, 26)
        E_(ld)
        XU = 136
        for k in range(10):
            E_(f'v_lshlrev_b32 v{XU+2*k}, 16, v{XR+k}\nv_and_b32 v{XU+2*k+1}, 0xffff0000, v{XR+k}')
        E_(f'v_mul_f32 v48, 0xbfb8aa3b, v50\nv_mov_b32 v49, v48\nv_mov_b32 v51, v50')
        for k in range(10):
            E_(f'v_pk_mul_f32 v[{SA+2*k}:{SA+2*k+1}], v[{SA+2*k}:{SA+2*k+1}], v[50:51]')
        E_(f's_mov_b32 s{sT1}, 0x3f80\ns_mov_b32 s{sT2}, 0x3f800000')
        E_(chk)
        E_(self.stamp('ypoll'))
        for i in range(3):
            for q_ in range(4):
                if i == 0 and q_: pass
                b = YL + 12 * q_ + 4 * i
                so = [sYc, sT0, sT3, sT4][q_]
                if i == 0 and q_: E_(f's_add_u32 s{so}, s{sYc}, {10240*q_}')
                E_(I(f'buffer_load_dwordx4 v[{b}:{b+3}], v{vL16}, {srd(WS)}, s{so} offen offset:{1024*i} sc1', tok=f'y{i}'))
        if c.ts: E_(W('y2')); E_(self.stamp('yld'))
        Y = 160; Tm = 184; OUTR = 208
        for lam in range(5):
            y = Y + 4 * lam; tm = Tm + 4 * lam
            for q_ in range(4):
                for dw in range(2):
                    src = YL + 12 * q_ + 2 * lam + dw
                    for hi in range(2):
                        d_ = y + 2 * dw + hi
                        if q_ == 0:
                            E_(f'v_lshlrev_b32 v{d_}, 16, v{src}' if hi == 0 else f'v_and_b32 v{d_}, 0xffff0000, v{src}')
                        else:
                            E_(f'v_dot2c_f32_bf16 v{d_}, s{sT2 if hi else sT1}, v{src}')
            if lam > 0: self.final_b(lam - 1, Y, Tm, XU, OUTR)
            for k in range(2):
                E_(f'v_pk_mul_f32 v[{tm+2*k}:{tm+2*k+1}], v[{y+2*k}:{y+2*k+1}], v[48:49]')
            for k in range(2):
                E_(f'v_pk_mul_f32 v[{y+2*k}:{y+2*k+1}], v[{y+2*k}:{y+2*k+1}], v[{SA+4*lam+2*k}:{SA+4*lam+2*k+1}]')
            for k in range(4): E_(f'v_exp_f32 v{tm+k}, v{tm+k}')
        self.final_b(4, Y, Tm, XU, OUTR)
        E_(self.stamp('fin'))
        E_(W('ow')); E_('s_barrier')
        E_(f's_mul_i32 s3, s{sW}, 2304\ns_add_u32 s3, s3, {OUTB}\nv_add_u32 v25, s3, v{vL16}')
        for k in range(3): E_(I(f'ds_read_b128 v[{224+4*k}:{227+4*k}], v25 offset:{1024*k}', tok=f'or{k}'))
        for k in range(2): E_(I(f'buffer_store_dwordx4 v[{224+4*k}:{227+4*k}], v{vA+k}, {srd(OUT)}, s{sXB} offen offset:{1024*k}', tok='out'))
        E_(W('or2'))
        E_('s_mov_b64 exec, 0xffff')
        E_(I(f'buffer_store_dwordx4 v[232:235], v{vA+2}, {srd(OUT)}, s{sXB} offen offset:2048', tok='out'))
        E_('s_mov_b64 exec, -1')

    def final_b(self, lam, Y, Tm, XU, OUTR):
        E_ = self.E
        y = Y + 4 * lam; tm = Tm + 4 * lam
        for k in range(2): E_(f'v_pk_add_f32 v[{tm+2*k}:{tm+2*k+1}], v[{tm+2*k}:{tm+2*k+1}], 1.0 op_sel_hi:[1,0]')
        for k in range(4): E_(f'v_rcp_f32 v{tm+k}, v{tm+k}')
        for k in range(2): E_(f'v_pk_fma_f32 v[{y+2*k}:{y+2*k+1}], v[{y+2*k}:{y+2*k+1}], v[{tm+2*k}:{tm+2*k+1}], v[{XU+4*lam+2*k}:{XU+4*lam+2*k+1}]')
        for k in range(2): E_(f'v_cvt_pk_bf16_f32 v{OUTR+2*lam+k}, v{y+2*k}, v{y+2*k+1}')
        E_(I(f'ds_write_b64 v62, v[{OUTR+2*lam}:{OUTR+2*lam+1}] offset:{32*lam}', tok='ow'))

    def build(self):
        c = self.c; E_ = self.E
        assert c.D + 2 <= 10 and c.NBf <= 10
        self.plan_slots()
        if c.ts: pass
        self.prologue()
        S = self.build_streams()
        self.ring0 = self.pick_ring0()
        E_(self.stamp('stat'))
        E_(W('T0', 'zf0', 'rsw', 'clr')); E_('s_barrier')
        E_(self.stamp('T0'))
        E_(f'v_mov_b32 v25, {OOB}\ns_and_b32 s3, s2, 7\ns_lshl_b32 s3, s3, 5\nv_mov_b32 v26, s3\nv_cmp_eq_u32 vcc, 0, v0')
        for s in range(c.D): E_(self.g1_reads(0, s))
        E_(f'v_cndmask_b32 v25, v25, v26, vcc')
        E_(I(f'buffer_atomic_add v{vONE}, v25, {srd(DBG)}, 0 offen sc1', tok='atom'))
        steps = self.g1_steps() + self.g2_steps()
        sk = c.skip.split()
        def drop(pred, names=None):
            for nm, st_ in S.items():
                if names and nm not in names: continue
                new = []
                for it in st_.items:
                    if it[0] == 'deadline': new.append(it); continue
                    gg = [x for x in it[1] if not pred(x)]
                    if gg: new.append((it[0], gg))
                st_.items = new
        for nm in sk:
            if nm in S: S[nm].items = []
        if sk:
            drop(lambda x: x.kind == 'label' or x.op.startswith('s_cbranch') or x.op.startswith('v_cmp_ne'))
            self.slow = []
        if 'hst' in sk: drop(lambda x: x.kind == 'vstore', ['epi'])
        if 'peerld' in sk: drop(lambda x: x.kind == 'vload', ['peer'])
        if 'oload' in sk: drop(lambda x: x.kind == 'vload', ['prep'])
        if 'dmaq' in sk: drop(lambda x: x.kind == 'dma', ['dma'])
        if 'attvm' in sk: drop(lambda x: x.kind in ('vstore', 'vload'), ['att'])
        if 'attds' in sk: drop(lambda x: x.kind in ('dsr', 'dsw'), ['att'])
        if 'attvalu' in sk: drop(lambda x: x.kind in ('valu', 'trans') and 'accvgpr' not in x.op and not (x.wr & {('v', 25), ('v', 26)}), ['att'])
        if 'sc1' in sk:
            for st_ in S.values():
                for it in st_.items:
                    if it[0] != 'deadline':
                        for x in it[1]: x.text = x.text.replace(' sc1', '')
        if 'bar' in sk:
            for st_ in steps: st_.post = [x for x in st_.post if x.kind != 'barrier']
        order = [S[k] for k in ('dma', 'epi', 'ypk', 'peer', 'misc', 'att', 'prep')]
        self.log = []
        body = schedule_timed(steps, order, log=self.log, stamps={36 * p: (lambda p=p: self.stamp(f'p{p-1}')) for p in range(1, 14)} | {468 + 72 * u: (lambda u=u: self.stamp(f'U{u-1}')) for u in range(1, 9)})
        E_(body)
        for s in order:
            if s.name != 'ypk': assert s.done(), (s.name, s.idx, len(s.items))
        self.tail(S)
        if c.ts:
            E_(W('out')); E_(self.stamp('out'))
            E_(f's_memrealtime s[0:1]\ns_waitcnt lgkmcnt(0)\nv_writelane_b32 v{vONE}, s0, 62')
            E_(f's_lshl_b32 s3, s2, 2\ns_add_u32 s3, s3, s{sW}\ns_lshl_b32 s3, s3, 8\ns_add_u32 s3, s3, {WS_TS}\nv_lshrrev_b32 v25, 2, v{vL16}')
            E_(f'buffer_store_dword v{vONE}, v25, {srd(WS)}, s3 offen')
            if c.dbg is not None:
                names = ['xiss', 'T0', 'p0', 'p2', 'p4', 'p6', 'p8', 'p10', 'p12', 'U3', 'U8', 's89', 'out']
                E_(f'v_readlane_b32 s40, v{vONE}, 61\nv_readlane_b32 s41, v{vONE}, 60\nv_readlane_b32 s42, v{vONE}, 62\ns_sub_u32 s42, s42, s41\nv_mov_b32 v26, 0')
                words = [1, 2, 3, 4, 5, 6, 7, 9, 10, 11, 12, 13, 14]
                for nm, wd in zip(names, words):
                    E_(f'v_readlane_b32 s43, v{vONE}, {self.notes.index(nm)+1}\ns_sub_u32 s43, s43, s40\nv_writelane_b32 v26, s43, {wd}')
                E_(f'v_writelane_b32 v26, s42, 15\nv_lshlrev_b32 v25, 2, v0\ns_cmp_eq_u32 s2, {c.dbg}\ns_cselect_b32 s44, 0xfefe, 0\ns_cmp_eq_u32 s{sW}, 0\ns_cselect_b32 s44, s44, 0\ns_mov_b32 exec_lo, s44\ns_mov_b32 exec_hi, 0')
                E_(f'buffer_store_dword v26, v25, {srd(DBG)}, 0 offen')
        stats = {}
        prog = resolve_waits(self.p, stats, lenient=bool(c.skip))
        prog = pad_hazards(prog, stats)
        self.stats = stats
        self.prog = prog
        return prog

    def pick_ring0(self):
        c = self.c; NB = c.D + 2
        best = None
        for r0 in range(c.NBf):
            ok = True
            for k in range(c.D):
                lo = c.Dh * k // c.D; hi = c.Dh * (k + 1) // c.D
                busy = {(x % NB) for x in range(468 - c.D + k + 1, 468)}
                for h in range(0, hi):
                    f = 4 * (h >> 3) + ((h >> 1) & 3)
                    if (f + r0) % c.NBf in busy: ok = False
            if ok: best = r0; break
        assert best is not None
        return best

    def text(self):
        hdr = open('cdna_kernels/' + NAME + '.s.ref').read().split('\n')
        top = [x for x in hdr if x.startswith(';') and not x.startswith('; @launch')]
        out = top + ['; @launch grid=(256,1,1) block=(256,1,1) lds=163840',
                     '.amdgcn_target "amdgcn-amd-amdhsa--gfx950"', '.text', f'.globl {NAME}_kernel', '.p2align 8',
                     f'.type {NAME}_kernel,@function', f'{NAME}_kernel:']
        body = [i.text for i in self.prog]
        out += body
        out += ['L_end:', 's_endpgm'] + self.slow + ['CODE_END:', 's_endpgm']
        out += ['.section .rodata,"a"', '.p2align 6', f'.amdhsa_kernel {NAME}_kernel', '  .amdhsa_next_free_vgpr 512', '  .amdhsa_next_free_sgpr 102',
                '  .amdhsa_accum_offset 256', '  .amdhsa_group_segment_fixed_size 0', '  .amdhsa_kernarg_size 80', '  .amdhsa_user_sgpr_count 2',
                '  .amdhsa_user_sgpr_kernarg_segment_ptr 1', '  .amdhsa_system_sgpr_workgroup_id_x 1', '.end_amdhsa_kernel']
        return '\n'.join(out) + '\n'


def c_gap(c, r_):
    return {0: 30, 7: 20, 14: 20}[r_]


class TimedStream:
    def __init__(self, name, items):
        self.name = name; self.items = items; self.idx = 0; self.last_step = -10**9

    def done(self):
        while self.idx < len(self.items) and self.items[self.idx][0] == 'deadline': self.idx += 1
        return self.idx >= len(self.items)

    def next_deadline(self):
        cost = 0
        for it in self.items[self.idx:]:
            if it[0] == 'deadline': return it[1], cost
            cost += sum(x.cost for x in it[1])
        return None, cost


def flush(s):
    r = [x for it in s.items[s.idx:] if it[0] != 'deadline' for x in it[1]]
    s.idx = len(s.items)
    return r


def schedule_timed(steps, streams, log=None, stamps=None):
    out = []
    m0_owner = None
    for g, st in enumerate(steps):
        if stamps and g in stamps: out.extend(stamps[g]())
        out.extend(st.pre)
        used = sum(i.cost for i in st.pre)
        cap = st.cap if st.cap is not None else (8 if st.mf.kind == 'mfma32' else 4)
        out.append(st.mf); used += st.mf.cost
        forced = 0
        for s in streams:
            dl, cost = s.next_deadline()
            if dl is not None and dl <= g:
                while s.items[s.idx][0] != 'deadline':
                    assert s.items[s.idx][0] <= g, (s.name, s.items[s.idx], g)
                    out.extend(s.items[s.idx][1]); forced += sum(x.cost for x in s.items[s.idx][1]); s.idx += 1
                s.idx += 1; s.last_step = g
        used += forced
        out.extend(st.post); used += sum(i.cost for i in st.post)
        progress = True
        while progress:
            progress = False
            for s in streams:
                if s.idx < len(s.items) and s.items[s.idx][0] == 'deadline':
                    s.idx += 1
                if s.idx >= len(s.items): continue
                t0, grp = s.items[s.idx]
                if t0 == 'deadline' or g < t0: continue
                if grp[0].gap and g < s.last_step + grp[0].gap: continue
                c = sum(x.cost for x in grp)
                extra = sum((8 if x.kind == 'mfma32' else 4) for x in grp if x.kind in ('mfma32', 'mfma16'))
                late = (s.name in ('dma', 'ypk') and g >= t0 + 2) or (c > 3 and used < cap) or (c >= 2 and used < cap and st.mf.kind == 'mfma16')
                if used + c > cap + extra and not late: continue
                out.extend(grp); used += c; cap += extra
                s.idx += 1; s.last_step = g
                progress = True
                break
        if log is not None: log.append((g, used, cap, forced, {s.name: s.idx for s in streams}))
    return out


if __name__ == '__main__':
    kw = {}
    for a in sys.argv[2:]:
        k, v = a.split('='); kw[k] = eval(v)
    g = Gen(Cfg(**kw)); g.build()
    open(sys.argv[1], 'w').write(g.text())
    print('instrs', len(g.prog), 'est clk', estimate(g.prog), {k: v for k, v in g.stats.items() if k != 'nop_sites'})
    over = [(x[0], x[1], x[2], x[3]) for x in g.log if x[1] > x[2]]
    print('overfull steps', len(over), 'excess slots', sum(x[1] - x[2] for x in over), over[:40])
    print('slots', g.slot, g.slotS, g.loadp, 'ring0', g.ring0, 'parked', len(g.park))
```

```python
import re

REG_RE = re.compile(r'^(-|\|)?(v|a|s)(\d+)$')
RNG_RE = re.compile(r'^(v|a|s)\[(\d+):(\d+)\]$')


def regs_of(op):
    op = op.strip()
    if op.startswith('-'):
        op = op[1:]
    if op.startswith('abs(') and op.endswith(')'):
        op = op[4:-1]
    if op.startswith('|') and op.endswith('|'):
        op = op[1:-1]
    m = RNG_RE.match(op)
    if m:
        return [(m.group(1), i) for i in range(int(m.group(2)), int(m.group(3)) + 1)]
    m = re.match(r'^(v|a|s)(\d+)$', op)
    if m:
        return [(m.group(1), int(m.group(2)))]
    if op == 'vcc':
        return [('x', 'vcc')]
    if op in ('exec', 'exec_lo', 'exec_hi'):
        return [('x', 'exec')]
    if op == 'm0':
        return [('x', 'm0')]
    return []


TRANS = ('v_exp_f32', 'v_log_f32', 'v_rcp_f32', 'v_rsq_f32', 'v_sqrt_f32')


class I:
    __slots__ = ('text', 'op', 'kind', 'rd', 'wr', 'tok', 'need', 'cost', 'gap', 'maybe', 'srcc', 'wide', 'glue', 'comment', 'nslots')

    def __init__(self, text, tok=None, need=None, gap=0, maybe=False, glue=False):
        self.text = text
        self.tok = tok
        self.need = need
        self.gap = gap
        self.maybe = maybe
        self.glue = glue
        self.srcc = set()
        self.comment = None
        self.wide = False
        self.parse()

    def parse(self):
        t = self.text.strip()
        if t.endswith(':') or t.startswith('.') or t.startswith(';'):
            self.op = t; self.kind = 'label'; self.rd = set(); self.wr = set(); self.cost = 0
            return
        parts = t.split(None, 1)
        op = parts[0]
        self.op = op
        rest = parts[1] if len(parts) > 1 else ''
        ops = [o.strip() for o in rest.split(',')] if rest else []
        mods = ''
        if ops:
            lp = ops[-1].split(None, 1)
            ops[-1] = lp[0]
            mods = lp[1] if len(lp) > 1 else ''
        R = [regs_of(o) for o in ops]
        rd = set(); wr = set()
        allr = lambda lst: set(x for l in lst for x in l)
        cost = 1
        if op == 'WAIT':
            kind = 'wait'; cost = 1
        elif op.startswith('v_mfma'):
            kind = 'mfma32' if '32x32' in op else ('mfma4' if '4x4x4' in op else 'mfma16')
            wr = set(R[0]); rd = allr(R[1:]); self.srcc = set(R[3]); cost = 2
        elif op.startswith('buffer_load'):
            if ' lds' in (' ' + mods + ' ') or mods.endswith('lds'):
                kind = 'dma'; rd = allr(R) | {('x', 'm0')}
            else:
                kind = 'vload'; wr = set(R[0]); rd = allr(R[1:])
                if 'd16' in op: rd |= set(R[0])
        elif op.startswith('buffer_store') or op.startswith('buffer_atomic'):
            kind = 'vstore'; rd = allr(R)
            self.wide = 'x4' in op or 'x3' in op
            if op.startswith('buffer_atomic') and 'sc0' in mods:
                wr = set(R[0]); kind = 'vload'
        elif op.startswith('ds_read'):
            kind = 'dsr'; wr = set(R[0]); rd = allr(R[1:])
        elif op.startswith('ds_write'):
            kind = 'dsw'; rd = allr(R)
        elif op.startswith('s_load'):
            kind = 'smem'; wr = set(R[0]); rd = allr(R[1:])
        elif op in ('s_memtime', 's_memrealtime'):
            kind = 'smem'; wr = set(R[0])
        elif op == 's_waitcnt':
            kind = 'rawwait'
        elif op == 's_barrier':
            kind = 'barrier'
        elif op == 's_nop':
            kind = 'nop'; cost = int(ops[0]) + 1
        elif op in ('s_endpgm', 's_branch', 's_setprio', 's_sleep'):
            kind = 'sctl'
        elif op.startswith('s_cbranch'):
            kind = 'sctl'
            if 'vcc' in op: rd = {('x', 'vcc')}
            if 'scc' in op: rd = {('x', 'scc')}
            if 'exec' in op: rd = {('x', 'exec')}
        elif op.startswith('s_cmp') or op.startswith('s_bitcmp'):
            kind = 'salu'; rd = allr(R); wr = {('x', 'scc')}
        elif op.startswith('s_'):
            kind = 'salu'; wr = set(R[0]); rd = allr(R[1:])
            if op.startswith(('s_addc', 's_subb', 's_cselect')): rd |= {('x', 'scc')}
            if 'saveexec' in op: rd |= {('x', 'exec')}; wr |= {('x', 'exec')}
            if op.startswith(('s_addk', 's_mulk')): rd |= set(R[0])
            if not op.startswith(('s_mov', 's_getpc', 's_mul', 's_cselect', 's_getreg')): wr |= {('x', 'scc')}
        elif op.startswith('v_'):
            kind = 'valu'
            base = op.replace('_e32', '').replace('_e64', '')
            if base in TRANS:
                kind = 'trans'; cost = 2
            if base.startswith('v_permlane'):
                kind = 'perm'; cost = 2; wr = allr(R); rd = allr(R)
            elif base.startswith('v_cmp'):
                wr = set(R[0]); rd = allr(R[1:])
            elif base.startswith(('v_readfirstlane', 'v_readlane')):
                kind = 'rfl'; wr = set(R[0]); rd = allr(R[1:])
            elif base.startswith('v_writelane'):
                wr = set(R[0]); rd = allr(R)
            else:
                wr = set(R[0]); rd = allr(R[1:])
                if base.startswith(('v_fmac', 'v_dot2c')): rd |= set(R[0])
                if base.startswith(('v_add_co', 'v_sub_co')):
                    wr |= set(R[1]); rd = allr(R[2:])
                if base.startswith(('v_pk_', 'v_dot2')) and 'i16' not in base: kind = 'valu_pk'
        else:
            raise ValueError('unknown instruction: ' + t)
        self.kind = kind; self.rd = rd; self.wr = wr; self.cost = cost

    def __repr__(self):
        return self.text


def W(*toks):
    i = I('WAIT'); i.need = list(toks); return i


VALU_KINDS = ('valu', 'trans', 'perm', 'rfl', 'valu_pk')
VM_KINDS = ('dma', 'vload', 'vstore')
MF_KINDS = ('mfma32', 'mfma16', 'mfma4')
PASSES = {'mfma32': 8, 'mfma16': 4, 'mfma4': 2}
DS_KINDS = ('dsr', 'dsw')


def as_list(x):
    if x is None: return []
    if isinstance(x, (list, tuple, set)): return list(x)
    return [x]


def resolve_waits(prog, stats=None, lenient=False):
    out = []
    vm = []
    lg = []
    seen_tok = set()
    smem_pending = set()

    def cnt_after(q, idx):
        return sum(1 for o in q[idx + 1:] if not o.maybe)

    for ins in prog:
        nv = None; nl = None
        touched = ins.rd | ins.wr
        need = as_list(ins.need)
        for t in need:
            assert lenient or t in seen_tok, f'wait on unknown token {t} at {ins.text}'
        for q, name in ((vm, 'vm'), (lg, 'lg')):
            last = -1
            for k, o in enumerate(q):
                if (o.wr & touched) or (need and set(as_list(o.tok)) & set(need)):
                    last = k
            if last >= 0:
                n = cnt_after(q, last)
                if name == 'vm': nv = min(n, 63)
                else: nl = min(n, 15)
        if smem_pending & touched and ins.kind != 'rawwait':
            raise AssertionError('use of pending smem register without wait: ' + ins.text)
        if ins.kind == 'rawwait':
            m = re.search(r'vmcnt\((\d+)\)', ins.text)
            if m:
                n = int(m.group(1)); assert n == 0 or not any(o.maybe for o in vm)
                vm = vm[len(vm) - n:] if n else []
            m = re.search(r'lgkmcnt\((\d+)\)', ins.text)
            if m:
                n = int(m.group(1))
                lg = lg[len(lg) - n:] if n and len(lg) > n else (lg if n else [])
                if n == 0: smem_pending = set()
            out.append(ins); continue
        if nv is not None or nl is not None:
            s = 's_waitcnt'
            if nv is not None:
                s += f' vmcnt({nv})'
                k = len(vm); c = 0
                while k > 0 and (c < nv or False):
                    k -= 1
                    if not vm[k].maybe: c += 1
                vm = vm[k:] if nv else []
            if nl is not None:
                assert not smem_pending, 'counted lgkm wait with smem pending: ' + ins.text
                s += f' lgkmcnt({nl})'
                lg = lg[len(lg) - nl:] if nl else []
            w = I(s)
            out.append(w)
            if stats is not None and ins.kind != 'wait': stats['auto_waits'] = stats.get('auto_waits', 0) + 1
        if ins.kind == 'wait':
            continue
        out.append(ins)
        if ins.kind in VM_KINDS:
            vm.append(ins)
            assert len(vm) <= 80
        elif ins.kind in DS_KINDS:
            lg.append(ins)
        elif ins.kind == 'smem':
            smem_pending |= ins.wr
        for t in as_list(ins.tok): seen_tok.add(t)
    return out


def pad_hazards(prog, stats=None):
    out = []
    pos = 0
    last_valu_w = {}
    last_trans_w = {}
    last_mfma_w = {}
    last_mfma_c = {}
    last_store = {}
    last_m0 = -100
    last_dl_w = {}
    last_exec_valu = -100
    for ins in prog:
        if ins.kind == 'label':
            out.append(ins); continue
        need = 0

        def req(p, n):
            nonlocal need
            need = max(need, p + n + 1 - pos)
        k = ins.kind
        isv = k in VALU_KINDS
        ismf = k in MF_KINDS
        for r in ins.rd:
            if r in last_valu_w:
                p = last_valu_w[r]
                if ismf: req(p, 2)
                if k == 'perm': req(p, 2)
                if k == 'rfl' and r[0] == 'v': req(p, 1)
                if r[0] == 's' or r == ('x', 'vcc'):
                    if k in VM_KINDS: req(p, 5)
                    if isv: req(p, 2)
                    if k == 'sctl' or k == 'salu': req(p, 1)
            if r in last_trans_w and (isv or ismf or k in VM_KINDS or k in DS_KINDS): req(last_trans_w[r], 1)
            if r in last_dl_w and (isv or ismf or k in VM_KINDS or k in DS_KINDS): req(last_dl_w[r], 3)
        for r in (ins.rd | ins.wr):
            if r in last_mfma_w:
                p, ps, dst = last_mfma_w[r]
                big = {8: 12, 4: 8, 2: 5}[ps]
                ovl = {8: 10, 4: 6, 2: 4}[ps]
                if ismf:
                    myps = PASSES[k]
                    if r in ins.srcc:
                        if ins.srcc == dst and myps == ps and r not in (ins.rd - ins.srcc):
                            if ps == 2: req(p, 2)
                        else:
                            req(p, ovl)
                    if r in ins.rd and r not in ins.srcc: req(p, big)
                    if r in ins.wr and r not in ins.rd: req(p, ovl)
                elif isv or k in VM_KINDS or k in DS_KINDS:
                    req(p, big)
        if isv:
            for r in ins.wr:
                if r in last_mfma_c:
                    p, ps = last_mfma_c[r]; req(p, {8: 7, 4: 3, 2: 1}[ps])
                if r in last_dl_w: req(last_dl_w[r], 3)
        for r in ins.wr:
            if r in last_store: req(last_store[r], 2 if isv else 1)
        if k == 'dma': req(last_m0, 1)
        if need > 0:
            assert need <= 16
            out.append(I(f's_nop {need - 1}')); pos += need
            if stats is not None:
                stats['nops'] = stats.get('nops', 0) + need
                stats.setdefault('nop_sites', []).append((need, ins.text))
        out.append(ins)
        if isv:
            for r in ins.wr:
                last_valu_w[r] = pos
                last_mfma_w.pop(r, None)
                if k == 'trans': last_trans_w[r] = pos
                else: last_trans_w.pop(r, None)
                if ins.op.startswith('v_dot2'): last_dl_w[r] = pos
                else: last_dl_w.pop(r, None)
        elif ismf:
            ps = PASSES[k]
            for r in ins.wr:
                last_mfma_w[r] = (pos, ps, frozenset(ins.wr)); last_valu_w.pop(r, None)
            for r in ins.srcc: last_mfma_c[r] = (pos, ps)
        else:
            for r in ins.wr:
                last_valu_w.pop(r, None)
        if ('x', 'm0') in ins.wr: last_m0 = pos
        if k == 'vstore' and ins.wide:
            for r in regs_of(ins.text.split(None, 1)[1].split(',')[0]): last_store[r] = pos
        pos += ins.cost if k == 'nop' else 1
    return out


class Stream:
    def __init__(self, name, items=None, start=0, rate=99):
        self.name = name; self.items = list(items or []); self.start = start; self.rate = rate
        self.idx = 0; self.last_step = -10**9

    def add(self, x, **kw):
        if isinstance(x, str):
            for line in x.split('\n'):
                if line.strip(): self.items.append(I(line.strip(), **kw)); kw.pop('gap', None)
        elif isinstance(x, list):
            self.items.extend(x)
        else:
            self.items.append(x)
        return self

    def done(self):
        return self.idx >= len(self.items)


class Step:
    def __init__(self, mf, pre=None, post=None, cap=None, end=None):
        self.mf = mf; self.pre = list(pre or []); self.post = list(post or [])
        self.cap = cap; self.end = list(end or [])


def schedule(steps, streams, base=0, overfill=None, log=None):
    out = []
    for n, st in enumerate(steps):
        g = base + n
        out.extend(st.pre)
        used = sum(i.cost for i in st.pre)
        cap = st.cap if st.cap is not None else (8 if st.mf.kind == 'mfma32' else 4)
        out.append(st.mf); used += st.mf.cost
        out.extend(st.post); used += sum(i.cost for i in st.post)
        progress = True
        taken = {}
        while progress:
            progress = False
            for s in streams:
                if s.done() or g < s.start: continue
                it = s.items[s.idx]
                if it.gap and g < s.last_step + it.gap: continue
                if taken.get(s.name, 0) >= s.rate: continue
                j = s.idx + 1
                while j < len(s.items) and s.items[j].glue: j += 1
                grp = s.items[s.idx:j]
                c = sum(x.cost for x in grp)
                extra = sum((8 if x.kind == 'mfma32' else 4) for x in grp if x.kind in ('mfma32', 'mfma16'))
                if used + c > cap + extra and not (overfill and overfill(s, g, used, cap)): continue
                out.extend(grp); used += c; cap += extra
                s.idx = j; s.last_step = g; taken[s.name] = taken.get(s.name, 0) + c
                progress = True
                break
        if log is not None: log.append((g, used, cap))
    return out


def flush(stream):
    r = stream.items[stream.idx:]
    stream.idx = len(stream.items)
    return r


def estimate(prog):
    t = 0; pipe = 0
    for i in prog:
        if i.kind in MF_KINDS:
            t = max(t, pipe); pipe = t + 4 * PASSES[i.kind]; t += 8
        elif i.kind == 'valu_pk':
            t = max(t, pipe) + 4
        else:
            t += 4 * i.cost
    return max(t, pipe)
```

```python
import sys, os
sys.path.insert(0, os.path.dirname(os.path.abspath(__file__)))
from asmlib import *

NAME = 'recurrent_scan__linear_kernel_hedgehog__dense_activation_relu__prompt'

SLOT = 36864
E = 147456
E2 = E + 5120
RSA = E + 12288
DUMMY = E + 0x3800
OOB = 0x80000000
FL_H, FL_KV, FL_O, FL_Y = 0x0, 0x8000, 0x9000, 0x10000
WS_KV, WS_RP, WS_WO, WS_OM, WS_OX, WS_Y8, WS_Y, WS_H, WS_TS = 0x20000, 0x100000, 0x400000, 0x500000, 0x700000, 0x800000, 0xC00000, 0x1400000, 0x3000000
WS_SIZE = 268435456
RPI = {'Ta': 0, 'Tb': 1, 'Tc': 2, 'Td': 3, 'S': 4}
X, QKV, PHI, WO, W1, W2, OUT, DBG, WS = 4, 8, 12, 16, 20, 24, 28, 32, 36
srd = lambda n: f's[{n}:{n+3}]'
SIZES = {X: 2359296, QKV: 1990656, PHI: 20736, WO: 663552, W1: 5308416, W2: 5308416, OUT: 2359296, DBG: 256, WS: WS_SIZE}
KOFF = {X: 0, QKV: 8, PHI: 16, WO: 24, W1: 40, W2: 48, OUT: 56, DBG: 64, WS: 72}
soP = 40
sD = 49
sMi = 54
sMiM = 58
sA = 60
sAM = 64
sPe = 66
sW, sR, sJ, sQ, sJJ, sWL = 67, 68, 69, 70, 71, 72
sHown, sFH, sFKV, sFO, sFY, sRP, sPF = 73, 74, 75, 76, 77, 78, 79
sPe2, sHb = 80, 81
sE = 82
sXO, sYc, sOMc = 85, 86, 87
sT0, sT1, sT2, sT3 = 90, 91, 92, 93
sHH = 98
sSPIN = 100
sT4 = 101
sM = 96
vL16 = 1
vK = 2
vW1, vPA, vS, vCur, vF0, vONE, vRS, vC, vSD, vCur2 = 11, 12, 13, 14, 15, 16, 17, 18, 19, 20
vMi = 21
vAt = 26
ACC = (32, 48)
ACC0 = (80, 96)
vH = 64
vX = 112
GA = 136
RING = 144
aPHI = 184
aKV = 208
SEL = 228
LOG2E = 0x3fb8aa3b


class Cfg:
    order = ['P0a', 'P0b', 'P1a', 'P1b', 'Ta', 'Tb', 'Tc', 'Td', 'S', 'P2a', 'P2b', 'P3a', 'P3b']
    D = 5
    we = 2
    ps = 8
    pk = 14
    woA = 10
    hl = (12, 13, 14, 16, 17, 18)
    po = 18
    xlag = 6
    npre = 4
    xa = 4
    Ds = 8
    ts = False
    spin = 20000
    pref = True
    skip = ''
    pfA = 1
    pfB = 1
    pfW2 = 4
    dbg = None
    xe = 24
    xl = 52
    pc = 7
    pdist = 22

    def __init__(self, **kw):
        for k, v in kw.items():
            assert hasattr(self, k), k
            setattr(self, k, v)


def L(text, **kw):
    r = []
    for line in text.split('\n'):
        line = line.strip()
        if line:
            r.append(I(line, **kw)); kw.pop('gap', None)
    return r


def glue(lst):
    for x in lst[1:]: x.glue = True
    return lst


F_T = lambda d: f'v_bfe_u32 v{d}, v{vL16}, 4, 5'
F_HH = lambda d: f'v_lshrrev_b32 v{d}, 9, v{vL16}'
F_N = lambda d: f'v_bfe_u32 v{d}, v{vL16}, 4, 4'
F_G = lambda d: f'v_lshrrev_b32 v{d}, 8, v{vL16}'
F_R4 = lambda d: f'v_bfe_u32 v{d}, v{vL16}, 6, 2'
F_C4 = lambda d: f'v_bfe_u32 v{d}, v{vL16}, 4, 2'
F_TB = lambda d: f'v_bfe_u32 v{d}, v{vL16}, 8, 1'


class Gen:
    def __init__(self, cfg):
        self.c = cfg
        self.p = []
        self.slow = []
        self.nts = 0
        self.notes = []

    def E(self, x, **kw):
        if isinstance(x, str): self.p.extend(L(x, **kw))
        elif isinstance(x, list): self.p.extend(x)
        else: self.p.append(x)

    def stamp(self, name=''):
        if not self.c.ts: return []
        k = self.nts; self.nts += 1; self.notes.append(name); assert k < 58
        return glue(L(f's_memtime s[0:1]\ns_waitcnt lgkmcnt(0)\nv_writelane_b32 v{vONE}, s0, {k+1}'))

    def poll(self, name, srdn, vaddr, soff, expect, reg, mask=None, imm=0):
        ld = f'buffer_load_dword v{reg}, v{vaddr}, {srd(srdn)}, {soff} offen' + (f' offset:{imm}' if imm else '') + ' sc1'
        an = f'v_and_b32 v{reg}, {mask}, v{reg}\n' if mask else ''
        chk = [W(name)] + L(f'{an}v_cmp_ne_u32 vcc, {expect}, v{reg}\ns_cbranch_vccnz SLOW_{name}\nBACK_{name}:')
        self.slow.append(f'''SLOW_{name}:
s_mov_b32 s{sSPIN}, 0
LOOP_{name}:
{ld}
s_add_u32 s{sSPIN}, s{sSPIN}, 1
s_waitcnt vmcnt(0)
{an}v_cmp_ne_u32 vcc, {expect}, v{reg}
s_nop 1
s_cbranch_vccz BACK_{name}
s_cmp_lt_u32 s{sSPIN}, {self.c.spin}
s_cbranch_scc1 LOOP_{name}
s_branch BACK_{name}''')
        return I(ld, tok=name), glue(chk)

    def plan(self):
        c = self.c
        self.kind = list(c.order) + ['B8'] + [f'U{u}' for u in range(1, 9)]
        slot = {i: i for i in range(4)}
        loadp = {0: -1, 1: -1, 2: 0, 3: 1}
        free = []; nxt = 4; stag = None
        lead3 = c.woA >= 19
        for p in range(1, 22):
            free.append(slot[p - 1])
            if p == c.ps: stag = free.pop(0)
            if p == c.ps + 2: free.append(stag)
            lead = 3 if (lead3 and p >= c.ps + 2) else 2
            while nxt <= min(p + lead, 21) and (free or nxt <= p + 2):
                slot[nxt] = free.pop(0); loadp[nxt] = p; nxt += 1
            if p == c.woA: slot['woA'] = free.pop(0); loadp['woA'] = p
            if p == 20: slot['woB'] = free.pop(0); loadp['woB'] = p
            if p == 21: slot['Y'] = free.pop(0)
        assert nxt == 22 and 'woA' in slot
        self.slot = {k: v * SLOT for k, v in slot.items()}
        self.slotS = stag * SLOT
        self.loadp = loadp
        self.tau = {}
        self.hoff = []
        self.acc = {}
        self.chain = []
        fin = {ACC[0]: -2, ACC[1]: -1}
        for i, k in enumerate(self.kind[:14]):
            if k[0] == 'P':
                pr, hf = int(k[1]), k[2] == 'b'
                if pr == 0:
                    assert i == (1 if hf else 0)
                    for mt in range(2): self.acc[(i, mt)] = ACC0[mt]
                    if hf:
                        for mt in range(2): self.chain.append((mt, 72 - 2 + mt, ACC0[mt], (i, mt)))
                elif not hf:
                    assert self.kind[i + 1] == k[:2] + 'b'
                    a0 = min(fin, key=fin.get); a1 = max(fin, key=fin.get)
                    for mt, a in enumerate((a0, a1)):
                        self.acc[(i, mt)] = a; self.acc[(i + 1, mt)] = a
                        fin[a] = 36 * (i + 1) + 18 * mt + 17
                        self.chain.append((36 * i + 18 * mt, fin[a], a, (i + 1, mt)))
                if hf:
                    for mt in range(2):
                        self.tau[(i, mt)] = len(self.hoff); self.hoff.append((64 * pr + 32 * mt, 32))
            elif k == 'B8':
                a0 = min(fin, key=fin.get); a1 = max(fin, key=fin.get)
                for mt, a in enumerate((a0, a1)):
                    self.acc[(i, mt)] = a; self.chain.append((36 * i + 18 * mt, 36 * i + 18 * mt + 17, a, (i, mt)))
            else:
                a = min(fin, key=fin.get); self.acc[(i, 0)] = a; fin[a] = 36 * i + 35
                self.chain.append((36 * i, fin[a], a, (i, 0)))
                if k == 'S':
                    self.tau[(i, 0)] = len(self.hoff); self.hoff.append((256, -256))
        assert len(self.hoff) == 9
        self.g2 = {14: (0, 0, None), 15: (0, 1, None)}
        for n in range(6): self.g2[16 + n] = (1 + n % 3, n // 3, n % 4)

    def dma_item(self, i):
        out = []; tok = f'T{i}'
        kind = self.kind[i] if isinstance(i, int) else i
        sl = self.slot[i]
        m0 = lambda k: L(f's_add_u32 m0, s{sWL}, {sl + k*1024}')
        ld = lambda v, R, so, k, sc='': [I(f'buffer_load_dwordx4 v{v}, {srd(R)}, {so} offen offset:{(k%4)*1024}{sc} lds', tok=tok)]
        one = lambda t: out.extend([x] for x in L(t))
        if kind[0] == 'P':
            cur = int(kind[1]) * 128 + (288 * 9216 if kind[2] == 'b' else 0)
            if cur != self.w1pos: one(f'v_add_u32 v{vW1}, {(cur - self.w1pos) & 0xffffffff}, v{vW1}')
            self.w1pos = cur
            for k in range(9):
                if k % 4 == 0: out.append(m0(k))
                out.append(ld(vW1, W1, f's{soP+k}', k))
        elif kind in RPI or kind in ('woA', 'woB'):
            if kind in RPI: b = lambda k: f's_add_u32 s{sD}, s{sRP}, {RPI[kind]*SLOT + k*1024}'
            else:
                one(f's_lshl_b32 s{sD+1}, s{sJJ}, 1\ns_and_b32 s{sD}, s{sQ}, 1\ns_add_u32 s{sD+1}, s{sD+1}, s{sD}\ns_mul_i32 s{sD+1}, s{sD+1}, 82944\ns_add_u32 s{sD+1}, s{sD+1}, s{sWL}')
                b = lambda k: f's_add_u32 s{sD}, s{sD+1}, {WS_WO + (SLOT if kind == "woB" else 0) + k*1024}'
            for k in range(9):
                if k % 4 == 0: one(b(k)); out.append(m0(k))
                out.append(ld(vL16, WS, f's{sD}', k, ' sc1'))
        elif kind == 'B8':
            one(f's_mul_i32 s{sD+1}, s{sJ}, 36\ns_add_u32 s{sD+1}, s{sD+1}, s{sW}\ns_mul_i32 s{sD+1}, s{sD+1}, 9216\ns_add_u32 s{sD+1}, s{sD+1}, 1024')
            one(f's_and_b32 s{sD}, s{sJJ}, 1\ns_mul_i32 s{sD+2}, s{sD}, {32*1152}\ns_add_u32 s{sD+2}, s{sD+2}, s{sD+1}\ns_mul_i32 s{sD}, s{sD}, {256*1152}\ns_sub_u32 s{sD+1}, s{sD+1}, s{sD}')
            one(f'v_lshrrev_b32 v{vW1}, 7, v{vL16}\nv_mul_u32_u24 v{vW1}, 1152, v{vW1}\nv_bfe_u32 v{vCur2}, v{vL16}, 8, 1\nv_lshl_add_u32 v{vW1}, v{vCur2}, 6, v{vW1}\nv_and_b32 v{vCur2}, 0x70, v{vL16}\nv_xor_b32 v{vW1}, v{vW1}, v{vCur2}')
            for k in range(9):
                a, b = self.hoff[k]
                one(f's_add_u32 s{sD}, s{sD+2 if b == 32 else sD+1}, {(a*1152 - (k%4)*1024) & 0xffffffff}')
                if k % 4 == 0: out.append(m0(k))
                out.append(ld(vW1, W2, f's{sD}', k))
        else:
            pe, hf, _ = self.g2[i]
            one(f's_add_u32 s{sD}, s{sJJ}, {pe}\ns_and_b32 s{sD}, s{sD}, 3\ns_and_b32 s{sD+3}, s{sD}, 1\ns_lshl2_add_u32 s{sD}, s{sQ}, s{sD}\ns_mul_i32 s{sD}, s{sD}, 72\ns_add_u32 s{sD}, s{sD}, s{sW}')
            one(f's_mul_i32 s{sD}, s{sD}, 4608\ns_lshl_b32 s{sD+1}, s{sJJ}, 8\ns_add_u32 s{sD}, s{sD}, s{sD+1}')
            grp = {}
            for k in range(9):
                sg = 9 * hf + k; a, b = self.hoff[sg >> 1]
                grp.setdefault((a + 16 * (sg & 1) - 16 * k, b), []).append(k)
            assert len(grp) <= 3
            reg = {}
            for n, (a, b) in enumerate(grp):
                r = sD + 1 + n if n < 2 else sD + 4
                one(f's_mul_i32 s{r}, s{sD+3}, {(b*1152) & 0xffffffff}\ns_add_u32 s{r}, s{r}, s{sD}')
                if a: one(f's_add_u32 s{r}, s{r}, {(a*1152) & 0xffffffff}')
                for k in grp[(a, b)]: reg[k] = r
            for k in range(9):
                if k % 4 == 0: out.append(m0(k))
                out.append(ld(vK + k, W2, f's{reg[k]}', k))
        return out

    def conv_mf(self, s):
        D = 32 + 8 * (s & 1); xr = vX + 4 * s
        return [I(f'v_mfma_f32_4x4x4_16b_bf16 v[{D+4*k}:{D+4*k+3}], v[60:61], v[{xr+2*k}:{xr+2*k+1}], v[48:51]') for k in range(2)]

    def conv_cvt(self, s):
        D = 32 + 8 * (s & 1); xr = vX + 4 * s
        return [I(f'v_cvt_pk_bf16_f32 v{xr+k}, v{D+2*k}, v{D+2*k+1}') for k in range(4)]

    @staticmethod
    def ident(d, t1):
        return (f'v_and_b32 v{t1}, 16, v{vL16}\nv_mov_b32 v{d}, 0x3f80\nv_lshlrev_b32 v{d}, v{t1}, v{d}\nv_bfe_i32 v{t1}, v{vL16}, 5, 1\n'
                f'v_and_b32 v{d+1}, v{d}, v{t1}\nv_xor_b32 v{d}, v{d}, v{d+1}')

    def prologue(self):
        c = self.c; E_ = self.E
        if c.ts: E_('s_memrealtime s[90:91]\ns_memtime s[92:93]')
        E_('s_cmp_ge_u32 s2, 256\ns_cbranch_scc1 L_end')
        for R in (X, QKV, W1, WS, PHI, W2, WO, OUT, DBG):
            E_(f's_load_dwordx2 s[{R}:{R+1}], s[0:1], {KOFF[R]}')
        if c.pref:
            E_('s_getpc_b64 s[40:41]\nPCREF:\ns_mov_b32 s42, CODE_END-PCREF\ns_mov_b32 s43, 0x20000')
            E_('s_lshr_b32 s3, s2, 3\nv_lshlrev_b32 v25, 5, v0\nv_add_u32 v25, s3, v25\nv_lshlrev_b32 v25, 7, v25')
            E_('buffer_load_dword v63, v25, s[40:43], 0 offen', tok='pref')
        l = 25
        E_(f'v_lshrrev_b32 v26, 6, v0\nv_and_b32 v{l}, 63, v0\nv_lshlrev_b32 v{vL16}, 4, v{l}')
        E_(f'v_readfirstlane_b32 s{sW}, v26')
        E_(f's_and_b32 s3, s2, 1\ns_lshl_b32 s3, s3, 3\ns_lshr_b32 s{sR}, s2, 5\ns_add_u32 s{sR}, s{sR}, s3')
        E_(f's_bfe_u32 s{sQ}, s2, 0x20001\ns_bfe_u32 s{sJJ}, s2, 0x20003\ns_lshl2_add_u32 s{sJ}, s{sQ}, s{sJJ}')
        E_(f'v_lshrrev_b32 v26, 3, v{l}\nv_mul_u32_u24 v27, 1152, v26\nv_and_b32 v28, 0x70, v{vL16}\nv_and_b32 v29, 0x30, v{l}\nv_xor_b32 v28, v28, v29')
        E_('v_add_u32 v2, v27, v28\nv_xor_b32 v3, 64, v2\nv_add_u32 v3, 8192, v3\nv_add_u32 v4, 16384, v2\nv_add_u32 v5, 16384, v3')
        E_(f's_mul_i32 s{sWL}, s{sW}, 9216\ns_lshl2_add_u32 s3, s{sR}, s{sW}')
        E_(f's_mul_i32 s{sXO}, s3, 36864\ns_mul_i32 s62, s3, 9')
        for R in SIZES:
            E_(f's_mov_b32 s{R+2}, {SIZES[R]}\ns_mov_b32 s{R+3}, 0x20000')
        E_(f'v_lshrrev_b32 v26, 2, v{l}\nv_and_b32 v27, 0x30, v{vL16}\nv_mul_u32_u24 v28, 3456, v26\nv_add_u32 v30, v28, v27\nv_mul_u32_u24 v29, 9216, v26\nv_add_u32 v24, v29, v27')
        E_(f'v_mov_b32 v31, 1216\nv_mov_b32 v26, 2360\nv_cmp_eq_u32 vcc, 16, v27\nv_bfe_u32 v22, v{l}, 1, 1\nv_mul_u32_u24 v22, 640, v22\nv_cndmask_b32 v31, v31, v26, vcc\nv_cmp_le_u32 vcc, 32, v27')
        E_(f'v_and_b32 v23, 1, v{l}\nv_lshl_add_u32 v22, v23, 7, v22\nv_cndmask_b32 v31, v31, 64, vcc\nv_add_u32 v21, v29, v22\nv_add_u32 v31, v31, v28')
        E_(f's_mul_i32 s60, s62, 3456\ns_mul_i32 s61, s{sJ}, 72\ns_add_u32 s60, s60, s61')
        E_(f's_mul_i32 s61, s62, 9216\ns_mul_i32 s63, s{sJ}, 576\ns_add_u32 s61, s61, s63\ns_and_b32 s64, s{sJJ}, 1\ns_lshl_b32 s65, s64, 9\ns_sub_u32 s61, s61, s65\ns_add_u32 s61, s61, 512')
        E_(f's_mul_i32 s{sRP}, s{sJ}, {5*SLOT}\ns_add_u32 s{sRP}, s{sRP}, {WS_RP}\ns_lshl_b32 s62, s62, 6\ns_add_u32 s62, s62, s{sRP}\ns_add_u32 s{sRP}, s{sRP}, s{sWL}')
        E_(f's_lshr_b32 s65, s2, 3\ns_lshl2_add_u32 s65, s65, s{sW}\ns_lshr_b32 s{sPF}, s65, 1\ns_mul_i32 s{sPF}, s{sPF}, {9*9216}\ns_and_b32 s65, s65, 1\ns_lshl1_add_u32 s65, s{sQ}, s65\ns_mul_i32 s65, s65, 1152\ns_add_u32 s{sPF}, s{sPF}, s65')
        E_(f's_add_u32 s58, s{sXO}, 1024')
        E_('s_waitcnt lgkmcnt(0)')
        if c.ts: E_(f'v_mov_b32 v{vONE}, 1\nv_writelane_b32 v{vONE}, s90, 60\nv_writelane_b32 v{vONE}, s92, 61')
        E_(self.stamp('karg'))
        E_('s_mov_b32 exec_hi, 15')
        if c.pfA: E_(f'buffer_load_dword a255, v21, {srd(W1)}, s{sPF} offen')
        for k, (v, R, so, o) in enumerate(((30, QKV, 60, 1152), (31, QKV, 60, 0), (30, QKV, 60, 2304), (30, QKV, 60, 0), (24, W1, 61, 0))):
            E_(I(f'buffer_load_dwordx4 v[{64+4*k}:{67+4*k}], v{v}, {srd(R)}, s{so} offen offset:{o}', tok='rpl'))
        E_('s_mov_b32 exec_hi, -1')
        save = self.p; self.p = []
        t, hh, a, b, d = 26, 27, 28, 29, 22
        E_(F_T(t) + '\n' + F_HH(hh))
        E_(f'v_bfe_u32 v{a}, v{t}, 1, 3\nv_xor_b32 v{a}, v{a}, v{hh}\nv_lshlrev_b32 v{a}, 4, v{a}\nv_lshl_add_u32 v{a}, v{t}, 7, v{a}\nv_add_u32 v6, s{sWL}, v{a}')
        E_('v_xor_b32 v7, 32, v6\nv_xor_b32 v8, 64, v6\nv_xor_b32 v9, 96, v6')
        E_(f'v_lshrrev_b32 v{a}, 3, v{t}\nv_mul_u32_u24 v{a}, 35840, v{a}')
        for k in range(4): E_(f'v_add_u32 v{84+k}, v{a}, v{6+k}')
        for k in range(8): E_(f'v_mov_b32 v{52+k}, 0')
        E_(f's_mov_b32 s{sT4}, 0x3f803f80\ns_mov_b32 s{sHH}, 0\ns_mov_b32 s{sHH+1}, -1')
        if not c.ts: E_(f'v_mov_b32 v{vONE}, 1')
        E_(f'v_mov_b32 v{a}, {OOB}\nv_cmp_eq_u32 vcc, 0, v{l}')
        E_(f'v_lshrrev_b32 v{b}, 3, v{l}\nv_mul_u32_u24 v{b}, 9216, v{b}\nv_cndmask_b32 v{vF0}, v{a}, v{l}, vcc')
        E_(F_TB(a) + f'\nv_lshl_add_u32 v{b}, v{a}, 6, v{b}\nv_and_b32 v{d}, 0x70, v{vL16}\nv_xor_b32 v{vW1}, v{b}, v{d}')
        E_(f's_mul_i32 s65, s{sW}, {8*9216}\ns_add_u32 s65, s65, s63\ns_lshl_b32 s64, s64, 6\ns_add_u32 s65, s65, s64')
        for k in range(9): E_(f's_add_u32 s{soP+k}, s65, {k*32*9216 - (k%4)*1024}')
        E_(F_C4(b) + f'\nv_lshlrev_b32 v{b}, 3, v{b}\nv_lshl_add_u32 v{b}, v{a}, 5, v{b}\n' + F_R4(d))
        E_(f'v_lshl_add_u32 v{a}, v{hh}, 3, v{d}\nv_lshl_add_u32 v{vS}, v{a}, 6, v{b}')
        E_(f'v_lshl_add_u32 v{b}, v{d}, 7, v{b}\nv_lshrrev_b32 v{d}, 1, v{d}\nv_lshl_add_u32 v{b}, v{d}, 6, v{b}\nv_mul_u32_u24 v{a}, 9216, v{hh}\nv_add_u32 v{vPA}, v{a}, v{b}')
        E_(self.ident(60, a))
        E_(f's_lshl2_add_u32 s64, s{sR}, s{sQ}\ns_lshl2_add_u32 s64, s64, s{sW}\ns_lshl_b32 s64, s64, 5\ns_add_u32 s64, s64, s{sJJ}\ns_lshl_b32 s{sFH}, s64, 2')
        E_(f's_lshl_b32 s64, s{sJ}, 6\ns_add_u32 s64, s64, s3\ns_lshl2_add_u32 s{sFKV}, s64, {FL_KV}')
        E_(f's_lshl_b32 s64, s3, 5\ns_add_u32 s64, s64, s{sJ}\ns_lshl2_add_u32 s{sFO}, s64, {FL_O}')
        E_(f's_lshl2_add_u32 s64, s{sR}, s{sJJ}\ns_lshl2_add_u32 s64, s64, s{sW}\ns_lshl_b32 s64, s64, 5\ns_add_u32 s64, s64, s{sQ}\ns_lshl2_add_u32 s{sFY}, s64, {FL_Y}')
        E_(f's_lshl4_add_u32 s64, s{sR}, s{sJ}\ns_lshl2_add_u32 s64, s64, s{sW}\ns_mul_i32 s64, s64, 18432\ns_add_u32 s{sHown}, s64, {WS_H}')
        E_(f'v_mov_b32 v62, 0')
        early = self.p; self.p = save
        cols = [8, 0, 1, 2, 3, 4, 5, 6, 7]

        def xdma(cc):
            r = []
            so = 58 if cc == 8 else sXO
            if cc not in (8, 0): r += L(f's_add_u32 s{sXO}, s{sXO}, 128')
            for i in range(4):
                if cc == 8: r += L(f's_add_u32 m0, s{sWL}, {i*SLOT + 8192 - i*1024}')
                elif i == 0: r += L(f's_add_u32 m0, s{sWL}, {(cc>>1)*SLOT + (cc&1)*4096}')
                r.append(I(f'buffer_load_dwordx4 v{2+i}, {srd(X)}, s{so} offen offset:{i*1024} lds', tok=f'x{cc}'))
            return r

        def xread(cc):
            r = [W(f'x{cc}')]
            if cc == 4: r += [I(f'v_add_u32 v{6+k}, {2*SLOT}, v{6+k}') for k in range(4)]
            for ks in range(4):
                s = 4 * cc + ks
                if cc == 8: bs, o = 84 + ks, 8192
                else: bs, o = 6 + ks, ((cc >> 1) & 1) * SLOT + (cc & 1) * 4096
                r.append(I(f'ds_read_b128 v[{vX+4*s}:{vX+4*s+3}], v{bs} offset:{o}', tok=f'xr{cc}'))
            return r

        def xdots(cc):
            r = []
            for k in range(16):
                xr = vX + 16 * cc + k
                r.append(I(f'v_dot2c_f32_bf16 v{52+(k&3)}, s{sT4}, v{xr}'))
                r.append(I(f'v_dot2c_f32_bf16 v{56+(k&3)}, v{xr}, v{xr}'))
            return r

        def mix(main, fill):
            nv = sum(1 for x in main if x.kind in VM_KINDS)
            k = 0; done = 0
            for x in main:
                E_(x)
                if x.kind in VM_KINDS:
                    k += 1; upto = len(fill) * k // nv
                    E_(fill[done:upto]); done = upto
            E_(fill[done:])

        rpst = L('s_mov_b32 exec_hi, 15')
        for k in range(5):
            if k: rpst += L(f's_add_u32 s62, s62, {SLOT}')
            rpst.append(I(f'buffer_store_dwordx4 v[{64+4*k}:{67+4*k}], v{vL16}, {srd(WS)}, s62 offen sc1', tok='rpst'))
        rpst += L('s_mov_b32 exec_hi, -1')
        for s_, o in ((sFH, 0), (sFH, 16), (sFKV, 0), (sFO, 0), (sFY, 0), (sFY, 16)):
            rpst.append(I(f'buffer_store_dword v62, v{vF0}, {srd(WS)}, s{s_} offen offset:{o} sc1', tok='clr'))
        lag = c.xlag
        ne = len(early)
        self.w1pos = 0
        pend = []
        for n in range(9 + lag):
            issue = xdma(cols[n]) if n < 9 else []
            if n < lag:
                mix(issue, early[ne * n // lag: ne * (n + 1) // lag]); continue
            cc = cols[n - lag]
            if n == lag: E_(self.stamp('xiss'))
            E_(xread(cc))
            if n == lag: E_(self.stamp('x8')); E_(rpst)
            if n >= 9 and not hasattr(self, 't0done') and n - lag >= 3:
                issue = [W('xr1')] + [x for g_ in self.dma_item(0) for x in g_]; self.t0done = True
            elif n >= 9 and hasattr(self, 't0done') and not hasattr(self, 't1done') and n - lag >= 5:
                issue = [W('xr3')] + [x for g_ in self.dma_item(1) for x in g_]; self.t1done = True
            if issue: mix(issue, pend)
            else: E_(pend)
            pend = xdots(cc)
        E_(self.stamp('x7'))
        E_(pend)
        assert hasattr(self, 't1done')
        E_('v_add_f32 v52, v52, v53\nv_add_f32 v54, v54, v55\nv_add_f32 v56, v56, v57\nv_add_f32 v58, v58, v59\nv_add_f32 v52, v52, v54\nv_add_f32 v56, v56, v58')
        E_('v_mov_b32 v53, v52\nv_mov_b32 v57, v56\nv_permlane32_swap_b32 v52, v53\nv_permlane32_swap_b32 v56, v57')
        E_('v_add_f32 v52, v52, v53\nv_add_f32 v56, v56, v57')
        inv = 0x3ae38e39
        E_(f'v_mul_f32 v52, {inv}, v52\nv_mul_f32 v56, {inv}, v56\nv_cvt_pk_bf16_f32 v53, v52, v52\nv_fma_f32 v56, -v52, v52, v56\nv_and_b32 v53, 0xffff0000, v53\nv_max_f32 v56, 0, v56\nv_xor_b32 v48, 0x80000000, v53')
        E_('v_mov_b32 v49, v48\nv_mov_b32 v50, v48\nv_mov_b32 v51, v48')
        rs = L(f'v_cvt_pk_bf16_f32 v56, v56, v56\nv_and_b32 v56, 0xffff0000, v56\nv_add_f32 v56, 0x3727c5ac, v56\nv_cvt_pk_bf16_f32 v56, v56, v56\nv_and_b32 v56, 0xffff0000, v56\nv_sqrt_f32 v56, v56')
        rs += L(f'v_cvt_pk_bf16_f32 v56, v56, v56\nv_lshrrev_b32 v{vSD}, 16, v56\nv_and_b32 v56, 0xffff0000, v56\nv_rcp_f32 v{vRS}, v56')
        rs += L(f'v_add_u32 v{vCur}, {self.slot[0]}, v{vPA}\nv_xor_b32 v{vCur2}, 64, v{vCur}\nv_mul_f32 v{vC}, {LOG2E}, v{vRS}')
        E_(self.conv_mf(0)); E_(rs[:5])
        for s in range(c.npre):
            E_(self.conv_mf(s + 1))
            if s == 0: E_(rs[5:])
            E_(self.conv_cvt(s))

    def step_desc(self, i, idx):
        k = self.kind[i]
        if k in ('P0a', 'P0b'): return idx & 1, idx >> 1
        if k[0] == 'P' or k == 'B8': return idx // 18, idx % 18
        if k[0] == 'U': return idx // 9, idx % 9
        return 0, idx

    def reads(self, gs):
        i, idx = divmod(gs, 36)
        k = self.kind[i]; mt, s = self.step_desc(i, idx)
        b = RING + 4 * (gs % (self.c.D + 2))
        r = []; reg = vCur
        if idx == 0 and i > 0:
            src = vPA if (k[0] in 'PU' or k == 'B8') else vS
            if k == 'B8': src = vS
            r.append(I(f'v_add_u32 v{vCur}, {self.slot[i]}, v{src}'))
            if k == 'P0b': r.append(I(f'v_xor_b32 v{vCur2}, 64, v{vCur}'))
        if k in ('P0a', 'P0b'):
            if mt: reg = vCur2
        elif s == 0 and mt: r.append(I(f'v_xor_b32 v{vCur}, {64*(mt ^ (mt-1))}, v{vCur}'))
        for rd in range(2):
            if k[0] == 'P': o = (s & 1) * 18432 + (s >> 1) * 1024 + rd * 512
            elif k == 'B8': o = (2 * (s & 1) + rd) * 9216 + (s >> 1) * 1024
            elif k[0] == 'U': o = rd * 18432 + s * 1024
            else: o = s * 1024 + rd * 256
            r.append(I(f'ds_read_b64_tr_b16 a[{b+2*rd}:{b+2*rd+1}], v{reg} offset:{o}', tok=f'f{gs}'))
        return r

    def main_steps(self):
        c = self.c; D = c.D
        steps = []
        NS = 22 * 36
        LA = c.npre
        for gs in range(NS):
            i, idx = divmod(gs, 36)
            k = self.kind[i]; mt, s = self.step_desc(i, idx)
            b = RING + 4 * (gs % (D + 2))
            tk = []
            if i < 13:
                xs = s + (18 if k[-1] == 'b' and k[0] == 'P' else 0)
                B = f'v[{vX+4*xs}:{vX+4*xs+3}]' if i < c.xa else f'a[{4*xs}:{4*xs+3}]'
                first = xs == 0; acc = self.acc[(i, mt)]
            elif i == 13:
                B = f'v[{vH+4*s}:{vH+4*s+3}]'; first = s == 0; acc = self.acc[(i, mt)]
            else:
                pe, hf, st = self.g2[i]
                B = f'v[{vH+4*(9*hf+s)}:{vH+4*(9*hf+s)+3}]' if pe == 0 else f'a[{36*st+4*s}:{36*st+4*s+3}]'
                first = (i == 14 and s == 0); acc = GA + 16 * mt
                if pe and mt == 0: tk.append(f'ph{i}_{s}')
            mf = I(f'v_mfma_f32_32x32x16_bf16 v[{acc}:{acc+15}], a[{b}:{b+3}], {B}, ' + ('0' if first else f'v[{acc}:{acc+15}]'))
            if gs % c.we == 0: tk += [f'f{x}' for x in range(gs, min(gs + c.we, NS))]
            pre = [W(*tk)] if tk else []
            post = []; end = []
            ns = gs + D
            if ns < NS: post += self.reads(ns)
            else:
                kk = ns - NS
                for x in range(c.Ds * kk // D, c.Ds * (kk + 1) // D): post += self.s_reads(x)
            if ns % 36 == 35:
                nd = list(self.bar_need.get(i, []))
                if i < 21: nd.append(f'T{i+1}')
                if i == 20: nd.append(f'f{ns}')
                post += [W(*nd)] + L('s_barrier')
            if i < 2:
                xs = 18 * i + s
                if mt == 0 and xs + LA < 36: post += self.conv_cvt(xs + LA)
                if mt == 1 and xs + LA + 1 < 36: end = self.conv_mf(xs + LA + 1)
            steps.append(Step(mf, pre, post, None, end))
        return steps

    def epi_G(self, tau, acc):
        h = vH + 8 * tau
        r = [I(f'v_cvt_pk_bf16_f32 v{h+k}, v{acc+2*k}, v{acc+2*k+1}') for k in range(8)]
        r += [I(f'v_pk_max_i16 v{h+k}, v{h+k}, 0') for k in range(8)]
        st = []
        if tau and tau % 2 == 0: st += L(f's_add_u32 s{sHown}, s{sHown}, 4096')
        for k in range(2):
            st.append(I(f'buffer_store_dwordx4 v[{h+4*k}:{h+4*k+3}], v{vL16}, {srd(WS)}, s{sHown} offen offset:{(tau&1)*2048+k*1024} sc1', tok=f'h{tau}'))
        return r, st

    PK = {'Ta': 136, 'Tb': 144, 'Tc': 152, 'Td': 160}

    def epi_Q(self, kind, acc):
        pk = self.PK[kind]
        n = 6 if kind == 'Tb' else 8
        r = [I(f'v_cvt_pk_bf16_f32 v{pk+k}, v{acc+2*k}, v{acc+2*k+1}') for k in range(n)]
        if kind == 'Tb': r += L(f'v_mov_b32 v{pk+6}, 0\nv_mov_b32 v{pk+7}, 0')
        return r

    def pmfma(self, which, P):
        m = self.PK['Ta' if which == 'k' else 'Td']
        B = [m, m + 4, self.PK['Tb'] + (0 if which == 'k' else 4)]
        r = []
        for s in range(3):
            r.append(I(f'v_mfma_f32_32x32x16_bf16 v[{P}:{P+15}], a[{aPHI+4*s}:{aPHI+4*s+3}], v[{B[s]}:{B[s]+3}], ' + ('0' if s == 0 else f'v[{P}:{P+15}]')))
        for s in range(3):
            r.append(I(f'v_mfma_f32_16x16x32_bf16 v[{P+16}:{P+19}], a[{aPHI+12+4*s}:{aPHI+12+4*s+3}], v[{B[s]}:{B[s]+3}], ' + ('0' if s == 0 else f'v[{P+16}:{P+19}]')))
        return r

    def softmax(self, P, EP, PHIo, T, norm_first, keepS=None):
        p = [P + k for k in range(18)]
        mx, mn, s1, s2 = T, T + 1, T + 2, T + 3
        r = []
        a = [f'v_max3_f32 v{mx}, v{p[0]}, v{p[1]}, v{p[2]}'] + [f'v_max3_f32 v{mx}, v{mx}, v{p[k]}, v{p[k+1]}' for k in range(3, 17, 2)] + [f'v_max_f32 v{mx}, v{mx}, v{p[17]}']
        b = [x.replace('max', 'min').replace(f'v{mx}', f'v{mn}') for x in a]
        for x, y in zip(a, b): r += L(x + '\n' + y)
        r[0].gap = 3
        r += L(f'v_mul_f32_e64 v{mx}, -v{vC}, v{mx}\nv_mul_f32 v{mn}, v{vC}, v{mn}')
        for k in range(18):
            r += L(f'v_fma_f32 v{EP+k}, v{p[k]}, v{vC}, v{mx}\nv_fma_f32 v{p[k]}, v{p[k]}, -v{vC}, v{mn}')
            r += L(f'v_exp_f32 v{EP+k}, v{EP+k}\nv_exp_f32 v{p[k]}, v{p[k]}')
            if k == 2:
                r += L(f'v_add_f32 v{s1}, v{EP}, v{EP+1}\nv_add_f32 v{s2}, v{p[0]}, v{p[1]}')
            elif k > 2:
                r += L(f'v_add_f32 v{s1}, v{s1}, v{EP+k-1}\nv_add_f32 v{s2}, v{s2}, v{p[k-1]}')
        r += L(f'v_add_f32 v{s1}, v{s1}, v{EP+17}\nv_add_f32 v{s2}, v{s2}, v{p[17]}')
        if norm_first:
            r += L(f'v_rcp_f32 v{s1}, v{s1}\nv_rcp_f32 v{s2}, v{s2}\nv_mul_f32 v{s1}, v{vRS}, v{s1}\nv_mul_f32 v{s2}, v{vRS}, v{s2}')
            for k in range(0, 18, 2):
                r += L(f'v_mul_f32 v{EP+k}, v{s1}, v{EP+k}\nv_mul_f32 v{EP+k+1}, v{s1}, v{EP+k+1}\nv_cvt_pk_bf16_f32 v{PHIo+k//2}, v{EP+k}, v{EP+k+1}')
        else:
            r += L(f'v_rcp_f32 v{s2}, v{s2}\nv_mul_f32 v{keepS}, 0x358637bd, v{s1}')
            for k in range(0, 18, 2):
                r += L(f'v_cvt_pk_bf16_f32 v{PHIo+k//2}, v{EP+k}, v{EP+k+1}')
            r += L(f'v_mul_f32 v{s2}, v{s1}, v{s2}')
        for k in range(0, 18, 2):
            r += L(f'v_mul_f32 v{p[k]}, v{s2}, v{p[k]}\nv_mul_f32 v{p[k+1]}, v{s2}, v{p[k+1]}\nv_cvt_pk_bf16_f32 v{PHIo+9+k//2}, v{p[k]}, v{p[k+1]}')
        return r

    @staticmethod
    def image_addr(rho, h_, cc, o1, o2, t1, t2, m):
        return (f'v_lshlrev_b32 v{t1}, 6, v{rho}\nv_lshl_add_u32 v{t1}, v{cc}, 4, v{t1}\nv_lshl_add_u32 v{t1}, v{h_}, 3, v{t1}\nv_cmp_gt_u32 s[{m}:{m+1}], 4, v{cc}\nv_add_u32 v{t1}, {E}, v{t1}\n'
                f'v_lshlrev_b32 v{t2}, 5, v{rho}\nv_lshl_add_u32 v{t2}, v{h_}, 4, v{t2}\nv_add_u32 v{t2}, {E2}, v{t2}\n'
                f'v_cndmask_b32 v{o1}, v{t2}, v{t1}, s[{m}:{m+1}]\nv_add_u32 v{t2}, {2688+8}, v{t2}\nv_cndmask_b32 v{o2}, v{t2}, v{t1}, s[{m}:{m+1}]')

    @staticmethod
    def ex_addr(d, t1):
        return (F_TB(t1) + f'\nv_mul_u32_u24 v{d}, 2688, v{t1}\n' + F_HH(t1) + f'\nv_lshl_add_u32 v{d}, v{t1}, 8, v{d}\n' + F_R4(t1) +
                f'\nv_lshl_add_u32 v{d}, v{t1}, 5, v{d}\n' + F_C4(t1) + f'\nv_lshl_add_u32 v{d}, v{t1}, 3, v{d}\nv_add_u32 v{d}, {E2}, v{d}')

    def build_streams(self):
        c = self.c
        P0 = lambda p: 36 * p
        bar = lambda p: 36 * p + 35 - c.D
        self.bar_need = {}
        need = lambda p, t: self.bar_need.setdefault(p, []).append(t)
        S = {}
        pos = {k: self.kind.index(k) for k in RPI}
        m = []
        A = lambda st, x: m.extend((st, [y]) for y in (L(x) if isinstance(x, str) else x))
        G = lambda st, x: m.append((st, glue(L(x) if isinstance(x, str) else x)))
        DL = lambda st: m.append(('deadline', st))
        pd = c.pdist
        items = sorted([i for i in self.loadp if self.loadp[i] >= 0], key=lambda i: (self.loadp[i], 99 if isinstance(i, str) else i))
        first_rp = min(pos.values())
        pg = 99
        for i in items:
            p = self.loadp[i]
            same = [x for x in items if self.loadp[x] == p]
            idx = same.index(i)
            span = (bar(p) - 1 - P0(p)) // len(same)
            if i == first_rp:
                st = P0(p) - pd
                A(st, f'v_and_b32 v{vCur2+1}, 0x30, v{vL16}\nv_lshrrev_b32 v{vCur2+1}, 2, v{vCur2+1}\ns_lshl_b32 s{sD}, s{sJ}, 4')
                ld, chk = self.poll('rp', DBG, vCur2 + 1, f's{sD}', 0x01010101, vCur2 + 2, mask=0x01010101)
                A(st, [ld]); G(P0(p) - 1, chk)
            grps = self.dma_item(i)
            nd = sum(1 for gg in grps if gg[0].kind == 'dma')
            k = 0
            for gg in grps:
                st = P0(p) + idx * span + (k * span) // nd
                if gg[0].kind == 'dma': k += 1
                elif k == 0: st = max(st - 6, P0(p) - 4 if idx == 0 else 0)
                else: st = max(st - 1, P0(p))
                m.append((st, gg))
            DL(bar(i - 1) if isinstance(i, int) else bar(21))
        S['dma'] = TimedStream('dma', m)

        def dma_insert(st, groups):
            it = S['dma'].items
            k = 0
            while k < len(it) and (isinstance(it[k][0], str) or it[k][0] <= st): k += 1
            assert it[k-1][0] == 'deadline'
            it[k:k] = [(st, gg) for gg in groups]
        one = lambda x: [[y] for y in (L(x) if isinstance(x, str) else x)]

        m = []
        flagA = (8) // 2
        pend = []
        for n, (s0, s1, acc, key) in enumerate(self.chain):
            k = self.kind[key[0]]
            nxt = [x[0] for x in self.chain[n + 1:] if x[2] == acc]
            st = s1 + 3
            if key in self.tau:
                tau = self.tau[key]
                r, sto = self.epi_G(tau, acc)
                A(st, r)
                dl = nxt[0] - 1 if nxt else 10**9
                dl = min(dl, P0(13) + 2 * tau - 2)
                if key[0] == 1: dl = min(dl, P0(2) + 30)
                DL(max(dl, st)); A(st, sto)
                m += pend; pend = []
                if tau in (flagA, 8):
                    pend.append((st + 40, glue([W(*[f'h{x}' for x in range(tau + 1)]), I(f'buffer_store_dword v{vONE}, v{vF0}, {srd(WS)}, s{sFH} offen offset:{0 if tau == flagA else 16} sc1', tok='flag')])))
            elif k == 'B8':
                mt = key[1]
                if mt == 0:
                    A(st - 12, F_HH(vCur2) + f'\nv_lshlrev_b32 v{vCur2}, 13, v{vCur2}\nv_and_b32 v{vW1}, 0x1f0, v{vL16}\nv_add_u32 v{vCur2}, v{vCur2}, v{vW1}')
                    A(st - 12, f's_lshl2_add_u32 s{sE}, s{sR}, s{sW}\ns_lshl_b32 s{sE}, s{sE}, 7\ns_add_u32 s{sE}, s{sE}, s{sJ}\ns_lshl_b32 s{sE}, s{sE}, 9\ns_add_u32 s{sE}, s{sE}, {WS_Y8}')
                A(st, [I(f'v_cvt_pk_bf16_f32 v{acc+k_}, v{acc+2*k_}, v{acc+2*k_+1}') for k_ in range(8)])
                A(st, [I(f'v_permlane32_swap_b32 v{acc+4*ip+k_}, v{acc+4*ip+2+k_}') for ip in range(2) for k_ in range(2)])
                for ip in range(2):
                    if mt or ip: A(st, f's_add_u32 s{sE}, s{sE}, 16384')
                    A(st, [I(f'buffer_store_dwordx4 v[{acc+4*ip}:{acc+4*ip+3}], v{vCur2}, {srd(WS)}, s{sE} offen sc1', tok='y8st')])
                if mt == 0: m += pend; pend = []
            else:
                A(st, self.epi_Q(k, acc)); DL(nxt[0] - 1)
                m += pend; pend = []
        assert not pend
        S['epi'] = TimedStream('epi', m)

        m = []
        for s in range(36):
            st = max(2 * (s - c.npre) + 3, P0(1)) if s < 18 else P0(2)
            A(st, [I(f'v_accvgpr_write_b32 a{4*s+k}, v{vX+4*s+k}') for k in range(4)])
        DL(P0(c.xa) - 2)
        S['accw'] = TimedStream('accw', m)

        m = []
        t0, t1, t2, t3, t4 = vMi + 2, vMi + 3, vMi + 4, 62, 63
        T = 96
        tb0 = P0(2) + 32
        if c.pfB >= 0:
            G(P0(c.pfB) + 4, f's_mov_b32 exec_hi, 15\nbuffer_load_dword a255, v21, {srd(W1)}, s{sPF} offen offset:256\ns_mov_b32 exec_hi, -1')
        st = P0(1)
        A(st, f'v_and_b32 v{t0}, 0x1f0, v{vL16}\nv_lshrrev_b32 v{t0}, 2, v{t0}\ns_lshl_b32 s{sMi}, s{sW}, 7\ns_add_u32 s{sMi}, s{sMi}, {RSA}\nv_add_u32 v{t0}, s{sMi}, v{t0}')
        A(st, [I(f'ds_write_b32 v{t0}, v{vRS}', tok='rsw')])
        zf = lambda z, tk: L(f'v_lshlrev_b32 v{t0}, 4, v0\nv_add_u32 v{t0}, {E}, v{t0}\nv_mov_b32 v{z}, 0\nv_mov_b32 v{z+1}, 0\nv_mov_b32 v{z+2}, 0\nv_mov_b32 v{z+3}, 0') + \
            [I(f'ds_write_b128 v{t0}, v[{z}:{z+3}] offset:{4096*k}', tok=tk) for k in range(3)]
        A(st, zf(72, 'zf0'))
        need(1, 'zf0'); need(1, 'rsw'); DL(bar(1))
        st = tb0
        h_, d_, a5, a, b, o1, o2 = T, T + 1, T + 2, T + 3, T + 4, T + 8, T + 9
        A(st, f'v_mul_u32_u24 v{h_}, 729, v0\nv_lshrrev_b32 v{h_}, 16, v{h_}\nv_mul_u32_u24 v{a}, 90, v{h_}\nv_sub_u32 v{a}, v0, v{a}')
        A(st, f'v_mul_u32_u24 v{d_}, 205, v{a}\nv_lshrrev_b32 v{d_}, 10, v{d_}\nv_mul_u32_u24 v{b}, 5, v{d_}\nv_sub_u32 v{a5}, v{a}, v{b}')
        A(st, f'v_mul_u32_u24 v{a}, 648, v{h_}\nv_mul_u32_u24 v{b}, 36, v{d_}\ns_movk_i32 s{sMi+1}, 180\nv_add_u32 v{a}, v{a}, v{b}\nv_cmp_gt_u32 s[{sMiM}:{sMiM+1}], s{sMi+1}, v0\nv_lshl_add_u32 v{a}, v{a5}, 3, v{a}')
        A(st, f's_mul_i32 s{sMi}, s{sJ}, 1296\nv_add_u32 v{a}, s{sMi}, v{a}\nv_mov_b32 v{b}, {OOB}\nv_cndmask_b32 v{a}, v{b}, v{a}, s[{sMiM}:{sMiM+1}]')
        A(st, [I(f'buffer_load_dword v{T+10}, v{a}, {srd(PHI)}, 0 offen', tok='wphi'), I(f'buffer_load_dword v{T+11}, v{a}, {srd(PHI)}, 0 offen offset:4', tok='wphi')])
        A(st, f'v_mul_u32_u24 v{b}, 18, v{h_}\nv_add_u32 v{d_}, v{b}, v{d_}')
        A(st, f'v_and_b32 v{a}, 0x33, v{d_}\nv_and_b32 v{b}, 4, v{d_}\nv_lshl_or_b32 v{a}, v{b}, 1, v{a}\nv_bfe_u32 v{b}, v{d_}, 3, 1\nv_lshl_or_b32 v{a}, v{b}, 2, v{a}')
        A(st, self.image_addr(a, h_, a5, o1, o2, T + 5, T + 6, sMi + 2))
        A(st, f'v_mov_b32 v{b}, {DUMMY}\nv_cndmask_b32 v{o1}, v{b}, v{o1}, s[{sMiM}:{sMiM+1}]\nv_cndmask_b32 v{o2}, v{b}, v{o2}, s[{sMiM}:{sMiM+1}]')
        R_, e_, stp, rho, g_, src, dst = T, T + 1, T + 2, T + 3, T + 4, T + 5, T + 6
        x_ = T + 7; WD = T + 12
        A(st, f'v_mul_u32_u24 v{R_}, 7282, v0\nv_lshrrev_b32 v{R_}, 16, v{R_}\nv_mul_u32_u24 v{x_}, 9, v{R_}\nv_sub_u32 v{e_}, v0, v{x_}\ns_lshr_b32 s{sMi}, s2, 3\ns_mul_i32 s{sMi}, s{sMi}, 18\nv_add_u32 v{R_}, s{sMi}, v{R_}')
        A(st, f'v_lshrrev_b32 v{stp}, 5, v{R_}\nv_and_b32 v{rho}, 31, v{R_}\nv_bfe_u32 v{g_}, v{R_}, 2, 2')
        A(st, f'v_and_b32 v{x_}, 1, v{g_}\nv_mul_u32_u24 v{src}, 20, v{x_}\nv_lshrrev_b32 v{x_}, 1, v{g_}\nv_lshl_add_u32 v{src}, v{x_}, 3, v{src}\nv_lshrrev_b32 v{x_}, 4, v{rho}\nv_lshl_add_u32 v{src}, v{x_}, 2, v{src}')
        A(st, f'v_mad_u32_u24 v{src}, v{stp}, 36, v{src}')
        A(st, f'v_lshl_add_u32 v{g_}, v{x_}, 2, v{g_}\nv_and_b32 v{x_}, 1, v{stp}\nv_lshl_add_u32 v{g_}, v{x_}, 3, v{g_}\nv_cmp_le_u32 s[{sMi+2}:{sMi+3}], 16, v{stp}\nv_mad_u32_u24 v{g_}, v{g_}, 36, 16')
        A(st, f'v_and_b32 v{x_}, 3, v{rho}\nv_cndmask_b32 v{src}, v{src}, v{g_}, s[{sMi+2}:{sMi+3}]\nv_add_u32 v{src}, v{src}, v{x_}\nv_mul_u32_u24 v{src}, 1152, v{src}')
        A(st, f's_and_b32 s{sMi}, s2, 7\ns_lshl_b32 s{sMi+1}, s{sMi}, 7\nv_lshlrev_b32 v{g_}, 4, v{e_}\nv_add_u32 v{g_}, s{sMi+1}, v{g_}\ns_lshl4_add_u32 s{sMi+1}, s{sMi}, 1024\nv_cmp_eq_u32 s[{sMi+2}:{sMi+3}], 8, v{e_}\nv_mov_b32 v{x_}, s{sMi+1}')
        A(st, f's_movk_i32 s{sMi+1}, 162\nv_cndmask_b32 v{g_}, v{g_}, v{x_}, s[{sMi+2}:{sMi+3}]\nv_cmp_gt_u32 s[{sMiM}:{sMiM+1}], s{sMi+1}, v0\nv_add_u32 v{src}, v{src}, v{g_}\nv_mov_b32 v{g_}, {OOB}')
        A(st, f'v_bfe_u32 v{x_}, v{rho}, 2, 1\nv_cndmask_b32 v{src}, v{g_}, v{src}, s[{sMiM}:{sMiM+1}]')
        A(st, [I(f'buffer_load_dwordx4 v[{WD}:{WD+3}], v{src}, {srd(WO)}, 0 offen', tok='wold')])
        A(st, f'v_xor_b32 v{x_}, v{x_}, v{e_}\nv_and_b32 v{x_}, 3, v{x_}\nv_lshlrev_b32 v{x_}, 4, v{x_}\nv_lshl_add_u32 v{x_}, v{rho}, 6, v{x_}\nv_lshrrev_b32 v{e_}, 2, v{e_}\nv_lshl_add_u32 v{x_}, v{e_}, 11, v{x_}')
        A(st, f'v_lshlrev_b32 v{rho}, 4, v{rho}\nv_add_u32 v{rho}, 4096, v{rho}\nv_cndmask_b32 v{x_}, v{x_}, v{rho}, s[{sMi+2}:{sMi+3}]\nv_mul_u32_u24 v{stp}, 4608, v{stp}\nv_add_u32 v{x_}, v{x_}, v{stp}')
        A(st, f'v_cndmask_b32 v{dst}, v{g_}, v{x_}, s[{sMiM}:{sMiM+1}]\ns_mul_i32 s{sMi}, s{sMi}, 82944\ns_add_u32 s{sMi}, s{sMi}, {WS_WO}')
        pw = 3
        A(P0(pw) + 12, [W('wphi'), I(f'ds_write_b64 v{o1}, v[{T+10}:{T+11}]', tok='wimg'), I(f'ds_write_b64 v{o2}, v[{T+10}:{T+11}]', tok='wimg')])
        need(pw, 'wimg'); DL(bar(pw))
        st = bar(pw) + 1
        A(st, [I(f'buffer_store_dwordx4 v[{WD}:{WD+3}], v{dst}, {srd(WS)}, s{sMi} offen sc1', tok='wost')])
        A(st, self.ex_addr(T, T + 1) + f'\nv_add_u32 v{T+1}, {E}, v{vS}')
        for s in range(3):
            for k in range(2):
                A(st, [I(f'ds_read_b64_tr_b16 a[{aPHI+4*s+2*k}:{aPHI+4*s+2*k+1}], v{T+1} offset:{1024*s+256*k}', tok='wfr')])
                A(st, [I(f'ds_read_b64_tr_b16 a[{aPHI+12+4*s+2*k}:{aPHI+12+4*s+2*k+1}], v{T} offset:{512*s+128*k}', tok='wfr')])
        need(pw + 1, 'wfr'); DL(bar(pw + 1))
        st = bar(pw + 1) + 1
        A(st, zf(T, 'zf1'))
        need(pw + 2, 'zf1'); need(pw + 2, 'wost'); DL(bar(pw + 2))
        st = bar(pw + 2) + 1
        A(st, f's_lshl4_add_u32 s{sMi}, s{sJ}, s{sR}\nv_mov_b32 v{t0}, s{sMi}\nv_cmp_eq_u32 s[{sMiM}:{sMiM+1}], 0, v0\nv_mov_b32 v{t1}, {OOB}\nv_mov_b32 v{t2}, 3\nv_cndmask_b32 v{t0}, v{t1}, v{t0}, s[{sMiM}:{sMiM+1}]')
        A(st, [I(f'buffer_store_byte v{t2}, v{t0}, {srd(DBG)}, 0 offen sc1', tok='flag')])
        if c.pfW2:
            st = max(st, P0(c.pfW2))
            A(st, f's_lshr_b32 s{sMi}, s2, 3\ns_lshl2_add_u32 s{sMi}, s{sMi}, s{sW}\ns_mul_i32 s{sMi}, s{sMi}, {81*128}\ns_mul_i32 s{sMi+1}, s{sQ}, {1152*1152}\ns_add_u32 s{sMi}, s{sMi}, s{sMi+1}\ns_add_u32 s{sMi+1}, s{sMi}, 8192\nv_lshlrev_b32 v{t0}, 3, v{vL16}')
            A(st, f'buffer_load_dword a255, v{t0}, {srd(W2)}, s{sMi} offen')
            G(st + 30, f's_mov_b64 exec, 0x1ffff\nbuffer_load_dword a255, v{t0}, {srd(W2)}, s{sMi+1} offen\ns_mov_b64 exec, -1')
        A(st, F_G(t0) + f'\nv_mul_u32_u24 v{vK}, 1152, v{t0}\nv_lshlrev_b32 v{t0}, 6, v{t0}\nv_and_b32 v{t1}, 0xf0, v{vL16}\nv_xor_b32 v{t0}, v{t0}, v{t1}\nv_add_u32 v{vK}, v{vK}, v{t0}')
        for k in range(1, 9): A(st, f'v_add_u32 v{vK+k}, {k*16*1152 - (k%4)*1024}, v{vK}')
        st = max(st, P0(c.pc) + 4)
        A(st, f'v_lshrrev_b32 v{t2}, 2, v{vL16}')
        ld, chk = self.poll('cnt', DBG, t2, '0', 0x03030303, t1)
        A(st, [ld]); chk[0].gap = pd; G(st, chk)
        self.cnt_marker = len(m)
        DL(P0(self.loadp[14]) - 8)
        lastS = max(pos.values())
        self.vES = 253
        st = max(st, bar(lastS - 1) + 2)
        A(st, f'v_add_u32 v{self.vES}, {E}, v{vS}')
        A(st, f'v_and_b32 v{vS}, 0x1ff, v{vPA}\n' + F_HH(t0) + f'\nv_lshl_add_u32 v{vS}, v{t0}, 9, v{vS}')
        DL(bar(12) - 1)
        st = bar(11) + 2
        A(st, f'v_and_b32 v{t0}, 0x3f, v{vPA}\n' + F_R4(t1) + f'\nv_mul_u32_u24 v{t1}, 320, v{t1}\nv_add_u32 v{t0}, v{t0}, v{t1}\n' + F_HH(t1) +
          f'\nv_mul_u32_u24 v{t1}, 9216, v{t1}\nv_add_u32 v{t0}, v{t0}, v{t1}\ns_and_b32 s{sMi}, s{sQ}, 1\ns_lshl_b32 s{sMi}, s{sMi}, 7\ns_xor_b32 s{sMi}, s{sMi}, 128\nv_xor_b32 v{vPA}, s{sMi}, v{t0}')
        DL(bar(13) - 1)
        S['misc'] = TimedStream('misc', m)

        m = []
        a0, a1, a2, a3, a4, a5 = range(vAt, vAt + 6)
        PK_ = self.PK
        Pk, EPk, PHk, Tk = 168, 188, 206, 224
        kready = P0(max(pos['Ta'], pos['Tb']) + 1) + 8
        st = kready - 30
        A(st, F_T(a4) + f'\nv_mul_u32_u24 v{a4}, 232, v{a4}\ns_mul_i32 s{sA}, s{sW}, {32*232}\ns_add_u32 s{sA}, s{sA}, {self.slotS}\nv_add_u32 v{a4}, s{sA}, v{a4}\n' + F_HH(a5))
        A(st, f'v_mul_u32_u24 v{a0}, 72, v{a5}\nv_add_u32 v{a0}, v{a0}, v{a4}\nv_lshl_add_u32 v{a1}, v{a5}, 3, v{a4}\nv_lshl_add_u32 v{a2}, v{a5}, 4, v{a4}\nv_lshl_add_u32 v{a3}, v{a5}, 5, v{a4}')
        A(kready, [W('wfr')])
        for x in self.pmfma('k', Pk): A(kready, [x])
        A(kready, self.softmax(Pk, EPk, PHk, Tk, True))
        st = P0(c.ps)
        for k in range(9): A(st, [I(f'ds_write_b64 v{a0}, v[{PHk+2*k}:{PHk+2*k+1}] offset:{8*k}', tok='stg')])
        st = max(st, P0(pos['Tc'] + 1) + 8)
        tc = PK_['Tc']; tbb = PK_['Tb']; hm = f's[{sHH}:{sHH+1}]'
        A(st, [I(f'ds_write_b64 v{a1}, v[{tc}:{tc+1}] offset:144', tok='stg'), I(f'ds_write_b64 v{a1}, v[{tc+2}:{tc+3}] offset:160', tok='stg'), I(f'ds_write_b64 v{a1}, v[{tc+6}:{tc+7}] offset:200', tok='stg')])
        A(st, f'v_cndmask_b32 v{a4}, v{vSD}, v{tbb+2}, {hm}\nv_cndmask_b32 v{a5}, v{tc+5}, v{tbb+3}, {hm}\nv_cndmask_b32 v{tc+5}, v{vSD}, v{tc+5}, {hm}')
        A(st, [I(f'ds_write_b64 v{a3}, v[{a4}:{a5}] offset:184', tok='stg'), I(f'ds_write_b64 v{a2}, v[{tc+4}:{tc+5}] offset:176', tok='stg')])
        need(c.ps, 'stg')
        A(st, f'v_lshrrev_b32 v{a0}, 6, v{vL16}\nv_mul_u32_u24 v{a0}, 232, v{a0}\n' + F_C4(a1) + f'\nv_lshl_add_u32 v{a1}, v{a1}, 3, v{a0}')
        A(st, f's_and_b32 s{sA}, s{sW}, 1\ns_lshr_b32 s{sA+1}, s{sW}, 1\ns_mul_i32 s{sA+2}, s{sA}, s{sA+1}\ns_mul_i32 s{sA+2}, s{sA+2}, 40\ns_lshl_b32 s{sA+3}, s{sA}, 5\ns_sub_u32 s{sA+3}, s{sA+3}, s{sA+2}')
        A(st, f's_mul_i32 s{sA+2}, s{sA+1}, 48\ns_add_u32 s{sA+3}, s{sA+3}, s{sA+2}\ns_add_u32 s{sA+3}, s{sA+3}, {144 + self.slotS}\nv_add_u32 v{a0}, s{sA+3}, v{a1}')
        A(st, f's_mul_i32 s{sA+2}, s{sA+1}, 72\ns_add_u32 s{sA+2}, s{sA+2}, {self.slotS}\nv_add_u32 v{a1}, s{sA+2}, v{a1}')
        DL(bar(c.ps))
        KA, KB, KD = 188, 204, 168
        st = bar(c.ps) + 1
        rdA = lambda ks: [I(f'ds_read_b64_tr_b16 v[{KA+4*ks+2*rd}:{KA+4*ks+2*rd+1}], v{a0} offset:{ks*7424+rd*3712}', tok=f'kva{ks}') for rd in range(2)]
        rdB = lambda x: [I(f'ds_read_b64_tr_b16 v[{KB+4*(x%6)+2*rd}:{KB+4*(x%6)+2*rd+1}], v{a1} offset:{(x%4)*7424+rd*3712+32*(x//4)}', tok=f'kvb{x}') for rd in range(2)]
        for ks in range(4): A(st, rdA(ks) + rdB(ks))
        A(st, F_G(a4) + f'\nv_mul_u32_u24 v{a2}, 288, v{a4}\nv_cmp_eq_u32 s[{sAM}:{sAM+1}], 0, v{a4}\nv_mov_b32 v{a3}, 1152\nv_mov_b32 v{a5}, {OOB}\n' + F_N(a4) + f'\nv_cndmask_b32 v{a3}, v{a5}, v{a3}, s[{sAM}:{sAM+1}]')
        G(st, f's_cmp_eq_u32 s{sA}, 1\ns_cselect_b64 s[{sAM}:{sAM+1}], -1, 0')
        A(st, f'v_cndmask_b32 v{a2}, v{a2}, v{a3}, s[{sAM}:{sAM+1}]\nv_cmp_gt_u32 s[{sAM}:{sAM+1}], 4, v{a4}\nv_lshl_add_u32 v{a2}, v{a4}, 3, v{a2}')
        A(st, f's_lshl4_add_u32 s{sA+2}, s{sJ}, s{sR}\ns_mul_i32 s{sA+2}, s{sA+2}, 3072\ns_mul_i32 s{sA+1}, s{sA+1}, 1440\nv_cndmask_b32 v{a3}, v{a5}, v{a2}, s[{sAM}:{sAM+1}]\ns_add_u32 s{sA+2}, s{sA+2}, s{sA+1}\ns_add_u32 s{sA+2}, s{sA+2}, {WS_KV}')
        for x in range(12):
            ft, ks = x // 4, x % 4
            mf = I(f'v_mfma_f32_16x16x32_bf16 v[{KD+4*ft}:{KD+4*ft+3}], v[{KA+4*ks}:{KA+4*ks+3}], v[{KB+4*(x%6)}:{KB+4*(x%6)+3}], ' + ('0' if ks == 0 else f'v[{KD+4*ft}:{KD+4*ft+3}]'))
            G(st, [W(f'kvb{x}', f'kva{ks}'), mf])
            if x + 4 < 12: A(st, rdB(x + 4))
        need(c.ps + 1, 'kvb11')
        DL(bar(c.ps + 1))
        x = []
        for ft in range(3):
            x += L(f'v_cvt_pk_bf16_f32 v{KD+4*ft}, v{KD+4*ft}, v{KD+4*ft+1}\nv_cvt_pk_bf16_f32 v{KD+4*ft+1}, v{KD+4*ft+2}, v{KD+4*ft+3}')
        x[4].gap = 1
        for ft in range(3):
            x.append(I(f'buffer_store_dwordx2 v[{KD+4*ft}:{KD+4*ft+1}], v{a2 if ft < 2 else a3}, {srd(WS)}, s{sA+2} offen offset:{128*ft} sc1', tok='kvst'))
        A(st, x)
        Pq, EPq, PHq, Tq, SQ = 168, 136, 232, 154, 252
        st = max(st, P0(pos['Td'] + 1) + 8)
        for x in self.pmfma('q', Pq): A(st, [x])
        sm = self.softmax(Pq, EPq, PHq, Tq, False, keepS=SQ)
        n1 = 70
        A(st, sm[:n1])
        G(st, [W('kvst'), I(f'buffer_store_dword v{vONE}, v{vF0}, {srd(WS)}, s{sFKV} offen sc1', tok='flag')])
        A(st, f'v_lshrrev_b32 v{a0}, 2, v{vL16}\ns_and_b32 s{sA}, s{sFKV}, 0xffffff00')
        A(st, sm[n1:n1 + 60])
        m.append(('after', ('misc', self.cnt_marker)))
        ld, chk = self.poll('kvf', WS, a0, f's{sA}', 1, a1)
        A(st, [ld]); A(st, sm[n1 + 60:])
        A(st, f'v_mov_b32 v{PHq+18}, 0\nv_mov_b32 v{PHq+19}, 0')
        A(st, f'v_and_b32 v{a2}, 16, v{vL16}\nv_mov_b32 v{a3}, 0x3f80\nv_lshlrev_b32 v{a3}, v{a2}, v{a3}\nv_bfe_u32 v{a2}, v{vL16}, 5, 3')
        for k in range(4): A(st, f'v_cmp_eq_u32 s[{sAM}:{sAM+1}], {k}, v{a2}\nv_mov_b32 v{SEL+k}, 0\nv_cndmask_b32 v{SEL+k}, v{SEL+k}, v{a3}, s[{sAM}:{sAM+1}]')
        A(st, F_G(a2) + f'\nv_mul_u32_u24 v{a2}, 3072, v{a2}\nv_and_b32 v{a3}, 0xf0, v{vL16}\nv_add_u32 v{a2}, v{a2}, v{a3}\ns_mul_i32 s{sA+1}, s{sW}, 768\ns_sub_u32 s{sA+2}, {148*16}, s{sA+1}')
        A(st, f'v_cmp_gt_u32 s[{sAM}:{sAM+1}], s{sA+2}, v{a3}\nv_mov_b32 v{a3}, {OOB}\ns_mul_i32 s{sA+2}, s{sJ}, 49152\ns_add_u32 s{sA+1}, s{sA+1}, s{sA+2}\ns_add_u32 s{sA+1}, s{sA+1}, {WS_KV}\nv_cndmask_b32 v{a3}, v{a3}, v{a2}, s[{sAM}:{sAM+1}]')
        G(st, chk)
        for i in range(4):
            A(st, f's_add_u32 s{sA+2}, s{sR}, {i}\ns_and_b32 s{sA+2}, s{sA+2}, 3\ns_mul_i32 s{sA+2}, s{sA+2}, 12288\ns_add_u32 s{sA+2}, s{sA+2}, s{sA+1}')
            for gp in range(3):
                b = aKV + 4 * (3 * i + gp)
                A(st, [I(f'buffer_load_dwordx4 a[{b}:{b+3}], v{a2 if gp < 2 else a3}, {srd(WS)}, s{sA+2} offen offset:{256*gp} sc1', tok=f'kr{i}')])
        KR, IA = 200, 212
        for gp in range(3):
            u, h_, cc = a0, a1, a2
            A(st, F_N(u) + f'\ns_mul_i32 s{sA}, s{sW}, 48\ns_add_u32 s{sA}, s{sA}, {16*gp}\nv_add_u32 v{u}, s{sA}, v{u}\ns_movk_i32 s{sA}, 90\nv_cmp_le_u32 s[{sAM}:{sAM+1}], s{sA}, v{u}\n' + F_G(a3))
            A(st, f'v_lshl_add_u32 v{a5}, v{a3}, 7, v{u}\nv_cndmask_b32 v{h_}, 0, 1, s[{sAM}:{sAM+1}]\nv_mul_u32_u24 v{a4}, 90, v{h_}\nv_sub_u32 v{u}, v{u}, v{a4}\nv_mul_u32_u24 v{cc}, 3641, v{u}\nv_lshrrev_b32 v{cc}, 16, v{cc}')
            A(st, f'v_mul_u32_u24 v{a4}, 18, v{cc}\nv_sub_u32 v{u}, v{u}, v{a4}\nv_lshl_add_u32 v{u}, v{u}, 1, v{a3}\nv_lshrrev_b32 v{a4}, 3, v{u}\nv_and_b32 v{u}, 7, v{u}\nv_lshl_add_u32 v{u}, v{a4}, 4, v{u}\nv_lshl_add_u32 v{u}, v{h_}, 3, v{u}')
            A(st, self.image_addr(u, h_, cc, IA + 2 * gp, IA + 2 * gp + 1, a3, a4, sAM))
            A(st, F_G(a3) + f'\nv_lshlrev_b32 v{a4}, 7, v{a3}\nv_sub_u32 v{a5}, v{a5}, v{a4}\nv_lshrrev_b32 v{a3}, 1, v{a3}\nv_lshl_add_u32 v{a5}, v{a3}, 8, v{a5}\ns_movk_i32 s{sA}, 180\nv_cmp_gt_u32 s[{sAM}:{sAM+1}], s{sA}, v{a5}\nv_mov_b32 v{a4}, {DUMMY}')
            A(st, f'v_cndmask_b32 v{IA+2*gp}, v{a4}, v{IA+2*gp}, s[{sAM}:{sAM+1}]\nv_cndmask_b32 v{IA+2*gp+1}, v{a4}, v{IA+2*gp+1}, s[{sAM}:{sAM+1}]')
        for i in range(4):
            for gp in range(3):
                b = aKV + 4 * (3 * i + gp); d = KR + 4 * gp
                mf = I(f'v_mfma_f32_16x16x32_bf16 v[{d}:{d+3}], v[{SEL}:{SEL+3}], a[{b}:{b+3}], ' + ('0' if i == 0 else f'v[{d}:{d+3}]'))
                G(st, [W(f'kr{i}'), mf] if gp == 0 else [mf])
        x = []
        for gp in range(3):
            d = KR + 4 * gp
            x += L(f'v_cvt_pk_bf16_f32 v{d}, v{d}, v{d+1}\nv_cvt_pk_bf16_f32 v{d+1}, v{d+2}, v{d+3}')
        x[0].gap = 1
        for gp in range(3):
            d = KR + 4 * gp
            x += [I(f'ds_write_b64 v{IA+2*gp+k}, v[{d}:{d+1}]', tok='kimg') for k in range(2)]
        A(st, x)
        A(st, self.ex_addr(a0, a1))
        pk = c.pk
        need(pk, 'kimg')
        DL(bar(pk))
        OD = 208
        st = bar(pk) + 1
        ofr = lambda x: aPHI + 4 * (x % 6)
        seq = []
        for sg in range(5):
            seq.append(('m', sg, [I(f'ds_read_b64_tr_b16 a[{ofr(2*sg)+2*k}:{ofr(2*sg)+2*k+1}], v{self.vES} offset:{1024*sg+256*k}', tok=f'of{2*sg}') for k in range(2)]))
            seq.append(('x', sg, [I(f'ds_read_b64_tr_b16 a[{ofr(2*sg+1)+2*k}:{ofr(2*sg+1)+2*k+1}], v{a0} offset:{512*sg+128*k}', tok=f'of{2*sg+1}') for k in range(2)]))
        for x in range(4): A(st, seq[x][2])
        A(st, f's_lshl2_add_u32 s{sA}, s{sR}, s{sW}\ns_lshl4_add_u32 s{sA+1}, s{sA}, s{sJ}\ns_lshl_b32 s{sA+1}, s{sA+1}, 11\ns_add_u32 s{sA+1}, s{sA+1}, {WS_OM}')
        A(st, f's_lshl_b32 s{sA}, s{sA}, 12\ns_lshr_b32 s{sA+2}, s{sJ}, 3\ns_lshl2_add_u32 s{sA+2}, s{sA+2}, s{sJJ}\ns_lshl_b32 s{sA+2}, s{sA+2}, 9\ns_add_u32 s{sA}, s{sA}, s{sA+2}')
        A(st, f's_and_b32 s{sA+2}, s{sQ}, 1\ns_lshl3_add_u32 s{sA}, s{sA+2}, s{sA}\ns_add_u32 s{sA}, s{sA}, {WS_OX}\nv_and_b32 v{a1}, 0x1f0, v{vL16}\n' + F_HH(a2) + f'\nv_lshl_add_u32 v{a1}, v{a2}, 2, v{a1}')
        for x in range(10):
            kind, sg, _ = seq[x]
            fr = ofr(x); Bq = PHq + 4 * sg
            if kind == 'm':
                mf = I(f'v_mfma_f32_32x32x16_bf16 v[{OD}:{OD+15}], a[{fr}:{fr+3}], v[{Bq}:{Bq+3}], ' + ('0' if sg == 0 else f'v[{OD}:{OD+15}]'))
            else:
                mf = I(f'v_mfma_f32_16x16x32_bf16 v[{OD+16}:{OD+19}], a[{fr}:{fr+3}], v[{Bq}:{Bq+3}], ' + ('0' if sg == 0 else f'v[{OD+16}:{OD+19}]'))
            G(st, [W(f'of{x}'), mf])
            if x + 4 < 10: A(st, seq[x + 4][2])
        need(pk + 1, 'of9')
        DL(bar(pk + 1))
        X0 = OD + 16
        x = L(f'v_cndmask_b32 v{a3}, v{X0+2}, v{X0}, {hm}\nv_add_f32 v{a3}, v{a3}, v{SQ}\nv_rcp_f32 v{a3}, v{a3}\nv_cndmask_b32 v{X0}, v{X0}, v{X0+2}, {hm}\nv_cndmask_b32 v{X0+1}, v{X0+1}, v{X0+3}, {hm}')
        x[0].gap = 2
        A(st, x)
        for k in range(9):
            A(st, f'v_mul_f32 v{OD+2*k}, v{a3}, v{OD+2*k}\nv_mul_f32 v{OD+2*k+1}, v{a3}, v{OD+2*k+1}\nv_cvt_pk_bf16_f32 v{PHq+k}, v{OD+2*k}, v{OD+2*k+1}')
        A(st, [I(f'buffer_store_dwordx4 v[{PHq+4*k}:{PHq+4*k+3}], v{vL16}, {srd(WS)}, s{sA+1} offen offset:{1024*k} sc1', tok='ost') for k in range(2)])
        A(st, [I(f'buffer_store_dword v{PHq+8}, v{a1}, {srd(WS)}, s{sA} offen sc1', tok='ost')])
        x = glue([W('ost', 'y8st'), I(f'buffer_store_dword v{vONE}, v{vF0}, {srd(WS)}, s{sFO} offen sc1', tok='flag')])
        x[0].gap = 30
        m.append(('after', ('epi', 'y8st')))
        m.append((st, x))
        S['att'] = TimedStream('att', m)

        m = []
        pv0, pv1, pvA = vMi, vMi + 1, vSD
        st = P0(c.hl[0]) - pd
        A(st, f'v_and_b32 v{pv0}, 0x30, v{vL16}\nv_lshrrev_b32 v{pv0}, 2, v{pv0}\ns_and_b32 s{sPe}, s{sFH}, 0xffffff80')
        ld, chk = self.poll('hA', WS, pv0, f's{sPe}', 1, pv1)
        m.append(('after', ('misc', self.cnt_marker)))
        A(st, [ld])
        A(st, f's_lshl2_add_u32 s{sHb}, s{sR}, s{sQ}\ns_lshl4_add_u32 s{sHb}, s{sHb}, s{sW}\ns_mul_i32 s{sHb}, s{sHb}, 18432\ns_add_u32 s{sHb}, s{sHb}, {WS_H}')
        chk[0].gap = pd - 4
        G(P0(c.hl[0]) - 1, chk)
        for n in range(6):
            i = 16 + n; pe, hf, stt = self.g2[i]
            p = c.hl[n]
            assert p < i and (p >= 12 if stt < 2 else p >= 13) and (n < 4 or p > i - 4)
            if n == 3:
                ld, chk = self.poll('hB', WS, pv0, f's{sPe}', 1, pv1, imm=16)
                A(P0(p) - pd, [ld]); chk[0].gap = pd - 4; G(P0(p) - 1, chk)
            same = [x for x in range(6) if c.hl[x] == p]
            span = 34 // len(same); st0 = P0(p) + 2 + same.index(n) * span
            A(st0 - 3, f's_add_u32 s{sPe2}, s{sJJ}, {pe}\ns_and_b32 s{sPe2}, s{sPe2}, 3\ns_mul_i32 s{sPe2}, s{sPe2}, {4*18432}\ns_add_u32 s{sPe2}, s{sPe2}, s{sHb}')
            if hf: A(st0 - 3, f's_add_u32 s{sPe2}, s{sPe2}, 9216')
            for k in range(9):
                st = st0 + k * span // 9
                if k in (4, 8): A(st - 1, f's_add_u32 s{sPe2}, s{sPe2}, 4096')
                A(st, [I(f'buffer_load_dwordx4 a[{36*stt+4*k}:{36*stt+4*k+3}], v{vL16}, {srd(WS)}, s{sPe2} offen offset:{(k%4)*1024} sc1', tok=f'ph{i}_{k}')])
            DL(P0(i) - 1)
        S['peer'] = TimedStream('peer', m)
        if self.loadp['woA'] < 19:
            it = S['dma'].items
            k = next(n for n, x in enumerate(it) if not isinstance(x[0], str) and x[1][0].tok == 'TwoA')
            it.insert(k, ('after', ('misc', self.cnt_marker)))

        m = []
        sp = soP
        st = bar(pk + 1) + 1
        dma_insert(st, one(f's_lshl_b32 s{sp}, s{sJJ}, 1\ns_and_b32 s{sp+1}, s{sQ}, 1\ns_add_u32 s{sp}, s{sp}, s{sp+1}\ns_mul_i32 s{sp+1}, s{sp}, 82944\ns_mul_i32 s{sp+2}, s{sW}, 2304\ns_add_u32 s{sp+1}, s{sp+1}, s{sp+2}\ns_add_u32 s{sp+1}, s{sp+1}, {WS_WO+2*SLOT}')
                   + one(f's_add_u32 m0, s{sp+2}, {E}')
                   + [glue(L('s_mov_b64 exec, 0xffff') + [I(f'buffer_load_dwordx4 v{vL16}, {srd(WS)}, s{sp+1} offen offset:2048 sc1 lds', tok='woE')] + L('s_mov_b64 exec, -1'))]
                   + one([I(f'buffer_load_dwordx4 v{vL16}, {srd(WS)}, s{sp+1} offen offset:{1024*k} sc1 lds', tok='woE') for k in range(2)]))
        need(21, 'TwoA'); need(21, 'TwoB'); need(21, 'woE')
        vOM, vOX, vXM, vXE, vLA, vLB, vLX, vRF = 32, 33, 34, 35, 36, 37, 38, 40
        self.tv = dict(vOM=vOM, vXM=vXM, vXE=vXE, vLA=vLA, vLB=vLB, vLX=vLX)
        u0, u1, u2 = 46, 47, 39
        st = max(P0(16), st + 12)
        m.append(('after', ('dma', 'woE')))
        A(st, f's_and_b32 s{sp+3}, s{sQ}, 2\ns_lshr_b32 s{sp+4}, s{sW}, 1\ns_add_u32 s{sp+5}, s{sp+3}, s{sp+4}\ns_lshl2_add_u32 s{sp+3}, s{sR}, s{sp+5}\ns_and_b32 s{sp+4}, s{sW}, 1\ns_lshl_b32 s{sp+6}, s{sp+4}, 8')
        A(st, f'v_and_b32 v{u0}, 0xf0, v{vL16}\nv_add_u32 v{u0}, s{sp+6}, v{u0}\n' + F_G(u1) + f'\nv_lshl_add_u32 v{vOX}, v{u1}, 9, v{u0}')
        A(st, f'v_lshrrev_b32 v{u0}, 2, v{vL16}\nv_and_b32 v{u0}, 60, v{u0}\ns_lshl_b32 s{sp+7}, s{sp+3}, 7\ns_add_u32 s{sp+7}, s{sp+7}, {FL_O}')
        ld, chk = self.poll('of', WS, u0, f's{sp+7}', 1, u2)
        A(P0(c.po) - pd, [ld])
        st = P0(c.po) - pd
        A(st, f's_lshl_b32 s{sOMc}, s{sp+3}, 15\ns_add_u32 s{sOMc}, s{sOMc}, {WS_OM}\ns_lshl_b32 s{sp+8}, s{sp+3}, 12\ns_add_u32 s{sp+8}, s{sp+8}, {WS_OX}')
        A(st, f's_lshl3_add_u32 s{sp+6}, s{sp+3}, s{sp}\ns_lshl_b32 s{sp+6}, s{sp+6}, 13\ns_add_u32 s{sp+6}, s{sp+6}, {WS_Y8}')
        chk[0].gap = pd - 6
        G(P0(c.po) - 1, chk)
        YB, Y8 = 200, 216
        st = P0(c.po)
        for i in range(4):
            if i == 2: A(st, f's_add_u32 s{sp+6}, s{sp+6}, 4096')
            A(st + 3 * i, [I(f'buffer_load_dwordx4 v[{YB+4*i}:{YB+4*i+3}], v{vOX}, {srd(WS)}, s{sp+6} offen offset:{(i&1)*2048} sc1', tok=f'y8l{i}')])
        span = (P0(21) + 8 - (st + 12))
        rest = []
        rest += L(F_N(u0) + f'\nv_mul_u32_u24 v{u0}, 1152, v{u0}\nv_lshl_add_u32 v{vXM}, v{u1}, 4, v{u0}\nv_lshl_add_u32 v{vXE}, v{u1}, 3, v{u0}\nv_mov_b32 v{u0}, {OOB}\nv_cndmask_b32 v{vXE}, v{vXE}, v{u0}, {hm}')
        rest += L(f's_lshr_b32 s{sp+1}, s{sQ}, 1\ns_lshl1_add_u32 s{sp+1}, s{sR}, s{sp+1}\ns_lshl2_add_u32 s{sp+1}, s{sp+1}, s{sW}\ns_mul_i32 s{sp+1}, s{sp+1}, {16*1152}\ns_lshl_b32 s{sp+2}, s{sp}, 7\ns_add_u32 s{sXO}, s{sp+1}, s{sp+2}')
        rest += L(f's_lshl4_add_u32 s{sp+2}, s{sp}, s{sp+1}\ns_add_u32 s{sp+2}, s{sp+2}, 1024')
        XR = 48
        rest += [I(f'buffer_load_dwordx4 v[{XR+4*k}:{XR+4*k+3}], v{vXM}, {srd(X)}, s{sXO} offen offset:{64*k}', tok='xres') for k in range(2)]
        rest += [I(f'buffer_load_dwordx2 v[{XR+8}:{XR+9}], v{vXE}, {srd(X)}, s{sp+2} offen', tok='xres')]
        rest += L(f's_lshr_b32 s{sp+1}, s{sQ}, 1\ns_lshl2_add_u32 s{sp+1}, s{sp+1}, s{sW}\ns_lshl_b32 s{sp+1}, s{sp+1}, 6\ns_add_u32 s{sp+1}, s{sp+1}, {RSA}\nv_and_b32 v{u0}, 0xf0, v{vL16}\nv_lshrrev_b32 v{u0}, 2, v{u0}\nv_add_u32 v{u0}, s{sp+1}, v{u0}')
        rest += [I(f'ds_read_b32 v{vRF}, v{u0}', tok='rsr')]
        rest += L(f'v_and_b32 v{vLA}, 0x3c0, v{vL16}\nv_lshrrev_b32 v{vLX}, 2, v{vLA}\nv_bfe_u32 v{u0}, v{vL16}, 4, 1\nv_lshl_add_u32 v{vLA}, v{u0}, 3, v{vLA}\nv_lshl_add_u32 v{vLX}, v{u0}, 3, v{vLX}')
        rest += L(f'v_and_b32 v{u0}, 32, v{vL16}\nv_add_u32 v{vLA}, v{vLA}, v{u0}\n' + F_TB(u0) + f'\nv_lshl_add_u32 v{vLA}, v{u0}, 4, v{vLA}')
        rest += L(f'v_add_u32 v{vLA}, {self.slot["woA"]}, v{vLA}\nv_xor_b32 v{vLB}, 16, v{vLA}\nv_add_u32 v{vLX}, {self.slot["woA"]+4096}, v{vLX}')
        rest += L(self.ident(44, u0))
        rest += L(f'v_mov_b32 v{vRF+1}, v{vRF}\nv_mul_f32 v42, 0xbfb8aa3b, v{vRF}\nv_mul_f32 v43, 0xbfb8aa3b, v{vRF}')
        for i in range(4):
            rest.append(glue([W(f'y8l{i}'), I(f'v_mfma_f32_16x16x32_bf16 v[{Y8}:{Y8+3}], v[{SEL}:{SEL+3}], v[{YB+4*i}:{YB+4*i+3}], ' + ('0' if i == 0 else f'v[{Y8}:{Y8+3}]'))]))
        rest += L(f's_lshl2_add_u32 s{sp+1}, s{sR}, s{sJJ}\ns_lshl2_add_u32 s{sE}, s{sp+1}, s{sW}\ns_lshl2_add_u32 s{sE}, s{sE}, s{sQ}\ns_lshl_b32 s{sE}, s{sE}, 13\ns_add_u32 s{sE}, s{sE}, {WS_Y}')
        rest += L(f's_and_b32 s{sp+6}, s{sQ}, 1\ns_lshl_b32 s{sp+6}, s{sp+6}, 12\ns_add_u32 s{sE+1}, s{sE}, s{sp+6}\ns_xor_b32 s{sE}, s{sE+1}, 4096')
        rest += L(f's_lshl2_add_u32 s{sp+1}, s{sp+1}, s{sp+5}\ns_lshl_b32 s{sYc}, s{sp+1}, 15\ns_add_u32 s{sYc}, s{sYc}, s{sp+6}\ns_add_u32 s{sYc}, s{sYc}, {WS_Y}\ns_lshl_b32 s{sp+7}, s{sp+1}, 7\ns_add_u32 s{sp+7}, s{sp+7}, {FL_Y}')
        rest += [glue(L(f's_lshr_b32 s{sp+1}, s{sQ}, 1\ns_lshr_b32 s{sp+6}, s{sW}, 1\ns_cmp_eq_u32 s{sp+1}, s{sp+6}\ns_cselect_b32 s{sp+6}, {OOB}, 0'))]
        rest += L(f'v_or_b32 v58, s{sp+6}, v{vL16}\ns_lshl_b32 s{sp+1}, s{sW}, 12\ns_add_u32 s{sp+1}, s{sp+1}, {self.slot["Y"]}\nv_add_u32 v59, s{sp+1}, v{vL16}')
        rest += L(f's_lshl_b32 s{sp+1}, s{sp+5}, 12\ns_add_u32 s{sp+1}, s{sp+1}, {self.slot["Y"]}\nv_add_u32 v60, s{sp+1}, v{vOX}')
        rest += L(f'v_bfe_u32 v61, v{vL16}, 4, 1\nv_lshl_or_b32 v61, v61, 1, 1\nv_xor_b32 v61, s{sQ}, v61\nv_lshlrev_b32 v61, 2, v61\ns_xor_b32 s{sp+1}, s{sQ}, 2\ns_lshl_b32 s{sp+1}, s{sp+1}, 2\nv_mov_b32 v62, s{sp+1}')
        for k, x in enumerate((1, 3, 2)):
            rest += L(f's_xor_b32 s{sp+1}, s{sQ}, {x}\ns_lshl_b32 s{sp+1}, s{sp+1}, 13\ns_add_u32 s{sT0+k}, s{sYc}, s{sp+1}')
        XU = 64
        sw = [I(f'v_permlane16_swap_b32 v{XR+4*mt+k}, v{XR+4*mt+2+k}') for mt in range(2) for k in range(2)]
        sw[0].gap = 0
        rest += sw
        for k in range(10): rest += L(f'v_lshlrev_b32 v{XU+2*k}, 16, v{XR+k}\nv_and_b32 v{XU+2*k+1}, 0xffff0000, v{XR+k}')
        nr = len(rest); k0 = 0
        for j_ in range(18):
            stj = st + 12 + j_ * span // 18
            if j_ < 16:
                if j_ and j_ % 2 == 0: A(stj, f's_add_u32 s{sOMc}, s{sOMc}, 4096')
                A(stj, [I(f'buffer_load_dwordx4 a[{184+4*j_}:{187+4*j_}], v{vOX}, {srd(WS)}, s{sOMc} offen offset:{(j_&1)*2048} sc1', tok=f'o{j_}')])
            else:
                A(stj, [I(f'buffer_load_dwordx4 a[{184+4*j_}:{187+4*j_}], v{vOX}, {srd(WS)}, s{sp+8} offen offset:{(j_-16)*2048} sc1', tok=f'o{j_}')])
            k1 = min(nr, nr * (j_ + 1) // 14)
            for x in rest[k0:k1]: m.append((stj, x if isinstance(x, list) else [x]))
            k0 = k1
        DL(bar(21) - 2)
        S['prep'] = TimedStream('prep', m)

        m = []
        for mu in range(4):
            a = GA + 16 * mu
            st = P0(21) + 9 * mu + 8 + 3
            A(st, [I(f'v_cvt_pk_bf16_f32 v{a+k}, v{a+2*k}, v{a+2*k+1}') for k in range(8)])
            for p_ in range(2):
                if mu < 2:
                    A(st, [I(f'buffer_store_dwordx4 v[{a+4*p_}:{a+4*p_+3}], v{vL16}, {srd(WS)}, s{sE} offen offset:{2048*mu+1024*p_} sc1', tok='yE')])
                else:
                    A(st, [I(f'buffer_store_dwordx4 v[{a+4*p_}:{a+4*p_+3}], v58, {srd(WS)}, s{sE+1} offen offset:{2048*(mu-2)+1024*p_} sc1', tok='yL')])
            if mu >= 2:
                A(st, [I(f'ds_write_b128 v59, v[{a+4*p_}:{a+4*p_+3}] offset:{2048*(mu-2)+1024*p_}', tok='yown') for p_ in range(2)])
        S['ypk'] = TimedStream('ypk', m)
        return S

    def s_reads(self, x):
        st, lam = x // 5, x % 5
        tv = self.tv
        b = 72 + 4 * (x % 18)
        r = []
        if lam == 0 and st in (8, 16):
            dl = (self.slot['woB'] - self.slot['woA']) if st == 8 else (E - self.slot['woB'])
            r += [I(f'v_add_u32 v{tv[k]}, {dl & 0xffffffff}, v{tv[k]}') for k in ('vLA', 'vLB', 'vLX')]
        o = (st % 8) * 4608
        for rd in range(2):
            if lam < 4: reg, oo = tv['vLB' if lam & 1 else 'vLA'], o + (lam >> 1) * 2048 + rd * 1024
            else: reg, oo = tv['vLX'], o + rd * 256
            r.append(I(f'ds_read_b64_tr_b16 a[{b+2*rd}:{b+2*rd+1}], v{reg} offset:{oo}', tok=f's{x}'))
        return r

    def tail(self, S):
        c = self.c; E_ = self.E; tv = self.tv
        sp = soP
        SA, YE, YL, YO, YA, Y8, XU, TM, OUTR = 84, 104, 120, 128, 200, 216, 64, 160, 180
        vOX = 33
        side = {}
        add = lambda x, lst: side.setdefault(x, []).extend(lst)
        yp = flush(S['ypk'])
        n0 = 1
        for k, x in enumerate(yp): add(n0 + k // 2, [x])
        xb = n0 + len(yp) // 2 + 3
        add(xb, [W('yown')] + L('s_barrier') + [I(f'ds_read_b128 v[{YO+4*mt}:{YO+4*mt+3}], v60 offset:{2048*mt}', tok='yor') for mt in range(2)])
        fl = lambda tk, o: [W(tk), I(f'buffer_store_dword v{vONE}, v{vF0}, {srd(WS)}, s{sFY} offen offset:{o} sc1', tok='flag')]
        add(c.xe, fl('yE', 0) + self.stamp('yEf'))
        add(c.xl, fl('yL', 16) + self.stamp('yLf'))
        ldE, chkE = self.poll('yfE', WS, 61, f's{sp+7}', 1, 63)
        ldL, chkL = self.poll('yfL', WS, 62, f's{sp+7}', 1, 63, imm=16)
        xpe = min(c.xl + 4, 60)
        add(xpe, [ldE])
        ident_mf = lambda src, mt, ab, first: I(f'v_mfma_f32_4x4x4_16b_bf16 v[{YA+8*mt+4*ab}:{YA+8*mt+4*ab+3}], v[44:45], v[{src+4*mt+2*ab}:{src+4*mt+2*ab+1}], ' + ('0' if first else f'v[{YA+8*mt+4*ab}:{YA+8*mt+4*ab+3}]'))
        for x in range(90):
            st, lam = x // 5, x % 5
            fr = 72 + 4 * (x % 18); acc = SA + 4 * lam
            E_(W(f's{x}', f'o{st}'))
            E_(f'v_mfma_f32_16x16x32_bf16 v[{acc}:{acc+3}], a[{fr}:{fr+3}], a[{184+4*st}:{187+4*st}], ' + ('0' if x < 5 else f'v[{acc}:{acc+3}]'))
            if x + c.Ds < 90: E_(self.s_reads(x + c.Ds))
            E_(side.get(x, []))
        E_(self.stamp('s89'))
        E_(chkE)
        E_(self.stamp('yEp'))
        for k in range(2):
            for mt in range(2):
                E_(I(f'buffer_load_dwordx4 v[{YE+8*k+4*mt}:{YE+8*k+4*mt+3}], v{vOX}, {srd(WS)}, s{sT0+k} offen offset:{2048*mt} sc1', tok=f'yl{k}'))
        E_(ldL)
        for mt in range(2):
            for ab in range(2): E_(ident_mf(YO, mt, ab, True))
        for k in range(10):
            E_(f'v_pk_mul_f32 v[{SA+2*k}:{SA+2*k+1}], v[{SA+2*k}:{SA+2*k+1}], v[40:41]')
        self.final_a(Y8, TM + 16, SA + 16); self.final_b(Y8, TM + 16, XU + 16, OUTR + 8)
        E_(I(f'buffer_store_dwordx2 v[{OUTR+8}:{OUTR+9}], v{tv["vXE"]}, {srd(OUT)}, s{sp+2} offen', tok='out'))
        E_(chkL)
        E_(self.stamp('yLp'))
        for mt in range(2):
            E_(I(f'buffer_load_dwordx4 v[{YL+4*mt}:{YL+4*mt+3}], v{vOX}, {srd(WS)}, s{sT0+2} offen offset:{2048*mt} sc1', tok=f'yl2{mt}'))
        for k in range(2):
            for mt in range(2):
                for ab in range(2): E_(ident_mf(YE + 8 * k, mt, ab, False))
        for mt in range(2):
            for ab in range(2): E_(ident_mf(YL, mt, ab, False))
        E_(self.stamp('yld'))
        for mt in range(2):
            for ab in range(2):
                lam = 2 * mt + ab
                self.final_a(YA + 4 * lam, TM + 4 * lam, SA + 4 * lam)
            for ab in range(2):
                lam = 2 * mt + ab
                self.final_b(YA + 4 * lam, TM + 4 * lam, XU + 4 * lam, OUTR + 2 * lam)
            for k in range(2): E_(f'v_permlane16_swap_b32 v{OUTR+4*mt+k}, v{OUTR+4*mt+2+k}')
            E_(I(f'buffer_store_dwordx4 v[{OUTR+4*mt}:{OUTR+4*mt+3}], v{tv["vXM"]}, {srd(OUT)}, s{sXO} offen offset:{64*mt}', tok='out'))
        E_(self.stamp('fin'))

    def final_a(self, y, tm, sa):
        E_ = self.E
        for k in range(2): E_(f'v_pk_mul_f32 v[{tm+2*k}:{tm+2*k+1}], v[{y+2*k}:{y+2*k+1}], v[42:43]')
        for k in range(4): E_(f'v_exp_f32 v{tm+k}, v{tm+k}')
        for k in range(2): E_(f'v_pk_mul_f32 v[{y+2*k}:{y+2*k+1}], v[{y+2*k}:{y+2*k+1}], v[{sa+2*k}:{sa+2*k+1}]')

    def final_b(self, y, tm, xu, outr):
        E_ = self.E
        for k in range(2): E_(f'v_pk_add_f32 v[{tm+2*k}:{tm+2*k+1}], v[{tm+2*k}:{tm+2*k+1}], 1.0 op_sel_hi:[1,0]')
        for k in range(4): E_(f'v_rcp_f32 v{tm+k}, v{tm+k}')
        for k in range(2): E_(f'v_pk_fma_f32 v[{y+2*k}:{y+2*k+1}], v[{y+2*k}:{y+2*k+1}], v[{tm+2*k}:{tm+2*k+1}], v[{xu+2*k}:{xu+2*k+1}]')
        for k in range(2): E_(f'v_cvt_pk_bf16_f32 v{outr+k}, v{y+2*k}, v{y+2*k+1}')

    def build(self):
        c = self.c; E_ = self.E
        assert c.D + 2 <= 10
        self.plan()
        self.prologue()
        S = self.build_streams()
        E_(self.stamp('stat'))
        E_(f's_lshl4_add_u32 s3, s{sJ}, s{sR}\nv_mov_b32 v23, {OOB}\nv_mov_b32 v24, s3\nv_cmp_eq_u32 vcc, 0, v0')
        E_(W('T0', 'rpst', 'clr')); E_('s_barrier')
        E_(self.stamp('T0'))
        for s in range(c.D): E_(self.reads(s))
        E_(f'v_cndmask_b32 v23, v23, v24, vcc')
        E_(I(f'buffer_store_byte v{vONE}, v23, {srd(DBG)}, 0 offen sc1', tok='flag'))
        steps = self.main_steps()
        sk = c.skip.split()

        def drop(pred, names=None):
            for nm, st_ in S.items():
                if names and nm not in names: continue
                for it in st_.items:
                    if isinstance(it[0], str): continue
                    it[1][:] = [x for x in it[1] if not pred(x)] or [I('s_nop 0')]
        for nm in sk:
            if nm in S: drop(lambda x: True, [nm])
        if sk:
            drop(lambda x: x.kind == 'label' or x.op.startswith('s_cbranch') or x.op.startswith('v_cmp_ne'))
            self.slow = [x for x in self.slow if x.startswith('SLOW_yf')]
        if 'hst' in sk: drop(lambda x: x.kind == 'vstore', ['epi'])
        if 'peerld' in sk: drop(lambda x: x.kind == 'vload', ['peer'])
        if 'oload' in sk: drop(lambda x: x.kind == 'vload', ['prep'])
        if 'dmaq' in sk: drop(lambda x: x.kind == 'dma', ['dma'])
        if 'attvm' in sk: drop(lambda x: x.kind in ('vstore', 'vload'), ['att'])
        order = [S[k] for k in ('dma', 'epi', 'ypk', 'peer', 'misc', 'att', 'prep', 'accw')]
        self.log = []
        body = schedule_timed(steps, order, log=self.log, stamps={36 * p: (lambda p=p: self.stamp(f'p{p-1}')) for p in range(1, 22)})
        E_(body)
        for s in order:
            if s.name != 'ypk': assert s.done(), (s.name, s.idx, len(s.items))
        E_(self.stamp('p21'))
        self.tail(S)
        if c.ts:
            E_(W('out')); E_(self.stamp('out'))
            E_(f's_memrealtime s[0:1]\ns_waitcnt lgkmcnt(0)\nv_writelane_b32 v{vONE}, s0, 62')
            E_(f's_lshl_b32 s3, s2, 2\ns_add_u32 s3, s3, s{sW}\ns_lshl_b32 s3, s3, 8\ns_add_u32 s3, s3, {WS_TS}\nv_lshrrev_b32 v25, 2, v{vL16}')
            E_(f'buffer_store_dword v{vONE}, v25, {srd(WS)}, s3 offen')
            if c.dbg is not None:
                names = ['karg', 'xiss', 'x7', 'T0', 'p1', 'p3', 'p5', 'p8', 'p12', 'p15', 'p18', 'p21', 's89', 'yLp', 'out']
                E_(f'v_readlane_b32 s40, v{vONE}, 61\nv_readlane_b32 s41, v{vONE}, 60\nv_readlane_b32 s42, v{vONE}, 62\ns_sub_u32 s42, s42, s41\nv_mov_b32 v26, 0')
                for wd, nm in enumerate(names):
                    E_(f'v_readlane_b32 s43, v{vONE}, {self.notes.index(nm)+1}\ns_sub_u32 s43, s43, s40\nv_writelane_b32 v26, s43, {wd}')
                E_(f'v_writelane_b32 v26, s42, 15\nv_lshlrev_b32 v25, 2, v0\ns_cmp_eq_u32 s2, {c.dbg}\ns_cselect_b32 s44, 0xffff, 0\ns_cmp_eq_u32 s{sW}, 0\ns_cselect_b32 s44, s44, 0\ns_mov_b32 exec_lo, s44\ns_mov_b32 exec_hi, 0')
                E_(f'buffer_store_dword v26, v25, {srd(DBG)}, 0 offen')
        stats = {}
        prog = resolve_waits(self.p, stats, lenient=bool(c.skip))
        prog = pad_hazards(prog, stats)
        self.stats = stats
        self.prog = prog
        return prog

    def text(self):
        hdr = open('cdna_kernels/' + NAME + '.s.ref').read().split('\n')
        top = [x for x in hdr if x.startswith(';') and not x.startswith('; @launch')]
        out = top + ['; @launch grid=(256,1,1) block=(256,1,1) lds=163840',
                     '.amdgcn_target "amdgcn-amd-amdhsa--gfx950"', '.text', f'.globl {NAME}_kernel', '.p2align 8',
                     f'.type {NAME}_kernel,@function', f'{NAME}_kernel:']
        out += [i.text for i in self.prog]
        out += ['L_end:', 's_endpgm'] + self.slow + ['CODE_END:', 's_endpgm']
        out += ['.section .rodata,"a"', '.p2align 6', f'.amdhsa_kernel {NAME}_kernel', '  .amdhsa_next_free_vgpr 512', '  .amdhsa_next_free_sgpr 102',
                '  .amdhsa_accum_offset 256', '  .amdhsa_group_segment_fixed_size 0', '  .amdhsa_kernarg_size 80', '  .amdhsa_user_sgpr_count 2',
                '  .amdhsa_user_sgpr_kernarg_segment_ptr 1', '  .amdhsa_system_sgpr_workgroup_id_x 1', '.end_amdhsa_kernel']
        return '\n'.join(out) + '\n'


class TimedStream:
    def __init__(self, name, items):
        self.name = name; self.items = items; self.idx = 0; self.last_step = -10**9

    def done(self):
        while self.idx < len(self.items) and isinstance(self.items[self.idx][0], str): self.idx += 1
        return self.idx >= len(self.items)

    def next_deadline(self):
        for it in self.items[self.idx:]:
            if it[0] == 'deadline': return it[1]
        return None


def flush(s):
    r = [x for it in s.items[s.idx:] if not isinstance(it[0], str) for x in it[1]]
    s.idx = len(s.items)
    return r


def schedule_timed(steps, streams, log=None, stamps=None):
    out = []
    byname = {s.name: s for s in streams}
    CAP = {'mfma32': 8, 'mfma16': 4, 'mfma4': 2}

    def passed(ref):
        s = byname[ref[0]]
        if isinstance(ref[1], int): return s.idx >= ref[1]
        return not any((not isinstance(it[0], str)) and any(x.tok == ref[1] for x in it[1]) for it in s.items[s.idx:])

    for g, st in enumerate(steps):
        if stamps and g in stamps: out.extend(stamps[g]())
        out.extend(st.pre)
        used = sum(i.cost for i in st.pre)
        cap = st.cap if st.cap is not None else CAP[st.mf.kind]
        out.append(st.mf); used += st.mf.cost
        forced = 0
        for s in streams:
            while True:
                dl = s.next_deadline()
                if dl is None or dl > g: break
                while s.items[s.idx][0] != 'deadline':
                    it = s.items[s.idx]
                    if it[0] == 'after': assert passed(it[1]), (s.name, it, g)
                    else:
                        assert it[0] <= g, (s.name, it, g)
                        out.extend(it[1]); forced += sum(x.cost for x in it[1])
                    s.idx += 1
                s.idx += 1; s.last_step = g
        used += forced
        out.extend(st.post); used += sum(i.cost for i in st.post)
        nmf = 0
        while True:
            pick = None
            for allow_mf in (False, True):
                for s in streams:
                    while s.idx < len(s.items) and (s.items[s.idx][0] == 'deadline' or (s.items[s.idx][0] == 'after' and passed(s.items[s.idx][1]))): s.idx += 1
                    if s.idx >= len(s.items): continue
                    t0, grp = s.items[s.idx]
                    if t0 == 'after' or g < t0: continue
                    if grp[0].gap and g < s.last_step + grp[0].gap: continue
                    cst = sum(x.cost for x in grp)
                    extra = sum(CAP[x.kind] for x in grp if x.kind in MF_KINDS)
                    if extra:
                        if not allow_mf or nmf >= 2 or st.end: continue
                    else:
                        late = (s.name in ('dma', 'ypk') and g >= t0 + 2 and used <= cap) or (cst > 3 and used < cap)
                        if used + cst > cap and not late: continue
                    pick = (s, grp, cst, extra); break
                if pick: break
            if not pick: break
            s, grp, cst, extra = pick
            if extra:
                nmf += 1
                cap = max(cap, used) + extra; used = cap - extra
            out.extend(grp); used += cst
            s.idx += 1; s.last_step = g
        if st.end:
            out.extend(st.end); cap = max(cap, used) + sum(CAP[x.kind] for x in st.end); used = cap
        if log is not None: log.append((g, used, cap, forced, {s.name: s.idx for s in streams}))
    return out


if __name__ == '__main__':
    kw = {}
    for a in sys.argv[2:]:
        k, v = a.split('='); kw[k] = eval(v)
    g = Gen(Cfg(**kw)); g.build()
    open(sys.argv[1], 'w').write(g.text())
    print('instrs', len(g.prog), 'est clk', estimate(g.prog), {k: v for k, v in g.stats.items() if k != 'nop_sites'})
    print('period slots', [sum(max(x[1], x[2]) for x in g.log[36*p:36*p+36]) * 4 for p in range(22)])
    print('forced', [(x[0], x[3]) for x in g.log if x[3]])
    print('slots', g.slot, g.slotS, g.loadp)
    for nm in g.log[0][4]:
        print(nm, [g.log[36*p+35][4][nm] for p in range(22)])
```

```python
import sys, os
sys.path.insert(0, os.path.dirname(os.path.abspath(__file__)))
from asmlib import *

NAME = 'recurrent_scan__linear_kernel_hedgehog__dense_activation_relu__prompt'

SLOT = 36864
E = 147456
E2 = E + 5120
RSA = E + 12288
DUMMY = E + 0x3800
OOB = 0x80000000
FL_H, FL_KV, FL_O, FL_RP, FL_WO, FL_Y = 0x0, 0x8000, 0xA000, 0xC000, 0xE000, 0x10000
WS_KV, WS_RP, WS_WO, WS_OM, WS_OX, WS_Y8, WS_Y, WS_H, WS_TS = 0x20000, 0x100000, 0x400000, 0x500000, 0x700000, 0x800000, 0xC00000, 0x1400000, 0x3000000
WS_SIZE = 268435456
RPI = {'Ta': 0, 'Tb': 1, 'Tc': 2, 'Td': 3, 'S': 4}
X, QKV, PHI, WO, W1, W2, OUT, DBG, WS = 4, 8, 12, 16, 20, 24, 28, 32, 36
srd = lambda n: f's[{n}:{n+3}]'
SIZES = {X: 2359296, QKV: 1990656, PHI: 20736, WO: 663552, W1: 5308416, W2: 5308416, OUT: 2359296, DBG: 256, WS: WS_SIZE}
KOFF = {X: 0, QKV: 8, PHI: 16, WO: 24, W1: 40, W2: 48, OUT: 56, DBG: 64, WS: 72}
soP = 40
soPb = [88, 89, 90, 91, 92, 93, 96, 97, 101]
PIMM = [0, 1, 2, 3, 0, 1, 2, 3, 0] + [0, 1, 2, 0, 1, 2, 3, 0, 1]
sN = 94
sD = 49
sMi = 54
sMiM = 58
sA = 60
sAM = 64
sPe = 66
sW, sR, sJ, sQ, sJJ, sWL = 67, 68, 69, 70, 71, 72
sHown, sFH, sFKV, sFO, sFY, sRP, sPF = 73, 74, 75, 76, 77, 78, 79
sPe2, sHb = 80, 81
sE = 82
sXO, sYc, sOMc = 85, 86, 87
sT0, sT1, sT2, sT3 = 90, 91, 92, 93
sHH = 98
sSPIN = 100
vL16 = 1
vK = 2
vW1, vPA, vS, vCur, vF0, vONE, vRS, vC, vSD, vCur2 = 11, 12, 13, 14, 15, 16, 17, 18, 19, 20
vPF, vPo, vPa, vPU = 21, 22, 24, 25
vAt = 26
ACC = (32, 48)
ACC0 = (80, 96)
vH = 64
vX = 112
GA = 136
RING = 144
aPHI = 184
aKV = 208
aSEL = 176
aN = 180
aRP, aWP, aWO, aPK = 208, 228, 232, 236
LOG2E = 0x3fb8aa3b


class Cfg:
    order = ['P0a', 'P0b', 'P1a', 'P1b', 'Ta', 'Tb', 'Tc', 'Td', 'S', 'P2a', 'P2b', 'P3a', 'P3b']
    D = 5
    we = 2
    ps = 8
    pk = 14
    woA = 10
    hl = (12, 13, 14, 16, 17, 18)
    po = 18
    xlag = 3
    npre = 4
    xa = 5
    Ds = 8
    ts = False
    xrot = 1
    c8p = 2
    rps = 12
    rpf = 24
    pf = {'P2': 3, 'P3': 5, 'B8': 7, 'U0': 8, 'U1': 10, 'U2': 11, 'U3': 12}
    cap = 8
    hfd = 40
    kvgap = 60
    krgap = 16
    msum = 0
    wim = 44
    pf1 = 1
    rpw = 2
    nfill = 200
    tsx = ''
    tsp = False
    spin = 20000
    pref = True
    skip = ''
    dbg = None
    xe = 24
    xl = 52
    pdist = 22

    def __init__(self, **kw):
        for k, v in kw.items():
            assert hasattr(self, k), k
            setattr(self, k, v)


def L(text, **kw):
    r = []
    for line in text.split('\n'):
        line = line.strip()
        if line:
            r.append(I(line, **kw)); kw.pop('gap', None)
    return r


def glue(lst):
    for x in lst[1:]: x.glue = True
    return lst


F_T = lambda d: f'v_bfe_u32 v{d}, v{vL16}, 4, 5'
F_HH = lambda d: f'v_lshrrev_b32 v{d}, 9, v{vL16}'
F_N = lambda d: f'v_bfe_u32 v{d}, v{vL16}, 4, 4'
F_G = lambda d: f'v_lshrrev_b32 v{d}, 8, v{vL16}'
F_R4 = lambda d: f'v_bfe_u32 v{d}, v{vL16}, 6, 2'
F_C4 = lambda d: f'v_bfe_u32 v{d}, v{vL16}, 4, 2'
F_TB = lambda d: f'v_bfe_u32 v{d}, v{vL16}, 8, 1'


class Gen:
    def __init__(self, cfg):
        self.c = cfg
        self.p = []
        self.slow = []
        self.nts = 0
        self.notes = []

    def E(self, x, **kw):
        if isinstance(x, str): self.p.extend(L(x, **kw))
        elif isinstance(x, list): self.p.extend(x)
        else: self.p.append(x)

    def stamp(self, name=''):
        if not self.c.ts: return []
        r = glue(L(f's_memtime s[0:1]\ns_waitcnt lgkmcnt(0)\nv_writelane_b32 v{vONE}, s0, 0'))
        r[2].comment = name
        for x in r: x.cost = 0
        return r

    def number_stamps(self):
        for x in self.p:
            if getattr(x, 'comment', None) is not None:
                self.nts += 1; self.notes.append(x.comment); assert self.nts < 59
                x.text = f'v_writelane_b32 v{vONE}, s0, {self.nts}'

    def xs(self, name, grp):
        if not self.c.tsx or name not in self.c.tsx.split(): return grp
        g = grp[0].gap
        r = glue(self.stamp('<' + name) + grp + self.stamp(name + '>')); r[0].gap = g; r[0].glue = False
        return r

    def poll(self, name, srdn, vaddr, soff, reg, imm=0, tag=False):
        assert reg % 2 == 0
        ld = f'buffer_load_dwordx2 v[{reg}:{reg+1}], v{vaddr}, {srd(srdn)}, {soff} offen' + (f' offset:{imm}' if imm else '') + ' sc1'
        cmp = f'v_min_u32 v{vaddr}, v{reg}, v{reg+1}\nv_cmp_eq_u32 vcc, 0, v{vaddr}' if tag else f'v_cmp_ne_u64 vcc, s[{sN}:{sN+1}], v[{reg}:{reg+1}]'
        fix = f'v_mov_b32 v{vaddr}, 0\n' if tag else ''
        chk = [W(name)] + L(f'{cmp}\ns_cbranch_vccnz SLOW_{name}\nBACK_{name}:')
        self.slow.append(f'''SLOW_{name}:
s_mov_b32 s{sSPIN}, 0
LOOP_{name}:
{fix}{ld}
s_add_u32 s{sSPIN}, s{sSPIN}, 1
s_waitcnt vmcnt(0)
{cmp}
s_nop 1
s_cbranch_vccz BACK_{name}
s_cmp_lt_u32 s{sSPIN}, {self.c.spin}
s_cbranch_scc1 LOOP_{name}
s_branch BACK_{name}''')
        return I(ld, tok=name), self.xs(name, glue(chk))

    @staticmethod
    def flag(s_, o=0, v=vF0):
        return I(f'buffer_store_dwordx2 a[{aN}:{aN+1}], v{v}, {srd(WS)}, s{s_} offen' + (f' offset:{o}' if o else '') + ' sc1', tok='flag')

    def plan(self):
        c = self.c
        self.kind = list(c.order) + ['B8'] + [f'U{u}' for u in range(1, 9)]
        slot = {i: i for i in range(4)}
        loadp = {0: -1, 1: -1, 2: 0, 3: 1}
        free = []; nxt = 4; stag = None
        lead3 = c.woA >= 19
        for p in range(1, 22):
            free.append(slot[p - 1])
            if p == c.ps: stag = free.pop(0)
            if p == c.ps + 2: free.append(stag)
            lead = 3 if (lead3 and p >= c.ps + 2) else 2
            while nxt <= min(p + lead, 21) and (free or nxt <= p + 2):
                slot[nxt] = free.pop(0); loadp[nxt] = p; nxt += 1
            if p == c.woA: slot['woA'] = free.pop(0); loadp['woA'] = p
            if p == 20: slot['woB'] = free.pop(0); loadp['woB'] = p
            if p == 21: slot['Y'] = free.pop(0)
        assert nxt == 22 and 'woA' in slot
        self.slot = {k: v * SLOT for k, v in slot.items()}
        self.slotS = stag * SLOT
        self.loadp = loadp
        self.tau = {}
        self.hoff = []
        self.acc = {}
        self.chain = []
        fin = {ACC[0]: -2, ACC[1]: -1}
        for i, k in enumerate(self.kind[:14]):
            if k[0] == 'P':
                pr, hf = int(k[1]), k[2] == 'b'
                if pr == 0:
                    assert i == (1 if hf else 0)
                    for mt in range(2): self.acc[(i, mt)] = ACC0[mt]
                    if hf:
                        for mt in range(2): self.chain.append((mt, 72 - 2 + mt, ACC0[mt], (i, mt)))
                elif not hf:
                    assert self.kind[i + 1] == k[:2] + 'b'
                    a0 = min(fin, key=fin.get); a1 = max(fin, key=fin.get)
                    for mt, a in enumerate((a0, a1)):
                        self.acc[(i, mt)] = a; self.acc[(i + 1, mt)] = a
                        fin[a] = 36 * (i + 1) + 18 * mt + 17
                        self.chain.append((36 * i + 18 * mt, fin[a], a, (i + 1, mt)))
                if hf:
                    for mt in range(2):
                        self.tau[(i, mt)] = len(self.hoff); self.hoff.append((64 * pr + 32 * mt, 32))
            elif k == 'B8':
                a0 = min(fin, key=fin.get); a1 = max(fin, key=fin.get)
                for mt, a in enumerate((a0, a1)):
                    self.acc[(i, mt)] = a; self.chain.append((36 * i + 18 * mt, 36 * i + 18 * mt + 17, a, (i, mt)))
            else:
                a = min(fin, key=fin.get); self.acc[(i, 0)] = a; fin[a] = 36 * i + 35
                self.chain.append((36 * i, fin[a], a, (i, 0)))
                if k == 'S':
                    self.tau[(i, 0)] = len(self.hoff); self.hoff.append((256, -256))
        assert len(self.hoff) == 9
        self.g2 = {14: (0, 0, None), 15: (0, 1, None)}
        for n in range(6): self.g2[16 + n] = (1 + n % 3, n // 3, n % 4)

    def dma_item(self, i):
        out = []; tok = f'T{i}'
        kind = self.kind[i] if isinstance(i, int) else i
        sl = self.slot[i]
        m0 = lambda k: L(f's_add_u32 m0, s{sWL}, {sl + k*1024}')
        ld = lambda v, R, so, k, sc='': [I(f'buffer_load_dwordx4 v{v}, {srd(R)}, {so} offen offset:{(k%4)*1024}{sc} lds', tok=tok)]
        one = lambda t: out.extend([x] for x in L(t))
        if kind[0] == 'P':
            cur = int(kind[1]) * 128
            if cur != self.w1pos: one(f'v_add_u32 v{vW1}, {(cur - self.w1pos) & 0xffffffff}, v{vW1}')
            self.w1pos = cur
            for k in range(9):
                im = PIMM[k + (9 if kind[2] == 'b' else 0)]
                if im == 0: out.append(m0(k))
                out.append(ld(vW1, W1, f's{soPb[k] if kind[2] == "b" else soP+k}', im))
        elif kind in RPI or kind in ('woA', 'woB'):
            if kind in RPI: b = lambda k: f's_add_u32 s{sD}, s{sRP}, {RPI[kind]*SLOT + k*1024}'
            else:
                one(f's_lshl_b32 s{sD+1}, s{sJJ}, 1\ns_and_b32 s{sD}, s{sQ}, 1\ns_add_u32 s{sD+1}, s{sD+1}, s{sD}\ns_mul_i32 s{sD+1}, s{sD+1}, 82944\ns_add_u32 s{sD+1}, s{sD+1}, s{sWL}')
                b = lambda k: f's_add_u32 s{sD}, s{sD+1}, {WS_WO + (SLOT if kind == "woB" else 0) + k*1024}'
            for k in range(9):
                if k % 4 == 0: one(b(k)); out.append(m0(k))
                out.append(ld(vL16, WS, f's{sD}', k, ' sc1'))
        elif kind == 'B8':
            one(f's_mul_i32 s{sD+1}, s{sJ}, 36\ns_add_u32 s{sD+1}, s{sD+1}, s{sW}\ns_mul_i32 s{sD+1}, s{sD+1}, 9216\ns_add_u32 s{sD+1}, s{sD+1}, 1024')
            one(f's_and_b32 s{sD}, s{sJJ}, 1\ns_mul_i32 s{sD+2}, s{sD}, {32*1152}\ns_add_u32 s{sD+2}, s{sD+2}, s{sD+1}\ns_mul_i32 s{sD}, s{sD}, {256*1152}\ns_sub_u32 s{sD+1}, s{sD+1}, s{sD}')
            one(f'v_lshrrev_b32 v{vW1}, 7, v{vL16}\nv_mul_u32_u24 v{vW1}, 1152, v{vW1}\nv_bfe_u32 v{vCur2}, v{vL16}, 8, 1\nv_lshl_add_u32 v{vW1}, v{vCur2}, 6, v{vW1}\nv_and_b32 v{vCur2}, 0x70, v{vL16}\nv_xor_b32 v{vW1}, v{vW1}, v{vCur2}')
            for k in range(9):
                a, b = self.hoff[k]
                one(f's_add_u32 s{sD}, s{sD+2 if b == 32 else sD+1}, {(a*1152 - (k%4)*1024) & 0xffffffff}')
                if k % 4 == 0: out.append(m0(k))
                out.append(ld(vW1, W2, f's{sD}', k))
        else:
            pe, hf, _ = self.g2[i]
            one(f's_add_u32 s{sD}, s{sJJ}, {pe}\ns_and_b32 s{sD}, s{sD}, 3\ns_and_b32 s{sD+3}, s{sD}, 1\ns_lshl2_add_u32 s{sD}, s{sQ}, s{sD}\ns_mul_i32 s{sD}, s{sD}, 72\ns_add_u32 s{sD}, s{sD}, s{sW}')
            one(f's_mul_i32 s{sD}, s{sD}, 4608\ns_lshl_b32 s{sD+1}, s{sJJ}, 8\ns_add_u32 s{sD}, s{sD}, s{sD+1}')
            grp = {}
            for k in range(9):
                sg = 9 * hf + k; a, b = self.hoff[sg >> 1]
                grp.setdefault((a + 16 * (sg & 1) - 16 * k, b), []).append(k)
            assert len(grp) <= 3
            reg = {}
            for n, (a, b) in enumerate(grp):
                r = sD + 1 + n if n < 2 else sD + 4
                one(f's_mul_i32 s{r}, s{sD+3}, {(b*1152) & 0xffffffff}\ns_add_u32 s{r}, s{r}, s{sD}')
                if a: one(f's_add_u32 s{r}, s{r}, {(a*1152) & 0xffffffff}')
                for k in grp[(a, b)]: reg[k] = r
            for k in range(9):
                if k % 4 == 0: out.append(m0(k))
                out.append(ld(vK + k, W2, f's{reg[k]}', k))
        return out

    def conv_mf(self, s):
        D = 32 + 8 * (s & 1); xr = vX + 4 * s
        return [I(f'v_mfma_f32_4x4x4_16b_bf16 v[{D+4*k}:{D+4*k+3}], v[60:61], v[{xr+2*k}:{xr+2*k+1}], v[48:51]') for k in range(2)]

    def conv_cvt(self, s):
        D = 32 + 8 * (s & 1); xr = vX + 4 * s
        return [I(f'v_cvt_pk_bf16_f32 v{xr+k}, v{D+2*k}, v{D+2*k+1}') for k in range(4)]

    @staticmethod
    def ident(d, t1):
        return (f'v_and_b32 v{t1}, 16, v{vL16}\nv_mov_b32 v{d}, 0x3f80\nv_lshlrev_b32 v{d}, v{t1}, v{d}\nv_bfe_i32 v{t1}, v{vL16}, 5, 1\n'
                f'v_and_b32 v{d+1}, v{d}, v{t1}\nv_xor_b32 v{d}, v{d}, v{d+1}')

    def prologue(self):
        c = self.c; E_ = self.E
        if c.ts: E_('s_memrealtime s[90:91]\ns_memtime s[92:93]')
        E_('s_cmp_ge_u32 s2, 256\ns_cbranch_scc1 L_end')
        for R in (X, W1, DBG, QKV, WS, PHI, W2, WO, OUT):
            E_(f's_load_dwordx2 s[{R}:{R+1}], s[0:1], {KOFF[R]}')
        E_(f's_memrealtime s[{sN}:{sN+1}]')
        if c.pref:
            E_('s_getpc_b64 s[40:41]\nPCREF:\ns_mov_b32 s42, CODE_END-PCREF\ns_mov_b32 s43, 0x20000')
            E_('s_lshr_b32 s3, s2, 3\nv_lshlrev_b32 v25, 5, v0\nv_add_u32 v25, s3, v25\nv_lshlrev_b32 v25, 7, v25')
            E_('buffer_load_dword v63, v25, s[40:43], 0 offen', tok='pref')
        l = 25
        E_(f'v_lshrrev_b32 v26, 6, v0\nv_and_b32 v{l}, 63, v0\nv_lshlrev_b32 v{vL16}, 4, v{l}')
        E_(f'v_readfirstlane_b32 s{sW}, v26')
        E_(f's_and_b32 s3, s2, 1\ns_lshl_b32 s3, s3, 3\ns_lshr_b32 s64, s2, 5\ns_add_u32 s{sR}, s64, s3')
        E_(f's_bfe_u32 s{sQ}, s2, 0x20001\ns_bfe_u32 s{sJJ}, s2, 0x20003\ns_lshl2_add_u32 s{sJ}, s{sQ}, s{sJJ}')
        E_(f'v_lshrrev_b32 v26, 3, v{l}\nv_mul_u32_u24 v27, 1152, v26\nv_and_b32 v28, 0x70, v{vL16}\nv_and_b32 v29, 0x30, v{l}\nv_xor_b32 v28, v28, v29')
        E_('v_add_u32 v2, v27, v28\nv_xor_b32 v3, 64, v2\nv_add_u32 v3, 8192, v3\nv_add_u32 v4, 16384, v2\nv_add_u32 v5, 16384, v3')
        E_(f's_mul_i32 s{sWL}, s{sW}, 9216\ns_lshl2_add_u32 s3, s{sR}, s{sW}')
        E_(f's_mul_i32 s{sXO}, s3, 36864')
        E_(f's_lshl_b32 s58, s{sQ}, 8' if c.xrot else 's_mov_b32 s58, 0')
        for R in SIZES:
            E_(f's_mov_b32 s{R+2}, {SIZES[R]}\ns_mov_b32 s{R+3}, 0x20000')
        E_(f'v_mov_b32 v31, {OOB}\nv_cmp_gt_u32 vcc, 18, v{l}\nv_mul_u32_u24 v{vPF}, 9216, v{l}\ns_lshl2_add_u32 s64, s64, s{sW}\ns_mul_i32 s{sPF}, s64, {18*9216}\nv_cndmask_b32 v{vPF}, v31, v{vPF}, vcc')
        E_(f's_mul_i32 s63, s{sJ}, 576\ns_and_b32 s65, s{sJJ}, 1\ns_lshl_b32 s57, s65, 6\ns_add_u32 s57, s57, s63\ns_add_u32 s{sPF}, s{sPF}, s57')
        E_(f'v_cmp_gt_u32 vcc, 2, v0\nv_lshlrev_b32 v23, 7, v0\ns_cmp_eq_u32 s2, 0\ns_cselect_b32 s59, 0, {OOB}\nv_cndmask_b32 v23, v31, v23, vcc\nv_or_b32 v23, s59, v23')
        E_('s_waitcnt lgkmcnt(0)')
        if c.ts: E_(f'v_mov_b32 v{vONE}, 1\nv_writelane_b32 v{vONE}, s90, 60\nv_writelane_b32 v{vONE}, s92, 61')
        E_(self.stamp('karg'))
        E_(f'buffer_load_dword a182, v{vPF}, {srd(W1)}, s{sPF} offen')
        tagst = L(f's_or_b32 s{sN}, s{sN}, 1\ns_or_b32 s{sN+1}, s{sN+1}, 0x80000000\nv_mov_b32 v28, s{sN}\nv_mov_b32 v29, s{sN+1}')
        tagst.append(I(f'buffer_store_dwordx2 v[28:29], v23, {srd(DBG)}, 0 offen sc1', tok='tagst'))
        save = self.p; self.p = []
        E_(tagst)
        t, hh, a, b, d = 26, 27, 74, 75, 22
        E_(f'v_lshrrev_b32 v26, 2, v{l}\nv_and_b32 v27, 0x30, v{vL16}\nv_mul_u32_u24 v{a}, 3456, v26\nv_add_u32 v64, v{a}, v27\nv_mul_u32_u24 v{b}, 9216, v26\nv_add_u32 v66, v{b}, v27')
        E_(f'v_mov_b32 v65, 1216\nv_mov_b32 v{b}, 2360\nv_cmp_eq_u32 vcc, 16, v27\ns_mul_i32 s62, s3, 9\nv_add_u32 v67, s62, v26\nv_cndmask_b32 v65, v65, v{b}, vcc\nv_cmp_le_u32 vcc, 32, v27')
        E_(f's_mul_i32 s60, s62, 3456\ns_mul_i32 s61, s{sJ}, 72\nv_cndmask_b32 v65, v65, 64, vcc\nv_add_u32 v65, v65, v{a}\ns_add_u32 s60, s60, s61')
        if c.xrot:
            E_(f's_lshl_b32 s56, s{sQ}, 7\nv_subrev_u32 v{b}, s56, v67\nv_cmp_gt_u32 vcc, 0x200, v67\nv_and_b32 v{b}, 0x1ff, v{b}\ns_nop 0\nv_cndmask_b32 v67, v67, v{b}, vcc')
        E_(f'v_cmp_gt_u32 vcc, 36, v{l}\nv_lshl_add_u32 v67, v67, 6, v27')
        E_(f's_mul_i32 s61, s62, 9216\ns_add_u32 s61, s61, s63\ns_lshl_b32 s65, s65, 9\ns_sub_u32 s61, s61, s65\ns_add_u32 s61, s61, 512')
        for k in range(4): E_(f'v_cndmask_b32 v{64+k}, v31, v{64+k}, vcc')
        E_(f's_mul_i32 s62, s{sJ}, {5*SLOT}\ns_add_u32 s62, s62, {WS_RP}\ns_add_u32 s{sRP}, s62, s{sWL}')
        E_(f's_lshl_b32 s64, s{sJ}, 6\ns_add_u32 s64, s64, s3\ns_lshl3_add_u32 s63, s64, {FL_RP}\ns_lshl3_add_u32 s{sFKV}, s64, {FL_KV}')
        ne2 = len(self.p)
        E_(F_T(t) + '\n' + F_HH(hh))
        E_(f'v_bfe_u32 v{a}, v{t}, 1, 3\nv_xor_b32 v{a}, v{a}, v{hh}\nv_lshlrev_b32 v{a}, 4, v{a}\nv_lshl_add_u32 v{a}, v{t}, 7, v{a}\nv_add_u32 v6, s{sWL}, v{a}')
        E_('v_xor_b32 v7, 32, v6\nv_xor_b32 v8, 64, v6\nv_xor_b32 v9, 96, v6')
        E_(f'v_lshrrev_b32 v{a}, 3, v{t}\nv_mul_u32_u24 v{a}, 35840, v{a}')
        for k in range(4): E_(f'v_add_u32 v{84+k}, v{a}, v{6+k}')
        for k in range(0 if not c.msum else 4, 8): E_(f'v_mov_b32 v{52+k}, 0')
        if c.msum:
            E_(f'v_lshrrev_b32 v88, 2, v{l}\nv_xor_b32 v88, v88, v{l}\nv_bfe_u32 v88, v88, 2, 1\nv_add_u32 v88, -1, v88\nv_and_b32 v88, 0x3f803f80, v88\nv_mov_b32 v89, v88\nv_mov_b32 v90, v88\nv_mov_b32 v91, v88')
        else: E_('v_mov_b32 v88, 0x3f803f80')
        E_(f's_mov_b32 s{sHH}, 0\ns_mov_b32 s{sHH+1}, -1')
        E_(f'v_cmp_eq_u32 vcc, 0, v{l}')
        E_(f'v_lshrrev_b32 v{b}, 3, v{l}\nv_mul_u32_u24 v{b}, 9216, v{b}\nv_cndmask_b32 v{vF0}, v31, v{l}, vcc')
        E_(F_TB(a) + f'\nv_lshl_add_u32 v{b}, v{a}, 6, v{b}\nv_and_b32 v{d}, 0x70, v{vL16}\nv_xor_b32 v{vW1}, v{b}, v{d}')
        E_(f's_mul_i32 s56, s{sW}, {8*9216}\ns_add_u32 s57, s57, s56')
        for g in range(5):
            if g < 4:
                if c.xrot: E_(f's_add_u32 s56, s{sQ}, {g}\ns_and_b32 s56, s56, 3\ns_mul_i32 s56, s56, {128*9216}\ns_add_u32 s56, s56, s57')
                else: E_(f's_add_u32 s56, s57, {g*128*9216}')
            for pb in range(4 * g, min(4 * g + 4, 18)):
                r_ = soP + pb if pb < 9 else soPb[pb - 9]
                E_(f's_add_u32 s{r_}, s{56 if g < 4 else 57}, {(pb % 4 if g < 4 else pb)*32*9216 - PIMM[pb]*1024}')
        E_(F_C4(b) + f'\nv_lshlrev_b32 v{b}, 3, v{b}\nv_lshl_add_u32 v{b}, v{a}, 5, v{b}\n' + F_R4(d))
        E_(f'v_lshl_add_u32 v{a}, v{hh}, 3, v{d}\nv_lshl_add_u32 v{vS}, v{a}, 6, v{b}')
        E_(f'v_lshl_add_u32 v{b}, v{d}, 7, v{b}\nv_lshrrev_b32 v{d}, 1, v{d}\nv_lshl_add_u32 v{b}, v{d}, 6, v{b}\nv_mul_u32_u24 v{a}, 9216, v{hh}\nv_add_u32 v{vPA}, v{a}, v{b}')
        E_(self.ident(60, a))
        E_(f'v_lshlrev_b32 v73, 4, v0\nv_add_u32 v73, {E}, v73\nv_mov_b32 v76, 0\nv_mov_b32 v77, 0\nv_mov_b32 v78, 0\nv_mov_b32 v79, 0')
        E_([I(f'ds_write_b128 v73, v[76:79] offset:{4096*k}', tok='zf0') for k in range(3)])
        E_(f's_lshl2_add_u32 s64, s{sR}, s{sQ}\ns_lshl2_add_u32 s64, s64, s{sW}\ns_lshl4_add_u32 s64, s64, s{sJJ}\ns_lshl_b32 s{sFH}, s64, 3')
        E_(f's_lshl4_add_u32 s64, s3, s{sJ}\ns_lshl3_add_u32 s{sFO}, s64, {FL_O}')
        E_(f's_lshl2_add_u32 s64, s{sR}, s{sJJ}\ns_lshl2_add_u32 s64, s64, s{sW}\ns_lshl4_add_u32 s64, s64, s{sQ}\ns_lshl3_add_u32 s{sFY}, s64, {FL_Y}')
        E_(f's_lshl4_add_u32 s64, s{sR}, s{sJ}\ns_lshl2_add_u32 s64, s64, s{sW}\ns_mul_i32 s64, s64, 18432\ns_add_u32 s{sHown}, s64, {WS_H}')
        T = 92
        h_, d_, a5, a, b, o1, o2 = T, T + 1, T + 2, T + 3, T + 4, 69, 70
        m1, m2 = 's[64:65]', 56
        E_(f'v_mul_u32_u24 v{h_}, 729, v0\nv_lshrrev_b32 v{h_}, 16, v{h_}\nv_mul_u32_u24 v{a}, 90, v{h_}\nv_sub_u32 v{a}, v0, v{a}')
        E_(f'v_mul_u32_u24 v{d_}, 205, v{a}\nv_lshrrev_b32 v{d_}, 10, v{d_}\nv_mul_u32_u24 v{b}, 5, v{d_}\nv_sub_u32 v{a5}, v{a}, v{b}')
        E_(f'v_mul_u32_u24 v{a}, 648, v{h_}\nv_mul_u32_u24 v{b}, 36, v{d_}\ns_movk_i32 s56, 180\nv_add_u32 v{a}, v{a}, v{b}\nv_cmp_gt_u32 {m1}, s56, v0\nv_lshl_add_u32 v{a}, v{a5}, 3, v{a}')
        E_(f's_mul_i32 s56, s{sJ}, 1296\nv_add_u32 v{a}, s56, v{a}\nv_cndmask_b32 v68, v31, v{a}, {m1}')
        E_(f'v_mul_u32_u24 v{b}, 18, v{h_}\nv_add_u32 v{d_}, v{b}, v{d_}')
        E_(f'v_and_b32 v{a}, 0x33, v{d_}\nv_and_b32 v{b}, 4, v{d_}\nv_lshl_or_b32 v{a}, v{b}, 1, v{a}\nv_bfe_u32 v{b}, v{d_}, 3, 1\nv_lshl_or_b32 v{a}, v{b}, 2, v{a}')
        E_(self.image_addr(a, h_, a5, o1, o2, T + 5, T + 6, m2))
        E_(f'v_mov_b32 v{b}, {DUMMY}\nv_cndmask_b32 v{o1}, v{b}, v{o1}, {m1}\nv_cndmask_b32 v{o2}, v{b}, v{o2}, {m1}')
        R_, e_, stp, rho, g_, src, dst, x_ = T, T + 1, T + 2, T + 3, T + 4, 71, 72, T + 5
        m2 = 's[56:57]'
        E_(f'v_mul_u32_u24 v{R_}, 7282, v0\nv_lshrrev_b32 v{R_}, 16, v{R_}\nv_mul_u32_u24 v{x_}, 9, v{R_}\nv_sub_u32 v{e_}, v0, v{x_}\ns_lshr_b32 s{sMi+1}, s2, 3\ns_mul_i32 s{sMi}, s{sMi+1}, 18\nv_add_u32 v{R_}, s{sMi}, v{R_}')
        E_(f'v_lshrrev_b32 v{stp}, 5, v{R_}\nv_and_b32 v{rho}, 31, v{R_}\nv_bfe_u32 v{g_}, v{R_}, 2, 2')
        E_(f'v_and_b32 v{x_}, 1, v{g_}\nv_mul_u32_u24 v{src}, 20, v{x_}\nv_lshrrev_b32 v{x_}, 1, v{g_}\nv_lshl_add_u32 v{src}, v{x_}, 3, v{src}\nv_lshrrev_b32 v{x_}, 4, v{rho}\nv_lshl_add_u32 v{src}, v{x_}, 2, v{src}')
        E_(f'v_mad_u32_u24 v{src}, v{stp}, 36, v{src}')
        E_(f'v_lshl_add_u32 v{g_}, v{x_}, 2, v{g_}\nv_and_b32 v{x_}, 1, v{stp}\nv_lshl_add_u32 v{g_}, v{x_}, 3, v{g_}\nv_cmp_le_u32 {m2}, 16, v{stp}\nv_mad_u32_u24 v{g_}, v{g_}, 36, 16')
        E_(f'v_and_b32 v{x_}, 3, v{rho}\nv_cndmask_b32 v{src}, v{src}, v{g_}, {m2}\nv_add_u32 v{src}, v{src}, v{x_}\nv_mul_u32_u24 v{src}, 1152, v{src}')
        E_(f's_and_b32 s{sMi}, s2, 7\ns_lshl_b32 s3, s{sMi}, 7\nv_lshlrev_b32 v{g_}, 4, v{e_}\nv_add_u32 v{g_}, s3, v{g_}\ns_lshl4_add_u32 s3, s{sMi}, 1024\nv_cmp_eq_u32 {m2}, 8, v{e_}\nv_mov_b32 v{x_}, s3')
        E_(f's_movk_i32 s3, 162\nv_cndmask_b32 v{g_}, v{g_}, v{x_}, {m2}\nv_cmp_gt_u32 {m1}, s3, v0\nv_add_u32 v{src}, v{src}, v{g_}')
        E_(f'v_bfe_u32 v{x_}, v{rho}, 2, 1\nv_cndmask_b32 v{src}, v31, v{src}, {m1}')
        E_(f'v_xor_b32 v{x_}, v{x_}, v{e_}\nv_and_b32 v{x_}, 3, v{x_}\nv_lshlrev_b32 v{x_}, 4, v{x_}\nv_lshl_add_u32 v{x_}, v{rho}, 6, v{x_}\nv_lshrrev_b32 v{e_}, 2, v{e_}\nv_lshl_add_u32 v{x_}, v{e_}, 11, v{x_}')
        E_(f'v_lshlrev_b32 v{rho}, 4, v{rho}\nv_add_u32 v{rho}, 4096, v{rho}\nv_cndmask_b32 v{x_}, v{x_}, v{rho}, {m2}\nv_mul_u32_u24 v{stp}, 4608, v{stp}\nv_add_u32 v{x_}, v{x_}, v{stp}')
        E_(f'v_cndmask_b32 v{dst}, v31, v{x_}, {m1}\ns_lshl_b32 s3, s{sMi}, 5\ns_add_u32 s{sMi+1}, s{sMi+1}, s3\ns_lshl3_add_u32 s{sMi+1}, s{sMi+1}, {FL_WO}\ns_mul_i32 s{sMi}, s{sMi}, 82944\ns_add_u32 s{sMi}, s{sMi}, {WS_WO}')
        E_(f'v_cmp_eq_u32 vcc, 0, v0\nv_and_b32 v30, 0x1f0, v{vL16}\nv_lshrrev_b32 v30, 2, v30\ns_lshl_b32 s3, s{sW}, 7\ns_add_u32 s3, s3, {RSA}\nv_add_u32 v30, s3, v30\nv_cndmask_b32 v73, v31, v0, vcc')
        E_(f'v_mov_b32 v{vPa}, 0\ns_and_b32 s56, s2, 1\ns_lshl_b32 s56, s56, 7')
        early = self.p; self.p = save
        cols = [0, 1, 2, 3, 4, 5, 6, 7]; cols.insert(c.c8p, 8)

        def xdma(cc):
            r = []
            if cc == 8: r += L(f's_add_u32 s59, s{sXO}, 1024')
            else:
                if cc: r += L('s_add_u32 s58, s58, 128\ns_and_b32 s58, s58, 0x3ff')
                r += L(f's_add_u32 s59, s{sXO}, s58')
            for i in range(4):
                if cc == 8: r += L(f's_add_u32 m0, s{sWL}, {i*SLOT + 8192 - i*1024}')
                elif i == 0: r += L(f's_add_u32 m0, s{sWL}, {(cc>>1)*SLOT + (cc&1)*4096}')
                r.append(I(f'buffer_load_dwordx4 v{2+i}, {srd(X)}, s59 offen offset:{i*1024} lds', tok=f'x{cc}'))
            return r

        def xread(cc):
            r = [W(f'x{cc}')]
            if cc == 4: r += [I(f'v_add_u32 v{6+k}, {2*SLOT}, v{6+k}') for k in range(4)]
            for ks in range(4):
                s = 4 * cc + ks
                if cc == 8: bs, o = 84 + ks, 8192
                else: bs, o = 6 + ks, ((cc >> 1) & 1) * SLOT + (cc & 1) * 4096
                r.append(I(f'ds_read_b128 v[{vX+4*s}:{vX+4*s+3}], v{bs} offset:{o}', tok=f'xr{cc}'))
            return r

        def xdots(cc):
            r = []
            for k in range(16):
                xr = vX + 16 * cc + k
                if not c.msum: r.append(I(f'v_dot2c_f32_bf16 v{52+(k&3)}, v88, v{xr}'))
                elif k % 4 == 0: r.append(I(f'v_mfma_f32_16x16x32_bf16 v[52:55], v[88:91], v[{xr}:{xr+3}], ' + ('0' if cc == cols[0] and k == 0 else 'v[52:55]')))
                r.append(I(f'v_dot2c_f32_bf16 v{56+(k&3)}, v{xr}, v{xr}'))
            return r

        def mix(main, fill):
            nv = sum(1 for x in main if x.kind in VM_KINDS)
            k = 0; done = 0
            for x in main:
                E_(x)
                if x.kind in VM_KINDS:
                    k += 1; upto = len(fill) * k // nv
                    E_(fill[done:upto]); done = upto
            E_(fill[done:])

        rpl = [I(f'buffer_load_dwordx4 a[{aRP+4*k}:{aRP+4*k+3}], v{v}, {srd(R)}, s{so} offen offset:{o}', tok='rpl')
               for k, (v, R, so, o) in enumerate(((64, QKV, 60, 1152), (65, QKV, 60, 0), (64, QKV, 60, 2304), (64, QKV, 60, 0), (66, W1, 61, 0)))]
        rpst = []
        for k in range(5):
            if k: rpst += L(f's_add_u32 s62, s62, {SLOT}')
            rpst.append(I(f'buffer_store_dwordx4 a[{aRP+4*k}:{aRP+4*k+3}], v67, {srd(WS)}, s62 offen sc1', tok='rpst'))
        self.rpst = rpst
        pf1 = L(f'buffer_load_dword a183, v{vPF}, {srd(W1)}, s{sPF} offen offset:128')
        lag = c.xlag
        self.w1pos = 0
        pend = []
        nA = min(c.nfill, len(early)); rest = early[nA:]
        early_rp = isinstance(c.rpw, int)
        n2 = max(c.rpw, 1) if early_rp else lag
        if early_rp and c.rpw == 0: E_(early[:ne2]); E_(rpl); early = early[ne2:]; nA -= ne2; ne2 = 0
        for n in range(9 + lag):
            issue = xdma(cols[n]) if n < 9 else []
            if n < lag:
                mix(issue, early[ne2 * n // n2: ne2 * (n + 1) // n2] if n < n2 else [])
                if early_rp and n + 1 == c.rpw: E_(rpl)
                if n == lag - 1: E_(early[ne2:nA])
                if c.tsp: E_(self.stamp(f'i{n}'))
                continue
            cc = cols[n - lag]
            if n == lag: E_(self.stamp('xiss'))
            if n in (lag + 1, lag + 2): E_(rest[:len(rest) // 2] if n == lag + 1 else rest[len(rest) // 2:])
            E_(xread(cc))
            if c.tsp and n > lag: E_(self.stamp(f'r{cc}'))
            if n == lag: E_(self.stamp('x8'))
            if n >= 9 and not hasattr(self, 't0done') and n - lag >= 3:
                issue = [W('xr1', 'xr8')] + [x for g_ in self.dma_item(0) for x in g_] + (rpl if c.rpw == 'T0' else []) + (rpst if early_rp else []) + (pf1 if c.pf1 == 0 else []); self.t0done = True
            elif n >= 9 and hasattr(self, 't0done') and not hasattr(self, 't1done') and n - lag >= 5:
                issue = [W('xr3')] + [x for g_ in self.dma_item(1) for x in g_] + (rpl if c.rpw == 'T1' else []) + (pf1 if c.pf1 == 1 else []); self.t1done = True
            if issue: mix(issue, pend)
            else: E_(pend)
            if c.tsp: E_(self.stamp(f'd{cc}'))
            pend = xdots(cc)
        E_(self.stamp('x7'))
        E_(pend)
        assert hasattr(self, 't1done')
        if not c.msum: E_('v_add_f32 v52, v52, v53\nv_add_f32 v54, v54, v55')
        E_('v_add_f32 v56, v56, v57\nv_add_f32 v58, v58, v59')
        if not c.msum: E_('v_add_f32 v52, v52, v54\nv_mov_b32 v53, v52')
        E_('v_add_f32 v56, v56, v58\nv_mov_b32 v57, v56')
        if not c.msum: E_('v_permlane32_swap_b32 v52, v53\nv_add_f32 v52, v52, v53')
        inv = 0x3ae38e39
        E_(f'v_mul_f32 v52, {inv}, v52\nv_permlane32_swap_b32 v56, v57\nv_cvt_pk_bf16_f32 v53, v52, v52\nv_and_b32 v53, 0xffff0000, v53\nv_xor_b32 v48, 0x80000000, v53')
        E_('v_mov_b32 v49, v48\nv_mov_b32 v50, v48\nv_mov_b32 v51, v48')
        rs = L(f'v_add_f32 v56, v56, v57\nv_mul_f32 v56, {inv}, v56\nv_fma_f32 v56, -v52, v52, v56\nv_max_f32 v56, 0, v56')
        rs += L(f'v_cvt_pk_bf16_f32 v56, v56, v56\nv_and_b32 v56, 0xffff0000, v56\nv_add_f32 v56, 0x3727c5ac, v56\nv_cvt_pk_bf16_f32 v56, v56, v56\nv_and_b32 v56, 0xffff0000, v56\nv_sqrt_f32 v56, v56')
        rs += L(f'v_cvt_pk_bf16_f32 v56, v56, v56\nv_lshrrev_b32 v{vSD}, 16, v56\nv_and_b32 v56, 0xffff0000, v56\nv_rcp_f32 v{vRS}, v56')
        rs += L(f'v_add_u32 v{vCur}, {self.slot[0]}, v{vPA}\nv_xor_b32 v{vCur2}, 64, v{vCur}\nv_mul_f32 v{vC}, {LOG2E}, v{vRS}')
        E_(self.conv_mf(0)); E_(rs[:6])
        for s in range(c.npre):
            E_(self.conv_mf(s + 1))
            if s < 2: E_(rs[6 + 6 * s: 12 + 6 * s])
            E_(self.conv_cvt(s))
        if c.rpw == 'pre': E_(rpl)

    def step_desc(self, i, idx):
        k = self.kind[i]
        if k in ('P0a', 'P0b'): return idx & 1, idx >> 1
        if k[0] == 'P' or k == 'B8': return idx // 18, idx % 18
        if k[0] == 'U': return idx // 9, idx % 9
        return 0, idx

    def reads(self, gs):
        i, idx = divmod(gs, 36)
        k = self.kind[i]; mt, s = self.step_desc(i, idx)
        b = RING + 4 * (gs % (self.c.D + 2))
        r = []; reg = vCur
        if idx == 0 and i > 0:
            src = vPA if k[0] == 'P' else (vPU if k[0] == 'U' else vS)
            r.append(I(f'v_add_u32 v{vCur}, {self.slot[i]}, v{src}'))
            if k == 'P0b': r.append(I(f'v_xor_b32 v{vCur2}, 64, v{vCur}'))
        if k in ('P0a', 'P0b'):
            if mt: reg = vCur2
        elif s == 0 and mt: r.append(I(f'v_xor_b32 v{vCur}, {64*(mt ^ (mt-1))}, v{vCur}'))
        for rd in range(2):
            if k[0] == 'P': o = (s & 1) * 18432 + (s >> 1) * 1024 + rd * 512
            elif k == 'B8': o = (2 * (s & 1) + rd) * 9216 + (s >> 1) * 1024
            elif k[0] == 'U': o = rd * 18432 + s * 1024
            else: o = s * 1024 + rd * 256
            r.append(I(f'ds_read_b64_tr_b16 a[{b+2*rd}:{b+2*rd+1}], v{reg} offset:{o}', tok=f'f{gs}'))
        return r

    def main_steps(self):
        c = self.c; D = c.D
        steps = []
        NS = 22 * 36
        LA = c.npre
        for gs in range(NS):
            i, idx = divmod(gs, 36)
            k = self.kind[i]; mt, s = self.step_desc(i, idx)
            b = RING + 4 * (gs % (D + 2))
            tk = []
            if i < 13:
                xs = s + (18 if k[-1] == 'b' and k[0] == 'P' else 0)
                B = f'v[{vX+4*xs}:{vX+4*xs+3}]' if i < c.xa else f'a[{4*xs}:{4*xs+3}]'
                first = xs == 0; acc = self.acc[(i, mt)]
            elif i == 13:
                B = f'v[{vH+4*s}:{vH+4*s+3}]'; first = s == 0; acc = self.acc[(i, mt)]
            else:
                pe, hf, st = self.g2[i]
                B = f'v[{vH+4*(9*hf+s)}:{vH+4*(9*hf+s)+3}]' if pe == 0 else f'a[{36*st+4*s}:{36*st+4*s+3}]'
                first = (i == 14 and s == 0); acc = GA + 16 * mt
                if pe and mt == 0: tk.append(f'ph{i}_{s}')
            mf = I(f'v_mfma_f32_32x32x16_bf16 v[{acc}:{acc+15}], a[{b}:{b+3}], {B}, ' + ('0' if first else f'v[{acc}:{acc+15}]'))
            if gs % c.we == 0: tk += [f'f{x}' for x in range(gs, min(gs + c.we, NS))]
            pre = [W(*tk)] if tk else []
            post = []; end = []
            ns = gs + D
            if ns < NS: post += self.reads(ns)
            else:
                kk = ns - NS
                for x in range(c.Ds * kk // D, c.Ds * (kk + 1) // D): post += self.s_reads(x)
            if ns % 36 == 35:
                nd = list(self.bar_need.get(i, []))
                if i < 21: nd.append(f'T{i+1}')
                if i == 20: nd.append(f'f{ns}')
                post += self.xs(f'b{i}', [W(*nd)] + L('s_barrier'))
            if i < 2:
                xs = 18 * i + s
                if mt == 0 and xs + LA < 36: post += self.conv_cvt(xs + LA)
                if mt == 1 and xs + LA + 1 < 36: end = self.conv_mf(xs + LA + 1)
            steps.append(Step(mf, pre, post, c.cap, end))
        return steps

    def epi_G(self, tau, acc):
        h = vH + 8 * tau
        r = [I(f'v_cvt_pk_bf16_f32 v{h+k}, v{acc+2*k}, v{acc+2*k+1}') for k in range(8)]
        r += [I(f'v_pk_max_i16 v{h+k}, v{h+k}, 0') for k in range(8)]
        st = []
        if tau and tau % 2 == 0: st += L(f's_add_u32 s{sHown}, s{sHown}, 4096')
        for k in range(2):
            st.append(I(f'buffer_store_dwordx4 v[{h+4*k}:{h+4*k+3}], v{vL16}, {srd(WS)}, s{sHown} offen offset:{(tau&1)*2048+k*1024} sc1', tok=f'h{tau}'))
        return r, st

    PK = {'Ta': 136, 'Tb': 144, 'Tc': 152, 'Td': 160}

    def epi_Q(self, kind, acc):
        pk = self.PK[kind]
        n = 6 if kind == 'Tb' else 8
        r = [I(f'v_cvt_pk_bf16_f32 v{pk+k}, v{acc+2*k}, v{acc+2*k+1}') for k in range(n)]
        if kind == 'Tb': r += L(f'v_mov_b32 v{pk+6}, 0\nv_mov_b32 v{pk+7}, 0')
        return r

    def pmfma(self, which, P):
        m = self.PK['Ta' if which == 'k' else 'Td']
        B = [m, m + 4, self.PK['Tb'] + (0 if which == 'k' else 4)]
        r = []
        for s in range(3):
            r.append(I(f'v_mfma_f32_32x32x16_bf16 v[{P}:{P+15}], a[{aPHI+4*s}:{aPHI+4*s+3}], v[{B[s]}:{B[s]+3}], ' + ('0' if s == 0 else f'v[{P}:{P+15}]')))
        for s in range(3):
            r.append(I(f'v_mfma_f32_16x16x32_bf16 v[{P+16}:{P+19}], a[{aPHI+12+4*s}:{aPHI+12+4*s+3}], v[{B[s]}:{B[s]+3}], ' + ('0' if s == 0 else f'v[{P+16}:{P+19}]')))
        return r

    def softmax(self, P, EP, PHIo, T, norm_first, keepS=None):
        p = [P + k for k in range(18)]
        mx, mn, s1, s2 = T, T + 1, T + 2, T + 3
        r = []
        a = [f'v_max3_f32 v{mx}, v{p[0]}, v{p[1]}, v{p[2]}'] + [f'v_max3_f32 v{mx}, v{mx}, v{p[k]}, v{p[k+1]}' for k in range(3, 17, 2)] + [f'v_max_f32 v{mx}, v{mx}, v{p[17]}']
        b = [x.replace('max', 'min').replace(f'v{mx}', f'v{mn}') for x in a]
        for x, y in zip(a, b): r += L(x + '\n' + y)
        r[0].gap = 3
        r += L(f'v_mul_f32_e64 v{mx}, -v{vC}, v{mx}\nv_mul_f32 v{mn}, v{vC}, v{mn}')
        for k in range(18):
            r += L(f'v_fma_f32 v{EP+k}, v{p[k]}, v{vC}, v{mx}\nv_fma_f32 v{p[k]}, v{p[k]}, -v{vC}, v{mn}')
            r += L(f'v_exp_f32 v{EP+k}, v{EP+k}\nv_exp_f32 v{p[k]}, v{p[k]}')
            if k == 2:
                r += L(f'v_add_f32 v{s1}, v{EP}, v{EP+1}\nv_add_f32 v{s2}, v{p[0]}, v{p[1]}')
            elif k > 2:
                r += L(f'v_add_f32 v{s1}, v{s1}, v{EP+k-1}\nv_add_f32 v{s2}, v{s2}, v{p[k-1]}')
        r += L(f'v_add_f32 v{s1}, v{s1}, v{EP+17}\nv_add_f32 v{s2}, v{s2}, v{p[17]}')
        if norm_first:
            r += L(f'v_rcp_f32 v{s1}, v{s1}\nv_rcp_f32 v{s2}, v{s2}\nv_mul_f32 v{s1}, v{vRS}, v{s1}\nv_mul_f32 v{s2}, v{vRS}, v{s2}')
            for k in range(0, 18, 2):
                r += L(f'v_mul_f32 v{EP+k}, v{s1}, v{EP+k}\nv_mul_f32 v{EP+k+1}, v{s1}, v{EP+k+1}\nv_cvt_pk_bf16_f32 v{PHIo+k//2}, v{EP+k}, v{EP+k+1}')
        else:
            r += L(f'v_rcp_f32 v{s2}, v{s2}\nv_mul_f32 v{keepS}, 0x358637bd, v{s1}')
            for k in range(0, 18, 2):
                r += L(f'v_cvt_pk_bf16_f32 v{PHIo+k//2}, v{EP+k}, v{EP+k+1}')
            r += L(f'v_mul_f32 v{s2}, v{s1}, v{s2}')
        for k in range(0, 18, 2):
            r += L(f'v_mul_f32 v{p[k]}, v{s2}, v{p[k]}\nv_mul_f32 v{p[k+1]}, v{s2}, v{p[k+1]}\nv_cvt_pk_bf16_f32 v{PHIo+9+k//2}, v{p[k]}, v{p[k+1]}')
        return r

    @staticmethod
    def image_addr(rho, h_, cc, o1, o2, t1, t2, m):
        return (f'v_lshlrev_b32 v{t1}, 6, v{rho}\nv_lshl_add_u32 v{t1}, v{cc}, 4, v{t1}\nv_lshl_add_u32 v{t1}, v{h_}, 3, v{t1}\nv_cmp_gt_u32 s[{m}:{m+1}], 4, v{cc}\nv_add_u32 v{t1}, {E}, v{t1}\n'
                f'v_lshlrev_b32 v{t2}, 5, v{rho}\nv_lshl_add_u32 v{t2}, v{h_}, 4, v{t2}\nv_add_u32 v{t2}, {E2}, v{t2}\n'
                f'v_cndmask_b32 v{o1}, v{t2}, v{t1}, s[{m}:{m+1}]\nv_add_u32 v{t2}, {2688+8}, v{t2}\nv_cndmask_b32 v{o2}, v{t2}, v{t1}, s[{m}:{m+1}]')

    @staticmethod
    def ex_addr(d, t1):
        return (F_TB(t1) + f'\nv_mul_u32_u24 v{d}, 2688, v{t1}\n' + F_HH(t1) + f'\nv_lshl_add_u32 v{d}, v{t1}, 8, v{d}\n' + F_R4(t1) +
                f'\nv_lshl_add_u32 v{d}, v{t1}, 5, v{d}\n' + F_C4(t1) + f'\nv_lshl_add_u32 v{d}, v{t1}, 3, v{d}\nv_add_u32 v{d}, {E2}, v{d}')

    def build_streams(self):
        c = self.c
        P0 = lambda p: 36 * p
        bar = lambda p: 36 * p + 35 - c.D
        self.bar_need = {}
        need = lambda p, t: self.bar_need.setdefault(p, []).append(t)
        S = {}
        pos = {k: self.kind.index(k) for k in RPI}
        m = []
        A = lambda st, x: m.extend((st, [y]) for y in (L(x) if isinstance(x, str) else x))
        G = lambda st, x: m.append((st, glue(L(x) if isinstance(x, str) else x)))
        DL = lambda st: m.append(('deadline', st))
        pd = c.pdist
        items = sorted([i for i in self.loadp if self.loadp[i] >= 0], key=lambda i: (self.loadp[i], 99 if isinstance(i, str) else i))
        first_rp = min(pos.values())
        pg = 99
        for i in items:
            p = self.loadp[i]
            same = [x for x in items if self.loadp[x] == p]
            idx = same.index(i)
            span = (bar(p) - 1 - P0(p)) // len(same)
            if i == first_rp:
                st = P0(p) - pd
                m.append(('after', ('misc', 'rpflag')))
                A(st, f'v_lshrrev_b32 v{vPa}, 1, v{vL16}\ns_lshl_b32 s{sD}, s{sJ}, 9\ns_add_u32 s{sD+4}, s{sD}, {FL_RP}')
                ld, chk = self.poll('rp', WS, vPa, f's{sD+4}', vPo)
                self.defer = (st, ld, P0(p) - 1, chk)
            if i == 'woA':
                st = P0(p) + idx * span - pd
                A(st, f'v_and_b32 v{vPa}, 0xf8, v{vPa}\ns_and_b32 s{sPe}, s{sQ}, 1\ns_lshl1_add_u32 s{sPe}, s{sJJ}, s{sPe}\ns_lshl_b32 s{sPe}, s{sPe}, 8\ns_add_u32 s{sPe}, s{sPe}, {FL_WO}')
                ld, chk = self.poll('wo', WS, vPa, f's{sPe}', vPo)
                self.defer = (st, ld, P0(p) + idx * span - 1, chk)
            if getattr(self, 'defer', None):
                st, ld, st2, chk = self.defer; self.defer = None
                nset = 5 if i == 'woA' else 4
                blk = m[-nset:] + [(st, [ld])]; del m[-nset:]
                k = len(m)
                while k > 0 and (isinstance(m[k-1][0], str) or m[k-1][0] > st): k -= 1
                m[k:k] = blk
                G(st2, chk)
            grps = self.dma_item(i)
            nd = sum(1 for gg in grps if gg[0].kind == 'dma')
            k = 0
            for gg in grps:
                st = P0(p) + idx * span + (k * span) // nd
                if gg[0].kind == 'dma': k += 1
                elif k == 0: st = max(st - 6, P0(p) - 4 if idx == 0 else 0)
                else: st = max(st - 1, P0(p))
                m.append((st, gg))
            if idx == len(same) - 1:
                for nm, pp in c.pf.items():
                    if pp != p: continue
                    st = bar(p) - 1
                    if nm[0] == 'P': A(st, f'buffer_load_dword a{182+list(c.pf).index(nm)%2}, v{vPF}, {srd(W1)}, s{sPF} offen offset:{128*int(nm[1])}')
                    elif nm == 'B8':
                        A(st - 8, f'v_lshrrev_b32 v{vCur2}, 5, v{vL16}\nv_mul_u32_u24 v{vCur2}, 1152, v{vCur2}\nv_and_b32 v{vPF}, {OOB}, v{vPF}\nv_or_b32 v{vPF}, v{vPF}, v{vCur2}\nv_and_b32 v{vCur2}, 16, v{vL16}\nv_lshl_add_u32 v{vPF}, v{vCur2}, 3, v{vPF}')
                        A(st - 8, f's_lshr_b32 s{sPF}, s2, 5\ns_lshl2_add_u32 s{sPF}, s{sPF}, s{sW}\ns_lshl_b32 s{sD}, s{sQ}, 7\ns_add_u32 s{sPF}, s{sPF}, s{sD}\ns_mul_i32 s{sPF}, s{sPF}, {9*1152}')
                        A(st - 8, f's_mul_i32 s{sD}, s{sJJ}, {288*1152}\ns_add_u32 s{sD}, s{sD}, s{sPF}\ns_lshl_b32 s{sD+1}, s{sJJ}, 8\ns_add_u32 s{sPF}, s{sPF}, s{sD+1}')
                        A(st, f'buffer_load_dword a{182+list(c.pf).index(nm)%2}, v{vPF}, {srd(W2)}, s{sD} offen offset:896')
                    else:
                        A(st - 4, f's_add_u32 s{sD}, s{sJJ}, {int(nm[1])}\ns_and_b32 s{sD}, s{sD}, 3\ns_mul_i32 s{sD}, s{sD}, {288*1152}\ns_add_u32 s{sD}, s{sD}, s{sPF}')
                        A(st, f'buffer_load_dword a{182+list(c.pf).index(nm)%2}, v{vPF}, {srd(W2)}, s{sD} offen')
            DL(bar(i - 1) if isinstance(i, int) else bar(21))
        S['dma'] = TimedStream('dma', m)

        def dma_insert(st, groups):
            it = S['dma'].items
            k = 0
            while k < len(it) and (isinstance(it[k][0], str) or it[k][0] <= st): k += 1
            assert it[k-1][0] == 'deadline'
            it[k:k] = [(st, gg) for gg in groups]
        one = lambda x: [[y] for y in (L(x) if isinstance(x, str) else x)]

        m = []
        flagA = (8) // 2
        pend = []
        for n, (s0, s1, acc, key) in enumerate(self.chain):
            k = self.kind[key[0]]
            nxt = [x[0] for x in self.chain[n + 1:] if x[2] == acc]
            st = s1 + 3
            if key in self.tau:
                tau = self.tau[key]
                r, sto = self.epi_G(tau, acc)
                A(st, r)
                dl = nxt[0] - 1 if nxt else 10**9
                dl = min(dl, P0(13) + 2 * tau - 2)
                if key[0] == 1: dl = min(dl, P0(2) + 30)
                DL(max(dl, st)); A(st, sto)
                m += pend; pend = []
                if tau in (flagA, 8):
                    pend.append((st + c.hfd, self.xs(f'hf{tau}', glue([W(*[f'h{x}' for x in range(tau + 1)]), self.flag(sFH, 0 if tau == flagA else 32)]))))
            elif k == 'B8':
                mt = key[1]
                if mt == 0:
                    A(st - 12, F_HH(vCur2) + f'\nv_lshlrev_b32 v{vCur2}, 13, v{vCur2}\nv_and_b32 v{vW1}, 0x1f0, v{vL16}\nv_add_u32 v{vCur2}, v{vCur2}, v{vW1}')
                    A(st - 12, f's_lshl2_add_u32 s{sE}, s{sR}, s{sW}\ns_lshl_b32 s{sE}, s{sE}, 7\ns_add_u32 s{sE}, s{sE}, s{sJ}\ns_lshl_b32 s{sE}, s{sE}, 9\ns_add_u32 s{sE}, s{sE}, {WS_Y8}')
                A(st, [I(f'v_cvt_pk_bf16_f32 v{acc+k_}, v{acc+2*k_}, v{acc+2*k_+1}') for k_ in range(8)])
                A(st, [I(f'v_permlane32_swap_b32 v{acc+4*ip+k_}, v{acc+4*ip+2+k_}') for ip in range(2) for k_ in range(2)])
                for ip in range(2):
                    if mt or ip: A(st, f's_add_u32 s{sE}, s{sE}, 16384')
                    A(st, [I(f'buffer_store_dwordx4 v[{acc+4*ip}:{acc+4*ip+3}], v{vCur2}, {srd(WS)}, s{sE} offen sc1', tok='y8st')])
                if mt == 0: m += pend; pend = []
            else:
                A(st, self.epi_Q(k, acc)); DL(nxt[0] - 1)
                m += pend; pend = []
        assert not pend
        S['epi'] = TimedStream('epi', m)

        m = []
        for s in range(36):
            st = max(2 * (s - c.npre) + 3, P0(1)) if s < 18 else P0(2)
            A(st, [I(f'v_accvgpr_write_b32 a{4*s+k}, v{vX+4*s+k}') for k in range(4)])
        DL(P0(c.xa) - 2)
        S['accw'] = TimedStream('accw', m)

        m = []
        T = 96
        tb0 = P0(2) + 32
        ld, chk = self.poll('tag', DBG, vPa, 's56', vPo, tag=True)
        A(0, [ld])
        A(0, [I(f'buffer_load_dword a{aWP+k}, v68, {srd(PHI)}, 0 offen offset:{4*k}', tok='wphi') for k in range(2)])
        A(0, [I(f'buffer_load_dwordx4 a[{aWO}:{aWO+3}], v71, {srd(WO)}, 0 offen', tok='wold')])
        A(0, [I(f'ds_write_b32 v30, v{vRS}', tok='rsw')])
        if not isinstance(c.rpw, int): A(c.rps, self.rpst)
        G(c.rpf - 8, chk)
        A(c.rpf - 8, f'v_readfirstlane_b32 s{sN}, v{vPo}\nv_readfirstlane_b32 s{sN+1}, v{vPo+1}\nv_accvgpr_write_b32 a{aN}, v{vPo}\nv_accvgpr_write_b32 a{aN+1}, v{vPo+1}')
        x = self.flag(63); x.tok = 'rpflag'; G(c.rpf, [W('rpst'), x])
        st = max(c.rpf, c.wim)
        A(st, [I(f'ds_write_b64 v{69+k}, a[{aWP}:{aWP+1}]', tok='wimg') for k in range(2)])
        A(st, [I(f'buffer_store_dwordx4 a[{aWO}:{aWO+3}], v72, {srd(WS)}, s{sMi} offen sc1', tok='wost')])
        A(st, f'v_mov_b32 v{vPU}, v73')
        pw = 1
        need(pw, 'wimg'); need(pw, 'rsw'); DL(bar(pw))
        st = tb0
        A(st, self.ex_addr(T, T + 1) + f'\nv_add_u32 v{T+1}, {E}, v{vS}')
        for s in range(3):
            for k in range(2):
                A(st, [I(f'ds_read_b64_tr_b16 a[{aPHI+4*s+2*k}:{aPHI+4*s+2*k+1}], v{T+1} offset:{1024*s+256*k}', tok='wfr')])
                A(st, [I(f'ds_read_b64_tr_b16 a[{aPHI+12+4*s+2*k}:{aPHI+12+4*s+2*k+1}], v{T} offset:{512*s+128*k}', tok='wfr')])
        need(3, 'wfr'); need(3, 'wost'); DL(bar(3))
        st = bar(3) + 1
        A(st, [self.flag(sMi + 1, v=vPU)])
        t0, t1 = T + 4, T + 5
        A(st, f'v_lshlrev_b32 v{t0}, 4, v0\nv_add_u32 v{t0}, {E}, v{t0}\nv_mov_b32 v{T}, 0\nv_mov_b32 v{T+1}, 0\nv_mov_b32 v{T+2}, 0\nv_mov_b32 v{T+3}, 0')
        A(st, [I(f'ds_write_b128 v{t0}, v[{T}:{T+3}] offset:{4096*k}', tok='zf1') for k in range(3)])
        A(st, F_G(t0) + f'\nv_mul_u32_u24 v{vK}, 1152, v{t0}\nv_lshlrev_b32 v{t0}, 6, v{t0}\nv_and_b32 v{t1}, 0xf0, v{vL16}\nv_xor_b32 v{t0}, v{t0}, v{t1}\nv_add_u32 v{vK}, v{vK}, v{t0}')
        for k in range(1, 9): A(st, f'v_add_u32 v{vK+k}, {k*16*1152 - (k%4)*1024}, v{vK}')
        A(st, f'v_and_b32 v{t0}, 0x3f, v{vPA}\n' + F_R4(t1) + f'\nv_mul_u32_u24 v{t1}, 320, v{t1}\nv_add_u32 v{t0}, v{t0}, v{t1}\n' + F_HH(t1) +
          f'\nv_mul_u32_u24 v{t1}, 9216, v{t1}\nv_add_u32 v{t0}, v{t0}, v{t1}\ns_and_b32 s{sMi}, s{sQ}, 1\ns_lshl_b32 s{sMi}, s{sMi}, 7\ns_xor_b32 s{sMi}, s{sMi}, 128\nv_xor_b32 v{vPU}, s{sMi}, v{t0}')
        self.vES = 253
        A(max(st, P0(c.xa)), f'v_add_u32 v{self.vES}, {E}, v{vS}')
        need(5, 'zf1'); DL(bar(5))
        lastS = max(pos.values())
        st = max(st, bar(lastS - 1) + 2)
        A(st, f'v_and_b32 v{vS}, 0x1ff, v{vPA}\n' + F_HH(t0) + f'\nv_lshl_add_u32 v{vS}, v{t0}, 9, v{vS}')
        DL(P0(pos['S'] + 1))
        S['misc'] = TimedStream('misc', m)

        m = []
        a0, a1, a2, a3, a4, a5 = range(vAt, vAt + 6)
        PK_ = self.PK
        Pk, EPk, PHk, Tk = 168, 188, 206, 224
        kready = P0(max(pos['Ta'], pos['Tb']) + 1) + 8
        sKL, sKS, sOM, sOX = 57, 58, 59, 3
        park = lambda k, v: f'v_accvgpr_write_b32 a{aPK+k}, v{v}'
        unpark = lambda k, v: f'v_accvgpr_read_b32 v{v}, a{aPK+k}'
        mA = f's[{sAM}:{sAM+1}]'
        st = P0(2)
        m.append(('after', ('misc', 'wost')))
        A(st, f'v_and_b32 v{a2}, 16, v{vL16}\nv_mov_b32 v{a3}, 0x3f80\nv_lshlrev_b32 v{a3}, v{a2}, v{a3}\nv_bfe_u32 v{a2}, v{vL16}, 5, 3')
        for k in range(4): A(st, f'v_cmp_eq_u32 {mA}, {k}, v{a2}\nv_cndmask_b32 v{a4}, 0, v{a3}, {mA}\nv_accvgpr_write_b32 a{aSEL+k}, v{a4}')
        for gp in range(3):
            u, h_, cc = a0, a1, a2
            A(st, F_N(u) + f'\ns_mul_i32 s{sA}, s{sW}, 48\ns_add_u32 s{sA}, s{sA}, {16*gp}\nv_add_u32 v{u}, s{sA}, v{u}\ns_movk_i32 s{sA}, 90\nv_cmp_le_u32 {mA}, s{sA}, v{u}\n' + F_G(a3))
            A(st, f'v_lshrrev_b32 v{a5}, 1, v{a3}\nv_lshl_add_u32 v{a5}, v{a5}, 8, v{u}\ns_movk_i32 s{sA}, 180\nv_cndmask_b32 v{h_}, 0, 1, {mA}\nv_cmp_gt_u32 s[{sA+2}:{sA+3}], s{sA}, v{a5}')
            A(st, f'v_mul_u32_u24 v{a4}, 90, v{h_}\nv_sub_u32 v{u}, v{u}, v{a4}\nv_mul_u32_u24 v{cc}, 3641, v{u}\nv_lshrrev_b32 v{cc}, 16, v{cc}')
            A(st, f'v_mul_u32_u24 v{a4}, 18, v{cc}\nv_sub_u32 v{u}, v{u}, v{a4}\nv_lshl_add_u32 v{u}, v{u}, 1, v{a3}\nv_lshrrev_b32 v{a4}, 3, v{u}\nv_and_b32 v{u}, 7, v{u}\nv_lshl_add_u32 v{u}, v{a4}, 4, v{u}\nv_lshl_add_u32 v{u}, v{h_}, 3, v{u}')
            A(st, self.image_addr(u, h_, cc, a5, u, a3, a4, sAM))
            A(st, f'v_mov_b32 v{a4}, {DUMMY}\nv_cndmask_b32 v{a5}, v{a4}, v{a5}, s[{sA+2}:{sA+3}]\nv_cndmask_b32 v{u}, v{a4}, v{u}, s[{sA+2}:{sA+3}]\n' + park(2 * gp, a5) + '\n' + park(2 * gp + 1, u))
        A(st, F_G(a2) + f'\nv_mul_u32_u24 v{a2}, 3072, v{a2}\nv_and_b32 v{a3}, 0xf0, v{vL16}\nv_add_u32 v{a2}, v{a2}, v{a3}\ns_mul_i32 s{sKL}, s{sW}, 768\ns_sub_u32 s{sA+2}, {148*16}, s{sKL}')
        A(st, f'v_cmp_gt_u32 {mA}, s{sA+2}, v{a3}\nv_mov_b32 v{a5}, {OOB}\ns_mul_i32 s{sA+2}, s{sJ}, 49152\ns_add_u32 s{sKL}, s{sKL}, s{sA+2}\ns_add_u32 s{sKL}, s{sKL}, {WS_KV}\nv_cndmask_b32 v{a3}, v{a5}, v{a2}, {mA}')
        A(st, park(6, a2) + '\n' + park(7, a3))
        A(st, f's_and_b32 s{sA}, s{sW}, 1\ns_lshr_b32 s{sA+1}, s{sW}, 1')
        A(st, F_G(a4) + f'\nv_mul_u32_u24 v{a2}, 288, v{a4}\nv_cmp_eq_u32 {mA}, 0, v{a4}\nv_mov_b32 v{a3}, 1152\n' + F_N(a4) + f'\nv_cndmask_b32 v{a3}, v{a5}, v{a3}, {mA}')
        G(st, f's_cmp_eq_u32 s{sA}, 1\ns_cselect_b64 {mA}, -1, 0')
        A(st, f'v_cndmask_b32 v{a2}, v{a2}, v{a3}, {mA}\nv_cmp_gt_u32 {mA}, 4, v{a4}\nv_lshl_add_u32 v{a2}, v{a4}, 3, v{a2}')
        A(st, f's_lshl4_add_u32 s{sKS}, s{sJ}, s{sR}\ns_mul_i32 s{sKS}, s{sKS}, 3072\ns_mul_i32 s{sA+2}, s{sA+1}, 1440\nv_cndmask_b32 v{a3}, v{a5}, v{a2}, {mA}\ns_add_u32 s{sKS}, s{sKS}, s{sA+2}\ns_add_u32 s{sKS}, s{sKS}, {WS_KV}')
        A(st, park(8, a2) + '\n' + park(9, a3))
        A(st, f'v_lshrrev_b32 v{a0}, 6, v{vL16}\nv_mul_u32_u24 v{a0}, 232, v{a0}\n' + F_C4(a1) + f'\nv_lshl_add_u32 v{a1}, v{a1}, 3, v{a0}')
        A(st, f's_mul_i32 s{sA+2}, s{sA}, s{sA+1}\ns_mul_i32 s{sA+2}, s{sA+2}, 40\ns_lshl_b32 s{sA+3}, s{sA}, 5\ns_sub_u32 s{sA+3}, s{sA+3}, s{sA+2}')
        A(st, f's_mul_i32 s{sA+2}, s{sA+1}, 48\ns_add_u32 s{sA+3}, s{sA+3}, s{sA+2}\ns_add_u32 s{sA+3}, s{sA+3}, {144 + self.slotS}\nv_add_u32 v{a0}, s{sA+3}, v{a1}')
        A(st, f's_mul_i32 s{sA+2}, s{sA+1}, 72\ns_add_u32 s{sA+2}, s{sA+2}, {self.slotS}\nv_add_u32 v{a1}, s{sA+2}, v{a1}')
        A(st, park(10, a0) + '\n' + park(11, a1))
        A(st, self.ex_addr(a0, a1) + '\n' + park(12, a0))
        A(st, f's_lshl2_add_u32 s{sA}, s{sR}, s{sW}\ns_lshl4_add_u32 s{sOM}, s{sA}, s{sJ}\ns_lshl_b32 s{sOM}, s{sOM}, 11\ns_add_u32 s{sOM}, s{sOM}, {WS_OM}')
        A(st, f's_lshl_b32 s{sA}, s{sA}, 12\ns_lshr_b32 s{sA+2}, s{sJ}, 3\ns_lshl2_add_u32 s{sA+2}, s{sA+2}, s{sJJ}\ns_lshl_b32 s{sA+2}, s{sA+2}, 9\ns_add_u32 s{sA}, s{sA}, s{sA+2}')
        A(st, f's_and_b32 s{sA+2}, s{sQ}, 1\ns_lshl3_add_u32 s{sA}, s{sA+2}, s{sA}\ns_add_u32 s{sOX}, s{sA}, {WS_OX}\nv_and_b32 v{a1}, 0x1f0, v{vL16}\n' + F_HH(a2) + f'\nv_lshl_add_u32 v{a1}, v{a2}, 2, v{a1}\n' + park(13, a1))
        A(st, F_T(a4) + f'\nv_mul_u32_u24 v{a4}, 232, v{a4}\ns_mul_i32 s{sA}, s{sW}, {32*232}\ns_add_u32 s{sA}, s{sA}, {self.slotS}\nv_add_u32 v{a4}, s{sA}, v{a4}\n' + F_HH(a5))
        A(st, f'v_mul_u32_u24 v{a0}, 72, v{a5}\nv_add_u32 v{a0}, v{a0}, v{a4}\nv_lshl_add_u32 v{a1}, v{a5}, 3, v{a4}\nv_lshl_add_u32 v{a2}, v{a5}, 4, v{a4}\nv_lshl_add_u32 v{a3}, v{a5}, 5, v{a4}')
        A(kready, [W('wfr')])
        for x in self.pmfma('k', Pk): A(kready, [x])
        A(kready, self.softmax(Pk, EPk, PHk, Tk, True))
        st = P0(c.ps)
        for k in range(9): A(st, [I(f'ds_write_b64 v{a0}, v[{PHk+2*k}:{PHk+2*k+1}] offset:{8*k}', tok='stg')])
        st = max(st, P0(pos['Tc'] + 1) + 8)
        tc = PK_['Tc']; tbb = PK_['Tb']; hm = f's[{sHH}:{sHH+1}]'
        A(st, [I(f'ds_write_b64 v{a1}, v[{tc}:{tc+1}] offset:144', tok='stg'), I(f'ds_write_b64 v{a1}, v[{tc+2}:{tc+3}] offset:160', tok='stg'), I(f'ds_write_b64 v{a1}, v[{tc+6}:{tc+7}] offset:200', tok='stg')])
        A(st, f'v_cndmask_b32 v{a4}, v{vSD}, v{tbb+2}, {hm}\nv_cndmask_b32 v{a5}, v{tc+5}, v{tbb+3}, {hm}\nv_cndmask_b32 v{tc+5}, v{vSD}, v{tc+5}, {hm}')
        A(st, [I(f'ds_write_b64 v{a3}, v[{a4}:{a5}] offset:184', tok='stg'), I(f'ds_write_b64 v{a2}, v[{tc+4}:{tc+5}] offset:176', tok='stg')])
        need(c.ps, 'stg')
        A(st, unpark(10, a0) + '\n' + unpark(11, a1))
        DL(bar(c.ps))
        KA, KB, KD = 188, 204, 168
        st = bar(c.ps) + 1
        rdA = lambda ks: [I(f'ds_read_b64_tr_b16 v[{KA+4*ks+2*rd}:{KA+4*ks+2*rd+1}], v{a0} offset:{ks*7424+rd*3712}', tok=f'kva{ks}') for rd in range(2)]
        rdB = lambda x: [I(f'ds_read_b64_tr_b16 v[{KB+4*(x%6)+2*rd}:{KB+4*(x%6)+2*rd+1}], v{a1} offset:{(x%4)*7424+rd*3712+32*(x//4)}', tok=f'kvb{x}') for rd in range(2)]
        for ks in range(4): A(st, rdA(ks) + rdB(ks))
        A(st, unpark(8, a2) + '\n' + unpark(9, a3))
        for x in range(12):
            ft, ks = x // 4, x % 4
            mf = I(f'v_mfma_f32_16x16x32_bf16 v[{KD+4*ft}:{KD+4*ft+3}], v[{KA+4*ks}:{KA+4*ks+3}], v[{KB+4*(x%6)}:{KB+4*(x%6)+3}], ' + ('0' if ks == 0 else f'v[{KD+4*ft}:{KD+4*ft+3}]'))
            G(st, [W(f'kvb{x}', f'kva{ks}'), mf])
            if x + 4 < 12: A(st, rdB(x + 4))
        need(c.ps + 1, 'kvb11')
        DL(bar(c.ps + 1))
        x = []
        for ft in range(3):
            x += L(f'v_cvt_pk_bf16_f32 v{KD+4*ft}, v{KD+4*ft}, v{KD+4*ft+1}\nv_cvt_pk_bf16_f32 v{KD+4*ft+1}, v{KD+4*ft+2}, v{KD+4*ft+3}')
        x[4].gap = 1
        for ft in range(3):
            x.append(I(f'buffer_store_dwordx2 v[{KD+4*ft}:{KD+4*ft+1}], v{a2 if ft < 2 else a3}, {srd(WS)}, s{sKS} offen offset:{128*ft} sc1', tok='kvst'))
        A(st, x)
        Pq, EPq, PHq, Tq, SQ = 168, 136, 232, 154, 252
        st = max(st, P0(pos['Td'] + 1) + 8)
        for x in self.pmfma('q', Pq): A(st, [x])
        sm = self.softmax(Pq, EPq, PHq, Tq, False, keepS=SQ)
        n1 = 70
        A(st, sm[:n1])
        G(st, self.xs('kvfl', [W('kvst'), self.flag(sFKV)]))
        A(st, f'v_lshrrev_b32 v{a0}, 1, v{vL16}\ns_and_b32 s{sA}, s{sFKV}, 0xfffffe00')
        n2 = n1 + c.kvgap
        A(st, sm[n1:n2])
        ld, chk = self.poll('kvf', WS, a0, f's{sA}', a4)
        A(st, [ld]); A(st, sm[n2:])
        A(st, f'v_mov_b32 v{PHq+18}, 0\nv_mov_b32 v{PHq+19}, 0')
        KR, IA, vEX, vOA = 200, 212, 254, 255
        A(st, '\n'.join([unpark(k, IA + k) for k in range(6)] + [unpark(6, a2), unpark(7, a3), unpark(12, vEX), unpark(13, vOA)]))
        G(st, chk)
        for i in range(4):
            A(st, f's_add_u32 s{sA+2}, s{sR}, {i}\ns_and_b32 s{sA+2}, s{sA+2}, 3\ns_mul_i32 s{sA+2}, s{sA+2}, 12288\ns_add_u32 s{sA+2}, s{sA+2}, s{sKL}')
            for gp in range(3):
                b = aKV + 4 * (3 * i + gp)
                A(st, [I(f'buffer_load_dwordx4 a[{b}:{b+3}], v{a2 if gp < 2 else a3}, {srd(WS)}, s{sA+2} offen offset:{256*gp} sc1', tok=f'kr{i}')])
        for i in range(4):
            for gp in range(3):
                b = aKV + 4 * (3 * i + gp); d = KR + 4 * gp
                mf = I(f'v_mfma_f32_16x16x32_bf16 v[{d}:{d+3}], a[{aSEL}:{aSEL+3}], a[{b}:{b+3}], ' + ('0' if i == 0 else f'v[{d}:{d+3}]'))
                if i == 0 and gp == 0: mf.gap = 0
                x = glue([W(f'kr{i}'), mf] if gp == 0 else [mf])
                if i == 0 and gp == 0: x[0].gap = c.krgap
                if gp == 0: x = self.xs(f'kr{i}', x)
                m.append((st, x))
        x = []
        for gp in range(3):
            d = KR + 4 * gp
            x += L(f'v_cvt_pk_bf16_f32 v{d}, v{d}, v{d+1}\nv_cvt_pk_bf16_f32 v{d+1}, v{d+2}, v{d+3}')
        x[0].gap = 1
        for gp in range(3):
            d = KR + 4 * gp
            x += [I(f'ds_write_b64 v{IA+2*gp+k}, v[{d}:{d+1}]', tok='kimg') for k in range(2)]
        A(st, x)
        pk = c.pk
        need(pk, 'kimg')
        DL(bar(pk))
        OD = 208
        st = bar(pk) + 1
        ofr = lambda x: aPHI + 4 * (x % 6)
        seq = []
        for sg in range(5):
            seq.append(('m', sg, [I(f'ds_read_b64_tr_b16 a[{ofr(2*sg)+2*k}:{ofr(2*sg)+2*k+1}], v{self.vES} offset:{1024*sg+256*k}', tok=f'of{2*sg}') for k in range(2)]))
            seq.append(('x', sg, [I(f'ds_read_b64_tr_b16 a[{ofr(2*sg+1)+2*k}:{ofr(2*sg+1)+2*k+1}], v{vEX} offset:{512*sg+128*k}', tok=f'of{2*sg+1}') for k in range(2)]))
        for x in range(4): A(st, seq[x][2])
        for x in range(10):
            kind, sg, _ = seq[x]
            fr = ofr(x); Bq = PHq + 4 * sg
            if kind == 'm':
                mf = I(f'v_mfma_f32_32x32x16_bf16 v[{OD}:{OD+15}], a[{fr}:{fr+3}], v[{Bq}:{Bq+3}], ' + ('0' if sg == 0 else f'v[{OD}:{OD+15}]'))
            else:
                mf = I(f'v_mfma_f32_16x16x32_bf16 v[{OD+16}:{OD+19}], a[{fr}:{fr+3}], v[{Bq}:{Bq+3}], ' + ('0' if sg == 0 else f'v[{OD+16}:{OD+19}]'))
            G(st, [W(f'of{x}'), mf])
            if x + 4 < 10: A(st, seq[x + 4][2])
        need(pk + 1, 'of9')
        DL(bar(pk + 1))
        X0 = OD + 16
        x = L(f'v_cndmask_b32 v{a3}, v{X0+2}, v{X0}, {hm}\nv_add_f32 v{a3}, v{a3}, v{SQ}\nv_rcp_f32 v{a3}, v{a3}\nv_cndmask_b32 v{X0}, v{X0}, v{X0+2}, {hm}\nv_cndmask_b32 v{X0+1}, v{X0+1}, v{X0+3}, {hm}')
        x[0].gap = 2
        A(st, x)
        for k in range(9):
            A(st, f'v_mul_f32 v{OD+2*k}, v{a3}, v{OD+2*k}\nv_mul_f32 v{OD+2*k+1}, v{a3}, v{OD+2*k+1}\nv_cvt_pk_bf16_f32 v{PHq+k}, v{OD+2*k}, v{OD+2*k+1}')
        A(st, [I(f'buffer_store_dwordx4 v[{PHq+4*k}:{PHq+4*k+3}], v{vL16}, {srd(WS)}, s{sOM} offen offset:{1024*k} sc1', tok='ost') for k in range(2)])
        A(st, [I(f'buffer_store_dword v{PHq+8}, v{vOA}, {srd(WS)}, s{sOX} offen sc1', tok='ost')])
        x = glue([W('ost', 'y8st'), self.flag(sFO)])
        x[0].gap = 30
        m.append(('after', ('epi', 'y8st')))
        m.append((st, self.xs('ofl', x)))
        S['att'] = TimedStream('att', m)

        m = []
        pv0, pv1 = vPa, vPo
        st = P0(c.hl[0]) - pd
        m.append(('after', ('dma', 'TwoA')))
        A(st, f'v_and_b32 v{pv0}, 0x18, v{pv0}\ns_and_b32 s{sPe}, s{sFH}, 0xffffff80')
        ld, chk = self.poll('hA', WS, pv0, f's{sPe}', pv1)
        A(st, [ld])
        A(st, f's_lshl2_add_u32 s{sHb}, s{sR}, s{sQ}\ns_lshl4_add_u32 s{sHb}, s{sHb}, s{sW}\ns_mul_i32 s{sHb}, s{sHb}, 18432\ns_add_u32 s{sHb}, s{sHb}, {WS_H}')
        chk[0].gap = pd - 4
        G(P0(c.hl[0]) - 1, chk)
        for n in range(6):
            i = 16 + n; pe, hf, stt = self.g2[i]
            p = c.hl[n]
            assert p < i and (p >= 12 if stt < 2 else p >= 13) and (n < 4 or p > i - 4)
            if n == 3:
                ld, chk = self.poll('hB', WS, pv0, f's{sPe}', pv1, imm=32)
                A(P0(p) - pd, [ld]); chk[0].gap = pd - 4; G(P0(p) - 1, chk)
            same = [x for x in range(6) if c.hl[x] == p]
            span = 34 // len(same); st0 = P0(p) + 2 + same.index(n) * span
            A(st0 - 3, f's_add_u32 s{sPe2}, s{sJJ}, {pe}\ns_and_b32 s{sPe2}, s{sPe2}, 3\ns_mul_i32 s{sPe2}, s{sPe2}, {4*18432}\ns_add_u32 s{sPe2}, s{sPe2}, s{sHb}')
            if hf: A(st0 - 3, f's_add_u32 s{sPe2}, s{sPe2}, 9216')
            for k in range(9):
                st = st0 + k * span // 9
                if k in (4, 8): A(st - 1, f's_add_u32 s{sPe2}, s{sPe2}, 4096')
                A(st, [I(f'buffer_load_dwordx4 a[{36*stt+4*k}:{36*stt+4*k+3}], v{vL16}, {srd(WS)}, s{sPe2} offen offset:{(k%4)*1024} sc1', tok=f'ph{i}_{k}')])
            DL(P0(i) - 1)
        S['peer'] = TimedStream('peer', m)

        m = []
        sp = soP
        st = bar(pk + 1) + 1
        dma_insert(st, one(f's_lshl_b32 s{sp}, s{sJJ}, 1\ns_and_b32 s{sp+1}, s{sQ}, 1\ns_add_u32 s{sp}, s{sp}, s{sp+1}\ns_mul_i32 s{sp+1}, s{sp}, 82944\ns_mul_i32 s{sp+2}, s{sW}, 2304\ns_add_u32 s{sp+1}, s{sp+1}, s{sp+2}\ns_add_u32 s{sp+1}, s{sp+1}, {WS_WO+2*SLOT}')
                   + one(f's_add_u32 m0, s{sp+2}, {E}')
                   + [glue(L('s_mov_b64 exec, 0xffff') + [I(f'buffer_load_dwordx4 v{vL16}, {srd(WS)}, s{sp+1} offen offset:2048 sc1 lds', tok='woE')] + L('s_mov_b64 exec, -1'))]
                   + one([I(f'buffer_load_dwordx4 v{vL16}, {srd(WS)}, s{sp+1} offen offset:{1024*k} sc1 lds', tok='woE') for k in range(2)]))
        need(21, 'TwoA'); need(21, 'TwoB'); need(21, 'woE')
        vOM, vOX, vXM, vXE, vLA, vLB, vLX, vRF = 32, 33, 34, 35, 36, 37, 38, 40
        self.tv = dict(vOM=vOM, vXM=vXM, vXE=vXE, vLA=vLA, vLB=vLB, vLX=vLX)
        u0, u1, u2 = 46, 47, 39
        st = max(P0(16), st + 12)
        m.append(('after', ('dma', 'woE')))
        A(st, f's_and_b32 s{sp+3}, s{sQ}, 2\ns_lshr_b32 s{sp+4}, s{sW}, 1\ns_add_u32 s{sp+5}, s{sp+3}, s{sp+4}\ns_lshl2_add_u32 s{sp+3}, s{sR}, s{sp+5}\ns_and_b32 s{sp+4}, s{sW}, 1\ns_lshl_b32 s{sp+6}, s{sp+4}, 8')
        A(st, f'v_and_b32 v{u0}, 0xf0, v{vL16}\nv_add_u32 v{u0}, s{sp+6}, v{u0}\n' + F_G(u1) + f'\nv_lshl_add_u32 v{vOX}, v{u1}, 9, v{u0}')
        A(st, f'v_lshrrev_b32 v{u0}, 1, v{vL16}\nv_and_b32 v{u0}, 0x78, v{u0}\ns_lshl_b32 s{sp+7}, s{sp+3}, 7\ns_add_u32 s{sp+7}, s{sp+7}, {FL_O}')
        ld, chk = self.poll('of', WS, u0, f's{sp+7}', 56)
        A(P0(c.po) - pd, [ld])
        st = P0(c.po) - pd
        A(st, f's_lshl_b32 s{sOMc}, s{sp+3}, 15\ns_add_u32 s{sOMc}, s{sOMc}, {WS_OM}\ns_lshl_b32 s{sp+8}, s{sp+3}, 12\ns_add_u32 s{sp+8}, s{sp+8}, {WS_OX}')
        A(st, f's_lshl3_add_u32 s{sp+6}, s{sp+3}, s{sp}\ns_lshl_b32 s{sp+6}, s{sp+6}, 13\ns_add_u32 s{sp+6}, s{sp+6}, {WS_Y8}')
        chk[0].gap = pd - 6
        G(P0(c.po) - 1, chk)
        YB, Y8 = 200, 216
        st = P0(c.po)
        for i in range(4):
            if i == 2: A(st, f's_add_u32 s{sp+6}, s{sp+6}, 4096')
            A(st + 3 * i, [I(f'buffer_load_dwordx4 v[{YB+4*i}:{YB+4*i+3}], v{vOX}, {srd(WS)}, s{sp+6} offen offset:{(i&1)*2048} sc1', tok=f'y8l{i}')])
        span = (P0(21) + 8 - (st + 12))
        rest = []
        rest += L(F_N(u0) + f'\nv_mul_u32_u24 v{u0}, 1152, v{u0}\nv_lshl_add_u32 v{vXM}, v{u1}, 4, v{u0}\nv_lshl_add_u32 v{vXE}, v{u1}, 3, v{u0}\nv_mov_b32 v{u0}, {OOB}\nv_cndmask_b32 v{vXE}, v{vXE}, v{u0}, {hm}')
        rest += L(f's_lshr_b32 s{sp+1}, s{sQ}, 1\ns_lshl1_add_u32 s{sp+1}, s{sR}, s{sp+1}\ns_lshl2_add_u32 s{sp+1}, s{sp+1}, s{sW}\ns_mul_i32 s{sp+1}, s{sp+1}, {16*1152}\ns_lshl_b32 s{sp+2}, s{sp}, 7\ns_add_u32 s{sXO}, s{sp+1}, s{sp+2}')
        rest += L(f's_lshl4_add_u32 s{sp+2}, s{sp}, s{sp+1}\ns_add_u32 s{sp+2}, s{sp+2}, 1024')
        XR = 48
        rest += [I(f'buffer_load_dwordx4 v[{XR+4*k}:{XR+4*k+3}], v{vXM}, {srd(X)}, s{sXO} offen offset:{64*k}', tok='xres') for k in range(2)]
        rest += [I(f'buffer_load_dwordx2 v[{XR+8}:{XR+9}], v{vXE}, {srd(X)}, s{sp+2} offen', tok='xres')]
        rest += L(f's_lshr_b32 s{sp+1}, s{sQ}, 1\ns_lshl2_add_u32 s{sp+1}, s{sp+1}, s{sW}\ns_lshl_b32 s{sp+1}, s{sp+1}, 6\ns_add_u32 s{sp+1}, s{sp+1}, {RSA}\nv_and_b32 v{u0}, 0xf0, v{vL16}\nv_lshrrev_b32 v{u0}, 2, v{u0}\nv_add_u32 v{u0}, s{sp+1}, v{u0}')
        rest += [I(f'ds_read_b32 v{vRF}, v{u0}', tok='rsr')]
        rest += L(f'v_and_b32 v{vLA}, 0x3c0, v{vL16}\nv_lshrrev_b32 v{vLX}, 2, v{vLA}\nv_bfe_u32 v{u0}, v{vL16}, 4, 1\nv_lshl_add_u32 v{vLA}, v{u0}, 3, v{vLA}\nv_lshl_add_u32 v{vLX}, v{u0}, 3, v{vLX}')
        rest += L(f'v_and_b32 v{u0}, 32, v{vL16}\nv_add_u32 v{vLA}, v{vLA}, v{u0}\n' + F_TB(u0) + f'\nv_lshl_add_u32 v{vLA}, v{u0}, 4, v{vLA}')
        rest += L(f'v_add_u32 v{vLA}, {self.slot["woA"]}, v{vLA}\nv_xor_b32 v{vLB}, 16, v{vLA}\nv_add_u32 v{vLX}, {self.slot["woA"]+4096}, v{vLX}')
        rest += L(self.ident(44, u0))
        rest += L(f'v_mov_b32 v{vRF+1}, v{vRF}\nv_mul_f32 v42, 0xbfb8aa3b, v{vRF}\nv_mul_f32 v43, 0xbfb8aa3b, v{vRF}')
        for i in range(4):
            rest.append(glue([W(f'y8l{i}'), I(f'v_mfma_f32_16x16x32_bf16 v[{Y8}:{Y8+3}], a[{aSEL}:{aSEL+3}], v[{YB+4*i}:{YB+4*i+3}], ' + ('0' if i == 0 else f'v[{Y8}:{Y8+3}]'))]))
        rest += L(f's_lshl2_add_u32 s{sp+1}, s{sR}, s{sJJ}\ns_lshl2_add_u32 s{sE}, s{sp+1}, s{sW}\ns_lshl2_add_u32 s{sE}, s{sE}, s{sQ}\ns_lshl_b32 s{sE}, s{sE}, 13\ns_add_u32 s{sE}, s{sE}, {WS_Y}')
        rest += L(f's_and_b32 s{sp+6}, s{sQ}, 1\ns_lshl_b32 s{sp+6}, s{sp+6}, 12\ns_add_u32 s{sE+1}, s{sE}, s{sp+6}\ns_xor_b32 s{sE}, s{sE+1}, 4096')
        rest += L(f's_lshl2_add_u32 s{sp+1}, s{sp+1}, s{sp+5}\ns_lshl_b32 s{sYc}, s{sp+1}, 15\ns_add_u32 s{sYc}, s{sYc}, s{sp+6}\ns_add_u32 s{sYc}, s{sYc}, {WS_Y}\ns_lshl_b32 s{sp+7}, s{sp+1}, 7\ns_add_u32 s{sp+7}, s{sp+7}, {FL_Y}')
        rest += [glue(L(f's_lshr_b32 s{sp+1}, s{sQ}, 1\ns_lshr_b32 s{sp+6}, s{sW}, 1\ns_cmp_eq_u32 s{sp+1}, s{sp+6}\ns_cselect_b32 s{sp+6}, {OOB}, 0'))]
        rest += L(f'v_or_b32 v58, s{sp+6}, v{vL16}\ns_lshl_b32 s{sp+1}, s{sW}, 12\ns_add_u32 s{sp+1}, s{sp+1}, {self.slot["Y"]}\nv_add_u32 v59, s{sp+1}, v{vL16}')
        rest += L(f's_lshl_b32 s{sp+1}, s{sp+5}, 12\ns_add_u32 s{sp+1}, s{sp+1}, {self.slot["Y"]}\nv_add_u32 v60, s{sp+1}, v{vOX}')
        rest += L(f'v_bfe_u32 v61, v{vL16}, 4, 1\nv_lshl_or_b32 v61, v61, 1, 1\nv_xor_b32 v61, s{sQ}, v61\nv_lshlrev_b32 v61, 3, v61\ns_xor_b32 s{sp+1}, s{sQ}, 2\ns_lshl_b32 s{sp+1}, s{sp+1}, 3\nv_mov_b32 v62, s{sp+1}')
        for k, x in enumerate((1, 3, 2)):
            rest += L(f's_xor_b32 s{sp+1}, s{sQ}, {x}\ns_lshl_b32 s{sp+1}, s{sp+1}, 13\ns_add_u32 s{sT0+k}, s{sYc}, s{sp+1}')
        XU = 64
        sw = [I(f'v_permlane16_swap_b32 v{XR+4*mt+k}, v{XR+4*mt+2+k}') for mt in range(2) for k in range(2)]
        sw[0].gap = 0
        rest += sw
        for k in range(10): rest += L(f'v_lshlrev_b32 v{XU+2*k}, 16, v{XR+k}\nv_and_b32 v{XU+2*k+1}, 0xffff0000, v{XR+k}')
        nr = len(rest); k0 = 0
        for j_ in range(18):
            stj = st + 12 + j_ * span // 18
            if j_ < 16:
                if j_ and j_ % 2 == 0: A(stj, f's_add_u32 s{sOMc}, s{sOMc}, 4096')
                A(stj, [I(f'buffer_load_dwordx4 a[{184+4*j_}:{187+4*j_}], v{vOX}, {srd(WS)}, s{sOMc} offen offset:{(j_&1)*2048} sc1', tok=f'o{j_}')])
            else:
                A(stj, [I(f'buffer_load_dwordx4 a[{184+4*j_}:{187+4*j_}], v{vOX}, {srd(WS)}, s{sp+8} offen offset:{(j_-16)*2048} sc1', tok=f'o{j_}')])
            k1 = min(nr, nr * (j_ + 1) // 14)
            for x in rest[k0:k1]: m.append((stj, x if isinstance(x, list) else [x]))
            k0 = k1
        DL(bar(21) - 2)
        S['prep'] = TimedStream('prep', m)

        m = []
        for mu in range(4):
            a = GA + 16 * mu
            st = P0(21) + 9 * mu + 8 + 3
            A(st, [I(f'v_cvt_pk_bf16_f32 v{a+k}, v{a+2*k}, v{a+2*k+1}') for k in range(8)])
            for p_ in range(2):
                if mu < 2:
                    A(st, [I(f'buffer_store_dwordx4 v[{a+4*p_}:{a+4*p_+3}], v{vL16}, {srd(WS)}, s{sE} offen offset:{2048*mu+1024*p_} sc1', tok='yE')])
                else:
                    A(st, [I(f'buffer_store_dwordx4 v[{a+4*p_}:{a+4*p_+3}], v58, {srd(WS)}, s{sE+1} offen offset:{2048*(mu-2)+1024*p_} sc1', tok='yL')])
            if mu >= 2:
                A(st, [I(f'ds_write_b128 v59, v[{a+4*p_}:{a+4*p_+3}] offset:{2048*(mu-2)+1024*p_}', tok='yown') for p_ in range(2)])
        S['ypk'] = TimedStream('ypk', m)
        return S

    def s_reads(self, x):
        st, lam = x // 5, x % 5
        tv = self.tv
        b = 72 + 4 * (x % 18)
        r = []
        if lam == 0 and st in (8, 16):
            dl = (self.slot['woB'] - self.slot['woA']) if st == 8 else (E - self.slot['woB'])
            r += [I(f'v_add_u32 v{tv[k]}, {dl & 0xffffffff}, v{tv[k]}') for k in ('vLA', 'vLB', 'vLX')]
        o = (st % 8) * 4608
        for rd in range(2):
            if lam < 4: reg, oo = tv['vLB' if lam & 1 else 'vLA'], o + (lam >> 1) * 2048 + rd * 1024
            else: reg, oo = tv['vLX'], o + rd * 256
            r.append(I(f'ds_read_b64_tr_b16 a[{b+2*rd}:{b+2*rd+1}], v{reg} offset:{oo}', tok=f's{x}'))
        return r

    def tail(self, S):
        c = self.c; E_ = self.E; tv = self.tv
        sp = soP
        SA, YE, YL, YO, YA, Y8, XU, TM, OUTR = 84, 104, 120, 128, 200, 216, 64, 160, 180
        vOX = 33
        side = {}
        add = lambda x, lst: side.setdefault(x, []).extend(lst)
        yp = flush(S['ypk'])
        n0 = 1
        for k, x in enumerate(yp): add(n0 + k // 2, [x])
        xb = n0 + len(yp) // 2 + 3
        add(xb, [W('yown')] + L('s_barrier') + [I(f'ds_read_b128 v[{YO+4*mt}:{YO+4*mt+3}], v60 offset:{2048*mt}', tok='yor') for mt in range(2)])
        fl = lambda tk, o: [W(tk), self.flag(sFY, o)]
        add(c.xe, fl('yE', 0) + self.stamp('yEf'))
        add(c.xl, fl('yL', 32) + self.stamp('yLf'))
        ldE, chkE = self.poll('yfE', WS, 61, f's{sp+7}', 222)
        ldL, chkL = self.poll('yfL', WS, 62, f's{sp+7}', 222, imm=32)
        xpe = min(c.xl + 4, 60)
        add(xpe, [ldE])
        ident_mf = lambda src, mt, ab, first: I(f'v_mfma_f32_4x4x4_16b_bf16 v[{YA+8*mt+4*ab}:{YA+8*mt+4*ab+3}], v[44:45], v[{src+4*mt+2*ab}:{src+4*mt+2*ab+1}], ' + ('0' if first else f'v[{YA+8*mt+4*ab}:{YA+8*mt+4*ab+3}]'))
        for x in range(90):
            st, lam = x // 5, x % 5
            fr = 72 + 4 * (x % 18); acc = SA + 4 * lam
            E_(W(f's{x}', f'o{st}'))
            E_(f'v_mfma_f32_16x16x32_bf16 v[{acc}:{acc+3}], a[{fr}:{fr+3}], a[{184+4*st}:{187+4*st}], ' + ('0' if x < 5 else f'v[{acc}:{acc+3}]'))
            if x + c.Ds < 90: E_(self.s_reads(x + c.Ds))
            E_(side.get(x, []))
        E_(self.stamp('s89'))
        E_(chkE)
        E_(self.stamp('yEp'))
        for k in range(2):
            for mt in range(2):
                E_(I(f'buffer_load_dwordx4 v[{YE+8*k+4*mt}:{YE+8*k+4*mt+3}], v{vOX}, {srd(WS)}, s{sT0+k} offen offset:{2048*mt} sc1', tok=f'yl{k}'))
        E_(ldL)
        for mt in range(2):
            for ab in range(2): E_(ident_mf(YO, mt, ab, True))
        for k in range(10):
            E_(f'v_pk_mul_f32 v[{SA+2*k}:{SA+2*k+1}], v[{SA+2*k}:{SA+2*k+1}], v[40:41]')
        self.final_a(Y8, TM + 16, SA + 16); self.final_b(Y8, TM + 16, XU + 16, OUTR + 8)
        E_(I(f'buffer_store_dwordx2 v[{OUTR+8}:{OUTR+9}], v{tv["vXE"]}, {srd(OUT)}, s{sp+2} offen', tok='out'))
        E_(chkL)
        E_(self.stamp('yLp'))
        for mt in range(2):
            E_(I(f'buffer_load_dwordx4 v[{YL+4*mt}:{YL+4*mt+3}], v{vOX}, {srd(WS)}, s{sT0+2} offen offset:{2048*mt} sc1', tok=f'yl2{mt}'))
        for k in range(2):
            for mt in range(2):
                for ab in range(2): E_(ident_mf(YE + 8 * k, mt, ab, False))
        for mt in range(2):
            for ab in range(2): E_(ident_mf(YL, mt, ab, False))
        E_(self.stamp('yld'))
        for mt in range(2):
            for ab in range(2):
                lam = 2 * mt + ab
                self.final_a(YA + 4 * lam, TM + 4 * lam, SA + 4 * lam)
            for ab in range(2):
                lam = 2 * mt + ab
                self.final_b(YA + 4 * lam, TM + 4 * lam, XU + 4 * lam, OUTR + 2 * lam)
            for k in range(2): E_(f'v_permlane16_swap_b32 v{OUTR+4*mt+k}, v{OUTR+4*mt+2+k}')
            E_(I(f'buffer_store_dwordx4 v[{OUTR+4*mt}:{OUTR+4*mt+3}], v{tv["vXM"]}, {srd(OUT)}, s{sXO} offen offset:{64*mt}', tok='out'))
        E_(self.stamp('fin'))

    def final_a(self, y, tm, sa):
        E_ = self.E
        for k in range(2): E_(f'v_pk_mul_f32 v[{tm+2*k}:{tm+2*k+1}], v[{y+2*k}:{y+2*k+1}], v[42:43]')
        for k in range(4): E_(f'v_exp_f32 v{tm+k}, v{tm+k}')
        for k in range(2): E_(f'v_pk_mul_f32 v[{y+2*k}:{y+2*k+1}], v[{y+2*k}:{y+2*k+1}], v[{sa+2*k}:{sa+2*k+1}]')

    def final_b(self, y, tm, xu, outr):
        E_ = self.E
        for k in range(2): E_(f'v_pk_add_f32 v[{tm+2*k}:{tm+2*k+1}], v[{tm+2*k}:{tm+2*k+1}], 1.0 op_sel_hi:[1,0]')
        for k in range(4): E_(f'v_rcp_f32 v{tm+k}, v{tm+k}')
        for k in range(2): E_(f'v_pk_fma_f32 v[{y+2*k}:{y+2*k+1}], v[{y+2*k}:{y+2*k+1}], v[{tm+2*k}:{tm+2*k+1}], v[{xu+2*k}:{xu+2*k+1}]')
        for k in range(2): E_(f'v_cvt_pk_bf16_f32 v{outr+k}, v{y+2*k}, v{y+2*k+1}')

    def build(self):
        c = self.c; E_ = self.E
        assert c.D + 2 <= 8
        self.plan()
        self.prologue()
        S = self.build_streams()
        E_(self.stamp('stat'))
        E_(W('T0', 'zf0')); E_('s_barrier')
        E_(self.stamp('T0'))
        for s in range(c.D): E_(self.reads(s))
        steps = self.main_steps()
        sk = c.skip.split()

        def drop(pred, names=None):
            for nm, st_ in S.items():
                if names and nm not in names: continue
                for it in st_.items:
                    if isinstance(it[0], str): continue
                    it[1][:] = [x for x in it[1] if not pred(x)] or [I('s_nop 0')]
        for nm in sk:
            if nm in S: drop(lambda x: True, [nm])
        if sk:
            drop(lambda x: x.kind == 'label' or x.op.startswith('s_cbranch') or x.op.startswith('v_cmp_ne'))
            self.slow = [x for x in self.slow if x.startswith('SLOW_yf')]
        if 'hst' in sk: drop(lambda x: x.kind == 'vstore', ['epi'])
        if 'peerld' in sk: drop(lambda x: x.kind == 'vload', ['peer'])
        if 'oload' in sk: drop(lambda x: x.kind == 'vload', ['prep'])
        if 'dmaq' in sk: drop(lambda x: x.kind == 'dma', ['dma'])
        if 'attvm' in sk: drop(lambda x: x.kind in ('vstore', 'vload'), ['att'])
        order = [S[k] for k in ('dma', 'epi', 'ypk', 'peer', 'misc', 'accw', 'att', 'prep')]
        self.log = []
        body = schedule_timed(steps, order, log=self.log, stamps={36 * p: (lambda p=p: self.stamp(f'p{p-1}')) for p in range(1, 4 if c.tsp else 22)})
        E_(body)
        for s in order:
            if s.name != 'ypk': assert s.done(), (s.name, s.idx, len(s.items))
        E_(self.stamp('p21'))
        self.tail(S)
        if c.ts:
            E_(W('out')); E_(self.stamp('out')); self.number_stamps()
            E_(f's_memrealtime s[0:1]\ns_waitcnt lgkmcnt(0)\nv_writelane_b32 v{vONE}, s0, 62')
            E_(f's_lshl_b32 s3, s2, 2\ns_add_u32 s3, s3, s{sW}\ns_lshl_b32 s3, s3, 8\ns_add_u32 s3, s3, {WS_TS}\nv_lshrrev_b32 v25, 2, v{vL16}')
            E_(f'buffer_store_dword v{vONE}, v25, {srd(WS)}, s3 offen')
            if c.dbg is not None:
                names = ['karg', 'xiss', 'x7', 'T0', 'p1', 'p3', 'p5', 'p8', 'p12', 'p15', 'p18', 'p21', 's89', 'yLp', 'out']
                E_(f'v_readlane_b32 s40, v{vONE}, 61\nv_readlane_b32 s41, v{vONE}, 60\nv_readlane_b32 s42, v{vONE}, 62\ns_sub_u32 s42, s42, s41\nv_mov_b32 v26, 0')
                for wd, nm in enumerate(names):
                    E_(f'v_readlane_b32 s43, v{vONE}, {self.notes.index(nm)+1}\ns_sub_u32 s43, s43, s40\nv_writelane_b32 v26, s43, {wd}')
                E_(f'v_writelane_b32 v26, s42, 15\nv_lshlrev_b32 v25, 2, v0\ns_cmp_eq_u32 s2, {c.dbg}\ns_cselect_b32 s44, 0xffff, 0\ns_cmp_eq_u32 s{sW}, 0\ns_cselect_b32 s44, s44, 0\ns_mov_b32 exec_lo, s44\ns_mov_b32 exec_hi, 0')
                E_(f'buffer_store_dword v26, v25, {srd(DBG)}, 0 offen')
        stats = {}
        prog = resolve_waits(self.p, stats, lenient=bool(c.skip))
        prog = pad_hazards(prog, stats)
        self.stats = stats
        self.prog = prog
        return prog

    def text(self):
        hdr = open('cdna_kernels/' + NAME + '.s.ref').read().split('\n')
        top = [x for x in hdr if x.startswith(';') and not x.startswith('; @launch')]
        out = top + ['; @launch grid=(256,1,1) block=(256,1,1) lds=163840',
                     '.amdgcn_target "amdgcn-amd-amdhsa--gfx950"', '.text', f'.globl {NAME}_kernel', '.p2align 8',
                     f'.type {NAME}_kernel,@function', f'{NAME}_kernel:']
        out += [i.text for i in self.prog]
        out += ['L_end:', 's_endpgm'] + self.slow + ['CODE_END:', 's_endpgm']
        out += ['.section .rodata,"a"', '.p2align 6', f'.amdhsa_kernel {NAME}_kernel', '  .amdhsa_next_free_vgpr 512', '  .amdhsa_next_free_sgpr 102',
                '  .amdhsa_accum_offset 256', '  .amdhsa_group_segment_fixed_size 0', '  .amdhsa_kernarg_size 80', '  .amdhsa_user_sgpr_count 2',
                '  .amdhsa_user_sgpr_kernarg_segment_ptr 1', '  .amdhsa_system_sgpr_workgroup_id_x 1', '.end_amdhsa_kernel']
        return '\n'.join(out) + '\n'


class TimedStream:
    def __init__(self, name, items):
        self.name = name; self.items = items; self.idx = 0; self.last_step = -10**9

    def done(self):
        while self.idx < len(self.items) and isinstance(self.items[self.idx][0], str): self.idx += 1
        return self.idx >= len(self.items)

    def next_deadline(self):
        for it in self.items[self.idx:]:
            if it[0] == 'deadline': return it[1]
        return None


def flush(s):
    r = [x for it in s.items[s.idx:] if not isinstance(it[0], str) for x in it[1]]
    s.idx = len(s.items)
    return r


def schedule_timed(steps, streams, log=None, stamps=None):
    out = []
    byname = {s.name: s for s in streams}
    CAP = {'mfma32': 8, 'mfma16': 4, 'mfma4': 3}

    def passed(ref):
        s = byname[ref[0]]
        if isinstance(ref[1], int): return s.idx >= ref[1]
        return not any((not isinstance(it[0], str)) and any(x.tok == ref[1] for x in it[1]) for it in s.items[s.idx:])

    for g, st in enumerate(steps):
        if stamps and g in stamps: out.extend(stamps[g]())
        out.extend(st.pre)
        used = sum(i.cost for i in st.pre)
        cap = st.cap if st.cap is not None else CAP[st.mf.kind]
        out.append(st.mf); used += st.mf.cost
        forced = 0
        for s in streams:
            while True:
                dl = s.next_deadline()
                if dl is None or dl > g: break
                while s.items[s.idx][0] != 'deadline':
                    it = s.items[s.idx]
                    if it[0] == 'after': assert passed(it[1]), (s.name, it, g)
                    else:
                        assert it[0] <= g, (s.name, it, g)
                        out.extend(it[1]); forced += sum(x.cost for x in it[1])
                    s.idx += 1
                s.idx += 1; s.last_step = g
        used += forced
        out.extend(st.post); used += sum(i.cost for i in st.post)
        nmf = 0
        while True:
            pick = None
            for allow_mf in (False, True):
                for s in streams:
                    while s.idx < len(s.items) and (s.items[s.idx][0] == 'deadline' or (s.items[s.idx][0] == 'after' and passed(s.items[s.idx][1]))): s.idx += 1
                    if s.idx >= len(s.items): continue
                    t0, grp = s.items[s.idx]
                    if t0 == 'after' or g < t0: continue
                    if grp[0].gap and g < s.last_step + grp[0].gap: continue
                    cst = sum(x.cost for x in grp)
                    extra = sum(CAP[x.kind] for x in grp if x.kind in MF_KINDS)
                    if extra:
                        if not allow_mf or nmf >= 2 or st.end: continue
                    else:
                        late = (s.name in ('dma', 'ypk') and g >= t0 + 2 and used <= cap) or (cst > 3 and used < cap)
                        if used + cst > cap and not late: continue
                    pick = (s, grp, cst, extra); break
                if pick: break
            if not pick: break
            s, grp, cst, extra = pick
            if extra:
                nmf += 1
                cap = max(cap, used) + extra; used = cap - extra
            out.extend(grp); used += cst
            s.idx += 1; s.last_step = g
        if st.end:
            out.extend(st.end); cap = max(cap, used) + sum(CAP[x.kind] for x in st.end); used = cap
        if log is not None: log.append((g, used, cap, forced, {s.name: s.idx for s in streams}))
    return out


if __name__ == '__main__':
    kw = {}
    for a in sys.argv[2:]:
        k, v = a.split('='); kw[k] = eval(v)
    g = Gen(Cfg(**kw)); g.build()
    open(sys.argv[1], 'w').write(g.text())
    print('instrs', len(g.prog), 'est clk', estimate(g.prog), {k: v for k, v in g.stats.items() if k != 'nop_sites'})
    print('period slots', [sum(max(x[1], x[2]) for x in g.log[36*p:36*p+36]) * 4 for p in range(22)])
    print('forced', [(x[0], x[3]) for x in g.log if x[3]])
    print('slots', g.slot, g.slotS, g.loadp)
    for nm in g.log[0][4]:
        print(nm, [g.log[36*p+35][4][nm] for p in range(22)])
```

```python
import re, sys, time
import numpy as np
from asmlib import *

U = np.uint32


def bf16_round(f):
    u = np.ascontiguousarray(f, dtype=np.float32).view(U)
    r = ((u + U(0x7fff) + ((u >> U(16)) & U(1))) >> U(16)).astype(U)
    nan = np.isnan(f)
    if nan.any(): r = np.where(nan, U(0x7fc0), r)
    return r


def bf2f(u16):
    return (u16.astype(U) << U(16)).view(np.float32)


class Sim:
    def __init__(self, prog, bufs, nwg=256, seed=0, check=True, wsmax=0x3100000):
        self.prog = prog; self.nwg = nwg; NW = self.NW = nwg * 4
        rng = np.random.default_rng(seed)
        self.V = rng.integers(0, 2**32, (512, NW, 64), dtype=U)
        self.S = rng.integers(0, 2**32, (128, NW), dtype=U)
        self.lds = rng.integers(0, 2**32, (nwg, 40960), dtype=U)
        self.V[0] = (np.arange(NW)[:, None] % 4) * 64 + np.arange(64)[None, :]
        self.S[2] = np.arange(NW) // 4
        self.exec = np.ones((NW, 64), bool)
        self.scc = np.zeros(NW, bool)
        self.bufs = bufs
        self.wg = (np.arange(NW) // 4)[:, None]
        self.wid = np.arange(NW)
        self.lane = np.arange(64)[None, :]
        self.check = check
        self.vm = []; self.lg = []
        self.epoch = 0
        n = 40960
        self.w_wave = np.full(n, -1, np.int8); self.w_op = np.full(n, -1, np.int32)
        self.r_ep = np.full((4, n), -1, np.int32); self.r_op = np.full((4, n), -1, np.int32)
        self.op_ret = {}
        nd = wsmax // 4
        self.wprod = np.full(nd, -1, np.int16); self.wret = np.full(nd, 2**30, np.int32); self.wiss = np.zeros(nd, np.int32)
        self.known = np.zeros((NW, NW), np.int32)
        self.polled = {}
        self.snap = {}
        self.clr = {}
        self.conf = {}
        self.slowpolls = []
        self.errors = []
        l = np.arange(64)
        self.idx = 0

    def err(self, msg):
        self.errors.append((self.idx, self.prog[self.idx].text, msg))
        if len(self.errors) <= 30: print('ERR', self.idx, self.prog[self.idx].text, '::', msg)

    def reg(self, o):
        m = re.match(r'^(v|a)(\d+)$', o)
        return int(m.group(2)) + (256 if m.group(1) == 'a' else 0)

    def rng_(self, o):
        m = re.match(r'^(v|a|s)\[(\d+):(\d+)\]$', o)
        if m: return int(m.group(2)) + (256 if m.group(1) == 'a' else 0), int(m.group(3)) - int(m.group(2)) + 1
        m = re.match(r'^(v|a|s)(\d+)$', o)
        return int(m.group(2)) + (256 if m.group(1) == 'a' else 0), 1

    def const(self, o):
        if re.match(r'^-?\d+\.\d+$', o): return np.float32(float(o)).view(U)
        return U(int(o, 0) & 0xffffffff)

    def sval(self, o):
        if o == 'm0': return self.S[124]
        if o[0] == 's' and o[1:].isdigit(): return self.S[int(o[1:])]
        if o.startswith('CODE_END'): return np.full(self.NW, 65536, U)
        return np.full(self.NW, self.const(o), U)

    def sset(self, o, v):
        if o == 'm0': self.S[124] = v
        else: self.S[int(o[1:])] = v

    def vu(self, o):
        if o[0] in 'va' and o[1:].isdigit(): return self.V[self.reg(o)]
        if o[0] == 's' and o[1:].isdigit(): return self.S[int(o[1:])][:, None]
        return self.const(o)

    def vf(self, o):
        neg = o.startswith('-') and not o[1].isdigit()
        if neg: o = o[1:]
        x = np.asarray(self.vu(o)).view(np.float32)
        return -x if neg else x

    def vset(self, o, val):
        r = self.reg(o) if isinstance(o, str) else o
        val = np.asarray(val)
        if val.dtype == np.float32: val = val.view(U)
        if self.exec_all: self.V[r] = val
        else: self.V[r] = np.where(self.exec, val, self.V[r])

    def mask_get(self, o):
        b = 106 if o == 'vcc' else self.rng_(o)[0]
        lo = (self.S[b][:, None] >> np.arange(32, dtype=U)[None, :]) & 1
        hi = (self.S[b + 1][:, None] >> np.arange(32, dtype=U)[None, :]) & 1
        return np.concatenate([lo, hi], 1).astype(bool)

    def mask_set(self, o, m):
        b = 106 if o == 'vcc' else self.rng_(o)[0]
        m = m & self.exec
        w = (U(1) << np.arange(32, dtype=U))[None, :]
        self.S[b] = (m[:, :32] * w).sum(1, dtype=np.uint64).astype(U)
        self.S[b + 1] = (m[:, 32:] * w).sum(1, dtype=np.uint64).astype(U)

    def gaddr(self, ops, mods, nbytes):
        va, R, so = ops
        b = self.rng_(R)[0]
        hi = self.S[b + 1]
        if int(hi[0]) == 0xc0de: return None, None, None
        slot = int(hi[0]) - 16
        assert (hi == hi[0]).all() and 0 <= slot < 10 and (self.S[b] == 0).all(), 'bad srd'
        assert (self.S[b + 3] == 0x20000).all()
        nrec = int(self.S[b + 2][0])
        m = re.search(r'offset:(\d+)', mods); imm = int(m.group(1)) if m else 0
        voff = self.V[self.reg(va)].astype(np.int64) + imm
        tot = voff + self.sval(so).astype(np.int64)[:, None]
        ok = (voff + nbytes <= nrec) & self.exec
        bad = ok & (tot + nbytes > nrec)
        if bad.any(): self.err(f'global OOB via soffset max={tot[bad].max()} nrec={nrec}')
        amb = (~ok) & self.exec & (voff < 0x40000000)
        if amb.any(): self.err(f'unintended voffset OOB {voff[amb].max()} nrec={nrec}')
        if (tot[ok] % 4).any(): self.err('misaligned global')
        ok &= ~bad
        return slot, np.where(ok, tot, 0) // 4, ok

    def lds_rd_check(self, dw):
        if not self.check: return
        for w in range(4):
            a = dw[w].ravel()
            ww = self.w_wave[a]; wo = self.w_op[a]
            for op in np.unique(wo):
                sel = wo == op
                if op < 0:
                    continue
                ret = self.op_ret.get(int(op))
                if ret is None: self.err(f'LDS read of unretired write op{op} {self.prog[op].text}')
                elif ret >= self.epoch and (ww[sel] != w).any(): self.err(f'LDS read without barrier, writer op{op} {self.prog[op].text}')
            self.r_ep[w, a] = self.epoch; self.r_op[w, a] = self.idx

    def lds_wr_check(self, dw, act, data, dma):
        if not self.check: return
        for w in range(4):
            a = dw[w][act[w]].ravel(); d = data[w][act[w]].ravel()
            keep = (a < (0x24000 + 0x3800) // 4) | (a >= (0x24000 + 0x3810) // 4)
            a = a[keep]; d = d[keep]
            for w2 in range(4):
                ro = self.r_op[w2, a]
                for op in np.unique(ro):
                    if op < 0: continue
                    ret = self.op_ret.get(int(op))
                    if w2 == w:
                        if dma and ret is None: self.err(f'DMA over own unretired read op{op} {self.prog[op].text}')
                    else:
                        ep = self.r_ep[w2, a][ro == op].max()
                        if ep >= self.epoch: self.err(f'LDS WAR without barrier vs op{op} {self.prog[op].text}')
                        elif not dma and (ret is None or ret >= self.epoch): self.err(f'LDS WAR (unretired read) vs op{op} {self.prog[op].text}')
            wo = self.w_op[a]; ww = self.w_wave[a]
            for op in np.unique(wo):
                if op < 0: continue
                sel = (wo == op)
                ret = self.op_ret.get(int(op))
                other = sel & (ww != w)
                if op == self.idx:
                    if (self.lds[0, a[other]] != d[other]).any(): self.err('same-op WAW with different data')
                    continue
                if other.any() and (ret is None or ret >= self.epoch):
                    if (self.lds[0, a[other]] != d[other]).any(): self.err(f'LDS WAW without barrier vs op{op} {self.prog[op].text}')
                own = sel & (ww == w)
                if own.any() and ret is None and (dma or self.prog[op].kind == 'dma'): self.err(f'own WAW unordered vs op{op} {self.prog[op].text}')
            self.lds[0, a] = d
            self.w_wave[a] = w; self.w_op[a] = self.idx

    def retire(self, q, n):
        while len(q) > n:
            op, info = q.pop(0)
            self.op_ret[op] = self.epoch
            if info is not None:
                self.wret[info] = self.idx

    G128 = [np.r_[0:4, 12:16, 20:28], np.r_[4:12, 16:20, 28:32]]

    def bankconf(self, ins, a):
        ex = self.exec[0]
        nd = a.shape[1]
        if nd == 4: grp = [self.G128[0], self.G128[1], self.G128[0] + 32, self.G128[1] + 32]
        elif nd == 2: grp = [np.arange(32), np.arange(32, 64)]
        else: grp = [np.arange(64)]
        extra = 0
        for g in grp:
            x = np.unique(a[g][ex[g]].ravel())
            if x.size: extra += np.bincount(x % 64).max() - 1
        k = (ins.op, re.sub(r'\d+', '', str(ins.tok)))
        c = self.conf.setdefault(k, [0, 0]); c[0] += 1; c[1] += extra

    def mat(self, r, n=4):
        x = self.V[r:r + n]
        lo = (x << U(16)).view(np.float32); hi = (x & U(0xffff0000)).view(np.float32)
        return np.stack([lo, hi], -1).transpose(1, 2, 0, 3).reshape(self.NW, 64, 2 * n)

    def run(self, stop=None, hooks=None):
        t0 = time.time()
        for idx, ins in enumerate(self.prog):
            self.idx = idx
            if hooks and idx in hooks: hooks[idx](self)
            if stop is not None and idx >= stop: break
            self.exec_all = bool(self.exec.all())
            self.step(ins)
        print('sim done', time.time() - t0, 's; errors', len(self.errors))

    def step(self, ins):
        t = ins.text.strip()
        if ins.kind == 'label': return
        parts = t.split(None, 1); op = parts[0].replace('_e64', '')
        rest = parts[1] if len(parts) > 1 else ''
        if op.startswith('s_waitcnt'):
            m = re.search(r'vmcnt\((\d+)\)', t)
            if m: self.retire(self.vm, int(m.group(1)))
            m = re.search(r'lgkmcnt\((\d+)\)', t)
            if m: self.retire(self.lg, int(m.group(1)))
            return
        mm = re.search(r'\s(op_sel\S*.*)$', rest)
        pkmods = ''
        if mm: pkmods = mm.group(1); rest = rest[:mm.start()]
        ops = [o.strip() for o in rest.split(',')] if rest else []
        mods = ''
        if ops:
            lp = ops[-1].split(None, 1); ops[-1] = lp[0]; mods = lp[1] if len(lp) > 1 else ''
        V = self.V; S = self.S; vu = self.vu; vf = self.vf; vs = self.vset
        with np.errstate(all='ignore'):
            if op == 's_barrier':
                self.epoch += 1
                self.known[self.wid, self.wid] = self.idx
                k4 = self.known.reshape(self.nwg, 4, self.NW).max(1)
                self.known[:] = np.repeat(k4, 4, axis=0)
            elif op in ('s_nop', 's_setprio'): pass
            elif op == 's_cbranch_scc1': assert not self.scc.any()
            elif op == 's_cbranch_vccnz':
                nm = ops[0][5:]
                slot, a, ldi = self.polled[nm]
                if (S[106] | S[107]).any():
                    self.slowpolls.append(nm)
                    k = self.idx - 1
                    while not self.prog[k].op.startswith('v_cmp'): k -= 1
                    assert nm != 'tag'
                    seq = [ldi, self.prog[k]]
                    for x in seq: self.step(x)
                    self.vm.pop()
                    if (S[106] | S[107]).any(): self.err('poll not satisfied in program order')
                ua = np.unique(a, axis=0, return_inverse=True)
                for n_, row in enumerate(ua[0]):
                    kk = None
                    for dw in np.unique(row):
                        for by in (0,):
                            sn = self.snap.get((slot, int(dw) * 4 + by))
                            if sn is None: self.err('polled flag never stored'); continue
                            kk = sn if kk is None else np.maximum(kk, sn)
                    sel = np.nonzero(ua[1].ravel() == n_)[0]
                    if kk is not None: self.known[sel] = np.maximum(self.known[sel], kk[None, :])
            elif op == 's_load_dwordx2':
                b = self.rng_(ops[0])[0]; S[b] = 0; S[b + 1] = 16 + int(ops[2]) // 8
            elif op == 's_getpc_b64':
                b = self.rng_(ops[0])[0]; S[b] = 0; S[b + 1] = 0xc0de
            elif op in ('s_memtime', 's_memrealtime'):
                b = self.rng_(ops[0])[0]; S[b] = self.idx + 2 * self.wid; S[b + 1] = 5
            elif op == 's_mov_b32' and ops[0].startswith('exec_'):
                v = int(ops[1], 0) & 0xffffffff; o = 32 if ops[0] == 'exec_hi' else 0
                self.exec = self.exec.copy(); self.exec[:, o:o + 32] = np.array([(v >> k) & 1 for k in range(32)], bool)
            elif op in ('s_mov_b32', 's_movk_i32'): self.sset(ops[0], self.sval(ops[1]))
            elif op == 's_mov_b64':
                assert ops[0] == 'exec'
                v = int(ops[1], 0) & (2**64 - 1)
                self.exec = np.tile(np.array([(v >> k) & 1 for k in range(64)], bool), (self.NW, 1))
            elif op == 's_cselect_b64':
                b = self.rng_(ops[0])[0]
                v = np.where(self.scc, self.sval(ops[1]), self.sval(ops[2])); S[b] = v; S[b + 1] = v
            elif op == 's_cselect_b32': self.sset(ops[0], np.where(self.scc, self.sval(ops[1]), self.sval(ops[2])))
            elif op.startswith('s_cmp'):
                a, b = self.sval(ops[0]), self.sval(ops[1])
                self.scc = {'ge': a >= b, 'eq': a == b, 'lt': a < b}[op.split('_')[2]]
            elif op.startswith('s_'):
                a, b = self.sval(ops[1]), self.sval(ops[2])
                if op in ('s_add_u32', 's_add_i32'): r = a + b
                elif op == 's_sub_u32': r = a - b
                elif op == 's_mul_i32': r = a * b
                elif op == 's_and_b32': r = a & b
                elif op == 's_xor_b32': r = a ^ b
                elif op == 's_or_b32': r = a | b
                elif re.match(r's_lshl\d_add_u32', op): r = (a << U(int(op[6]))) + b
                elif op == 's_lshl_b32': r = a << (b & U(31))
                elif op == 's_lshr_b32': r = a >> (b & U(31))
                elif op == 's_min_u32': r = np.minimum(a, b)
                elif op == 's_bfe_u32': r = (a >> (b & U(31))) & ((U(1) << ((b >> U(16)) & U(31))) - U(1))
                else: raise ValueError(t)
                self.sset(ops[0], r.astype(U))
            elif op.startswith('v_mfma') and '4x4x4' in op:
                assert self.exec_all
                d, nd = self.rng_(ops[0])
                A = self.mat(self.rng_(ops[1])[0], 2).reshape(self.NW, 16, 4, 4)
                B = self.mat(self.rng_(ops[2])[0], 2).reshape(self.NW, 16, 4, 4)
                D = np.einsum('wbik,wbjk->iwbj', A, B).reshape(4, self.NW, 64).astype(np.float32)
                if ops[3] != '0':
                    c = self.rng_(ops[3])[0]; D = D + V[c:c + nd].view(np.float32)
                V[d:d + nd] = np.ascontiguousarray(D).view(U)
            elif op.startswith('v_mfma'):
                assert self.exec_all
                d, nd = self.rng_(ops[0])
                A = self.mat(self.rng_(ops[1])[0]); B = self.mat(self.rng_(ops[2])[0])
                n = 32 if '32x32' in op else 16
                kg = 64 // n
                A = A.reshape(self.NW, kg, n, 8).transpose(0, 2, 1, 3).reshape(self.NW, n, kg * 8)
                B = B.reshape(self.NW, kg, n, 8).transpose(0, 1, 3, 2).reshape(self.NW, kg * 8, n)
                D = np.matmul(A, B)
                if n == 32: D = D.reshape(self.NW, 4, 2, 4, 32).transpose(1, 3, 0, 2, 4).reshape(16, self.NW, 64)
                else: D = D.reshape(self.NW, 4, 4, 16).transpose(2, 0, 1, 3).reshape(4, self.NW, 64)
                if ops[3] != '0':
                    c = self.rng_(ops[3])[0]; D = D + V[c:c + nd].view(np.float32)
                V[d:d + nd] = np.ascontiguousarray(D).view(U)
            elif op.startswith('ds_read'):
                d, nd = self.rng_(ops[0])
                m = re.search(r'offset:(\d+)', mods); imm = int(m.group(1)) if m else 0
                a = V[self.reg(ops[1])].astype(np.int64) + imm
                if (a + 4 * nd > 163840).any(): self.err('LDS OOB read')
                if (a % (4 * min(nd, 2) if nd < 4 else 16)).any(): self.err('LDS misaligned read')
                a = (a // 4)[..., None] + np.arange(nd)
                self.bankconf(ins, a[0])
                self.lds_rd_check(a[:4])
                x = self.lds[self.wg[..., None], a]
                if 'tr_b16' in op:
                    assert self.exec_all
                    e = np.stack([x & U(0xffff), x >> U(16)], -1).reshape(self.NW, 4, 4, 4, 4)
                    e = e.transpose(0, 1, 3, 4, 2).reshape(self.NW, 64, 4)
                    x = np.stack([e[..., 0] | (e[..., 1] << U(16)), e[..., 2] | (e[..., 3] << U(16))], -1)
                for k in range(nd): vs(d + k, x[..., k])
                self.lg.append((self.idx, None))
            elif op.startswith('ds_write'):
                s, ns = self.rng_(ops[1])
                m = re.search(r'offset:(\d+)', mods); imm = int(m.group(1)) if m else 0
                a = V[self.reg(ops[0])].astype(np.int64) + imm
                if (a + 4 * ns > 163840).any(): self.err('LDS OOB write')
                if (a % (4 * ns)).any(): self.err('LDS misaligned write')
                a = (a // 4)[..., None] + np.arange(ns)
                self.bankconf(ins, a[0])
                data = V[s:s + ns].transpose(1, 2, 0)
                self.lds_wr_check(a[:4], self.exec[:4], data[:4], False)
                wg = np.broadcast_to(self.wg[..., None], a.shape)
                self.lds[wg[self.exec], a[self.exec]] = data[self.exec]
                self.lg.append((self.idx, None))
            elif op.startswith('buffer_load'):
                lds = ins.kind == 'dma'
                n = {'dword': 1, 'dwordx2': 2, 'dwordx4': 4}[op.split('_')[2]]
                slot, a, ok = self.gaddr(ops[-3:], mods, 4 * n)
                if slot is None:
                    self.vm.append((self.idx, None)); return
                a = a[..., None] + np.arange(n)
                x = np.where(ok[..., None], self.bufs[slot][a], U(0))
                if slot == 8:
                    assert 'sc1' in mods and ok.all()
                    self.polled[ins.tok] = (slot, a[..., 0], ins)
                if slot == 9 and self.check:
                    assert 'sc1' in mods
                    if a[ok].max() < 0x20000 // 4:
                        assert ok.all()
                        self.polled[ins.tok] = (slot, a[..., 0], ins)
                    else:
                        okk = np.broadcast_to(ok[..., None], a.shape)
                        cons = np.broadcast_to(self.wid[:, None, None], a.shape)[okk]
                        aa = a[okk]; pr = self.wprod[aa]
                        un = pr < 0
                        if un.any(): self.err(f'load of unwritten ws {un.sum()}')
                        bad = (~un) & (self.known[cons, pr] <= self.wret[aa])
                        if bad.any(): self.err(f'hand-off not covered by a checked flag: {bad.sum()}')
                if lds:
                    m = re.search(r'offset:(\d+)', mods); imm = int(m.group(1)) if m else 0
                    la = (S[124].astype(np.int64)[:, None] + imm + 16 * self.lane) // 4
                    if (la * 4 + 16 > 163840)[self.exec].any(): self.err('DMA LDS OOB')
                    la = la[..., None] + np.arange(4)
                    self.lds_wr_check(la[:4], self.exec[:4], x[:4], True)
                    wg = np.broadcast_to(self.wg[..., None], la.shape)
                    self.lds[wg[self.exec], la[self.exec]] = x[self.exec]
                else:
                    d, nd = self.rng_(ops[0])
                    for k in range(nd): vs(d + k, x[..., k])
                self.vm.append((self.idx, None))
            elif op == 'buffer_store_byte':
                va, R, so = ops[-3:]
                b = self.rng_(R)[0]; slot = int(S[b + 1][0]) - 16
                assert slot == 8 and 'sc1' in mods and so == '0'
                voff = V[self.reg(va)].astype(np.int64)
                ok = (voff < 256) & self.exec
                if ((~ok) & self.exec & (voff < 0x40000000)).any(): self.err('byte store OOB')
                self.bufs[8].view(np.uint8)[voff[ok]] = (V[self.reg(ops[0])][ok] & 255).astype(np.uint8)
                self.known[self.wid, self.wid] = self.idx
                for w, l_ in zip(*np.nonzero(ok)): self.snap[(8, int(voff[w, l_]))] = self.known[w].copy()
                self.vm.append((self.idx, None))
            elif op.startswith('buffer_store'):
                s, ns = self.rng_(ops[0])
                slot, a, ok = self.gaddr(ops[-3:], mods, 4 * ns)
                assert slot >= 7
                a = a[..., None] + np.arange(ns)
                data = V[s:s + ns].transpose(1, 2, 0)
                self.bufs[slot][a[ok]] = data[ok]
                info = None
                if slot == 9:
                    info = a[ok].ravel()
                    self.wprod[info] = np.broadcast_to(self.wid[:, None, None], a.shape)[ok].ravel()
                    self.wret[info] = 2**30; self.wiss[info] = self.idx
                    if 'sc1' not in mods and info.size and info.max() < 0x3000000 // 4: self.err('ws store without sc1')
                    if info.size and info.max() < 0x20000 // 4:
                        self.known[self.wid, self.wid] = self.idx
                        for w, l_ in zip(*np.nonzero(ok)):
                            dw = int(a[w, l_, 0])
                            assert (9, dw * 4) not in self.snap and ns == 2 and dw % 2 == 0
                            self.snap[(9, dw * 4)] = self.known[w].copy()
                if slot == 8:
                    for w, l_ in zip(*np.nonzero(ok)): self.snap[(8, int(a[w, l_, 0]) * 4)] = self.known[w].copy()
                self.vm.append((self.idx, info))
            elif op == 'buffer_atomic_add':
                slot, a, ok = self.gaddr(ops[-3:], mods, 4)
                np.add.at(self.bufs[slot], a[ok], V[self.reg(ops[0])][ok])
                self.vm.append((self.idx, None))
            elif op == 'v_readfirstlane_b32': self.sset(ops[0], V[self.reg(ops[1])][:, 0])
            elif op == 'v_writelane_b32': V[self.reg(ops[0])][:, int(ops[2])] = self.sval(ops[1])
            elif op in ('v_mov_b32', 'v_accvgpr_read_b32', 'v_accvgpr_write_b32'):
                vs(ops[0], np.broadcast_to(vu(ops[1]), (self.NW, 64)).copy())
            elif op == 'v_cmp_ne_u64':
                b = self.rng_(ops[1])[0]; v = self.rng_(ops[2])[0]
                self.mask_set(ops[0], (V[v] != S[b][:, None]) | (V[v + 1] != S[b + 1][:, None]))
            elif op.startswith('v_cmp'):
                a, b = vu(ops[1]), vu(ops[2])
                r = {'eq': a == b, 'ne': a != b, 'gt': a > b, 'le': a <= b, 'lt': a < b, 'ge': a >= b}[op.split('_')[2]]
                self.mask_set(ops[0], np.broadcast_to(r, (self.NW, 64)))
            elif op == 'v_cndmask_b32': vs(ops[0], np.where(self.mask_get(ops[3]), vu(ops[2]), vu(ops[1])).astype(U))
            elif op == 'v_permlane32_swap_b32':
                a, b = self.reg(ops[0]), self.reg(ops[1])
                tmp = V[a][:, 32:].copy(); V[a][:, 32:] = V[b][:, :32]; V[b][:, :32] = tmp
            elif op == 'v_permlane16_swap_b32':
                a, b = self.reg(ops[0]), self.reg(ops[1])
                for h in (0, 32):
                    tmp = V[a][:, h + 16:h + 32].copy(); V[a][:, h + 16:h + 32] = V[b][:, h:h + 16]; V[b][:, h:h + 16] = tmp
            elif op == 'v_cvt_pk_bf16_f32':
                vs(ops[0], bf16_round(vf(ops[1])) | (bf16_round(vf(ops[2])) << U(16)))
            elif op == 'v_pk_max_i16':
                assert ops[2] == '0'
                x = vu(ops[1])
                vs(ops[0], np.where(x & U(0x8000), U(0), x & U(0xffff)) | np.where(x & U(0x80000000), U(0), x & U(0xffff0000)))
            elif op == 'v_dot2c_f32_bf16':
                a, b = np.asarray(vu(ops[1])), np.asarray(vu(ops[2]))
                f = lambda x: ((x << U(16)).view(np.float32), (x & U(0xffff0000)).view(np.float32))
                (al, ah), (bl, bh) = f(a), f(b)
                vs(ops[0], (vf(ops[0]) + al * bl + ah * bh).astype(np.float32))
            elif op.startswith('v_pk_') and op.endswith('f32'):
                d = self.rng_(ops[0])[0]
                def g(o, k):
                    if o[0] == 'v': return V[self.rng_(o)[0] + k].view(np.float32)
                    assert pkmods == 'op_sel_hi:[1,0]'
                    return np.float32(float(o))
                r = []
                for k in range(2):
                    if 'mul' in op: r.append(g(ops[1], k) * g(ops[2], k))
                    elif 'add' in op: r.append(g(ops[1], k) + g(ops[2], k))
                    else: r.append(g(ops[1], k) * g(ops[2], k) + g(ops[3], k))
                vs(d, r[0]); vs(d + 1, r[1])
            elif op.endswith('_f32'):
                x = [vf(o) for o in ops[1:]]
                r = {'v_add_f32': lambda: x[0] + x[1], 'v_mul_f32': lambda: x[0] * x[1], 'v_max_f32': lambda: np.maximum(x[0], x[1]),
                     'v_min_f32': lambda: np.minimum(x[0], x[1]), 'v_fma_f32': lambda: (x[0].astype(np.float64) * x[1] + x[2]).astype(np.float32),
                     'v_max3_f32': lambda: np.maximum(np.maximum(x[0], x[1]), x[2]), 'v_min3_f32': lambda: np.minimum(np.minimum(x[0], x[1]), x[2]),
                     'v_exp_f32': lambda: np.exp2(x[0]), 'v_rcp_f32': lambda: np.float32(1) / x[0], 'v_sqrt_f32': lambda: np.sqrt(x[0]),
                     'v_sub_f32': lambda: x[0] - x[1]}[op]()
                vs(ops[0], np.broadcast_to(r.astype(np.float32), (self.NW, 64)))
            else:
                x = [np.asarray(vu(o)) for o in ops[1:]]
                m24 = U(0xffffff)
                r = {'v_and_b32': lambda: x[0] & x[1], 'v_or_b32': lambda: x[0] | x[1], 'v_xor_b32': lambda: x[0] ^ x[1],
                     'v_add_u32': lambda: x[0] + x[1], 'v_sub_u32': lambda: x[0] - x[1], 'v_subrev_u32': lambda: x[1] - x[0],
                     'v_lshlrev_b32': lambda: x[1] << (x[0] & U(31)), 'v_lshrrev_b32': lambda: x[1] >> (x[0] & U(31)),
                     'v_mul_u32_u24': lambda: (x[0] & m24) * (x[1] & m24), 'v_lshl_add_u32': lambda: (x[0] << x[1]) + x[2],
                     'v_lshl_or_b32': lambda: (x[0] << x[1]) | x[2], 'v_and_or_b32': lambda: (x[0] & x[1]) | x[2],
                     'v_mad_u32_u24': lambda: (x[0] & m24) * (x[1] & m24) + x[2],
                     'v_bfe_i32': lambda: ((x[0] << (U(32) - x[1] - x[2])).astype(U).view(np.int32) >> (32 - int(x[2]))).view(U),
                     'v_min_u32': lambda: np.minimum(x[0], x[1]), 'v_bfe_u32': lambda: (x[0] >> x[1]) & ((U(1) << x[2]) - U(1))}[op]()
                vs(ops[0], np.broadcast_to(r.astype(U), (self.NW, 64)))


def bf(x): return bf2f(bf16_round(x))


def make_inputs(seed):
    rng = np.random.default_rng(seed)
    rn = lambda sh, sc: bf(bf(rng.standard_normal(sh).astype(np.float32)) * np.float32(sc))
    x = rn((2048, 576), 0.05); wqkv = rn((576, 1728), 0.2); wphi = bf(rn((32, 18, 18), 0.2) * np.float32(18 ** -0.5))
    wo = rn((576, 576), 0.05); bx = rn((2048, 576), 0.05); w1 = rn((576, 4608), 0.05); w2 = rn((4608, 576), 0.05)
    return [x, wqkv, wphi, wo, bx, w1, w2]


def pack(a):
    u = bf16_round(a).astype(np.uint16).ravel()
    return u.view(U).copy()


def emu(inp):
    x, wqkv, wphi, wo, _, w1, w2 = inp
    R = {}
    m = x.mean(-1, keepdims=True); v = (x * x).mean(-1, keepdims=True) - m * m
    mb = bf(m); sd = bf(np.sqrt(bf(bf(v) + np.float32(1e-5)))); rs = 1 / sd
    d = bf(x - mb)
    R['d'] = d; R['rs'] = rs
    h = bf(np.maximum(d @ w1, 0)); R['h'] = h
    R['yp'] = np.stack([bf(h[:, q * 1152:(q + 1) * 1152] @ w2[q * 1152:(q + 1) * 1152, :512]) for q in range(4)])
    R['y8'] = np.stack([bf(h[:, j * 288:(j + 1) * 288] @ w2[j * 288:(j + 1) * 288, 512:]) for j in range(16)])
    y = np.concatenate([R['yp'].sum(0), R['y8'].sum(0)], -1) * rs
    qkv = bf(d @ wqkv).reshape(2048, 3, 32, 18).transpose(1, 2, 0, 3)
    sm = lambda p: np.exp(p - p.max(-1, keepdims=True)) / np.exp(p - p.max(-1, keepdims=True)).sum(-1, keepdims=True)
    pq = (qkv[0] @ wphi) * rs; pk = (qkv[1] @ wphi) * rs
    phq = bf(np.concatenate([sm(pq), sm(-pq)], -1)); phk = bf(np.concatenate([sm(pk), sm(-pk)], -1) * rs)
    v1 = np.concatenate([qkv[2], np.broadcast_to(sd, (32, 2048, 1))], -1)
    R['kvp'] = bf(np.einsum('hrsf,hrsd->rhfd', phk.reshape(32, 16, 128, 36), v1.reshape(32, 16, 128, 19)))
    kv = bf(R['kvp'].sum(0))
    nd = phq @ kv
    o = bf(nd[..., :18] / (nd[..., 18:] + 1e-6)).transpose(1, 0, 2).reshape(2048, 576); R['o'] = o
    s = o @ wo
    R['out'] = bf(x + s * y / (1 + np.exp(-y)))
    return R


def ref_torchlike(inp):
    x, wqkv, wphi, wo, _, w1, w2 = inp
    m = bf(x.mean(-1, keepdims=True)); v = bf(x.var(-1, keepdims=True))
    xn = bf(bf(x - m) / bf(np.sqrt(bf(v + np.float32(1e-5)))))
    qkv = bf(xn @ wqkv).reshape(2048, 3, 32, 18).transpose(1, 2, 0, 3)
    sm = lambda p: bf(np.exp(p - p.max(-1, keepdims=True)) / np.exp(p - p.max(-1, keepdims=True)).sum(-1, keepdims=True))
    pq = bf(qkv[0] @ wphi); pk = bf(qkv[1] @ wphi)
    phq = np.concatenate([sm(pq), sm(-pq)], -1); phk = np.concatenate([sm(pk), sm(-pk)], -1)
    kv = bf(phk.transpose(0, 2, 1) @ qkv[2]); z = bf(phk.sum(1))
    num = bf(phq @ kv); den = bf(bf(np.einsum('hqf,hf->hq', phq, z))[..., None] + np.float32(1e-6))
    o = bf(num / den).transpose(1, 0, 2).reshape(2048, 576)
    s = bf(o @ wo)
    y = bf(np.maximum(bf(xn @ w1), 0) @ w2)
    g = bf(y / (1 + np.exp(-y)))
    return bf(x + bf(s * g))


def unpack_ws(ws, hoff):
    from kern2 import WS_H, WS_KV, WS_OM, WS_OX, WS_Y, WS_Y8
    R = {}
    b16 = lambda off, n: bf2f(ws[off // 4: off // 4 + n].view(np.uint16))
    hh = b16(WS_H, 1024 * 4608).reshape(16, 16, 4, 9, 2, 2, 32, 2, 4)
    hh = hh.transpose(0, 2, 6, 1, 3, 4, 7, 5, 8).reshape(2048, 16, 9, 32)
    h = np.zeros((2048, 4608), np.float32)
    for j in range(16):
        for tau in range(9):
            o = 288 * j + hoff[tau][0] + hoff[tau][1] * (j & 1)
            h[:, o:o + 32] = hh[:, j, tau]
    R['h'] = h
    kv = b16(WS_KV, 256 * 768).reshape(16, 16, 1536)[:, :, :1440].reshape(16, 16, 2, 5, 36, 4)
    kv = kv.transpose(1, 0, 2, 4, 3, 5).reshape(16, 16, 2, 36, 20)
    A = kv[:, :, 0, :, :19]
    B = np.concatenate([kv[:, :, 1, :, 18:20], kv[:, :, 1, :, :16], kv[:, :, 1, :, 16:17]], -1)
    R['kvp'] = np.stack([A, B], 2).reshape(16, 32, 36, 19)
    om = b16(WS_OM, 64 * 16 * 512).reshape(64, 16, 2, 2, 32, 8)
    ox = b16(WS_OX, 64 * 1024).reshape(64, 2, 4, 32, 2, 4)
    o = np.zeros((64, 32, 16, 36), np.float32)
    mm = om.transpose(0, 4, 1, 3, 2, 5).reshape(64, 32, 16, 2, 16)
    o[..., 0:16] = mm[..., 0, :]; o[..., 20:36] = mm[..., 1, :]
    o[..., 16:20] = ox.transpose(0, 3, 1, 4, 2, 5).reshape(64, 32, 16, 4)
    R['o'] = o.reshape(2048, 576)
    y = b16(WS_Y, 1024 * 2048).reshape(16, 4, 4, 4, 2, 2, 2, 2, 32, 2, 4).copy()
    for q in range(4):
        for w in range(4):
            if (q >> 1) == (w >> 1): y[:, :, w, q, q & 1] = np.inf
    R['yp'] = y.transpose(3, 0, 2, 8, 1, 4, 5, 6, 9, 7, 10).reshape(4, 2048, 512)
    y8 = b16(WS_Y8, 64 * 8 * 16 * 128).reshape(64, 8, 16, 32, 8)
    R['y8'] = y8.transpose(2, 0, 3, 1, 4).reshape(16, 2048, 64)
    return R


def compare(R, G):
    for k in ('h', 'kvp', 'o', 'yp', 'y8', 'out', 'ref'):
        if k not in R: continue
        a, b = R[k], G['out' if k == 'ref' else k]
        ok = ~np.isinf(b)
        a = a[ok]; b = b[ok]
        d = a - b
        print(f'{k:4s} relL2={np.sqrt((d*d).sum()/(a*a).sum()):.5f} maxabs={np.abs(d).max():.5f} ref_rms={np.sqrt((a*a).mean()):.4f} nan={np.isnan(b).sum()}')


if __name__ == '__main__':
    from kern2 import Gen, Cfg
    kw = {}
    for a in sys.argv[1:]:
        k, v = a.split('='); kw[k] = eval(v)
    g = Gen(Cfg(**kw)); prog = g.build()
    inp = make_inputs(0)
    rng = np.random.default_rng(5)
    bufs = [pack(a) for a in inp] + [rng.integers(0, 2**32, 2048 * 288, dtype=U), np.zeros(64, U), rng.integers(0, 2**32, 0x3100000 // 4, dtype=U)]
    bufs[9][:0x20000 // 4:2] = 7; bufs[9][1:0x20000 // 4:2] = 0x80000005
    s = Sim(prog, bufs)
    s.run()
    print('slow polls', s.slowpolls)
    print('lds conflicts', {k: v for k, v in s.conf.items() if v[1]})
    G = unpack_ws(bufs[9], g.hoff); G['out'] = bf2f(bufs[7].view(np.uint16)).reshape(2048, 576)
    R = emu(inp); R['ref'] = ref_torchlike(inp)
    compare(R, G)
    np.savez('simdump.npz', **{'G' + k: v for k, v in G.items()}, **{'R' + k: v for k, v in R.items()})
```

```python
import sys, os
sys.path.insert(0, os.path.dirname(os.path.abspath(__file__)))
from asmlib import *

NAME = 'recurrent_scan__linear_kernel_hedgehog__dense_activation_relu__prompt'

SLOT = 36864
E = 147456
E2 = E + 5120
RSA = E + 12288
DUMMY = E + 0x3800
OOB = 0x80000000
FL_H, FL_KV, FL_O, FL_RP, FL_WO, FL_Y = 0x0, 0x8000, 0xA000, 0xC000, 0xE000, 0x10000
WS_KV, WS_RP, WS_WO, WS_OM, WS_OX, WS_Y8, WS_Y, WS_H, WS_TS = 0x20000, 0x100000, 0x400000, 0x500000, 0x700000, 0x800000, 0xC00000, 0x1400000, 0x3000000
WS_SIZE = 268435456
RPI = {'Ta': 0, 'Tb': 1, 'Tc': 2, 'Td': 3, 'S': 4}
X, QKV, PHI, WO, W1, W2, OUT, DBG, WS = 4, 8, 12, 16, 20, 24, 28, 32, 36
srd = lambda n: f's[{n}:{n+3}]'
SIZES = {X: 2359296, QKV: 1990656, PHI: 20736, WO: 663552, W1: 5308416, W2: 5308416, OUT: 2359296, DBG: 256, WS: WS_SIZE}
KOFF = {X: 0, QKV: 8, PHI: 16, WO: 24, W1: 40, W2: 48, OUT: 56, DBG: 64, WS: 72}
soP = 40
soPb = [88, 89, 90, 91, 92, 93, 96, 97, 101]
PIMM = [0, 1, 2, 3, 0, 1, 2, 3, 0] + [0, 1, 2, 0, 1, 2, 3, 0, 1]
sN = 94
sD = 49
sMi = 54
sMiM = 58
sA = 60
sAM = 64
sPe = 66
sW, sR, sJ, sQ, sJJ, sWL = 67, 68, 69, 70, 71, 72
sHown, sFH, sFKV, sFO, sFY, sRP, sPF = 73, 74, 75, 76, 77, 78, 79
sPe2, sHb = 80, 81
sE = 82
sXO, sYc, sOMc = 85, 86, 87
sT0, sT1, sT2, sT3 = 90, 91, 92, 93
sHH = 98
sSPIN = 100
vL16 = 1
vK = 2
vW1, vPA, vS, vCur, vF0, vONE, vRS, vC, vSD, vCur2 = 11, 12, 13, 14, 15, 16, 17, 18, 19, 20
vPF, vPo, vPa, vPU = 21, 22, 24, 25
vAt = 26
ACC = (32, 48)
ACC0 = (80, 96)
vH = 64
vX = 112
GA = 136
RING = 144
aPHI = 184
aKV = 208
aSEL = 176
aN = 180
aRP, aWP, aWO, aPK = 208, 228, 232, 236
LOG2E = 0x3fb8aa3b


class Cfg:
    order = ['P0a', 'P0b', 'P1a', 'P1b', 'Ta', 'Tb', 'Tc', 'Td', 'S', 'P2a', 'P2b', 'P3a', 'P3b']
    D = 5
    we = 2
    ps = 8
    pk = 13
    woA = 10
    hl = (13, 14, 15, 16, 17, 18)
    wop = 9
    po = 19
    xlag = 3
    npre = 4
    xa = 5
    Ds = 8
    ts = False
    xrot = 1
    c8p = 2
    rps = 12
    rpf = 24
    pf = {'P2': 3, 'P3': 5, 'B8': 5, 'U0': 6, 'U1': 7, 'U2': 7, 'U3': 8}
    cap = 8
    pfs = 26
    dly = 6
    dend = 29
    osc = ''
    caps = {7: 9, 8: 9, 9: 9}
    kvx = (358, 406, 430, 30, 30)
    hfd = 30
    kvgap = 60
    krgap = 16
    msum = 0
    wim = 44
    pf1 = 1
    rpw = 3
    bulk = 2
    pf0p = 2
    t1p = 0
    head = 1
    nfill = 400
    tsx = ''
    tsg = None
    tsp = False
    spin = 20000
    pref = True
    skip = ''
    dbg = None
    xe = 24
    xl = 52
    pdist = 22

    def __init__(self, **kw):
        for k, v in kw.items():
            assert hasattr(self, k), k
            setattr(self, k, v)


def L(text, **kw):
    r = []
    for line in text.split('\n'):
        line = line.strip()
        if line:
            r.append(I(line, **kw)); kw.pop('gap', None)
    return r


def glue(lst):
    for x in lst[1:]: x.glue = True
    return lst


F_T = lambda d: f'v_bfe_u32 v{d}, v{vL16}, 4, 5'
F_HH = lambda d: f'v_lshrrev_b32 v{d}, 9, v{vL16}'
F_N = lambda d: f'v_bfe_u32 v{d}, v{vL16}, 4, 4'
F_G = lambda d: f'v_lshrrev_b32 v{d}, 8, v{vL16}'
F_R4 = lambda d: f'v_bfe_u32 v{d}, v{vL16}, 6, 2'
F_C4 = lambda d: f'v_bfe_u32 v{d}, v{vL16}, 4, 2'
F_TB = lambda d: f'v_bfe_u32 v{d}, v{vL16}, 8, 1'


class Gen:
    def __init__(self, cfg):
        self.c = cfg
        self.p = []
        self.slow = []
        self.nts = 0
        self.notes = []

    def E(self, x, **kw):
        if isinstance(x, str): self.p.extend(L(x, **kw))
        elif isinstance(x, list): self.p.extend(x)
        else: self.p.append(x)

    def stamp(self, name=''):
        if not self.c.ts: return []
        if self.c.tsg:
            r = glue(L(f'v_writelane_b32 v{vONE}, s0, 0\ns_memtime s[0:1]'))
            r[0].comment = name; r[1].kind = 'sctl'; r[1].wr = set()
        else:
            r = glue(L(f's_memtime s[0:1]\ns_waitcnt lgkmcnt(0)\nv_writelane_b32 v{vONE}, s0, 0'))
            r[2].comment = name
        for x in r: x.cost = 0
        return r

    def number_stamps(self):
        for x in self.p:
            if getattr(x, 'comment', None) is not None:
                self.nts += 1; self.notes.append(x.comment); assert self.nts < 59
                x.text = f'v_writelane_b32 v{vONE}, s0, {self.nts - 1 if self.c.tsg else self.nts}'

    def xs(self, name, grp):
        if not self.c.tsx or name not in self.c.tsx.split(): return grp
        g = grp[0].gap
        r = glue(self.stamp('<' + name) + grp + self.stamp(name + '>')); r[0].gap = g; r[0].glue = False
        return r

    def poll(self, name, srdn, vaddr, soff, reg, imm=0, tag=False):
        assert reg % 2 == 0
        ld = f'buffer_load_dwordx2 v[{reg}:{reg+1}], v{vaddr}, {srd(srdn)}, {soff} offen' + (f' offset:{imm}' if imm else '') + ' sc1'
        cmp = f'v_min_u32 v{vaddr}, v{reg}, v{reg+1}\nv_cmp_eq_u32 vcc, 0, v{vaddr}' if tag else f'v_cmp_ne_u64 vcc, s[{sN}:{sN+1}], v[{reg}:{reg+1}]'
        fix = f'v_mov_b32 v{vaddr}, 0\n' if tag else ''
        chk = [W(name)] + L(f'{cmp}\ns_cbranch_vccnz SLOW_{name}\nBACK_{name}:')
        self.slow.append(f'''SLOW_{name}:
s_mov_b32 s{sSPIN}, 0
LOOP_{name}:
{fix}{ld}
s_add_u32 s{sSPIN}, s{sSPIN}, 1
s_waitcnt vmcnt(0)
{cmp}
s_nop 1
s_cbranch_vccz BACK_{name}
s_cmp_lt_u32 s{sSPIN}, {self.c.spin}
s_cbranch_scc1 LOOP_{name}
s_branch BACK_{name}''')
        return I(ld, tok=name), self.xs(name, glue(chk))

    @staticmethod
    def flag(s_, o=0, v=vF0):
        return I(f'buffer_store_dwordx2 a[{aN}:{aN+1}], v{v}, {srd(WS)}, s{s_} offen' + (f' offset:{o}' if o else '') + ' sc1', tok='flag')

    def plan(self):
        c = self.c
        self.kind = list(c.order) + ['B8'] + [f'U{u}' for u in range(1, 9)]
        slot = {i: i for i in range(4)}
        loadp = {0: -1, 1: 0 if c.t1p else -1, 2: 0, 3: 1}
        free = []; nxt = 4; stag = None
        lead3 = c.woA >= 19
        for p in range(1, 22):
            free.append(slot[p - 1])
            if p == c.ps: stag = free.pop(0)
            if p == c.ps + 2: free.append(stag)
            lead = 3 if (lead3 and p >= c.ps + 2) else 2
            while nxt <= min(p + lead, 21) and (free or nxt <= p + 2):
                slot[nxt] = free.pop(0); loadp[nxt] = p; nxt += 1
            if p == c.woA: slot['woA'] = free.pop(0); loadp['woA'] = p
            if p == 20: slot['woB'] = free.pop(0); loadp['woB'] = p
            if p == 21: slot['Y'] = free.pop(0)
        assert nxt == 22 and 'woA' in slot
        self.slot = {k: v * SLOT for k, v in slot.items()}
        self.slotS = stag * SLOT
        self.loadp = loadp
        self.tau = {}
        self.hoff = []
        self.acc = {}
        self.chain = []
        fin = {ACC[0]: -2, ACC[1]: -1}
        for i, k in enumerate(self.kind[:14]):
            if k[0] == 'P':
                pr, hf = int(k[1]), k[2] == 'b'
                if pr == 0:
                    assert i == (1 if hf else 0)
                    for mt in range(2): self.acc[(i, mt)] = ACC0[mt]
                    if hf:
                        for mt in range(2): self.chain.append((mt, 72 - 2 + mt, ACC0[mt], (i, mt)))
                elif not hf:
                    assert self.kind[i + 1] == k[:2] + 'b'
                    a0 = min(fin, key=fin.get); a1 = max(fin, key=fin.get)
                    for mt, a in enumerate((a0, a1)):
                        self.acc[(i, mt)] = a; self.acc[(i + 1, mt)] = a
                        fin[a] = 36 * (i + 1) + 18 * mt + 17
                        self.chain.append((36 * i + 18 * mt, fin[a], a, (i + 1, mt)))
                if hf:
                    for mt in range(2):
                        self.tau[(i, mt)] = len(self.hoff); self.hoff.append((64 * pr + 32 * mt, 32))
            elif k == 'B8':
                a0 = min(fin, key=fin.get); a1 = max(fin, key=fin.get)
                for mt, a in enumerate((a0, a1)):
                    self.acc[(i, mt)] = a; self.chain.append((36 * i + 18 * mt, 36 * i + 18 * mt + 17, a, (i, mt)))
            else:
                a = min(fin, key=fin.get); self.acc[(i, 0)] = a; fin[a] = 36 * i + 35
                self.chain.append((36 * i, fin[a], a, (i, 0)))
                if k == 'S':
                    self.tau[(i, 0)] = len(self.hoff); self.hoff.append((256, -256))
        assert len(self.hoff) == 9
        self.g2 = {14: (0, 0, None), 15: (0, 1, None)}
        for n in range(6): self.g2[16 + n] = (1 + n % 3, n // 3, n % 4)

    def dma_item(self, i):
        out = []; tok = f'T{i}'
        kind = self.kind[i] if isinstance(i, int) else i
        sl = self.slot[i]
        m0 = lambda k: L(f's_add_u32 m0, s{sWL}, {sl + k*1024}')
        ld = lambda v, R, so, k, sc='': [I(f'buffer_load_dwordx4 v{v}, {srd(R)}, {so} offen offset:{(k%4)*1024}{sc} lds', tok=tok)]
        one = lambda t: out.extend([x] for x in L(t))
        if kind[0] == 'P':
            cur = int(kind[1]) * 128
            if cur != self.w1pos: one(f'v_add_u32 v{vW1}, {(cur - self.w1pos) & 0xffffffff}, v{vW1}')
            self.w1pos = cur
            for k in range(9):
                im = PIMM[k + (9 if kind[2] == 'b' else 0)]
                if im == 0: out.append(m0(k))
                out.append(ld(vW1, W1, f's{soPb[k] if kind[2] == "b" else soP+k}', im))
        elif kind in RPI or kind in ('woA', 'woB'):
            if kind in RPI: b = lambda k: f's_add_u32 s{sD}, s{sRP}, {RPI[kind]*SLOT + k*1024}'
            else:
                one(f's_lshl_b32 s{sD+1}, s{sJJ}, 1\ns_and_b32 s{sD}, s{sQ}, 1\ns_add_u32 s{sD+1}, s{sD+1}, s{sD}\ns_mul_i32 s{sD+1}, s{sD+1}, 82944\ns_add_u32 s{sD+1}, s{sD+1}, s{sWL}')
                b = lambda k: f's_add_u32 s{sD}, s{sD+1}, {WS_WO + (SLOT if kind == "woB" else 0) + k*1024}'
            for k in range(9):
                if k % 4 == 0: one(b(k)); out.append(m0(k))
                out.append(ld(vL16, WS, f's{sD}', k, ' sc1'))
        elif kind == 'B8':
            one(f's_mul_i32 s{sD+1}, s{sJ}, 36\ns_add_u32 s{sD+1}, s{sD+1}, s{sW}\ns_mul_i32 s{sD+1}, s{sD+1}, 9216\ns_add_u32 s{sD+1}, s{sD+1}, 1024')
            one(f's_and_b32 s{sD}, s{sJJ}, 1\ns_mul_i32 s{sD+2}, s{sD}, {32*1152}\ns_add_u32 s{sD+2}, s{sD+2}, s{sD+1}\ns_mul_i32 s{sD}, s{sD}, {256*1152}\ns_sub_u32 s{sD+1}, s{sD+1}, s{sD}')
            one(f'v_lshrrev_b32 v{vW1}, 7, v{vL16}\nv_mul_u32_u24 v{vW1}, 1152, v{vW1}\nv_bfe_u32 v{vCur2}, v{vL16}, 8, 1\nv_lshl_add_u32 v{vW1}, v{vCur2}, 6, v{vW1}\nv_and_b32 v{vCur2}, 0x70, v{vL16}\nv_xor_b32 v{vW1}, v{vW1}, v{vCur2}')
            for k in range(9):
                a, b = self.hoff[k]
                one(f's_add_u32 s{sD}, s{sD+2 if b == 32 else sD+1}, {(a*1152 - (k%4)*1024) & 0xffffffff}')
                if k % 4 == 0: out.append(m0(k))
                out.append(ld(vW1, W2, f's{sD}', k))
        else:
            pe, hf, _ = self.g2[i]
            one(f's_add_u32 s{sD}, s{sJJ}, {pe}\ns_and_b32 s{sD}, s{sD}, 3\ns_and_b32 s{sD+3}, s{sD}, 1\ns_lshl2_add_u32 s{sD}, s{sQ}, s{sD}\ns_mul_i32 s{sD}, s{sD}, 72\ns_add_u32 s{sD}, s{sD}, s{sW}')
            one(f's_mul_i32 s{sD}, s{sD}, 4608\ns_lshl_b32 s{sD+1}, s{sJJ}, 8\ns_add_u32 s{sD}, s{sD}, s{sD+1}')
            grp = {}
            for k in range(9):
                sg = 9 * hf + k; a, b = self.hoff[sg >> 1]
                grp.setdefault((a + 16 * (sg & 1) - 16 * k, b), []).append(k)
            assert len(grp) <= 3
            reg = {}
            for n, (a, b) in enumerate(grp):
                r = sD + 1 + n if n < 2 else sD + 4
                one(f's_mul_i32 s{r}, s{sD+3}, {(b*1152) & 0xffffffff}\ns_add_u32 s{r}, s{r}, s{sD}')
                if a: one(f's_add_u32 s{r}, s{r}, {(a*1152) & 0xffffffff}')
                for k in grp[(a, b)]: reg[k] = r
            for k in range(9):
                if k % 4 == 0: out.append(m0(k))
                out.append(ld(vK + k, W2, f's{reg[k]}', k))
        return out

    def conv_mf(self, s):
        D = 32 + 8 * (s & 1); xr = vX + 4 * s
        return [I(f'v_mfma_f32_4x4x4_16b_bf16 v[{D+4*k}:{D+4*k+3}], v[60:61], v[{xr+2*k}:{xr+2*k+1}], v[48:51]') for k in range(2)]

    def conv_cvt(self, s):
        D = 32 + 8 * (s & 1); xr = vX + 4 * s
        return [I(f'v_cvt_pk_bf16_f32 v{xr+k}, v{D+2*k}, v{D+2*k+1}') for k in range(4)]

    @staticmethod
    def ident(d, t1):
        return (f'v_and_b32 v{t1}, 16, v{vL16}\nv_mov_b32 v{d}, 0x3f80\nv_lshlrev_b32 v{d}, v{t1}, v{d}\nv_bfe_i32 v{t1}, v{vL16}, 5, 1\n'
                f'v_and_b32 v{d+1}, v{d}, v{t1}\nv_xor_b32 v{d}, v{d}, v{d+1}')

    def prologue(self):
        c = self.c; E_ = self.E
        if c.ts: E_('s_memrealtime s[92:93]\ns_memtime s[96:97]')
        E_('s_cmp_ge_u32 s2, 256\ns_cbranch_scc1 L_end')
        if c.head:
            E_(f's_load_dwordx2 s[{X}:{X+1}], s[0:1], 0\ns_load_dwordx8 s[76:83], s[0:1], 40\ns_load_dwordx8 s[44:51], s[0:1], 8\ns_load_dwordx2 s[{WS}:{WS+1}], s[0:1], {KOFF[WS]}')
        else:
            for R in (X, W1, DBG, QKV, WS, PHI, W2, WO, OUT):
                E_(f's_load_dwordx2 s[{R}:{R+1}], s[0:1], {KOFF[R]}')
        E_(f's_memrealtime s[{sN}:{sN+1}]')
        if c.pref:
            E_('s_getpc_b64 s[40:41]\nPCREF:\ns_mov_b32 s42, CODE_END-PCREF\ns_mov_b32 s43, 0x20000')
            E_('s_lshr_b32 s3, s2, 3\nv_lshlrev_b32 v25, 5, v0\nv_add_u32 v25, s3, v25\nv_lshlrev_b32 v25, 7, v25')
            E_('buffer_load_dword v63, v25, s[40:43], 0 offen', tok='pref')
        l = 25
        E_(f'v_lshrrev_b32 v26, 6, v0\nv_and_b32 v{l}, 63, v0\nv_lshlrev_b32 v{vL16}, 4, v{l}')
        E_(f'v_readfirstlane_b32 s{sW}, v26')
        E_(f's_and_b32 s3, s2, 1\ns_lshl_b32 s3, s3, 3\ns_lshr_b32 s64, s2, 5\ns_add_u32 s{sR}, s64, s3')
        E_(f's_bfe_u32 s{sQ}, s2, 0x20001\ns_bfe_u32 s{sJJ}, s2, 0x20003\ns_lshl2_add_u32 s{sJ}, s{sQ}, s{sJJ}')
        E_(f'v_lshrrev_b32 v26, 3, v{l}\nv_mul_u32_u24 v27, 1152, v26\nv_and_b32 v28, 0x70, v{vL16}\nv_and_b32 v29, 0x30, v{l}\nv_xor_b32 v28, v28, v29')
        E_('v_add_u32 v2, v27, v28\nv_xor_b32 v3, 64, v2\nv_add_u32 v3, 8192, v3\nv_add_u32 v4, 16384, v2\nv_add_u32 v5, 16384, v3')
        E_(f's_mul_i32 s{sWL}, s{sW}, 9216\ns_lshl2_add_u32 s3, s{sR}, s{sW}')
        E_(f's_mul_i32 s{sXO}, s3, 36864')
        E_(f's_lshl_b32 s58, s{sQ}, 8' if c.xrot else 's_mov_b32 s58, 0')
        save = self.p; self.p = []
        for R in SIZES:
            if c.head and R not in (X, WS):
                t_ = 76 + KOFF[R] // 4 - 10 if KOFF[R] >= 40 else 44 + KOFF[R] // 4 - 2
                E_(f's_mov_b64 s[{R}:{R+1}], s[{t_}:{t_+1}]')
            x_ = L(f's_mov_b32 s{R+2}, {SIZES[R]}\ns_mov_b32 s{R+3}, 0x20000')
            if R == X: save.extend(x_)
            else: E_(x_)
        E_(f'v_mov_b32 v31, {OOB}\nv_cmp_gt_u32 vcc, 18, v{l}\nv_mul_u32_u24 v{vPF}, 9216, v{l}\ns_lshl2_add_u32 s64, s64, s{sW}\ns_mul_i32 s{sPF}, s64, {18*9216}\nv_cndmask_b32 v{vPF}, v31, v{vPF}, vcc')
        E_(f's_mul_i32 s63, s{sJ}, 576\ns_and_b32 s65, s{sJJ}, 1\ns_lshl_b32 s57, s65, 6\ns_add_u32 s57, s57, s63\ns_add_u32 s{sPF}, s{sPF}, s57')
        E_(f'v_cmp_gt_u32 vcc, 2, v0\nv_lshlrev_b32 v23, 7, v0\ns_cmp_eq_u32 s2, 0\ns_cselect_b32 s59, 0, {OOB}\nv_cndmask_b32 v23, v31, v23, vcc\nv_or_b32 v23, s59, v23')
        hd2 = self.p; self.p = save
        if not c.head: E_(hd2); hd2 = []
        E_('s_waitcnt lgkmcnt(0)')
        if c.ts: E_(f'v_mov_b32 v{vONE}, 1\nv_writelane_b32 v{vONE}, s92, 60\nv_writelane_b32 v{vONE}, s96, 61')
        E_(self.stamp('karg'))
        pf0 = L(f'buffer_load_dword a182, v{vPF}, {srd(W1)}, s{sPF} offen')
        if c.pf0p == 0: E_(hd2); hd2 = []; E_(pf0)
        tagst = L(f's_or_b32 s{sN}, s{sN}, 1\ns_or_b32 s{sN+1}, s{sN+1}, 0x80000000\nv_mov_b32 v28, s{sN}\nv_mov_b32 v29, s{sN+1}')
        tagst.append(I(f'buffer_store_dwordx2 v[28:29], v23, {srd(DBG)}, 0 offen sc1', tok='tagst'))
        save = self.p; self.p = []
        E_(tagst)
        t, hh, a, b, d = 26, 27, 74, 75, 22
        E_(f'v_lshrrev_b32 v26, 2, v{l}\nv_and_b32 v27, 0x30, v{vL16}\nv_mul_u32_u24 v{a}, 3456, v26\nv_add_u32 v64, v{a}, v27\nv_mul_u32_u24 v{b}, 9216, v26\nv_add_u32 v66, v{b}, v27')
        E_(f'v_mov_b32 v65, 1216\nv_mov_b32 v{b}, 2360\nv_cmp_eq_u32 vcc, 16, v27\ns_mul_i32 s62, s3, 9\nv_add_u32 v67, s62, v26\nv_cndmask_b32 v65, v65, v{b}, vcc\nv_cmp_le_u32 vcc, 32, v27')
        E_(f's_mul_i32 s60, s62, 3456\ns_mul_i32 s61, s{sJ}, 72\nv_cndmask_b32 v65, v65, 64, vcc\nv_add_u32 v65, v65, v{a}\ns_add_u32 s60, s60, s61')
        if c.xrot:
            E_(f's_lshl_b32 s56, s{sQ}, 7\nv_subrev_u32 v{b}, s56, v67\nv_cmp_gt_u32 vcc, 0x200, v67\nv_and_b32 v{b}, 0x1ff, v{b}\ns_nop 0\nv_cndmask_b32 v67, v67, v{b}, vcc')
        E_(f'v_cmp_gt_u32 vcc, 36, v{l}\nv_lshl_add_u32 v67, v67, 6, v27')
        E_(f's_mul_i32 s61, s62, 9216\ns_add_u32 s61, s61, s63\ns_lshl_b32 s65, s65, 9\ns_sub_u32 s61, s61, s65\ns_add_u32 s61, s61, 512')
        for k in range(4): E_(f'v_cndmask_b32 v{64+k}, v31, v{64+k}, vcc')
        E_(f's_mul_i32 s62, s{sJ}, {5*SLOT}\ns_add_u32 s62, s62, {WS_RP}\ns_add_u32 s{sRP}, s62, s{sWL}')
        E_(f's_lshl_b32 s64, s{sJ}, 6\ns_add_u32 s64, s64, s3\ns_lshl3_add_u32 s63, s64, {FL_RP}\ns_lshl3_add_u32 s{sFKV}, s64, {FL_KV}')
        ne2 = len(self.p)
        E_(F_T(t) + '\n' + F_HH(hh))
        E_(f'v_bfe_u32 v{a}, v{t}, 1, 3\nv_xor_b32 v{a}, v{a}, v{hh}\nv_lshlrev_b32 v{a}, 4, v{a}\nv_lshl_add_u32 v{a}, v{t}, 7, v{a}\nv_add_u32 v6, s{sWL}, v{a}')
        E_('v_xor_b32 v7, 32, v6\nv_xor_b32 v8, 64, v6\nv_xor_b32 v9, 96, v6')
        E_(f'v_lshrrev_b32 v{a}, 3, v{t}\nv_mul_u32_u24 v{a}, 35840, v{a}')
        for k in range(4): E_(f'v_add_u32 v{84+k}, v{a}, v{6+k}')
        for k in range(0 if not c.msum else 4, 8): E_(f'v_mov_b32 v{52+k}, 0')
        if c.msum:
            E_(f'v_lshrrev_b32 v88, 2, v{l}\nv_xor_b32 v88, v88, v{l}\nv_bfe_u32 v88, v88, 2, 1\nv_add_u32 v88, -1, v88\nv_and_b32 v88, 0x3f803f80, v88\nv_mov_b32 v89, v88\nv_mov_b32 v90, v88\nv_mov_b32 v91, v88')
        else: E_('v_mov_b32 v88, 0x3f803f80')
        E_(f's_mov_b32 s{sHH}, 0\ns_mov_b32 s{sHH+1}, -1')
        E_(f'v_cmp_eq_u32 vcc, 0, v{l}')
        E_(f'v_lshrrev_b32 v{b}, 3, v{l}\nv_mul_u32_u24 v{b}, 9216, v{b}\nv_cndmask_b32 v{vF0}, v31, v{l}, vcc')
        E_(F_TB(a) + f'\nv_lshl_add_u32 v{b}, v{a}, 6, v{b}\nv_and_b32 v{d}, 0x70, v{vL16}\nv_xor_b32 v{vW1}, v{b}, v{d}')
        E_(f's_mul_i32 s56, s{sW}, {8*9216}\ns_add_u32 s57, s57, s56')
        for g in range(5):
            if g < 4:
                if c.xrot: E_(f's_add_u32 s56, s{sQ}, {g}\ns_and_b32 s56, s56, 3\ns_mul_i32 s56, s56, {128*9216}\ns_add_u32 s56, s56, s57')
                else: E_(f's_add_u32 s56, s57, {g*128*9216}')
            for pb in range(4 * g, min(4 * g + 4, 18)):
                r_ = soP + pb if pb < 9 else soPb[pb - 9]
                E_(f's_add_u32 s{r_}, s{56 if g < 4 else 57}, {(pb % 4 if g < 4 else pb)*32*9216 - PIMM[pb]*1024}')
        E_(F_C4(b) + f'\nv_lshlrev_b32 v{b}, 3, v{b}\nv_lshl_add_u32 v{b}, v{a}, 5, v{b}\n' + F_R4(d))
        E_(f'v_lshl_add_u32 v{a}, v{hh}, 3, v{d}\nv_lshl_add_u32 v{vS}, v{a}, 6, v{b}')
        E_(f'v_lshl_add_u32 v{b}, v{d}, 7, v{b}\nv_lshrrev_b32 v{d}, 1, v{d}\nv_lshl_add_u32 v{b}, v{d}, 6, v{b}\nv_mul_u32_u24 v{a}, 9216, v{hh}\nv_add_u32 v{vPA}, v{a}, v{b}')
        E_(self.ident(60, a))
        E_(f'v_lshlrev_b32 v73, 4, v0\nv_add_u32 v73, {E}, v73\nv_mov_b32 v76, 0\nv_mov_b32 v77, 0\nv_mov_b32 v78, 0\nv_mov_b32 v79, 0')
        E_([I(f'ds_write_b128 v73, v[76:79] offset:{4096*k}', tok='zf0') for k in range(3)])
        E_(f's_lshl2_add_u32 s64, s{sR}, s{sQ}\ns_lshl2_add_u32 s64, s64, s{sW}\ns_lshl4_add_u32 s64, s64, s{sJJ}\ns_lshl_b32 s{sFH}, s64, 3')
        E_(f's_lshl4_add_u32 s64, s3, s{sJ}\ns_lshl3_add_u32 s{sFO}, s64, {FL_O}')
        E_(f's_lshl2_add_u32 s64, s{sR}, s{sJJ}\ns_lshl2_add_u32 s64, s64, s{sW}\ns_lshl4_add_u32 s64, s64, s{sQ}\ns_lshl3_add_u32 s{sFY}, s64, {FL_Y}')
        E_(f's_lshl4_add_u32 s64, s{sR}, s{sJ}\ns_lshl2_add_u32 s64, s64, s{sW}\ns_mul_i32 s64, s64, 18432\ns_add_u32 s{sHown}, s64, {WS_H}')
        T = 92
        h_, d_, a5, a, b, o1, o2 = T, T + 1, T + 2, T + 3, T + 4, 69, 70
        m1, m2 = 's[64:65]', 56
        E_(f'v_mul_u32_u24 v{h_}, 729, v0\nv_lshrrev_b32 v{h_}, 16, v{h_}\nv_mul_u32_u24 v{a}, 90, v{h_}\nv_sub_u32 v{a}, v0, v{a}')
        E_(f'v_mul_u32_u24 v{d_}, 205, v{a}\nv_lshrrev_b32 v{d_}, 10, v{d_}\nv_mul_u32_u24 v{b}, 5, v{d_}\nv_sub_u32 v{a5}, v{a}, v{b}')
        E_(f'v_mul_u32_u24 v{a}, 648, v{h_}\nv_mul_u32_u24 v{b}, 36, v{d_}\ns_movk_i32 s56, 180\nv_add_u32 v{a}, v{a}, v{b}\nv_cmp_gt_u32 {m1}, s56, v0\nv_lshl_add_u32 v{a}, v{a5}, 3, v{a}')
        E_(f's_mul_i32 s56, s{sJ}, 1296\nv_add_u32 v{a}, s56, v{a}\nv_cndmask_b32 v68, v31, v{a}, {m1}')
        E_(f'v_mul_u32_u24 v{b}, 18, v{h_}\nv_add_u32 v{d_}, v{b}, v{d_}')
        E_(f'v_and_b32 v{a}, 0x33, v{d_}\nv_and_b32 v{b}, 4, v{d_}\nv_lshl_or_b32 v{a}, v{b}, 1, v{a}\nv_bfe_u32 v{b}, v{d_}, 3, 1\nv_lshl_or_b32 v{a}, v{b}, 2, v{a}')
        E_(self.image_addr(a, h_, a5, o1, o2, T + 5, T + 6, m2))
        E_(f'v_mov_b32 v{b}, {DUMMY}\nv_cndmask_b32 v{o1}, v{b}, v{o1}, {m1}\nv_cndmask_b32 v{o2}, v{b}, v{o2}, {m1}')
        R_, e_, stp, rho, g_, src, dst, x_ = T, T + 1, T + 2, T + 3, T + 4, 71, 72, T + 5
        m2 = 's[56:57]'
        E_(f'v_mul_u32_u24 v{R_}, 7282, v0\nv_lshrrev_b32 v{R_}, 16, v{R_}\nv_mul_u32_u24 v{x_}, 9, v{R_}\nv_sub_u32 v{e_}, v0, v{x_}\ns_lshr_b32 s{sMi+1}, s2, 3\ns_mul_i32 s{sMi}, s{sMi+1}, 18\nv_add_u32 v{R_}, s{sMi}, v{R_}')
        E_(f'v_lshrrev_b32 v{stp}, 5, v{R_}\nv_and_b32 v{rho}, 31, v{R_}\nv_bfe_u32 v{g_}, v{R_}, 2, 2')
        E_(f'v_and_b32 v{x_}, 1, v{g_}\nv_mul_u32_u24 v{src}, 20, v{x_}\nv_lshrrev_b32 v{x_}, 1, v{g_}\nv_lshl_add_u32 v{src}, v{x_}, 3, v{src}\nv_lshrrev_b32 v{x_}, 4, v{rho}\nv_lshl_add_u32 v{src}, v{x_}, 2, v{src}')
        E_(f'v_mad_u32_u24 v{src}, v{stp}, 36, v{src}')
        E_(f'v_lshl_add_u32 v{g_}, v{x_}, 2, v{g_}\nv_and_b32 v{x_}, 1, v{stp}\nv_lshl_add_u32 v{g_}, v{x_}, 3, v{g_}\nv_cmp_le_u32 {m2}, 16, v{stp}\nv_mad_u32_u24 v{g_}, v{g_}, 36, 16')
        E_(f'v_and_b32 v{x_}, 3, v{rho}\nv_cndmask_b32 v{src}, v{src}, v{g_}, {m2}\nv_add_u32 v{src}, v{src}, v{x_}\nv_mul_u32_u24 v{src}, 1152, v{src}')
        E_(f's_and_b32 s{sMi}, s2, 7\ns_lshl_b32 s3, s{sMi}, 7\nv_lshlrev_b32 v{g_}, 4, v{e_}\nv_add_u32 v{g_}, s3, v{g_}\ns_lshl4_add_u32 s3, s{sMi}, 1024\nv_cmp_eq_u32 {m2}, 8, v{e_}\nv_mov_b32 v{x_}, s3')
        E_(f's_movk_i32 s3, 162\nv_cndmask_b32 v{g_}, v{g_}, v{x_}, {m2}\nv_cmp_gt_u32 {m1}, s3, v0\nv_add_u32 v{src}, v{src}, v{g_}')
        E_(f'v_bfe_u32 v{x_}, v{rho}, 2, 1\nv_cndmask_b32 v{src}, v31, v{src}, {m1}')
        E_(f'v_xor_b32 v{x_}, v{x_}, v{e_}\nv_and_b32 v{x_}, 3, v{x_}\nv_lshlrev_b32 v{x_}, 4, v{x_}\nv_lshl_add_u32 v{x_}, v{rho}, 6, v{x_}\nv_lshrrev_b32 v{e_}, 2, v{e_}\nv_lshl_add_u32 v{x_}, v{e_}, 11, v{x_}')
        E_(f'v_lshlrev_b32 v{rho}, 4, v{rho}\nv_add_u32 v{rho}, 4096, v{rho}\nv_cndmask_b32 v{x_}, v{x_}, v{rho}, {m2}\nv_mul_u32_u24 v{stp}, 4608, v{stp}\nv_add_u32 v{x_}, v{x_}, v{stp}')
        E_(f'v_cndmask_b32 v{dst}, v31, v{x_}, {m1}\ns_lshl_b32 s3, s{sMi}, 5\ns_add_u32 s{sMi+1}, s{sMi+1}, s3\ns_lshl3_add_u32 s{sMi+1}, s{sMi+1}, {FL_WO}\ns_mul_i32 s{sMi}, s{sMi}, 82944\ns_add_u32 s{sMi}, s{sMi}, {WS_WO}')
        E_(f'v_cmp_eq_u32 vcc, 0, v0\nv_and_b32 v30, 0x1f0, v{vL16}\nv_lshrrev_b32 v30, 2, v30\ns_lshl_b32 s3, s{sW}, 7\ns_add_u32 s3, s3, {RSA}\nv_add_u32 v30, s3, v30\nv_cndmask_b32 v73, v31, v0, vcc')
        E_(f'v_mov_b32 v{vPa}, 0\ns_and_b32 s56, s2, 1\ns_lshl_b32 s56, s56, 7')
        early = self.p; self.p = save
        cols = [0, 1, 2, 3, 4, 5, 6, 7]; cols.insert(c.c8p, 8)

        def xdma(cc):
            r = []
            if cc == 8: r += L(f's_add_u32 s59, s{sXO}, 1024')
            else:
                if cc: r += L('s_add_u32 s58, s58, 128\ns_and_b32 s58, s58, 0x3ff')
                r += L(f's_add_u32 s59, s{sXO}, s58')
            for i in range(4):
                if cc == 8: r += L(f's_add_u32 m0, s{sWL}, {i*SLOT + 8192 - i*1024}')
                elif i == 0: r += L(f's_add_u32 m0, s{sWL}, {(cc>>1)*SLOT + (cc&1)*4096}')
                r.append(I(f'buffer_load_dwordx4 v{2+i}, {srd(X)}, s59 offen offset:{i*1024} lds', tok=f'x{cc}'))
            return r

        def xread(cc):
            r = [W(f'x{cc}')]
            if cc == 4: r += [I(f'v_add_u32 v{6+k}, {2*SLOT}, v{6+k}') for k in range(4)]
            for ks in range(4):
                s = 4 * cc + ks
                if cc == 8: bs, o = 84 + ks, 8192
                else: bs, o = 6 + ks, ((cc >> 1) & 1) * SLOT + (cc & 1) * 4096
                r.append(I(f'ds_read_b128 v[{vX+4*s}:{vX+4*s+3}], v{bs} offset:{o}', tok=f'xr{cc}'))
            return r

        def xdots(cc):
            r = []
            for k in range(16):
                xr = vX + 16 * cc + k
                if not c.msum: r.append(I(f'v_dot2c_f32_bf16 v{52+(k&3)}, v88, v{xr}'))
                elif k % 4 == 0: r.append(I(f'v_mfma_f32_16x16x32_bf16 v[52:55], v[88:91], v[{xr}:{xr+3}], ' + ('0' if cc == cols[0] and k == 0 else 'v[52:55]')))
                r.append(I(f'v_dot2c_f32_bf16 v{56+(k&3)}, v{xr}, v{xr}'))
            return r

        def mix(main, fill):
            nv = sum(1 for x in main if x.kind in VM_KINDS)
            k = 0; done = 0
            for x in main:
                E_(x)
                if x.kind in VM_KINDS:
                    k += 1; upto = len(fill) * k // nv
                    E_(fill[done:upto]); done = upto
            E_(fill[done:])

        rpl = [I(f'buffer_load_dwordx4 a[{aRP+4*k}:{aRP+4*k+3}], v{v}, {srd(R)}, s{so} offen offset:{o}', tok='rpl')
               for k, (v, R, so, o) in enumerate(((64, QKV, 60, 1152), (65, QKV, 60, 0), (64, QKV, 60, 2304), (64, QKV, 60, 0), (66, W1, 61, 0)))]
        rpst = []
        for k in range(5):
            if k: rpst += L(f's_add_u32 s62, s62, {SLOT}')
            rpst.append(I(f'buffer_store_dwordx4 a[{aRP+4*k}:{aRP+4*k+3}], v67, {srd(WS)}, s62 offen sc1', tok='rpst'))
        self.rpst = rpst
        pf1 = L(f'buffer_load_dword a183, v{vPF}, {srd(W1)}, s{sPF} offen offset:128')
        lag = c.xlag
        self.w1pos = 0
        pend = []
        nA = min(c.nfill, len(early)); rest = early[nA:]
        early_rp = isinstance(c.rpw, int)
        n2 = max(c.rpw, 1) if early_rp else lag
        if early_rp and c.rpw == 0: E_(early[:ne2]); E_(rpl); early = early[ne2:]; nA -= ne2; ne2 = 0
        for n in range(9 + lag):
            issue = xdma(cols[n]) if n < 9 else []
            if n < lag:
                if c.bulk is None: mix(issue, early[ne2 * n // n2: ne2 * (n + 1) // n2] if n < n2 else [])
                else: E_(issue)
                if c.tsp: E_(self.stamp(f'c{n}'))
                if hd2 and n + 1 == min(c.bulk, c.pf0p): E_(hd2); hd2 = []
                if n + 1 == c.pf0p: E_(pf0)
                if n + 1 == c.bulk: E_(early[:nA])
                if early_rp and n + 1 == c.rpw: E_(rpl); E_(self.stamp('rpl') if c.tsp else [])
                if n == lag - 1 and c.bulk is None: E_(early[ne2:nA])
                if c.tsp: E_(self.stamp(f'i{n}'))
                continue
            cc = cols[n - lag]
            if n == lag: E_(self.stamp('xiss'))
            if n in (lag + 1, lag + 2): E_(rest[:len(rest) // 2] if n == lag + 1 else rest[len(rest) // 2:])
            E_(xread(cc))
            if c.tsp and n > lag: E_(self.stamp(f'r{cc}'))
            if n == lag: E_(self.stamp('x8'))
            if n >= 9 and not hasattr(self, 't0done') and n - lag >= 3:
                issue = [W('xr1', 'xr8')] + [x for g_ in self.dma_item(0) for x in g_] + (rpl if c.rpw == 'T0' else []) + (rpst if early_rp else []) + (pf1 if c.pf1 == 0 else []); self.t0done = True
            elif n >= 9 and hasattr(self, 't0done') and not hasattr(self, 't1done') and n - lag >= 5 and not c.t1p:
                issue = [W('xr3')] + [x for g_ in self.dma_item(1) for x in g_] + (rpl if c.rpw == 'T1' else []) + (pf1 if c.pf1 == 1 else []); self.t1done = True
            if n + 1 == c.pf0p: issue = issue + pf0
            if early_rp and n + 1 == c.rpw: issue = issue + rpl
            if issue: mix(issue, pend)
            else: E_(pend)
            if c.tsp: E_(self.stamp(f'd{cc}'))
            pend = xdots(cc)
        E_(self.stamp('x7'))
        E_(pend)
        assert hasattr(self, 't1done') or c.t1p
        if not c.msum: E_('v_add_f32 v52, v52, v53\nv_add_f32 v54, v54, v55')
        E_('v_add_f32 v56, v56, v57\nv_add_f32 v58, v58, v59')
        if not c.msum: E_('v_add_f32 v52, v52, v54\nv_mov_b32 v53, v52')
        E_('v_add_f32 v56, v56, v58\nv_mov_b32 v57, v56')
        if not c.msum: E_('v_permlane32_swap_b32 v52, v53\nv_add_f32 v52, v52, v53')
        inv = 0x3ae38e39
        E_(f'v_mul_f32 v52, {inv}, v52\nv_permlane32_swap_b32 v56, v57\nv_cvt_pk_bf16_f32 v53, v52, v52\nv_and_b32 v53, 0xffff0000, v53\nv_xor_b32 v48, 0x80000000, v53')
        E_('v_mov_b32 v49, v48\nv_mov_b32 v50, v48\nv_mov_b32 v51, v48')
        rs = L(f'v_add_f32 v56, v56, v57\nv_mul_f32 v56, {inv}, v56\nv_fma_f32 v56, -v52, v52, v56\nv_max_f32 v56, 0, v56')
        rs += L(f'v_cvt_pk_bf16_f32 v56, v56, v56\nv_and_b32 v56, 0xffff0000, v56\nv_add_f32 v56, 0x3727c5ac, v56\nv_cvt_pk_bf16_f32 v56, v56, v56\nv_and_b32 v56, 0xffff0000, v56\nv_sqrt_f32 v56, v56')
        rs += L(f'v_cvt_pk_bf16_f32 v56, v56, v56\nv_lshrrev_b32 v{vSD}, 16, v56\nv_and_b32 v56, 0xffff0000, v56\nv_rcp_f32 v{vRS}, v56')
        rs += L(f'v_add_u32 v{vCur}, {self.slot[0]}, v{vPA}\nv_xor_b32 v{vCur2}, 64, v{vCur}\nv_mul_f32 v{vC}, {LOG2E}, v{vRS}')
        E_(self.conv_mf(0)); E_(rs[:6])
        for s in range(c.npre):
            E_(self.conv_mf(s + 1))
            if s < 2: E_(rs[6 + 6 * s: 12 + 6 * s])
            E_(self.conv_cvt(s))
        if c.rpw == 'pre': E_(rpl)

    def step_desc(self, i, idx):
        k = self.kind[i]
        if k in ('P0a', 'P0b'): return idx & 1, idx >> 1
        if k[0] == 'P' or k == 'B8': return idx // 18, idx % 18
        if k[0] == 'U': return idx // 9, idx % 9
        return 0, idx

    def reads(self, gs):
        i, idx = divmod(gs, 36)
        k = self.kind[i]; mt, s = self.step_desc(i, idx)
        b = RING + 4 * (gs % (self.c.D + 2))
        r = []; reg = vCur
        if idx == 0 and i > 0:
            src = vPA if k[0] == 'P' else (vPU if k[0] == 'U' else vS)
            r.append(I(f'v_add_u32 v{vCur}, {self.slot[i]}, v{src}'))
            if k == 'P0b': r.append(I(f'v_xor_b32 v{vCur2}, 64, v{vCur}'))
        if k in ('P0a', 'P0b'):
            if mt: reg = vCur2
        elif s == 0 and mt: r.append(I(f'v_xor_b32 v{vCur}, {64*(mt ^ (mt-1))}, v{vCur}'))
        for rd in range(2):
            if k[0] == 'P': o = (s & 1) * 18432 + (s >> 1) * 1024 + rd * 512
            elif k == 'B8': o = (2 * (s & 1) + rd) * 9216 + (s >> 1) * 1024
            elif k[0] == 'U': o = rd * 18432 + s * 1024
            else: o = s * 1024 + rd * 256
            r.append(I(f'ds_read_b64_tr_b16 a[{b+2*rd}:{b+2*rd+1}], v{reg} offset:{o}', tok=f'f{gs}'))
        return r

    def main_steps(self):
        c = self.c; D = c.D
        steps = []
        NS = 22 * 36
        LA = c.npre
        for gs in range(NS):
            i, idx = divmod(gs, 36)
            k = self.kind[i]; mt, s = self.step_desc(i, idx)
            b = RING + 4 * (gs % (D + 2))
            tk = []
            if i < 13:
                xs = s + (18 if k[-1] == 'b' and k[0] == 'P' else 0)
                B = f'v[{vX+4*xs}:{vX+4*xs+3}]' if i < c.xa else f'a[{4*xs}:{4*xs+3}]'
                first = xs == 0; acc = self.acc[(i, mt)]
            elif i == 13:
                B = f'v[{vH+4*s}:{vH+4*s+3}]'; first = s == 0; acc = self.acc[(i, mt)]
            else:
                pe, hf, st = self.g2[i]
                B = f'v[{vH+4*(9*hf+s)}:{vH+4*(9*hf+s)+3}]' if pe == 0 else f'a[{36*st+4*s}:{36*st+4*s+3}]'
                first = (i == 14 and s == 0); acc = GA + 16 * mt
                if pe and mt == 0: tk.append(f'ph{i}_{s}')
            mf = I(f'v_mfma_f32_32x32x16_bf16 v[{acc}:{acc+15}], a[{b}:{b+3}], {B}, ' + ('0' if first else f'v[{acc}:{acc+15}]'))
            if gs % c.we == 0: tk += [f'f{x}' for x in range(gs, min(gs + c.we, NS))]
            pre = [W(*tk)] if tk else []
            post = []; end = []
            ns = gs + D
            if ns < NS: post += self.reads(ns)
            else:
                kk = ns - NS
                for x in range(c.Ds * kk // D, c.Ds * (kk + 1) // D): post += self.s_reads(x)
            if ns % 36 == 35:
                nd = list(self.bar_need.get(i, []))
                if i < 21: nd.append(f'T{i+1}')
                if i == 20: nd.append(f'f{ns}')
                post += self.xs(f'b{i}', [W(*nd)] + L('s_barrier'))
            if i < 2:
                xs = 18 * i + s
                if mt == 0 and xs + LA < 36: post += self.conv_cvt(xs + LA)
                if mt == 1 and xs + LA + 1 < 36: end = self.conv_mf(xs + LA + 1)
            steps.append(Step(mf, pre, post, c.caps.get(i, c.cap), end))
        return steps

    def epi_G(self, tau, acc):
        h = vH + 8 * tau
        r = [I(f'v_cvt_pk_bf16_f32 v{h+k}, v{acc+2*k}, v{acc+2*k+1}') for k in range(8)]
        r += [I(f'v_pk_max_i16 v{h+k}, v{h+k}, 0') for k in range(8)]
        st = []
        if tau and tau % 2 == 0: st += L(f's_add_u32 s{sHown}, s{sHown}, 4096')
        for k in range(2):
            st.append(I(f'buffer_store_dwordx4 v[{h+4*k}:{h+4*k+3}], v{vL16}, {srd(WS)}, s{sHown} offen offset:{(tau&1)*2048+k*1024} sc1', tok=f'h{tau}'))
        return r, st

    PK = {'Ta': 136, 'Tb': 144, 'Tc': 152, 'Td': 160}

    def epi_Q(self, kind, acc):
        pk = self.PK[kind]
        n = 6 if kind == 'Tb' else 8
        r = [I(f'v_cvt_pk_bf16_f32 v{pk+k}, v{acc+2*k}, v{acc+2*k+1}') for k in range(n)]
        if kind == 'Tb': r += L(f'v_mov_b32 v{pk+6}, 0\nv_mov_b32 v{pk+7}, 0')
        return r

    def pmfma(self, which, P):
        m = self.PK['Ta' if which == 'k' else 'Td']
        B = [m, m + 4, self.PK['Tb'] + (0 if which == 'k' else 4)]
        r = []
        for s in range(3):
            r.append(I(f'v_mfma_f32_32x32x16_bf16 v[{P}:{P+15}], a[{aPHI+4*s}:{aPHI+4*s+3}], v[{B[s]}:{B[s]+3}], ' + ('0' if s == 0 else f'v[{P}:{P+15}]')))
        for s in range(3):
            r.append(I(f'v_mfma_f32_16x16x32_bf16 v[{P+16}:{P+19}], a[{aPHI+12+4*s}:{aPHI+12+4*s+3}], v[{B[s]}:{B[s]+3}], ' + ('0' if s == 0 else f'v[{P+16}:{P+19}]')))
        return r

    def softmax(self, P, EP, PHIo, T, norm_first, keepS=None):
        p = [P + k for k in range(18)]
        mx, mn, s1, s2 = T, T + 1, T + 2, T + 3
        r = []
        a = [f'v_max3_f32 v{mx}, v{p[0]}, v{p[1]}, v{p[2]}'] + [f'v_max3_f32 v{mx}, v{mx}, v{p[k]}, v{p[k+1]}' for k in range(3, 17, 2)] + [f'v_max_f32 v{mx}, v{mx}, v{p[17]}']
        b = [x.replace('max', 'min').replace(f'v{mx}', f'v{mn}') for x in a]
        for x, y in zip(a, b): r += L(x + '\n' + y)
        r[0].gap = 3
        r += L(f'v_mul_f32_e64 v{mx}, -v{vC}, v{mx}\nv_mul_f32 v{mn}, v{vC}, v{mn}')
        for k in range(18):
            r += L(f'v_fma_f32 v{EP+k}, v{p[k]}, v{vC}, v{mx}\nv_fma_f32 v{p[k]}, v{p[k]}, -v{vC}, v{mn}')
            r += L(f'v_exp_f32 v{EP+k}, v{EP+k}\nv_exp_f32 v{p[k]}, v{p[k]}')
            if k == 2:
                r += L(f'v_add_f32 v{s1}, v{EP}, v{EP+1}\nv_add_f32 v{s2}, v{p[0]}, v{p[1]}')
            elif k > 2:
                r += L(f'v_add_f32 v{s1}, v{s1}, v{EP+k-1}\nv_add_f32 v{s2}, v{s2}, v{p[k-1]}')
        r += L(f'v_add_f32 v{s1}, v{s1}, v{EP+17}\nv_add_f32 v{s2}, v{s2}, v{p[17]}')
        if norm_first:
            r += L(f'v_rcp_f32 v{s1}, v{s1}\nv_rcp_f32 v{s2}, v{s2}\nv_mul_f32 v{s1}, v{vRS}, v{s1}\nv_mul_f32 v{s2}, v{vRS}, v{s2}')
            for k in range(0, 18, 2):
                r += L(f'v_mul_f32 v{EP+k}, v{s1}, v{EP+k}\nv_mul_f32 v{EP+k+1}, v{s1}, v{EP+k+1}\nv_cvt_pk_bf16_f32 v{PHIo+k//2}, v{EP+k}, v{EP+k+1}')
        else:
            r += L(f'v_rcp_f32 v{s2}, v{s2}\nv_mul_f32 v{keepS}, 0x358637bd, v{s1}')
            for k in range(0, 18, 2):
                r += L(f'v_cvt_pk_bf16_f32 v{PHIo+k//2}, v{EP+k}, v{EP+k+1}')
            r += L(f'v_mul_f32 v{s2}, v{s1}, v{s2}')
        for k in range(0, 18, 2):
            r += L(f'v_mul_f32 v{p[k]}, v{s2}, v{p[k]}\nv_mul_f32 v{p[k+1]}, v{s2}, v{p[k+1]}\nv_cvt_pk_bf16_f32 v{PHIo+9+k//2}, v{p[k]}, v{p[k+1]}')
        return r

    @staticmethod
    def image_addr(rho, h_, cc, o1, o2, t1, t2, m):
        return (f'v_lshlrev_b32 v{t1}, 6, v{rho}\nv_lshl_add_u32 v{t1}, v{cc}, 4, v{t1}\nv_lshl_add_u32 v{t1}, v{h_}, 3, v{t1}\nv_cmp_gt_u32 s[{m}:{m+1}], 4, v{cc}\nv_add_u32 v{t1}, {E}, v{t1}\n'
                f'v_lshlrev_b32 v{t2}, 5, v{rho}\nv_lshl_add_u32 v{t2}, v{h_}, 4, v{t2}\nv_add_u32 v{t2}, {E2}, v{t2}\n'
                f'v_cndmask_b32 v{o1}, v{t2}, v{t1}, s[{m}:{m+1}]\nv_add_u32 v{t2}, {2688+8}, v{t2}\nv_cndmask_b32 v{o2}, v{t2}, v{t1}, s[{m}:{m+1}]')

    @staticmethod
    def ex_addr(d, t1):
        return (F_TB(t1) + f'\nv_mul_u32_u24 v{d}, 2688, v{t1}\n' + F_HH(t1) + f'\nv_lshl_add_u32 v{d}, v{t1}, 8, v{d}\n' + F_R4(t1) +
                f'\nv_lshl_add_u32 v{d}, v{t1}, 5, v{d}\n' + F_C4(t1) + f'\nv_lshl_add_u32 v{d}, v{t1}, 3, v{d}\nv_add_u32 v{d}, {E2}, v{d}')

    def build_streams(self):
        c = self.c
        P0 = lambda p: 36 * p
        bar = lambda p: 36 * p + 35 - c.D
        self.bar_need = {}
        need = lambda p, t: self.bar_need.setdefault(p, []).append(t)
        S = {}
        pos = {k: self.kind.index(k) for k in RPI}
        m = []
        A = lambda st, x: m.extend((st, [y]) for y in (L(x) if isinstance(x, str) else x))
        G = lambda st, x: m.append((st, glue(L(x) if isinstance(x, str) else x)))
        DL = lambda st: m.append(('deadline', st))
        pd = c.pdist
        items = sorted([i for i in self.loadp if self.loadp[i] >= 0], key=lambda i: (self.loadp[i], 99 if isinstance(i, str) else i))
        first_rp = min(pos.values())
        pg = 99
        for i in items:
            p = self.loadp[i]
            same = [x for x in items if self.loadp[x] == p]
            idx = same.index(i)
            d0 = c.dly if (p - 1) in c.pf.values() else 0
            dend = min(c.dend, c.pfs) if p in c.pf.values() else c.dend
            span = (dend - d0) // len(same)
            if i == first_rp:
                st = P0(p) - pd
                m.append(('after', ('misc', 'rpflag')))
                A(st, f'v_lshrrev_b32 v{vPa}, 1, v{vL16}\ns_lshl_b32 s{sD}, s{sJ}, 9\ns_add_u32 s{sD+4}, s{sD}, {FL_RP}')
                ld, chk = self.poll('rp', WS, vPa, f's{sD+4}', vPo)
                self.defer = (st, ld, P0(p) - 1, chk)
            if i == 'woA': m.append(('after', ('peer', 8)))
            if getattr(self, 'defer', None):
                st, ld, st2, chk = self.defer; self.defer = None
                nset = 4
                blk = m[-nset:] + [(st, [ld])]; del m[-nset:]
                k = len(m)
                while k > 0 and (isinstance(m[k-1][0], str) or m[k-1][0] > st): k -= 1
                m[k:k] = blk
                G(st2, chk)
            grps = self.dma_item(i)
            nd = sum(1 for gg in grps if gg[0].kind == 'dma')
            k = 0
            for gg in grps:
                st = P0(p) + d0 + idx * span + (k * span) // nd
                if gg[0].kind == 'dma': k += 1
                elif k == 0: st = max(st - 6, P0(p) - 4 if idx == 0 else 0)
                else: st = max(st - 1, P0(p))
                m.append((st, gg))
            if idx == len(same) - 1:
                for nm, pp in c.pf.items():
                    if pp != p: continue
                    st = P0(p) + c.pfs
                    if nm[0] == 'P': A(st, f'buffer_load_dword a{182+list(c.pf).index(nm)%2}, v{vPF}, {srd(W1)}, s{sPF} offen offset:{128*int(nm[1])}')
                    elif nm == 'B8':
                        A(st - 8, f'v_lshrrev_b32 v{vCur2}, 5, v{vL16}\nv_mul_u32_u24 v{vCur2}, 1152, v{vCur2}\nv_and_b32 v{vPF}, {OOB}, v{vPF}\nv_or_b32 v{vPF}, v{vPF}, v{vCur2}\nv_and_b32 v{vCur2}, 16, v{vL16}\nv_lshl_add_u32 v{vPF}, v{vCur2}, 3, v{vPF}')
                        A(st - 8, f's_lshr_b32 s{sPF}, s2, 5\ns_lshl2_add_u32 s{sPF}, s{sPF}, s{sW}\ns_lshl_b32 s{sD}, s{sQ}, 7\ns_add_u32 s{sPF}, s{sPF}, s{sD}\ns_mul_i32 s{sPF}, s{sPF}, {9*1152}')
                        A(st - 8, f's_mul_i32 s{sD}, s{sJJ}, {288*1152}\ns_add_u32 s{sD}, s{sD}, s{sPF}\ns_lshl_b32 s{sD+1}, s{sJJ}, 8\ns_add_u32 s{sPF}, s{sPF}, s{sD+1}')
                        A(st, f'buffer_load_dword a{182+list(c.pf).index(nm)%2}, v{vPF}, {srd(W2)}, s{sD} offen offset:896')
                    else:
                        A(st - 4, f's_add_u32 s{sD}, s{sJJ}, {int(nm[1])}\ns_and_b32 s{sD}, s{sD}, 3\ns_mul_i32 s{sD}, s{sD}, {288*1152}\ns_add_u32 s{sD}, s{sD}, s{sPF}')
                        A(st, f'buffer_load_dword a{182+list(c.pf).index(nm)%2}, v{vPF}, {srd(W2)}, s{sD} offen')
            DL(bar(i - 1) if isinstance(i, int) else bar(21))
        S['dma'] = TimedStream('dma', m)

        def dma_insert(st, groups):
            it = S['dma'].items
            k = 0
            while k < len(it) and (isinstance(it[k][0], str) or it[k][0] <= st): k += 1
            assert it[k-1][0] == 'deadline'
            it[k:k] = [(st, gg) for gg in groups]
        one = lambda x: [[y] for y in (L(x) if isinstance(x, str) else x)]

        m = []
        flagA = (8) // 2
        flg = []
        for n, (s0, s1, acc, key) in enumerate(self.chain):
            k = self.kind[key[0]]
            nxt = [x[0] for x in self.chain[n + 1:] if x[2] == acc]
            st = s1 + 3
            if key in self.tau:
                tau = self.tau[key]
                r, sto = self.epi_G(tau, acc)
                A(st, r)
                dl = nxt[0] - 1 if nxt else 10**9
                dl = min(dl, P0(13) + 2 * tau - 2)
                if key[0] == 1: dl = min(dl, P0(2) + 30)
                DL(max(dl, st)); A(st, sto)
                if tau in (flagA, 8):
                    flg.append(('after', ('epi', f'h{tau}')))
                    flg.append((st + c.hfd, self.xs(f'hf{tau}', glue([W(*[f'h{x}' for x in range(tau + 1)]), self.flag(sFH, 0 if tau == flagA else 32)]))))
            elif k == 'B8':
                mt = key[1]
                if mt == 0:
                    A(st - 12, F_HH(vCur2) + f'\nv_lshlrev_b32 v{vCur2}, 13, v{vCur2}\nv_and_b32 v{vW1}, 0x1f0, v{vL16}\nv_add_u32 v{vCur2}, v{vCur2}, v{vW1}')
                    A(st - 12, f's_lshl2_add_u32 s{sE}, s{sR}, s{sW}\ns_lshl_b32 s{sE}, s{sE}, 7\ns_add_u32 s{sE}, s{sE}, s{sJ}\ns_lshl_b32 s{sE}, s{sE}, 9\ns_add_u32 s{sE}, s{sE}, {WS_Y8}')
                A(st, [I(f'v_cvt_pk_bf16_f32 v{acc+k_}, v{acc+2*k_}, v{acc+2*k_+1}') for k_ in range(8)])
                A(st, [I(f'v_permlane32_swap_b32 v{acc+4*ip+k_}, v{acc+4*ip+2+k_}') for ip in range(2) for k_ in range(2)])
                for ip in range(2):
                    if mt or ip: A(st, f's_add_u32 s{sE}, s{sE}, 16384')
                    A(st, [I(f'buffer_store_dwordx4 v[{acc+4*ip}:{acc+4*ip+3}], v{vCur2}, {srd(WS)}, s{sE} offen sc1', tok='y8st')])
            else:
                A(st, self.epi_Q(k, acc)); DL(nxt[0] - 1)
        S['flg'] = TimedStream('flg', flg)
        S['epi'] = TimedStream('epi', m)

        m = []
        for s in range(36):
            st = max(2 * (s - c.npre) + 3, P0(1)) if s < 18 else P0(2)
            A(st, [I(f'v_accvgpr_write_b32 a{4*s+k}, v{vX+4*s+k}') for k in range(4)])
        DL(P0(c.xa) - 2)
        S['accw'] = TimedStream('accw', m)

        m = []
        T = 96
        tb0 = P0(2) + 32
        ld, chk = self.poll('tag', DBG, vPa, 's56', vPo, tag=True)
        A(0, [ld])
        A(0, [I(f'buffer_load_dword a{aWP+k}, v68, {srd(PHI)}, 0 offen offset:{4*k}', tok='wphi') for k in range(2)])
        A(0, [I(f'buffer_load_dwordx4 a[{aWO}:{aWO+3}], v71, {srd(WO)}, 0 offen', tok='wold')])
        A(0, [I(f'ds_write_b32 v30, v{vRS}', tok='rsw')])
        ev = []
        if not isinstance(c.rpw, int): ev.append((c.rps, lambda: A(c.rps, self.rpst)))
        tc_ = min(c.rpf - 8, 40)
        ev.append((tc_, lambda: (G(tc_, chk), A(tc_, f'v_readfirstlane_b32 s{sN}, v{vPo}\nv_readfirstlane_b32 s{sN+1}, v{vPo+1}\nv_accvgpr_write_b32 a{aN}, v{vPo}\nv_accvgpr_write_b32 a{aN+1}, v{vPo+1}'))))
        x = self.flag(63); x.tok = 'rpflag'
        ev.append((c.rpf, lambda: G(c.rpf, [W('rpst'), x])))
        pw = 1

        def wimg():
            st = c.wim
            A(st, [I(f'ds_write_b64 v{69+k}, a[{aWP}:{aWP+1}]', tok='wimg') for k in range(2)])
            A(st, [I(f'buffer_store_dwordx4 a[{aWO}:{aWO+3}], v72, {srd(WS)}, s{sMi} offen sc1', tok='wost')])
            A(st, f'v_mov_b32 v{vPU}, v73')
            need(pw, 'wimg'); need(pw, 'rsw'); DL(bar(pw))
        ev.append((c.wim, wimg))
        assert not isinstance(c.rpw, str) or c.rps < c.wim
        for _, f_ in sorted(ev, key=lambda e: e[0]): f_()
        st = tb0
        A(st, self.ex_addr(T, T + 1) + f'\nv_add_u32 v{T+1}, {E}, v{vS}')
        for s in range(3):
            for k in range(2):
                A(st, [I(f'ds_read_b64_tr_b16 a[{aPHI+4*s+2*k}:{aPHI+4*s+2*k+1}], v{T+1} offset:{1024*s+256*k}', tok='wfr')])
                A(st, [I(f'ds_read_b64_tr_b16 a[{aPHI+12+4*s+2*k}:{aPHI+12+4*s+2*k+1}], v{T} offset:{512*s+128*k}', tok='wfr')])
        need(3, 'wfr'); need(3, 'wost'); DL(bar(3))
        st = bar(3) + 1
        A(st, [self.flag(sMi + 1, v=vPU)])
        t0, t1 = T + 4, T + 5
        A(st, f'v_lshlrev_b32 v{t0}, 4, v0\nv_add_u32 v{t0}, {E}, v{t0}\nv_mov_b32 v{T}, 0\nv_mov_b32 v{T+1}, 0\nv_mov_b32 v{T+2}, 0\nv_mov_b32 v{T+3}, 0')
        A(st, [I(f'ds_write_b128 v{t0}, v[{T}:{T+3}] offset:{4096*k}', tok='zf1') for k in range(3)])
        A(st, F_G(t0) + f'\nv_mul_u32_u24 v{vK}, 1152, v{t0}\nv_lshlrev_b32 v{t0}, 6, v{t0}\nv_and_b32 v{t1}, 0xf0, v{vL16}\nv_xor_b32 v{t0}, v{t0}, v{t1}\nv_add_u32 v{vK}, v{vK}, v{t0}')
        for k in range(1, 9): A(st, f'v_add_u32 v{vK+k}, {k*16*1152 - (k%4)*1024}, v{vK}')
        A(st, f'v_and_b32 v{t0}, 0x3f, v{vPA}\n' + F_R4(t1) + f'\nv_mul_u32_u24 v{t1}, 320, v{t1}\nv_add_u32 v{t0}, v{t0}, v{t1}\n' + F_HH(t1) +
          f'\nv_mul_u32_u24 v{t1}, 9216, v{t1}\nv_add_u32 v{t0}, v{t0}, v{t1}\ns_and_b32 s{sMi}, s{sQ}, 1\ns_lshl_b32 s{sMi}, s{sMi}, 7\ns_xor_b32 s{sMi}, s{sMi}, 128\nv_xor_b32 v{vPU}, s{sMi}, v{t0}')
        t4 = min(s1 for s0, s1, acc, key in self.chain if self.tau.get(key) == 4)
        DL(min(bar(5), t4))
        t0 = 135
        self.vES = 253
        A(max(st, P0(c.xa)), f'v_add_u32 v{self.vES}, {E}, v{vS}')
        need(5, 'zf1'); DL(bar(5))
        lastS = max(pos.values())
        st = max(st, bar(lastS - 1) + 2)
        A(st, f'v_and_b32 v{vS}, 0x1ff, v{vPA}\n' + F_HH(t0) + f'\nv_lshl_add_u32 v{vS}, v{t0}, 9, v{vS}')
        DL(P0(pos['S'] + 1))
        S['misc'] = TimedStream('misc', m)

        m = []
        a0, a1, a2, a3, a4, a5 = range(vAt, vAt + 6)
        PK_ = self.PK
        Pk, EPk, PHk, Tk = 168, 188, 206, 224
        kready = P0(max(pos['Ta'], pos['Tb']) + 1) + 8
        sKL, sKS, sOM, sOX = 57, 58, 59, 3
        park = lambda k, v: f'v_accvgpr_write_b32 a{aPK+k}, v{v}'
        unpark = lambda k, v: f'v_accvgpr_read_b32 v{v}, a{aPK+k}'
        mA = f's[{sAM}:{sAM+1}]'
        st = P0(2)
        m.append(('after', ('misc', 'wost'))); m.append(('after', ('misc', 'rpflag')))
        A(st, f'v_and_b32 v{a2}, 16, v{vL16}\nv_mov_b32 v{a3}, 0x3f80\nv_lshlrev_b32 v{a3}, v{a2}, v{a3}\nv_bfe_u32 v{a2}, v{vL16}, 5, 3')
        for k in range(4): A(st, f'v_cmp_eq_u32 {mA}, {k}, v{a2}\nv_cndmask_b32 v{a4}, 0, v{a3}, {mA}\nv_accvgpr_write_b32 a{aSEL+k}, v{a4}')
        for gp in range(3):
            u, h_, cc = a0, a1, a2
            A(st, F_N(u) + f'\ns_mul_i32 s{sA}, s{sW}, 48\ns_add_u32 s{sA}, s{sA}, {16*gp}\nv_add_u32 v{u}, s{sA}, v{u}\ns_movk_i32 s{sA}, 90\nv_cmp_le_u32 {mA}, s{sA}, v{u}\n' + F_G(a3))
            A(st, f'v_lshrrev_b32 v{a5}, 1, v{a3}\nv_lshl_add_u32 v{a5}, v{a5}, 8, v{u}\ns_movk_i32 s{sA}, 180\nv_cndmask_b32 v{h_}, 0, 1, {mA}\nv_cmp_gt_u32 s[{sA+2}:{sA+3}], s{sA}, v{a5}')
            A(st, f'v_mul_u32_u24 v{a4}, 90, v{h_}\nv_sub_u32 v{u}, v{u}, v{a4}\nv_mul_u32_u24 v{cc}, 3641, v{u}\nv_lshrrev_b32 v{cc}, 16, v{cc}')
            A(st, f'v_mul_u32_u24 v{a4}, 18, v{cc}\nv_sub_u32 v{u}, v{u}, v{a4}\nv_lshl_add_u32 v{u}, v{u}, 1, v{a3}\nv_lshrrev_b32 v{a4}, 3, v{u}\nv_and_b32 v{u}, 7, v{u}\nv_lshl_add_u32 v{u}, v{a4}, 4, v{u}\nv_lshl_add_u32 v{u}, v{h_}, 3, v{u}')
            A(st, self.image_addr(u, h_, cc, a5, u, a3, a4, sAM))
            A(st, f'v_mov_b32 v{a4}, {DUMMY}\nv_cndmask_b32 v{a5}, v{a4}, v{a5}, s[{sA+2}:{sA+3}]\nv_cndmask_b32 v{u}, v{a4}, v{u}, s[{sA+2}:{sA+3}]\n' + park(2 * gp, a5) + '\n' + park(2 * gp + 1, u))
        A(st, F_G(a2) + f'\nv_mul_u32_u24 v{a2}, 3072, v{a2}\nv_and_b32 v{a3}, 0xf0, v{vL16}\nv_add_u32 v{a2}, v{a2}, v{a3}\ns_mul_i32 s{sKL}, s{sW}, 768\ns_sub_u32 s{sA+2}, {148*16}, s{sKL}')
        A(st, f'v_cmp_gt_u32 {mA}, s{sA+2}, v{a3}\nv_mov_b32 v{a5}, {OOB}\ns_mul_i32 s{sA+2}, s{sJ}, 49152\ns_add_u32 s{sKL}, s{sKL}, s{sA+2}\ns_add_u32 s{sKL}, s{sKL}, {WS_KV}\nv_cndmask_b32 v{a3}, v{a5}, v{a2}, {mA}')
        A(st, park(6, a2) + '\n' + park(7, a3))
        A(st, f's_and_b32 s{sA}, s{sW}, 1\ns_lshr_b32 s{sA+1}, s{sW}, 1')
        A(st, F_G(a4) + f'\nv_mul_u32_u24 v{a2}, 288, v{a4}\nv_cmp_eq_u32 {mA}, 0, v{a4}\nv_mov_b32 v{a3}, 1152\n' + F_N(a4) + f'\nv_cndmask_b32 v{a3}, v{a5}, v{a3}, {mA}')
        G(st, f's_cmp_eq_u32 s{sA}, 1\ns_cselect_b64 {mA}, -1, 0')
        A(st, f'v_cndmask_b32 v{a2}, v{a2}, v{a3}, {mA}\nv_cmp_gt_u32 {mA}, 4, v{a4}\nv_lshl_add_u32 v{a2}, v{a4}, 3, v{a2}')
        A(st, f's_lshl4_add_u32 s{sKS}, s{sJ}, s{sR}\ns_mul_i32 s{sKS}, s{sKS}, 3072\ns_mul_i32 s{sA+2}, s{sA+1}, 1440\nv_cndmask_b32 v{a3}, v{a5}, v{a2}, {mA}\ns_add_u32 s{sKS}, s{sKS}, s{sA+2}\ns_add_u32 s{sKS}, s{sKS}, {WS_KV}')
        A(st, park(8, a2) + '\n' + park(9, a3))
        A(st, f'v_lshrrev_b32 v{a0}, 6, v{vL16}\nv_mul_u32_u24 v{a0}, 232, v{a0}\n' + F_C4(a1) + f'\nv_lshl_add_u32 v{a1}, v{a1}, 3, v{a0}')
        A(st, f's_mul_i32 s{sA+2}, s{sA}, s{sA+1}\ns_mul_i32 s{sA+2}, s{sA+2}, 40\ns_lshl_b32 s{sA+3}, s{sA}, 5\ns_sub_u32 s{sA+3}, s{sA+3}, s{sA+2}')
        A(st, f's_mul_i32 s{sA+2}, s{sA+1}, 48\ns_add_u32 s{sA+3}, s{sA+3}, s{sA+2}\ns_add_u32 s{sA+3}, s{sA+3}, {144 + self.slotS}\nv_add_u32 v{a0}, s{sA+3}, v{a1}')
        A(st, f's_mul_i32 s{sA+2}, s{sA+1}, 72\ns_add_u32 s{sA+2}, s{sA+2}, {self.slotS}\nv_add_u32 v{a1}, s{sA+2}, v{a1}')
        A(st, park(10, a0) + '\n' + park(11, a1))
        A(st, self.ex_addr(a0, a1) + '\n' + park(12, a0))
        A(st, f's_lshl2_add_u32 s{sA}, s{sR}, s{sW}\ns_lshl4_add_u32 s{sOM}, s{sA}, s{sJ}\ns_lshl_b32 s{sOM}, s{sOM}, 11\ns_add_u32 s{sOM}, s{sOM}, {WS_OM}')
        A(st, f's_lshl_b32 s{sA}, s{sA}, 12\ns_lshr_b32 s{sA+2}, s{sJ}, 3\ns_lshl2_add_u32 s{sA+2}, s{sA+2}, s{sJJ}\ns_lshl_b32 s{sA+2}, s{sA+2}, 9\ns_add_u32 s{sA}, s{sA}, s{sA+2}')
        A(st, f's_and_b32 s{sA+2}, s{sQ}, 1\ns_lshl3_add_u32 s{sA}, s{sA+2}, s{sA}\ns_add_u32 s{sOX}, s{sA}, {WS_OX}\nv_and_b32 v{a1}, 0x1f0, v{vL16}\n' + F_HH(a2) + f'\nv_lshl_add_u32 v{a1}, v{a2}, 2, v{a1}\n' + park(13, a1))
        A(st, F_T(a4) + f'\nv_mul_u32_u24 v{a4}, 232, v{a4}\ns_mul_i32 s{sA}, s{sW}, {32*232}\ns_add_u32 s{sA}, s{sA}, {self.slotS}\nv_add_u32 v{a4}, s{sA}, v{a4}\n' + F_HH(a5))
        A(st, f'v_mul_u32_u24 v{a0}, 72, v{a5}\nv_add_u32 v{a0}, v{a0}, v{a4}\nv_lshl_add_u32 v{a1}, v{a5}, 3, v{a4}\nv_lshl_add_u32 v{a2}, v{a5}, 4, v{a4}\nv_lshl_add_u32 v{a3}, v{a5}, 5, v{a4}')
        A(kready, [W('wfr')])
        for x in self.pmfma('k', Pk): A(kready, [x])
        A(kready, self.softmax(Pk, EPk, PHk, Tk, True))
        st = P0(c.ps)
        for k in range(9): A(st, [I(f'ds_write_b64 v{a0}, v[{PHk+2*k}:{PHk+2*k+1}] offset:{8*k}', tok='stg')])
        st = max(st, P0(pos['Tc'] + 1) + 8)
        tc = PK_['Tc']; tbb = PK_['Tb']; hm = f's[{sHH}:{sHH+1}]'
        A(st, [I(f'ds_write_b64 v{a1}, v[{tc}:{tc+1}] offset:144', tok='stg'), I(f'ds_write_b64 v{a1}, v[{tc+2}:{tc+3}] offset:160', tok='stg'), I(f'ds_write_b64 v{a1}, v[{tc+6}:{tc+7}] offset:200', tok='stg')])
        A(st, f'v_cndmask_b32 v{a4}, v{vSD}, v{tbb+2}, {hm}\nv_cndmask_b32 v{a5}, v{tc+5}, v{tbb+3}, {hm}\nv_cndmask_b32 v{tc+5}, v{vSD}, v{tc+5}, {hm}')
        A(st, [I(f'ds_write_b64 v{a3}, v[{a4}:{a5}] offset:184', tok='stg'), I(f'ds_write_b64 v{a2}, v[{tc+4}:{tc+5}] offset:176', tok='stg')])
        need(c.ps, 'stg')
        A(st, unpark(10, a0) + '\n' + unpark(11, a1))
        DL(bar(c.ps))
        KA, KB, KD = 188, 204, 168
        st = bar(c.ps) + 1
        rdA = lambda ks: [I(f'ds_read_b64_tr_b16 v[{KA+4*ks+2*rd}:{KA+4*ks+2*rd+1}], v{a0} offset:{ks*7424+rd*3712}', tok=f'kva{ks}') for rd in range(2)]
        rdB = lambda x: [I(f'ds_read_b64_tr_b16 v[{KB+4*(x%6)+2*rd}:{KB+4*(x%6)+2*rd+1}], v{a1} offset:{(x%4)*7424+rd*3712+32*(x//4)}', tok=f'kvb{x}') for rd in range(2)]
        for ks in range(4): A(st, rdA(ks) + rdB(ks))
        A(st, unpark(8, a2) + '\n' + unpark(9, a3))
        for x in range(12):
            ft, ks = x // 4, x % 4
            mf = I(f'v_mfma_f32_16x16x32_bf16 v[{KD+4*ft}:{KD+4*ft+3}], v[{KA+4*ks}:{KA+4*ks+3}], v[{KB+4*(x%6)}:{KB+4*(x%6)+3}], ' + ('0' if ks == 0 else f'v[{KD+4*ft}:{KD+4*ft+3}]'))
            G(st, [W(f'kvb{x}', f'kva{ks}'), mf])
            if x + 4 < 12: A(st, rdB(x + 4))
        need(c.ps + 1, 'kvb11')
        DL(bar(c.ps + 1))
        x = []
        for ft in range(3):
            x += L(f'v_cvt_pk_bf16_f32 v{KD+4*ft}, v{KD+4*ft}, v{KD+4*ft+1}\nv_cvt_pk_bf16_f32 v{KD+4*ft+1}, v{KD+4*ft+2}, v{KD+4*ft+3}')
        x[4].gap = 1
        for ft in range(3):
            x.append(I(f'buffer_store_dwordx2 v[{KD+4*ft}:{KD+4*ft+1}], v{a2 if ft < 2 else a3}, {srd(WS)}, s{sKS} offen offset:{128*ft} sc1', tok='kvst'))
        A(st, x)
        Pq, EPq, PHq, Tq, SQ = 168, 136, 232, 154, 252
        st = max(st, P0(pos['Td'] + 1) + 8)
        for x in self.pmfma('q', Pq): A(st, [x])
        sm = self.softmax(Pq, EPq, PHq, Tq, False, keepS=SQ)
        KR, IA, vEX, vOA = 200, 212, 254, 255
        pk = c.pk
        if c.kvx:
            A(st, sm); A(st, f'v_mov_b32 v{PHq+18}, 0\nv_mov_b32 v{PHq+19}, 0')
            DL(P0(14) - 1)
            m_att = m; m = []
            f0, f1, f2, span, rgap = c.kvx
            m.append(('after', ('att', 'kvst')))
            G(f0, self.xs('kvfl', [W('kvst'), self.flag(sFKV)]))
            A(f0, f'v_lshrrev_b32 v{a0}, 1, v{vL16}\ns_and_b32 s{sA}, s{sFKV}, 0xfffffe00')
            ld, chk = self.poll('kvf', WS, a0, f's{sA}', a4)
            A(f1, [ld])
            A(f1, '\n'.join([unpark(k, IA + k) for k in range(6)] + [unpark(6, a2), unpark(7, a3), unpark(12, vEX), unpark(13, vOA)]))
            G(f2, chk); st = f2
        else:
            n1 = 70
            A(st, sm[:n1])
            G(st, self.xs('kvfl', [W('kvst'), self.flag(sFKV)]))
            A(st, f'v_lshrrev_b32 v{a0}, 1, v{vL16}\ns_and_b32 s{sA}, s{sFKV}, 0xfffffe00')
            n2 = n1 + c.kvgap
            A(st, sm[n1:n2])
            ld, chk = self.poll('kvf', WS, a0, f's{sA}', a4)
            A(st, [ld]); A(st, sm[n2:])
            A(st, f'v_mov_b32 v{PHq+18}, 0\nv_mov_b32 v{PHq+19}, 0')
            A(st, '\n'.join([unpark(k, IA + k) for k in range(6)] + [unpark(6, a2), unpark(7, a3), unpark(12, vEX), unpark(13, vOA)]))
            G(st, chk); span = 0; rgap = c.krgap
        for i in range(4):
            A(st + span * 3 * i // 12 - 2, f's_add_u32 s{sA+2}, s{sR}, {i}\ns_and_b32 s{sA+2}, s{sA+2}, 3\ns_mul_i32 s{sA+2}, s{sA+2}, 12288\ns_add_u32 s{sA+2}, s{sA+2}, s{sKL}')
            for gp in range(3):
                b = aKV + 4 * (3 * i + gp)
                A(st + span * (3 * i + gp) // 12, [I(f'buffer_load_dwordx4 a[{b}:{b+3}], v{a2 if gp < 2 else a3}, {srd(WS)}, s{sA+2} offen offset:{256*gp} sc1', tok=f'kr{i}')])
        for i in range(4):
            for gp in range(3):
                b = aKV + 4 * (3 * i + gp); d = KR + 4 * gp
                mf = I(f'v_mfma_f32_16x16x32_bf16 v[{d}:{d+3}], a[{aSEL}:{aSEL+3}], a[{b}:{b+3}], ' + ('0' if i == 0 else f'v[{d}:{d+3}]'))
                if i == 0 and gp == 0: mf.gap = 0
                x = glue([W(f'kr{i}'), mf] if gp == 0 else [mf])
                if i == 0 and gp == 0: x[0].gap = rgap
                if gp == 0: x = self.xs(f'kr{i}', x)
                m.append((st, x))
        x = []
        for gp in range(3):
            d = KR + 4 * gp
            x += L(f'v_cvt_pk_bf16_f32 v{d}, v{d}, v{d+1}\nv_cvt_pk_bf16_f32 v{d+1}, v{d+2}, v{d+3}')
        x[0].gap = 1
        for gp in range(3):
            d = KR + 4 * gp
            x += [I(f'ds_write_b64 v{IA+2*gp+k}, v[{d}:{d+1}]', tok='kimg') for k in range(2)]
        A(st, x)
        need(pk, 'kimg')
        DL(bar(pk))
        if c.kvx:
            S['kvx'] = TimedStream('kvx', m); m = m_att
            m.append(('after', ('kvx', 'kimg')))
        OD = 208
        st = bar(pk) + 1
        ofr = lambda x: aPHI + 4 * (x % 6)
        seq = []
        for sg in range(5):
            seq.append(('m', sg, [I(f'ds_read_b64_tr_b16 a[{ofr(2*sg)+2*k}:{ofr(2*sg)+2*k+1}], v{self.vES} offset:{1024*sg+256*k}', tok=f'of{2*sg}') for k in range(2)]))
            seq.append(('x', sg, [I(f'ds_read_b64_tr_b16 a[{ofr(2*sg+1)+2*k}:{ofr(2*sg+1)+2*k+1}], v{vEX} offset:{512*sg+128*k}', tok=f'of{2*sg+1}') for k in range(2)]))
        for x in range(4): A(st, seq[x][2])
        for x in range(10):
            kind, sg, _ = seq[x]
            fr = ofr(x); Bq = PHq + 4 * sg
            if kind == 'm':
                mf = I(f'v_mfma_f32_32x32x16_bf16 v[{OD}:{OD+15}], a[{fr}:{fr+3}], v[{Bq}:{Bq+3}], ' + ('0' if sg == 0 else f'v[{OD}:{OD+15}]'))
            else:
                mf = I(f'v_mfma_f32_16x16x32_bf16 v[{OD+16}:{OD+19}], a[{fr}:{fr+3}], v[{Bq}:{Bq+3}], ' + ('0' if sg == 0 else f'v[{OD+16}:{OD+19}]'))
            G(st, [W(f'of{x}'), mf])
            if x + 4 < 10: A(st, seq[x + 4][2])
        need(pk + 1, 'of9')
        DL(bar(pk + 1))
        X0 = OD + 16
        x = L(f'v_cndmask_b32 v{a3}, v{X0+2}, v{X0}, {hm}\nv_add_f32 v{a3}, v{a3}, v{SQ}\nv_rcp_f32 v{a3}, v{a3}\nv_cndmask_b32 v{X0}, v{X0}, v{X0+2}, {hm}\nv_cndmask_b32 v{X0+1}, v{X0+1}, v{X0+3}, {hm}')
        x[0].gap = 2
        A(st, x)
        for k in range(9):
            A(st, f'v_mul_f32 v{OD+2*k}, v{a3}, v{OD+2*k}\nv_mul_f32 v{OD+2*k+1}, v{a3}, v{OD+2*k+1}\nv_cvt_pk_bf16_f32 v{PHq+k}, v{OD+2*k}, v{OD+2*k+1}')
        A(st, [I(f'buffer_store_dwordx4 v[{PHq+4*k}:{PHq+4*k+3}], v{vL16}, {srd(WS)}, s{sOM} offen offset:{1024*k} sc1', tok='ost') for k in range(2)])
        A(st, [I(f'buffer_store_dword v{PHq+8}, v{vOA}, {srd(WS)}, s{sOX} offen sc1', tok='ost')])
        x = glue([W('ost', 'y8st'), self.flag(sFO)])
        x[0].gap = 30
        m.append(('after', ('epi', 'y8st')))
        m.append((st, self.xs('ofl', x)))
        S['att'] = TimedStream('att', m)

        m = []
        pv0, pv1 = vPa, vPo
        st = P0(min(c.woA, c.wop)) - pd - 4
        m.append(('after', ('dma', f'T{first_rp}')))
        A(st, f'v_and_b32 v{vPa}, 0xf8, v{vPa}\ns_and_b32 s{sPe}, s{sQ}, 1\ns_lshl1_add_u32 s{sPe}, s{sJJ}, s{sPe}\ns_lshl_b32 s{sPe}, s{sPe}, 8\ns_add_u32 s{sPe}, s{sPe}, {FL_WO}')
        ld, chk = self.poll('wo', WS, vPa, f's{sPe}', vPo)
        A(st, [ld]); chk[0].gap = pd - 4; G(st + pd, chk)
        assert len(m) == 8
        st = P0(c.hl[0]) - pd
        A(st, f'v_and_b32 v{pv0}, 0x18, v{pv0}\ns_and_b32 s{sPe}, s{sFH}, 0xffffff80')
        ld, chk = self.poll('hA', WS, pv0, f's{sPe}', pv1)
        A(st, [ld])
        A(st, f's_lshl2_add_u32 s{sHb}, s{sR}, s{sQ}\ns_lshl4_add_u32 s{sHb}, s{sHb}, s{sW}\ns_mul_i32 s{sHb}, s{sHb}, 18432\ns_add_u32 s{sHb}, s{sHb}, {WS_H}')
        chk[0].gap = pd - 4
        G(P0(c.hl[0]) - 1, chk)
        for n in range(6):
            i = 16 + n; pe, hf, stt = self.g2[i]
            p = c.hl[n]
            assert p < i and (p >= 12 if stt < 2 else p >= 13) and (n < 4 or p > i - 4)
            if n == 3:
                ld, chk = self.poll('hB', WS, pv0, f's{sPe}', pv1, imm=32)
                A(P0(p) - pd, [ld]); chk[0].gap = pd - 4; G(P0(p) - 1, chk)
            same = [x for x in range(6) if c.hl[x] == p]
            span = 34 // len(same); st0 = P0(p) + 2 + same.index(n) * span
            A(st0 - 3, f's_add_u32 s{sPe2}, s{sJJ}, {pe}\ns_and_b32 s{sPe2}, s{sPe2}, 3\ns_mul_i32 s{sPe2}, s{sPe2}, {4*18432}\ns_add_u32 s{sPe2}, s{sPe2}, s{sHb}')
            if hf: A(st0 - 3, f's_add_u32 s{sPe2}, s{sPe2}, 9216')
            for k in range(9):
                st = st0 + k * span // 9
                if k in (4, 8): A(st - 1, f's_add_u32 s{sPe2}, s{sPe2}, 4096')
                A(st, [I(f'buffer_load_dwordx4 a[{36*stt+4*k}:{36*stt+4*k+3}], v{vL16}, {srd(WS)}, s{sPe2} offen offset:{(k%4)*1024} sc1', tok=f'ph{i}_{k}')])
            DL(P0(i) - 1)
        S['peer'] = TimedStream('peer', m)

        m = []
        sp = soP
        st = bar(pk + 1) + 1
        dma_insert(st, one(f's_lshl_b32 s{sp}, s{sJJ}, 1\ns_and_b32 s{sp+1}, s{sQ}, 1\ns_add_u32 s{sp}, s{sp}, s{sp+1}\ns_mul_i32 s{sp+1}, s{sp}, 82944\ns_mul_i32 s{sp+2}, s{sW}, 2304\ns_add_u32 s{sp+1}, s{sp+1}, s{sp+2}\ns_add_u32 s{sp+1}, s{sp+1}, {WS_WO+2*SLOT}')
                   + one(f's_add_u32 m0, s{sp+2}, {E}')
                   + [glue(L('s_mov_b64 exec, 0xffff') + [I(f'buffer_load_dwordx4 v{vL16}, {srd(WS)}, s{sp+1} offen offset:2048 sc1 lds', tok='woE')] + L('s_mov_b64 exec, -1'))]
                   + one([I(f'buffer_load_dwordx4 v{vL16}, {srd(WS)}, s{sp+1} offen offset:{1024*k} sc1 lds', tok='woE') for k in range(2)]))
        need(21, 'TwoA'); need(21, 'TwoB'); need(21, 'woE')
        vOM, vOX, vXM, vXE, vLA, vLB, vLX, vRF = 32, 33, 34, 35, 36, 37, 38, 40
        self.tv = dict(vOM=vOM, vXM=vXM, vXE=vXE, vLA=vLA, vLB=vLB, vLX=vLX)
        u0, u1, u2 = 46, 47, 39
        st = max(P0(16), st + 12)
        m.append(('after', ('dma', 'woE')))
        A(st, f's_and_b32 s{sp+3}, s{sQ}, 2\ns_lshr_b32 s{sp+4}, s{sW}, 1\ns_add_u32 s{sp+5}, s{sp+3}, s{sp+4}\ns_lshl2_add_u32 s{sp+3}, s{sR}, s{sp+5}\ns_and_b32 s{sp+4}, s{sW}, 1\ns_lshl_b32 s{sp+6}, s{sp+4}, 8')
        A(st, f'v_and_b32 v{u0}, 0xf0, v{vL16}\nv_add_u32 v{u0}, s{sp+6}, v{u0}\n' + F_G(u1) + f'\nv_lshl_add_u32 v{vOX}, v{u1}, 9, v{u0}')
        A(st, f'v_lshrrev_b32 v{u0}, 1, v{vL16}\nv_and_b32 v{u0}, 0x78, v{u0}\ns_lshl_b32 s{sp+7}, s{sp+3}, 7\ns_add_u32 s{sp+7}, s{sp+7}, {FL_O}')
        ld, chk = self.poll('of', WS, u0, f's{sp+7}', 56)
        A(P0(c.po) - pd, [ld])
        st = P0(c.po) - pd
        A(st, f's_lshl_b32 s{sOMc}, s{sp+3}, 15\ns_add_u32 s{sOMc}, s{sOMc}, {WS_OM}\ns_lshl_b32 s{sp+8}, s{sp+3}, 12\ns_add_u32 s{sp+8}, s{sp+8}, {WS_OX}')
        A(st, f's_lshl3_add_u32 s{sp+6}, s{sp+3}, s{sp}\ns_lshl_b32 s{sp+6}, s{sp+6}, 13\ns_add_u32 s{sp+6}, s{sp+6}, {WS_Y8}')
        chk[0].gap = pd - 6
        G(P0(c.po) - 1, chk)
        YB, Y8 = 200, 216
        st = P0(c.po)
        for i in range(4):
            if i == 2: A(st, f's_add_u32 s{sp+6}, s{sp+6}, 4096')
            A(st + 3 * i, [I(f'buffer_load_dwordx4 v[{YB+4*i}:{YB+4*i+3}], v{vOX}, {srd(WS)}, s{sp+6} offen offset:{(i&1)*2048} sc1', tok=f'y8l{i}')])
        span = (P0(21) + 8 - (st + 12))
        rest = []
        rest += L(F_N(u0) + f'\nv_mul_u32_u24 v{u0}, 1152, v{u0}\nv_lshl_add_u32 v{vXM}, v{u1}, 4, v{u0}\nv_lshl_add_u32 v{vXE}, v{u1}, 3, v{u0}\nv_mov_b32 v{u0}, {OOB}\nv_cndmask_b32 v{vXE}, v{vXE}, v{u0}, {hm}')
        rest += L(f's_lshr_b32 s{sp+1}, s{sQ}, 1\ns_lshl1_add_u32 s{sp+1}, s{sR}, s{sp+1}\ns_lshl2_add_u32 s{sp+1}, s{sp+1}, s{sW}\ns_mul_i32 s{sp+1}, s{sp+1}, {16*1152}\ns_lshl_b32 s{sp+2}, s{sp}, 7\ns_add_u32 s{sXO}, s{sp+1}, s{sp+2}')
        rest += L(f's_lshl4_add_u32 s{sp+2}, s{sp}, s{sp+1}\ns_add_u32 s{sp+2}, s{sp+2}, 1024')
        XR = 48
        rest += [I(f'buffer_load_dwordx4 v[{XR+4*k}:{XR+4*k+3}], v{vXM}, {srd(X)}, s{sXO} offen offset:{64*k}', tok='xres') for k in range(2)]
        rest += [I(f'buffer_load_dwordx2 v[{XR+8}:{XR+9}], v{vXE}, {srd(X)}, s{sp+2} offen', tok='xres')]
        rest += L(f's_lshr_b32 s{sp+1}, s{sQ}, 1\ns_lshl2_add_u32 s{sp+1}, s{sp+1}, s{sW}\ns_lshl_b32 s{sp+1}, s{sp+1}, 6\ns_add_u32 s{sp+1}, s{sp+1}, {RSA}\nv_and_b32 v{u0}, 0xf0, v{vL16}\nv_lshrrev_b32 v{u0}, 2, v{u0}\nv_add_u32 v{u0}, s{sp+1}, v{u0}')
        rest += [I(f'ds_read_b32 v{vRF}, v{u0}', tok='rsr')]
        rest += L(f'v_and_b32 v{vLA}, 0x3c0, v{vL16}\nv_lshrrev_b32 v{vLX}, 2, v{vLA}\nv_bfe_u32 v{u0}, v{vL16}, 4, 1\nv_lshl_add_u32 v{vLA}, v{u0}, 3, v{vLA}\nv_lshl_add_u32 v{vLX}, v{u0}, 3, v{vLX}')
        rest += L(f'v_and_b32 v{u0}, 32, v{vL16}\nv_add_u32 v{vLA}, v{vLA}, v{u0}\n' + F_TB(u0) + f'\nv_lshl_add_u32 v{vLA}, v{u0}, 4, v{vLA}')
        rest += L(f'v_add_u32 v{vLA}, {self.slot["woA"]}, v{vLA}\nv_xor_b32 v{vLB}, 16, v{vLA}\nv_add_u32 v{vLX}, {self.slot["woA"]+4096}, v{vLX}')
        rest += L(self.ident(44, u0))
        rest += L(f'v_mov_b32 v{vRF+1}, v{vRF}\nv_mul_f32 v42, 0xbfb8aa3b, v{vRF}\nv_mul_f32 v43, 0xbfb8aa3b, v{vRF}')
        for i in range(4):
            rest.append(glue([W(f'y8l{i}'), I(f'v_mfma_f32_16x16x32_bf16 v[{Y8}:{Y8+3}], a[{aSEL}:{aSEL+3}], v[{YB+4*i}:{YB+4*i+3}], ' + ('0' if i == 0 else f'v[{Y8}:{Y8+3}]'))]))
        rest += L(f's_lshl2_add_u32 s{sp+1}, s{sR}, s{sJJ}\ns_lshl2_add_u32 s{sE}, s{sp+1}, s{sW}\ns_lshl2_add_u32 s{sE}, s{sE}, s{sQ}\ns_lshl_b32 s{sE}, s{sE}, 13\ns_add_u32 s{sE}, s{sE}, {WS_Y}')
        rest += L(f's_and_b32 s{sp+6}, s{sQ}, 1\ns_lshl_b32 s{sp+6}, s{sp+6}, 12\ns_add_u32 s{sE+1}, s{sE}, s{sp+6}\ns_xor_b32 s{sE}, s{sE+1}, 4096')
        rest += L(f's_lshl2_add_u32 s{sp+1}, s{sp+1}, s{sp+5}\ns_lshl_b32 s{sYc}, s{sp+1}, 15\ns_add_u32 s{sYc}, s{sYc}, s{sp+6}\ns_add_u32 s{sYc}, s{sYc}, {WS_Y}\ns_lshl_b32 s{sp+7}, s{sp+1}, 7\ns_add_u32 s{sp+7}, s{sp+7}, {FL_Y}')
        rest += [glue(L(f's_lshr_b32 s{sp+1}, s{sQ}, 1\ns_lshr_b32 s{sp+6}, s{sW}, 1\ns_cmp_eq_u32 s{sp+1}, s{sp+6}\ns_cselect_b32 s{sp+6}, {OOB}, 0'))]
        rest += L(f'v_or_b32 v58, s{sp+6}, v{vL16}\ns_lshl_b32 s{sp+1}, s{sW}, 12\ns_add_u32 s{sp+1}, s{sp+1}, {self.slot["Y"]}\nv_add_u32 v59, s{sp+1}, v{vL16}')
        rest += L(f's_lshl_b32 s{sp+1}, s{sp+5}, 12\ns_add_u32 s{sp+1}, s{sp+1}, {self.slot["Y"]}\nv_add_u32 v60, s{sp+1}, v{vOX}')
        rest += L(f'v_bfe_u32 v61, v{vL16}, 4, 1\nv_lshl_or_b32 v61, v61, 1, 1\nv_xor_b32 v61, s{sQ}, v61\nv_lshlrev_b32 v61, 3, v61\ns_xor_b32 s{sp+1}, s{sQ}, 2\ns_lshl_b32 s{sp+1}, s{sp+1}, 3\nv_mov_b32 v62, s{sp+1}')
        for k, x in enumerate((1, 3, 2)):
            rest += L(f's_xor_b32 s{sp+1}, s{sQ}, {x}\ns_lshl_b32 s{sp+1}, s{sp+1}, 13\ns_add_u32 s{sT0+k}, s{sYc}, s{sp+1}')
        XU = 64
        sw = [I(f'v_permlane16_swap_b32 v{XR+4*mt+k}, v{XR+4*mt+2+k}') for mt in range(2) for k in range(2)]
        sw[0].gap = 0
        rest += sw
        for k in range(10): rest += L(f'v_lshlrev_b32 v{XU+2*k}, 16, v{XR+k}\nv_and_b32 v{XU+2*k+1}, 0xffff0000, v{XR+k}')
        nr = len(rest); k0 = 0
        for j_ in range(18):
            stj = st + 12 + j_ * span // 18
            if j_ < 16:
                if j_ and j_ % 2 == 0: A(stj, f's_add_u32 s{sOMc}, s{sOMc}, 4096')
                A(stj, [I(f'buffer_load_dwordx4 a[{184+4*j_}:{187+4*j_}], v{vOX}, {srd(WS)}, s{sOMc} offen offset:{(j_&1)*2048} sc1', tok=f'o{j_}')])
            else:
                A(stj, [I(f'buffer_load_dwordx4 a[{184+4*j_}:{187+4*j_}], v{vOX}, {srd(WS)}, s{sp+8} offen offset:{(j_-16)*2048} sc1', tok=f'o{j_}')])
            k1 = min(nr, nr * (j_ + 1) // 14)
            for x in rest[k0:k1]: m.append((stj, x if isinstance(x, list) else [x]))
            k0 = k1
        DL(bar(21) - 2)
        S['prep'] = TimedStream('prep', m)

        m = []
        for mu in range(4):
            a = GA + 16 * mu
            st = P0(21) + 9 * mu + 8 + 3
            A(st, [I(f'v_cvt_pk_bf16_f32 v{a+k}, v{a+2*k}, v{a+2*k+1}') for k in range(8)])
            for p_ in range(2):
                if mu < 2:
                    A(st, [I(f'buffer_store_dwordx4 v[{a+4*p_}:{a+4*p_+3}], v{vL16}, {srd(WS)}, s{sE} offen offset:{2048*mu+1024*p_} sc1', tok='yE')])
                else:
                    A(st, [I(f'buffer_store_dwordx4 v[{a+4*p_}:{a+4*p_+3}], v58, {srd(WS)}, s{sE+1} offen offset:{2048*(mu-2)+1024*p_} sc1', tok='yL')])
            if mu >= 2:
                A(st, [I(f'ds_write_b128 v59, v[{a+4*p_}:{a+4*p_+3}] offset:{2048*(mu-2)+1024*p_}', tok='yown') for p_ in range(2)])
        S['ypk'] = TimedStream('ypk', m)
        return S

    def s_reads(self, x):
        st, lam = x // 5, x % 5
        tv = self.tv
        b = 72 + 4 * (x % 18)
        r = []
        if lam == 0 and st in (8, 16):
            dl = (self.slot['woB'] - self.slot['woA']) if st == 8 else (E - self.slot['woB'])
            r += [I(f'v_add_u32 v{tv[k]}, {dl & 0xffffffff}, v{tv[k]}') for k in ('vLA', 'vLB', 'vLX')]
        o = (st % 8) * 4608
        for rd in range(2):
            if lam < 4: reg, oo = tv['vLB' if lam & 1 else 'vLA'], o + (lam >> 1) * 2048 + rd * 1024
            else: reg, oo = tv['vLX'], o + rd * 256
            r.append(I(f'ds_read_b64_tr_b16 a[{b+2*rd}:{b+2*rd+1}], v{reg} offset:{oo}', tok=f's{x}'))
        return r

    def tail(self, S):
        c = self.c; E_ = self.E; tv = self.tv
        sp = soP
        SA, YE, YL, YO, YA, Y8, XU, TM, OUTR = 84, 104, 120, 128, 200, 216, 64, 160, 180
        vOX = 33
        side = {}
        add = lambda x, lst: side.setdefault(x, []).extend(lst)
        yp = flush(S['ypk'])
        n0 = 1
        for k, x in enumerate(yp): add(n0 + k // 2, [x])
        xb = n0 + len(yp) // 2 + 3
        add(xb, [W('yown')] + L('s_barrier') + [I(f'ds_read_b128 v[{YO+4*mt}:{YO+4*mt+3}], v60 offset:{2048*mt}', tok='yor') for mt in range(2)])
        fl = lambda tk, o: [W(tk), self.flag(sFY, o)]
        add(c.xe, fl('yE', 0) + self.stamp('yEf'))
        add(c.xl, fl('yL', 32) + self.stamp('yLf'))
        ldE, chkE = self.poll('yfE', WS, 61, f's{sp+7}', 222)
        ldL, chkL = self.poll('yfL', WS, 62, f's{sp+7}', 222, imm=32)
        xpe = min(c.xl + 4, 60)
        add(xpe, [ldE])
        ident_mf = lambda src, mt, ab, first: I(f'v_mfma_f32_4x4x4_16b_bf16 v[{YA+8*mt+4*ab}:{YA+8*mt+4*ab+3}], v[44:45], v[{src+4*mt+2*ab}:{src+4*mt+2*ab+1}], ' + ('0' if first else f'v[{YA+8*mt+4*ab}:{YA+8*mt+4*ab+3}]'))
        for x in range(90):
            st, lam = x // 5, x % 5
            fr = 72 + 4 * (x % 18); acc = SA + 4 * lam
            E_(W(f's{x}', f'o{st}'))
            E_(f'v_mfma_f32_16x16x32_bf16 v[{acc}:{acc+3}], a[{fr}:{fr+3}], a[{184+4*st}:{187+4*st}], ' + ('0' if x < 5 else f'v[{acc}:{acc+3}]'))
            if x + c.Ds < 90: E_(self.s_reads(x + c.Ds))
            E_(side.get(x, []))
        E_(self.stamp('s89'))
        E_(chkE)
        E_(self.stamp('yEp'))
        for k in range(2):
            for mt in range(2):
                E_(I(f'buffer_load_dwordx4 v[{YE+8*k+4*mt}:{YE+8*k+4*mt+3}], v{vOX}, {srd(WS)}, s{sT0+k} offen offset:{2048*mt} sc1', tok=f'yl{k}'))
        E_(ldL)
        for mt in range(2):
            for ab in range(2): E_(ident_mf(YO, mt, ab, True))
        for k in range(10):
            E_(f'v_pk_mul_f32 v[{SA+2*k}:{SA+2*k+1}], v[{SA+2*k}:{SA+2*k+1}], v[40:41]')
        self.final_a(Y8, TM + 16, SA + 16); self.final_b(Y8, TM + 16, XU + 16, OUTR + 8)
        E_(I(f'buffer_store_dwordx2 v[{OUTR+8}:{OUTR+9}], v{tv["vXE"]}, {srd(OUT)}, s{sp+2} offen{c.osc}', tok='out'))
        E_(chkL)
        E_(self.stamp('yLp'))
        for mt in range(2):
            E_(I(f'buffer_load_dwordx4 v[{YL+4*mt}:{YL+4*mt+3}], v{vOX}, {srd(WS)}, s{sT0+2} offen offset:{2048*mt} sc1', tok=f'yl2{mt}'))
        for k in range(2):
            for mt in range(2):
                for ab in range(2): E_(ident_mf(YE + 8 * k, mt, ab, False))
        for mt in range(2):
            for ab in range(2): E_(ident_mf(YL, mt, ab, False))
        E_(self.stamp('yld'))
        for mt in range(2):
            for ab in range(2):
                lam = 2 * mt + ab
                self.final_a(YA + 4 * lam, TM + 4 * lam, SA + 4 * lam)
            for ab in range(2):
                lam = 2 * mt + ab
                self.final_b(YA + 4 * lam, TM + 4 * lam, XU + 4 * lam, OUTR + 2 * lam)
            for k in range(2): E_(f'v_permlane16_swap_b32 v{OUTR+4*mt+k}, v{OUTR+4*mt+2+k}')
            E_(I(f'buffer_store_dwordx4 v[{OUTR+4*mt}:{OUTR+4*mt+3}], v{tv["vXM"]}, {srd(OUT)}, s{sXO} offen offset:{64*mt}{c.osc}', tok='out'))
        E_(self.stamp('fin'))

    def final_a(self, y, tm, sa):
        E_ = self.E
        for k in range(2): E_(f'v_pk_mul_f32 v[{tm+2*k}:{tm+2*k+1}], v[{y+2*k}:{y+2*k+1}], v[42:43]')
        for k in range(4): E_(f'v_exp_f32 v{tm+k}, v{tm+k}')
        for k in range(2): E_(f'v_pk_mul_f32 v[{y+2*k}:{y+2*k+1}], v[{y+2*k}:{y+2*k+1}], v[{sa+2*k}:{sa+2*k+1}]')

    def final_b(self, y, tm, xu, outr):
        E_ = self.E
        for k in range(2): E_(f'v_pk_add_f32 v[{tm+2*k}:{tm+2*k+1}], v[{tm+2*k}:{tm+2*k+1}], 1.0 op_sel_hi:[1,0]')
        for k in range(4): E_(f'v_rcp_f32 v{tm+k}, v{tm+k}')
        for k in range(2): E_(f'v_pk_fma_f32 v[{y+2*k}:{y+2*k+1}], v[{y+2*k}:{y+2*k+1}], v[{tm+2*k}:{tm+2*k+1}], v[{xu+2*k}:{xu+2*k+1}]')
        for k in range(2): E_(f'v_cvt_pk_bf16_f32 v{outr+k}, v{y+2*k}, v{y+2*k+1}')

    def build(self):
        c = self.c; E_ = self.E
        assert c.D + 2 <= 8
        self.plan()
        self.prologue()
        S = self.build_streams()
        E_(self.stamp('stat'))
        E_(W('T0', 'zf0')); E_('s_barrier')
        E_(self.stamp('T0'))
        for s in range(c.D): E_(self.reads(s))
        steps = self.main_steps()
        sk = c.skip.split()

        def drop(pred, names=None):
            for nm, st_ in S.items():
                if names and nm not in names: continue
                for it in st_.items:
                    if isinstance(it[0], str): continue
                    it[1][:] = [x for x in it[1] if not pred(x)] or [I('s_nop 0')]
        for nm in sk:
            if nm in S: drop(lambda x: True, [nm])
        if sk:
            drop(lambda x: x.kind == 'label' or x.op.startswith('s_cbranch') or x.op.startswith('v_cmp_ne'))
            self.slow = [x for x in self.slow if x.startswith('SLOW_yf')]
        if 'hst' in sk: drop(lambda x: x.kind == 'vstore', ['epi'])
        if 'peerld' in sk: drop(lambda x: x.kind == 'vload', ['peer'])
        if 'oload' in sk: drop(lambda x: x.kind == 'vload', ['prep'])
        if 'dmaq' in sk: drop(lambda x: x.kind == 'dma', ['dma'])
        if 'attvm' in sk: drop(lambda x: x.kind in ('vstore', 'vload'), ['att'])
        order = [S[k] for k in ('dma', 'flg', 'epi', 'ypk', 'peer', 'kvx', 'misc', 'accw', 'att', 'prep') if k in S]
        self.log = []
        stp = {36 * p: (lambda p=p: self.stamp(f'p{p-1}')) for p in range(1, 4 if c.tsp else 22)}
        if c.tsg:
            stp = {k: v for k, v in stp.items() if k // 36 in (2, 6, 10, 14, 18)}
            for g_ in range(*c.tsg): stp[g_] = (lambda g_=g_: self.stamp(f'{(g_-1)//36}.{(g_-1)%36+1}'))
        body = schedule_timed(steps, order, log=self.log, stamps=stp)
        E_(body)
        for s in order:
            if s.name != 'ypk': assert s.done(), (s.name, s.idx, len(s.items))
        E_(self.stamp('p21'))
        self.tail(S)
        if c.ts:
            E_(W('out')); E_(self.stamp('out')); self.number_stamps()
            if c.tsg: E_(f's_waitcnt lgkmcnt(0)\nv_writelane_b32 v{vONE}, s0, {self.nts}')
            E_(f's_memrealtime s[0:1]\ns_waitcnt lgkmcnt(0)\nv_writelane_b32 v{vONE}, s0, 62')
            E_(f's_lshl_b32 s3, s2, 2\ns_add_u32 s3, s3, s{sW}\ns_lshl_b32 s3, s3, 8\ns_add_u32 s3, s3, {WS_TS}\nv_lshrrev_b32 v25, 2, v{vL16}')
            E_(f'buffer_store_dword v{vONE}, v25, {srd(WS)}, s3 offen')
            if c.dbg is not None:
                names = ['karg', 'xiss', 'x7', 'T0', 'p1', 'p3', 'p5', 'p8', 'p12', 'p15', 'p18', 'p21', 's89', 'yLp', 'out']
                E_(f'v_readlane_b32 s40, v{vONE}, 61\nv_readlane_b32 s41, v{vONE}, 60\nv_readlane_b32 s42, v{vONE}, 62\ns_sub_u32 s42, s42, s41\nv_mov_b32 v26, 0')
                for wd, nm in enumerate(names):
                    E_(f'v_readlane_b32 s43, v{vONE}, {self.notes.index(nm)+1}\ns_sub_u32 s43, s43, s40\nv_writelane_b32 v26, s43, {wd}')
                E_(f'v_writelane_b32 v26, s42, 15\nv_lshlrev_b32 v25, 2, v0\ns_cmp_eq_u32 s2, {c.dbg}\ns_cselect_b32 s44, 0xffff, 0\ns_cmp_eq_u32 s{sW}, 0\ns_cselect_b32 s44, s44, 0\ns_mov_b32 exec_lo, s44\ns_mov_b32 exec_hi, 0')
                E_(f'buffer_store_dword v26, v25, {srd(DBG)}, 0 offen')
        for x in self.p:
            if x.kind == 'vload' and x.wr & {('a', 182), ('a', 183)}: x.wr = set()
        stats = {}
        prog = resolve_waits(self.p, stats, lenient=bool(c.skip))
        prog = pad_hazards(prog, stats)
        self.stats = stats
        self.prog = prog
        return prog

    def text(self):
        hdr = open('cdna_kernels/' + NAME + '.s.ref').read().split('\n')
        top = [x for x in hdr if x.startswith(';') and not x.startswith('; @launch')]
        out = top + ['; @launch grid=(256,1,1) block=(256,1,1) lds=163840',
                     '.amdgcn_target "amdgcn-amd-amdhsa--gfx950"', '.text', f'.globl {NAME}_kernel', '.p2align 8',
                     f'.type {NAME}_kernel,@function', f'{NAME}_kernel:']
        out += [i.text for i in self.prog]
        out += ['L_end:', 's_endpgm'] + self.slow + ['CODE_END:', 's_endpgm']
        out += ['.section .rodata,"a"', '.p2align 6', f'.amdhsa_kernel {NAME}_kernel', '  .amdhsa_next_free_vgpr 512', '  .amdhsa_next_free_sgpr 102',
                '  .amdhsa_accum_offset 256', '  .amdhsa_group_segment_fixed_size 0', '  .amdhsa_kernarg_size 80', '  .amdhsa_user_sgpr_count 2',
                '  .amdhsa_user_sgpr_kernarg_segment_ptr 1', '  .amdhsa_system_sgpr_workgroup_id_x 1', '.end_amdhsa_kernel']
        return '\n'.join(out) + '\n'


class TimedStream:
    def __init__(self, name, items):
        self.name = name; self.items = items; self.idx = 0; self.last_step = -10**9

    def done(self):
        while self.idx < len(self.items) and isinstance(self.items[self.idx][0], str): self.idx += 1
        return self.idx >= len(self.items)

    def next_deadline(self):
        for it in self.items[self.idx:]:
            if it[0] == 'deadline': return it[1]
        return None


def flush(s):
    r = [x for it in s.items[s.idx:] if not isinstance(it[0], str) for x in it[1]]
    s.idx = len(s.items)
    return r


def schedule_timed(steps, streams, log=None, stamps=None):
    out = []
    byname = {s.name: s for s in streams}
    CAP = {'mfma32': 8, 'mfma16': 4, 'mfma4': 3}

    def passed(ref):
        s = byname[ref[0]]
        if isinstance(ref[1], int): return s.idx >= ref[1]
        return not any((not isinstance(it[0], str)) and any(x.tok == ref[1] for x in it[1]) for it in s.items[s.idx:])

    for g, st in enumerate(steps):
        if stamps and g in stamps: out.extend(stamps[g]())
        out.extend(st.pre)
        used = sum(i.cost for i in st.pre)
        cap = st.cap if st.cap is not None else CAP[st.mf.kind]
        out.append(st.mf); used += st.mf.cost
        forced = 0
        for s in streams:
            while True:
                dl = s.next_deadline()
                if dl is None or dl > g: break
                while s.items[s.idx][0] != 'deadline':
                    it = s.items[s.idx]
                    if it[0] == 'after': assert passed(it[1]), (s.name, it, g)
                    else:
                        assert it[0] <= g, (s.name, it, g)
                        out.extend(it[1]); forced += sum(x.cost for x in it[1])
                    s.idx += 1
                s.idx += 1; s.last_step = g
        used += forced
        out.extend(st.post); used += sum(i.cost for i in st.post)
        nmf = 0
        while True:
            pick = None
            for allow_mf in (False, True):
                for s in streams:
                    while s.idx < len(s.items) and (s.items[s.idx][0] == 'deadline' or (s.items[s.idx][0] == 'after' and passed(s.items[s.idx][1]))): s.idx += 1
                    if s.idx >= len(s.items): continue
                    t0, grp = s.items[s.idx]
                    if t0 == 'after' or g < t0: continue
                    if grp[0].gap and g < s.last_step + grp[0].gap: continue
                    cst = sum(x.cost for x in grp)
                    extra = sum(CAP[x.kind] for x in grp if x.kind in MF_KINDS)
                    if extra:
                        if not allow_mf or nmf >= 2 or st.end: continue
                    else:
                        late = (s.name in ('dma', 'ypk', 'peer', 'kvx') and g >= t0 + 2 and used <= cap) or (cst > 3 and used < cap)
                        if used + cst > cap and not late: continue
                    pick = (s, grp, cst, extra); break
                if pick: break
            if not pick: break
            s, grp, cst, extra = pick
            if extra:
                nmf += 1
                cap = max(cap, used) + extra; used = cap - extra
            out.extend(grp); used += cst
            s.idx += 1; s.last_step = g
        if st.end:
            out.extend(st.end); cap = max(cap, used) + sum(CAP[x.kind] for x in st.end); used = cap
        if log is not None: log.append((g, used, cap, forced, {s.name: s.idx for s in streams}))
    return out


if __name__ == '__main__':
    kw = {}
    for a in sys.argv[2:]:
        k, v = a.split('='); kw[k] = eval(v)
    g = Gen(Cfg(**kw)); g.build()
    open(sys.argv[1], 'w').write(g.text())
    print('instrs', len(g.prog), 'est clk', estimate(g.prog), {k: v for k, v in g.stats.items() if k != 'nop_sites'})
    print('period slots', [sum(max(x[1], x[2]) for x in g.log[36*p:36*p+36]) * 4 for p in range(22)])
    print('forced', [(x[0], x[3]) for x in g.log if x[3]])
    print('slots', g.slot, g.slotS, g.loadp)
    for nm in g.log[0][4]:
        print(nm, [g.log[36*p+35][4][nm] for p in range(22)])
```

```python
import sys, os
sys.path.insert(0, os.path.dirname(os.path.abspath(__file__)))
from asmlib import *

NAME = 'recurrent_scan__linear_kernel_hedgehog__dense_activation_relu__prompt'

SLOT = 36864
E = 147456
E2 = E + 5120
RSA = E + 12288
DUMMY = E + 0x3800
OOB = 0x80000000
FL_H, FL_KV, FL_O, FL_RP, FL_WO, FL_Y = 0x0, 0x8000, 0xA000, 0xC000, 0xE000, 0x10000
WS_KV, WS_RP, WS_WO, WS_OM, WS_OX, WS_Y8, WS_Y, WS_H, WS_TS = 0x20000, 0x100000, 0x400000, 0x500000, 0x700000, 0x800000, 0xC00000, 0x1800000, 0x3000000
WS_SIZE = 268435456
RPI = {'Ta': 0, 'Tb': 1, 'Tc': 2, 'Td': 3, 'S': 4}
X, QKV, PHI, WO, W1, W2, OUT, DBG, WS = 4, 8, 12, 16, 20, 24, 28, 32, 36
srd = lambda n: f's[{n}:{n+3}]'
SIZES = {X: 2359296, QKV: 1990656, PHI: 20736, WO: 663552, W1: 5308416, W2: 5308416, OUT: 2359296, DBG: 256, WS: WS_SIZE}
KOFF = {X: 0, QKV: 8, PHI: 16, WO: 24, W1: 40, W2: 48, OUT: 56, DBG: 64, WS: 72}
soP = 40
soPb = [88, 89, 90, 91, 92, 93, 96, 97, 101]
PIMM = [0, 1, 2, 3, 0, 1, 2, 3, 0] + [0, 1, 2, 0, 1, 2, 3, 0, 1]
sN = 94
sD = 49
sMi = 54
sMiM = 58
sA = 60
sAM = 64
sPe = 66
sW, sR, sJ, sQ, sJJ, sWL = 67, 68, 69, 70, 71, 72
sHown, sFH, sFKV, sFO, sFY, sRP, sPF = 73, 74, 75, 76, 77, 78, 79
sPe2, sHb = 80, 81
sE = 82
sXO, sYc, sOMc = 85, 86, 87
sT0, sT1, sT2, sT3 = 90, 91, 92, 93
sHH = 98
sSPIN = 100
vL16 = 1
vK = 2
vW1, vPA, vS, vCur, vF0, vONE, vRS, vC, vSD, vCur2 = 11, 12, 13, 14, 15, 16, 17, 18, 19, 20
vPF, vPo, vPa, vPU = 21, 22, 24, 25
vAt = 26
ACC = (32, 48)
ACC0 = (80, 96)
vH = 64
vX = 112
GA = 136
RING = 144
aPHI = 184
aKV = 208
aSEL = 176
aN = 180
aRP, aWP, aWO, aPK = 208, 228, 232, 236
LOG2E = 0x3fb8aa3b


class Cfg:
    order = ['P0a', 'P0b', 'P1a', 'P1b', 'Ta', 'Tb', 'Tc', 'Td', 'S', 'P2a', 'P2b', 'P3a', 'P3b']
    D = 5
    we = 2
    ps = 8
    pk = 13
    woA = 10
    hl = (13, 14, 15, 16, 17, 18)
    wop = 9
    po = 19
    xlag = 3
    npre = 4
    xa = 5
    Ds = 8
    ts = False
    xrot = 1
    c8p = 2
    rps = 12
    rpf = 24
    pf = {'P2': 3, 'P3': 5, 'B8': 5, 'U0': 6, 'U1': 7, 'U2': 7, 'U3': 8}
    cap = 8
    ys = 4
    ycl = (190, 28)
    xye = 30
    xyl = 50
    xpe = 6
    xpl = 68
    xyc = 40
    hlay = 2
    ylay = 1
    swe = 3
    ypn = 4
    gentle = 1
    xlc = 90
    rt2 = 1
    xp2 = 0
    oend = 18
    rj = 9
    xrs = 15
    xux = 14
    ldsb = 0
    stgi = 0
    pfs = 26
    dly = 6
    dend = 29
    osc = ' sc1'
    caps = {7: 9, 8: 9, 9: 9}
    kvx = (358, 406, 430, 30, 30)
    hfd = 30
    kvgap = 60
    krgap = 16
    msum = 0
    wim = 44
    pf1 = 1
    rpw = 3
    bulk = 2
    pf0p = 2
    t1p = 0
    head = 1
    nfill = 400
    tsx = ''
    tsg = None
    tsp = False
    spin = 20000
    pref = True
    skip = ''
    dbg = None
    xe = 0
    xl = 40
    pdist = 22

    def __init__(self, **kw):
        for k, v in kw.items():
            assert hasattr(self, k), k
            setattr(self, k, v)


def L(text, **kw):
    r = []
    for line in text.split('\n'):
        line = line.strip()
        if line:
            r.append(I(line, **kw)); kw.pop('gap', None)
    return r


def glue(lst):
    for x in lst[1:]: x.glue = True
    return lst


F_T = lambda d: f'v_bfe_u32 v{d}, v{vL16}, 4, 5'
F_HH = lambda d: f'v_lshrrev_b32 v{d}, 9, v{vL16}'
F_N = lambda d: f'v_bfe_u32 v{d}, v{vL16}, 4, 4'
F_G = lambda d: f'v_lshrrev_b32 v{d}, 8, v{vL16}'
F_R4 = lambda d: f'v_bfe_u32 v{d}, v{vL16}, 6, 2'
F_C4 = lambda d: f'v_bfe_u32 v{d}, v{vL16}, 4, 2'
F_TB = lambda d: f'v_bfe_u32 v{d}, v{vL16}, 8, 1'


class Gen:
    def __init__(self, cfg):
        self.c = cfg
        self.p = []
        self.slow = []
        self.nts = 0
        self.notes = []

    def E(self, x, **kw):
        if isinstance(x, str): self.p.extend(L(x, **kw))
        elif isinstance(x, list): self.p.extend(x)
        else: self.p.append(x)

    def stamp(self, name=''):
        if not self.c.ts: return []
        if self.c.tsg:
            r = glue(L(f'v_writelane_b32 v{vONE}, s0, 0\ns_memtime s[0:1]'))
            r[0].comment = name; r[1].kind = 'sctl'; r[1].wr = set()
        else:
            r = glue(L(f's_memtime s[0:1]\ns_waitcnt lgkmcnt(0)\nv_writelane_b32 v{vONE}, s0, 0'))
            r[2].comment = name
        for x in r: x.cost = 0
        return r

    def number_stamps(self):
        for x in self.p:
            if getattr(x, 'comment', None) is not None:
                self.nts += 1; self.notes.append(x.comment); assert self.nts < 59
                x.text = f'v_writelane_b32 v{vONE}, s0, {self.nts - 1 if self.c.tsg else self.nts}'

    def xs(self, name, grp):
        if not self.c.tsx or name not in self.c.tsx.split(): return grp
        g = grp[0].gap
        r = glue(self.stamp('<' + name) + grp + self.stamp(name + '>')); r[0].gap = g; r[0].glue = False
        return r

    def poll(self, name, srdn, vaddr, soff, reg, imm=0, tag=False, reg2=None):
        assert reg % 2 == 0
        ld = f'buffer_load_dwordx2 v[{reg}:{reg+1}], v{vaddr}, {srd(srdn)}, {soff} offen' + (f' offset:{imm}' if imm else '') + ' sc1'
        cmp = f'v_min_u32 v{vaddr}, v{reg}, v{reg+1}\nv_cmp_eq_u32 vcc, 0, v{vaddr}' if tag else f'v_cmp_ne_u64 vcc, s[{sN}:{sN+1}], v[{reg}:{reg+1}]'
        fix = f'v_mov_b32 v{vaddr}, 0\n' if tag else ''
        chk = [W(name)] + L(f'{cmp}\ns_cbranch_vccnz SLOW_{name}\nBACK_{name}:')
        snd = ''
        if reg2:
            self.ld2 = I(ld.replace(f'v[{reg}:{reg+1}]', f'v[{reg2}:{reg2+1}]'), tok=name + '2')
            snd = f's_waitcnt vmcnt(0)\nv_cmp_ne_u64 vcc, s[{sN}:{sN+1}], v[{reg2}:{reg2+1}]\ns_nop 1\ns_cbranch_vccz BACK_{name}\n'
        self.slow.append(f'''SLOW_{name}:
{snd}s_mov_b32 s{sSPIN}, 0
LOOP_{name}:
{fix}{ld}
s_add_u32 s{sSPIN}, s{sSPIN}, 1
s_waitcnt vmcnt(0)
{cmp}
s_nop 1
s_cbranch_vccz BACK_{name}
s_cmp_lt_u32 s{sSPIN}, {self.c.spin}
s_cbranch_scc1 LOOP_{name}
s_branch BACK_{name}''')
        return I(ld, tok=name), self.xs(name, glue(chk))

    def tcheck(self, name, toks, T, lds, so=()):
        mx = ''
        for t, op in ((222, 'min'), (223, 'max')):
            mx += f'v_{op}3_u32 v{t}, v{T[0]}, v{T[1]}, v{T[2]}\n'
            if len(T) > 3: mx += f'v_{op}3_u32 v{t}, v{T[3]}, v{T[4]}, v{t}\nv_{op}_u32 v{t}, v{T[5]}, v{t}\n'
        pre = ''
        if self.c.gentle:
            pre = f'v_mov_b32 v224, {(2 << 21) + 1024 + 1008 + 12}\nPRE_{name}:\n'
            for k in range(2): pre += f'buffer_load_dword v{222+k}, v224, {srd(WS)}, s{so[k % len(so)]} offen sc1\n' if k < len(so) else ''
            pre += f's_add_u32 s{sSPIN}, s{sSPIN}, 1\ns_waitcnt vmcnt(0)\n'
            pre += 'v_cmp_ne_u64 vcc, s[74:75], v[222:223]\n' if len(so) > 1 else 'v_cmp_ne_u32 vcc, s74, v222\n'
            pre += f's_nop 1\ns_cbranch_vccz GO_{name}\ns_cmp_lt_u32 s{sSPIN}, {self.c.spin}\ns_cbranch_scc1 PRE_{name}\nGO_{name}:\n'
        return self.ycheck(name, toks, 0, 0, lds, mx + 'v_cmp_ne_u64 vcc, s[74:75], v[222:223]', pre)

    def ycheck(self, name, toks, r0, n, lds, cond=None, pre=''):
        t = 222
        mx = f'v_max3_u32 v{t}, v{r0}, v{r0+1}, v{r0+2}\nv_max3_u32 v{t+1}, v{r0+3}, v{r0+4}, v{r0+5}\n'
        for k in range(6, n - 1, 2): mx += f'v_max3_u32 v{t+k//2%2}, v{r0+k}, v{r0+k+1}, v{t+k//2%2}\n'
        mx += f'v_max_u32 v{t}, v{t}, v{t+1}\nv_cmp_eq_u32 vcc, -1, v{t}'
        if cond: mx = cond
        ld = pre + '\n'.join(x.text for x in lds)
        self.slow.append(f'''SLOW_{name}:
s_mov_b32 s{sSPIN}, 0
LOOP_{name}:
{ld}
s_add_u32 s{sSPIN}, s{sSPIN}, 1
s_waitcnt vmcnt(0)
{mx}
s_nop 1
s_cbranch_vccz BACK_{name}
s_cmp_lt_u32 s{sSPIN}, {self.c.spin}
s_cbranch_scc1 LOOP_{name}
s_branch BACK_{name}''')
        return [W(*toks)] + L(f'{mx}\ns_cbranch_vccnz SLOW_{name}\nBACK_{name}:')

    @staticmethod
    def flag(s_, o=0, v=vF0):
        return I(f'buffer_store_dwordx2 a[{aN}:{aN+1}], v{v}, {srd(WS)}, s{s_} offen' + (f' offset:{o}' if o else '') + ' sc1', tok='flag')

    def plan(self):
        c = self.c
        self.kind = list(c.order) + ['B8'] + [f'U{u}' for u in range(1, 9)]
        slot = {i: i for i in range(4)}
        loadp = {0: -1, 1: 0 if c.t1p else -1, 2: 0, 3: 1}
        free = []; nxt = 4; stag = None
        lead3 = c.woA >= 19
        for p in range(1, 22):
            free.append(slot[p - 1])
            if p == c.ps: stag = free.pop(0)
            if p == c.ps + 2: free.append(stag)
            lead = 3 if (lead3 and p >= c.ps + 2) else 2
            while nxt <= min(p + lead, 21) and (free or nxt <= p + 2):
                slot[nxt] = free.pop(0); loadp[nxt] = p; nxt += 1
            if p == c.woA: slot['woA'] = free.pop(0); loadp['woA'] = p
            if p == 20: slot['woB'] = free.pop(0); loadp['woB'] = p
            if p == 21: slot['Y'] = free.pop(0)
        assert nxt == 22 and 'woA' in slot
        self.slot = {k: v * SLOT for k, v in slot.items()}
        self.slotS = stag * SLOT
        self.loadp = loadp
        self.tau = {}
        self.hoff = []
        self.acc = {}
        self.chain = []
        fin = {ACC[0]: -2, ACC[1]: -1}
        for i, k in enumerate(self.kind[:14]):
            if k[0] == 'P':
                pr, hf = int(k[1]), k[2] == 'b'
                if pr == 0:
                    assert i == (1 if hf else 0)
                    for mt in range(2): self.acc[(i, mt)] = ACC0[mt]
                    if hf:
                        for mt in range(2): self.chain.append((mt, 72 - 2 + mt, ACC0[mt], (i, mt)))
                elif not hf:
                    assert self.kind[i + 1] == k[:2] + 'b'
                    a0 = min(fin, key=fin.get); a1 = max(fin, key=fin.get)
                    for mt, a in enumerate((a0, a1)):
                        self.acc[(i, mt)] = a; self.acc[(i + 1, mt)] = a
                        fin[a] = 36 * (i + 1) + 18 * mt + 17
                        self.chain.append((36 * i + 18 * mt, fin[a], a, (i + 1, mt)))
                if hf:
                    for mt in range(2):
                        self.tau[(i, mt)] = len(self.hoff); self.hoff.append((64 * pr + 32 * mt, 32))
            elif k == 'B8':
                a0 = min(fin, key=fin.get); a1 = max(fin, key=fin.get)
                for mt, a in enumerate((a0, a1)):
                    self.acc[(i, mt)] = a; self.chain.append((36 * i + 18 * mt, 36 * i + 18 * mt + 17, a, (i, mt)))
            else:
                a = min(fin, key=fin.get); self.acc[(i, 0)] = a; fin[a] = 36 * i + 35
                self.chain.append((36 * i, fin[a], a, (i, 0)))
                if k == 'S':
                    self.tau[(i, 0)] = len(self.hoff); self.hoff.append((256, -256))
        assert len(self.hoff) == 9
        self.g2 = {14: (0, 0, None), 15: (0, 1, None)}
        for n in range(6): self.g2[16 + n] = (1 + n % 3, n // 3, n % 4)

    def dma_item(self, i):
        out = []; tok = f'T{i}'
        kind = self.kind[i] if isinstance(i, int) else i
        sl = self.slot[i]
        m0 = lambda k: L(f's_add_u32 m0, s{sWL}, {sl + k*1024}')
        ld = lambda v, R, so, k, sc='': [I(f'buffer_load_dwordx4 v{v}, {srd(R)}, {so} offen offset:{(k%4)*1024}{sc} lds', tok=tok)]
        one = lambda t: out.extend([x] for x in L(t))
        if kind[0] == 'P':
            cur = int(kind[1]) * 128
            if cur != self.w1pos: one(f'v_add_u32 v{vW1}, {(cur - self.w1pos) & 0xffffffff}, v{vW1}')
            self.w1pos = cur
            for k in range(9):
                im = PIMM[k + (9 if kind[2] == 'b' else 0)]
                if im == 0: out.append(m0(k))
                out.append(ld(vW1, W1, f's{soPb[k] if kind[2] == "b" else soP+k}', im))
        elif kind in RPI or kind in ('woA', 'woB'):
            if kind in RPI: b = lambda k: f's_add_u32 s{sD}, s{sRP}, {RPI[kind]*SLOT + k*1024}'
            else:
                one(f's_lshl_b32 s{sD+1}, s{sJJ}, 1\ns_and_b32 s{sD}, s{sQ}, 1\ns_add_u32 s{sD+1}, s{sD+1}, s{sD}\ns_mul_i32 s{sD+1}, s{sD+1}, 82944\ns_add_u32 s{sD+1}, s{sD+1}, s{sWL}')
                b = lambda k: f's_add_u32 s{sD}, s{sD+1}, {WS_WO + (SLOT if kind == "woB" else 0) + k*1024}'
            for k in range(9):
                if k % 4 == 0: one(b(k)); out.append(m0(k))
                out.append(ld(vL16, WS, f's{sD}', k, ' sc1'))
        elif kind == 'B8':
            one(f's_mul_i32 s{sD+1}, s{sJ}, 36\ns_add_u32 s{sD+1}, s{sD+1}, s{sW}\ns_mul_i32 s{sD+1}, s{sD+1}, 9216\ns_add_u32 s{sD+1}, s{sD+1}, 1024')
            one(f's_and_b32 s{sD}, s{sJJ}, 1\ns_mul_i32 s{sD+2}, s{sD}, {32*1152}\ns_add_u32 s{sD+2}, s{sD+2}, s{sD+1}\ns_mul_i32 s{sD}, s{sD}, {256*1152}\ns_sub_u32 s{sD+1}, s{sD+1}, s{sD}')
            one(f'v_lshrrev_b32 v{vW1}, 7, v{vL16}\nv_mul_u32_u24 v{vW1}, 1152, v{vW1}\nv_bfe_u32 v{vCur2}, v{vL16}, 8, 1\nv_lshl_add_u32 v{vW1}, v{vCur2}, 6, v{vW1}\nv_and_b32 v{vCur2}, 0x70, v{vL16}\nv_xor_b32 v{vW1}, v{vW1}, v{vCur2}')
            for k in range(9):
                a, b = self.hoff[k]
                one(f's_add_u32 s{sD}, s{sD+2 if b == 32 else sD+1}, {(a*1152 - (k%4)*1024) & 0xffffffff}')
                if k % 4 == 0: out.append(m0(k))
                out.append(ld(vW1, W2, f's{sD}', k))
        else:
            pe, hf, _ = self.g2[i]
            one(f's_add_u32 s{sD}, s{sJJ}, {pe}\ns_and_b32 s{sD}, s{sD}, 3\ns_and_b32 s{sD+3}, s{sD}, 1\ns_lshl2_add_u32 s{sD}, s{sQ}, s{sD}\ns_mul_i32 s{sD}, s{sD}, 72\ns_add_u32 s{sD}, s{sD}, s{sW}')
            one(f's_mul_i32 s{sD}, s{sD}, 4608\ns_lshl_b32 s{sD+1}, s{sJJ}, 8\ns_add_u32 s{sD}, s{sD}, s{sD+1}')
            grp = {}
            for k in range(9):
                sg = 9 * hf + k; a, b = self.hoff[sg >> 1]
                grp.setdefault((a + 16 * (sg & 1) - 16 * k, b), []).append(k)
            assert len(grp) <= 3
            reg = {}
            for n, (a, b) in enumerate(grp):
                r = sD + 1 + n if n < 2 else sD + 4
                one(f's_mul_i32 s{r}, s{sD+3}, {(b*1152) & 0xffffffff}\ns_add_u32 s{r}, s{r}, s{sD}')
                if a: one(f's_add_u32 s{r}, s{r}, {(a*1152) & 0xffffffff}')
                for k in grp[(a, b)]: reg[k] = r
            for k in range(9):
                if k % 4 == 0: out.append(m0(k))
                out.append(ld(vK + k, W2, f's{reg[k]}', k))
        return out

    def conv_mf(self, s):
        D = 32 + 8 * (s & 1); xr = vX + 4 * s
        return [I(f'v_mfma_f32_4x4x4_16b_bf16 v[{D+4*k}:{D+4*k+3}], v[60:61], v[{xr+2*k}:{xr+2*k+1}], v[48:51]') for k in range(2)]

    def conv_cvt(self, s):
        D = 32 + 8 * (s & 1); xr = vX + 4 * s
        return [I(f'v_cvt_pk_bf16_f32 v{xr+k}, v{D+2*k}, v{D+2*k+1}') for k in range(4)]

    @staticmethod
    def ident(d, t1):
        return (f'v_and_b32 v{t1}, 16, v{vL16}\nv_mov_b32 v{d}, 0x3f80\nv_lshlrev_b32 v{d}, v{t1}, v{d}\nv_bfe_i32 v{t1}, v{vL16}, 5, 1\n'
                f'v_and_b32 v{d+1}, v{d}, v{t1}\nv_xor_b32 v{d}, v{d}, v{d+1}')

    def prologue(self):
        c = self.c; E_ = self.E
        if c.ts: E_('s_memrealtime s[92:93]\ns_memtime s[96:97]')
        E_('s_cmp_ge_u32 s2, 256\ns_cbranch_scc1 L_end')
        if c.head:
            E_(f's_load_dwordx2 s[{X}:{X+1}], s[0:1], 0\ns_load_dwordx8 s[76:83], s[0:1], 40\ns_load_dwordx8 s[44:51], s[0:1], 8\ns_load_dwordx2 s[{WS}:{WS+1}], s[0:1], {KOFF[WS]}')
        else:
            for R in (X, W1, DBG, QKV, WS, PHI, W2, WO, OUT):
                E_(f's_load_dwordx2 s[{R}:{R+1}], s[0:1], {KOFF[R]}')
        E_(f's_memrealtime s[{sN}:{sN+1}]')
        if c.pref:
            E_('s_getpc_b64 s[40:41]\nPCREF:\ns_mov_b32 s42, CODE_END-PCREF\ns_mov_b32 s43, 0x20000')
            E_('s_lshr_b32 s3, s2, 3\nv_lshlrev_b32 v25, 5, v0\nv_add_u32 v25, s3, v25\nv_lshlrev_b32 v25, 7, v25')
            E_('buffer_load_dword v63, v25, s[40:43], 0 offen', tok='pref')
        l = 25
        E_(f'v_lshrrev_b32 v26, 6, v0\nv_and_b32 v{l}, 63, v0\nv_lshlrev_b32 v{vL16}, 4, v{l}')
        E_(f'v_readfirstlane_b32 s{sW}, v26')
        E_(f's_and_b32 s3, s2, 1\ns_lshl_b32 s3, s3, 3\ns_lshr_b32 s64, s2, 5\ns_add_u32 s{sR}, s64, s3')
        E_(f's_bfe_u32 s{sQ}, s2, 0x20001\ns_bfe_u32 s{sJJ}, s2, 0x20003\ns_lshl2_add_u32 s{sJ}, s{sQ}, s{sJJ}')
        E_(f'v_lshrrev_b32 v26, 3, v{l}\nv_mul_u32_u24 v27, 1152, v26\nv_and_b32 v28, 0x70, v{vL16}\nv_and_b32 v29, 0x30, v{l}\nv_xor_b32 v28, v28, v29')
        E_('v_add_u32 v2, v27, v28\nv_xor_b32 v3, 64, v2\nv_add_u32 v3, 8192, v3\nv_add_u32 v4, 16384, v2\nv_add_u32 v5, 16384, v3')
        E_(f's_mul_i32 s{sWL}, s{sW}, 9216\ns_lshl2_add_u32 s3, s{sR}, s{sW}')
        E_(f's_mul_i32 s{sXO}, s3, 36864')
        E_(f's_lshl_b32 s58, s{sQ}, 8' if c.xrot else 's_mov_b32 s58, 0')
        save = self.p; self.p = []
        for R in SIZES:
            if c.head and R not in (X, WS):
                t_ = 76 + KOFF[R] // 4 - 10 if KOFF[R] >= 40 else 44 + KOFF[R] // 4 - 2
                E_(f's_mov_b64 s[{R}:{R+1}], s[{t_}:{t_+1}]')
            x_ = L(f's_mov_b32 s{R+2}, {SIZES[R]}\ns_mov_b32 s{R+3}, 0x20000')
            if R == X: save.extend(x_)
            else: E_(x_)
        E_(f'v_mov_b32 v31, {OOB}\nv_cmp_gt_u32 vcc, 18, v{l}\nv_mul_u32_u24 v{vPF}, 9216, v{l}\ns_lshl2_add_u32 s64, s64, s{sW}\ns_mul_i32 s{sPF}, s64, {18*9216}\nv_cndmask_b32 v{vPF}, v31, v{vPF}, vcc')
        E_(f's_mul_i32 s63, s{sJ}, 576\ns_and_b32 s65, s{sJJ}, 1\ns_lshl_b32 s57, s65, 6\ns_add_u32 s57, s57, s63\ns_add_u32 s{sPF}, s{sPF}, s57')
        E_(f'v_cmp_gt_u32 vcc, 2, v0\nv_lshlrev_b32 v23, 7, v0\ns_cmp_eq_u32 s2, 0\ns_cselect_b32 s59, 0, {OOB}\nv_cndmask_b32 v23, v31, v23, vcc\nv_or_b32 v23, s59, v23')
        hd2 = self.p; self.p = save
        if not c.head: E_(hd2); hd2 = []
        E_('s_waitcnt lgkmcnt(0)')
        if c.ts: E_(f'v_mov_b32 v{vONE}, 1\nv_writelane_b32 v{vONE}, s92, 60\nv_writelane_b32 v{vONE}, s96, 61')
        E_(self.stamp('karg'))
        pf0 = L(f'buffer_load_dword a182, v{vPF}, {srd(W1)}, s{sPF} offen')
        if c.pf0p == 0: E_(hd2); hd2 = []; E_(pf0)
        tagst = L(f's_or_b32 s{sN}, s{sN}, 1\ns_or_b32 s{sN+1}, s{sN+1}, 0x80000000\nv_mov_b32 v28, s{sN}\nv_mov_b32 v29, s{sN+1}')
        tagst.append(I(f'buffer_store_dwordx2 v[28:29], v23, {srd(DBG)}, 0 offen sc1', tok='tagst'))
        save = self.p; self.p = []
        E_(tagst)
        t, hh, a, b, d = 26, 27, 74, 75, 22
        E_(f'v_lshrrev_b32 v26, 2, v{l}\nv_and_b32 v27, 0x30, v{vL16}\nv_mul_u32_u24 v{a}, 3456, v26\nv_add_u32 v64, v{a}, v27\nv_mul_u32_u24 v{b}, 9216, v26\nv_add_u32 v66, v{b}, v27')
        E_(f'v_mov_b32 v65, 1216\nv_mov_b32 v{b}, 2360\nv_cmp_eq_u32 vcc, 16, v27\ns_mul_i32 s62, s3, 9\nv_add_u32 v67, s62, v26\nv_cndmask_b32 v65, v65, v{b}, vcc\nv_cmp_le_u32 vcc, 32, v27')
        E_(f's_mul_i32 s60, s62, 3456\ns_mul_i32 s61, s{sJ}, 72\nv_cndmask_b32 v65, v65, 64, vcc\nv_add_u32 v65, v65, v{a}\ns_add_u32 s60, s60, s61')
        if c.xrot:
            E_(f's_lshl_b32 s56, s{sQ}, 7\nv_subrev_u32 v{b}, s56, v67\nv_cmp_gt_u32 vcc, 0x200, v67\nv_and_b32 v{b}, 0x1ff, v{b}\ns_nop 0\nv_cndmask_b32 v67, v67, v{b}, vcc')
        E_(f'v_cmp_gt_u32 vcc, 36, v{l}\nv_lshl_add_u32 v67, v67, 6, v27')
        E_(f's_mul_i32 s61, s62, 9216\ns_add_u32 s61, s61, s63\ns_lshl_b32 s65, s65, 9\ns_sub_u32 s61, s61, s65\ns_add_u32 s61, s61, 512')
        for k in range(4): E_(f'v_cndmask_b32 v{64+k}, v31, v{64+k}, vcc')
        E_(f's_mul_i32 s62, s{sJ}, {5*SLOT}\ns_add_u32 s62, s62, {WS_RP}\ns_add_u32 s{sRP}, s62, s{sWL}')
        E_(f's_lshl_b32 s64, s{sJ}, 6\ns_add_u32 s64, s64, s3\ns_lshl3_add_u32 s63, s64, {FL_RP}\ns_lshl3_add_u32 s{sFKV}, s64, {FL_KV}')
        ne2 = len(self.p)
        E_(F_T(t) + '\n' + F_HH(hh))
        E_(f'v_bfe_u32 v{a}, v{t}, 1, 3\nv_xor_b32 v{a}, v{a}, v{hh}\nv_lshlrev_b32 v{a}, 4, v{a}\nv_lshl_add_u32 v{a}, v{t}, 7, v{a}\nv_add_u32 v6, s{sWL}, v{a}')
        E_('v_xor_b32 v7, 32, v6\nv_xor_b32 v8, 64, v6\nv_xor_b32 v9, 96, v6')
        E_(f'v_lshrrev_b32 v{a}, 3, v{t}\nv_mul_u32_u24 v{a}, 35840, v{a}')
        for k in range(4): E_(f'v_add_u32 v{84+k}, v{a}, v{6+k}')
        for k in range(0 if not c.msum else 4, 8): E_(f'v_mov_b32 v{52+k}, 0')
        if c.msum:
            E_(f'v_lshrrev_b32 v88, 2, v{l}\nv_xor_b32 v88, v88, v{l}\nv_bfe_u32 v88, v88, 2, 1\nv_add_u32 v88, -1, v88\nv_and_b32 v88, 0x3f803f80, v88\nv_mov_b32 v89, v88\nv_mov_b32 v90, v88\nv_mov_b32 v91, v88')
        else: E_('v_mov_b32 v88, 0x3f803f80')
        E_(f's_mov_b32 s{sHH}, 0\ns_mov_b32 s{sHH+1}, -1')
        E_(f'v_cmp_eq_u32 vcc, 0, v{l}')
        E_(f'v_lshrrev_b32 v{b}, 3, v{l}\nv_mul_u32_u24 v{b}, 9216, v{b}\nv_cndmask_b32 v{vF0}, v31, v{l}, vcc')
        E_(F_TB(a) + f'\nv_lshl_add_u32 v{b}, v{a}, 6, v{b}\nv_and_b32 v{d}, 0x70, v{vL16}\nv_xor_b32 v{vW1}, v{b}, v{d}')
        E_(f's_mul_i32 s56, s{sW}, {8*9216}\ns_add_u32 s57, s57, s56')
        for g in range(5):
            if g < 4:
                if c.xrot: E_(f's_add_u32 s56, s{sQ}, {g}\ns_and_b32 s56, s56, 3\ns_mul_i32 s56, s56, {128*9216}\ns_add_u32 s56, s56, s57')
                else: E_(f's_add_u32 s56, s57, {g*128*9216}')
            for pb in range(4 * g, min(4 * g + 4, 18)):
                r_ = soP + pb if pb < 9 else soPb[pb - 9]
                E_(f's_add_u32 s{r_}, s{56 if g < 4 else 57}, {(pb % 4 if g < 4 else pb)*32*9216 - PIMM[pb]*1024}')
        E_(F_C4(b) + f'\nv_lshlrev_b32 v{b}, 3, v{b}\nv_lshl_add_u32 v{b}, v{a}, 5, v{b}\n' + F_R4(d))
        E_(f'v_lshl_add_u32 v{a}, v{hh}, 3, v{d}\nv_lshl_add_u32 v{vS}, v{a}, 6, v{b}')
        E_(f'v_lshl_add_u32 v{b}, v{d}, 7, v{b}\nv_lshrrev_b32 v{d}, 1, v{d}\nv_lshl_add_u32 v{b}, v{d}, 6, v{b}\nv_mul_u32_u24 v{a}, 9216, v{hh}\nv_add_u32 v{vPA}, v{a}, v{b}')
        E_(self.ident(60, a))
        E_(f'v_lshlrev_b32 v73, 4, v0\nv_add_u32 v73, {E}, v73\nv_mov_b32 v76, 0\nv_mov_b32 v77, 0\nv_mov_b32 v78, 0\nv_mov_b32 v79, 0')
        E_([I(f'ds_write_b128 v73, v[76:79] offset:{4096*k}', tok='zf0') for k in range(3)])
        E_(f's_lshl2_add_u32 s64, s{sR}, s{sQ}\ns_lshl2_add_u32 s64, s64, s{sW}\ns_lshl4_add_u32 s64, s64, s{sJJ}\ns_lshl_b32 s{sFH}, s64, 3')
        E_(f's_lshl4_add_u32 s64, s3, s{sJ}\ns_lshl3_add_u32 s{sFO}, s64, {FL_O}')
        if c.ys not in (1, 5): E_(f's_lshl2_add_u32 s64, s{sR}, s{sJJ}\ns_lshl2_add_u32 s64, s64, s{sW}\ns_lshl4_add_u32 s64, s64, s{sQ}\ns_lshl3_add_u32 s{sFY}, s64, {FL_Y}')
        if c.hlay == 2: E_(f's_lshl4_add_u32 s64, s{sQ}, s{sR}\ns_lshl2_add_u32 s64, s64, s{sJJ}\ns_lshl2_add_u32 s64, s64, s{sW}\ns_lshl_b32 s64, s64, 11\ns_add_u32 s{sHown}, s64, {WS_H}')
        else: E_(f's_lshl4_add_u32 s64, s{sR}, s{sJ}\ns_lshl2_add_u32 s64, s64, s{sW}\ns_mul_i32 s64, s64, {2048 if c.hlay else 18432}\ns_add_u32 s{sHown}, s64, {WS_H}')
        T = 92
        h_, d_, a5, a, b, o1, o2 = T, T + 1, T + 2, T + 3, T + 4, 69, 70
        m1, m2 = 's[64:65]', 56
        E_(f'v_mul_u32_u24 v{h_}, 729, v0\nv_lshrrev_b32 v{h_}, 16, v{h_}\nv_mul_u32_u24 v{a}, 90, v{h_}\nv_sub_u32 v{a}, v0, v{a}')
        E_(f'v_mul_u32_u24 v{d_}, 205, v{a}\nv_lshrrev_b32 v{d_}, 10, v{d_}\nv_mul_u32_u24 v{b}, 5, v{d_}\nv_sub_u32 v{a5}, v{a}, v{b}')
        E_(f'v_mul_u32_u24 v{a}, 648, v{h_}\nv_mul_u32_u24 v{b}, 36, v{d_}\ns_movk_i32 s56, 180\nv_add_u32 v{a}, v{a}, v{b}\nv_cmp_gt_u32 {m1}, s56, v0\nv_lshl_add_u32 v{a}, v{a5}, 3, v{a}')
        E_(f's_mul_i32 s56, s{sJ}, 1296\nv_add_u32 v{a}, s56, v{a}\nv_cndmask_b32 v68, v31, v{a}, {m1}')
        E_(f'v_mul_u32_u24 v{b}, 18, v{h_}\nv_add_u32 v{d_}, v{b}, v{d_}')
        E_(f'v_and_b32 v{a}, 0x33, v{d_}\nv_and_b32 v{b}, 4, v{d_}\nv_lshl_or_b32 v{a}, v{b}, 1, v{a}\nv_bfe_u32 v{b}, v{d_}, 3, 1\nv_lshl_or_b32 v{a}, v{b}, 2, v{a}')
        E_(self.image_addr(a, h_, a5, o1, o2, T + 5, T + 6, m2))
        E_(f'v_mov_b32 v{b}, {DUMMY}\nv_cndmask_b32 v{o1}, v{b}, v{o1}, {m1}\nv_cndmask_b32 v{o2}, v{b}, v{o2}, {m1}')
        R_, e_, stp, rho, g_, src, dst, x_ = T, T + 1, T + 2, T + 3, T + 4, 71, 72, T + 5
        m2 = 's[56:57]'
        E_(f'v_mul_u32_u24 v{R_}, 7282, v0\nv_lshrrev_b32 v{R_}, 16, v{R_}\nv_mul_u32_u24 v{x_}, 9, v{R_}\nv_sub_u32 v{e_}, v0, v{x_}\ns_lshr_b32 s{sMi+1}, s2, 3\ns_mul_i32 s{sMi}, s{sMi+1}, 18\nv_add_u32 v{R_}, s{sMi}, v{R_}')
        E_(f'v_lshrrev_b32 v{stp}, 5, v{R_}\nv_and_b32 v{rho}, 31, v{R_}\nv_bfe_u32 v{g_}, v{R_}, 2, 2')
        E_(f'v_and_b32 v{x_}, 1, v{g_}\nv_mul_u32_u24 v{src}, 20, v{x_}\nv_lshrrev_b32 v{x_}, 1, v{g_}\nv_lshl_add_u32 v{src}, v{x_}, 3, v{src}\nv_lshrrev_b32 v{x_}, 4, v{rho}\nv_lshl_add_u32 v{src}, v{x_}, 2, v{src}')
        E_(f'v_mad_u32_u24 v{src}, v{stp}, 36, v{src}')
        E_(f'v_lshl_add_u32 v{g_}, v{x_}, 2, v{g_}\nv_and_b32 v{x_}, 1, v{stp}\nv_lshl_add_u32 v{g_}, v{x_}, 3, v{g_}\nv_cmp_le_u32 {m2}, 16, v{stp}\nv_mad_u32_u24 v{g_}, v{g_}, 36, 16')
        E_(f'v_and_b32 v{x_}, 3, v{rho}\nv_cndmask_b32 v{src}, v{src}, v{g_}, {m2}\nv_add_u32 v{src}, v{src}, v{x_}\nv_mul_u32_u24 v{src}, 1152, v{src}')
        E_(f's_and_b32 s{sMi}, s2, 7\ns_lshl_b32 s3, s{sMi}, 7\nv_lshlrev_b32 v{g_}, 4, v{e_}\nv_add_u32 v{g_}, s3, v{g_}\ns_lshl4_add_u32 s3, s{sMi}, 1024\nv_cmp_eq_u32 {m2}, 8, v{e_}\nv_mov_b32 v{x_}, s3')
        E_(f's_movk_i32 s3, 162\nv_cndmask_b32 v{g_}, v{g_}, v{x_}, {m2}\nv_cmp_gt_u32 {m1}, s3, v0\nv_add_u32 v{src}, v{src}, v{g_}')
        E_(f'v_bfe_u32 v{x_}, v{rho}, 2, 1\nv_cndmask_b32 v{src}, v31, v{src}, {m1}')
        E_(f'v_xor_b32 v{x_}, v{x_}, v{e_}\nv_and_b32 v{x_}, 3, v{x_}\nv_lshlrev_b32 v{x_}, 4, v{x_}\nv_lshl_add_u32 v{x_}, v{rho}, 6, v{x_}\nv_lshrrev_b32 v{e_}, 2, v{e_}\nv_lshl_add_u32 v{x_}, v{e_}, 11, v{x_}')
        E_(f'v_lshlrev_b32 v{rho}, 4, v{rho}\nv_add_u32 v{rho}, 4096, v{rho}\nv_cndmask_b32 v{x_}, v{x_}, v{rho}, {m2}\nv_mul_u32_u24 v{stp}, 4608, v{stp}\nv_add_u32 v{x_}, v{x_}, v{stp}')
        E_(f'v_cndmask_b32 v{dst}, v31, v{x_}, {m1}\ns_lshl_b32 s3, s{sMi}, 5\ns_add_u32 s{sMi+1}, s{sMi+1}, s3\ns_lshl3_add_u32 s{sMi+1}, s{sMi+1}, {FL_WO}\ns_mul_i32 s{sMi}, s{sMi}, 82944\ns_add_u32 s{sMi}, s{sMi}, {WS_WO}')
        E_(f'v_cmp_eq_u32 vcc, 0, v0\nv_and_b32 v30, 0x1f0, v{vL16}\nv_lshrrev_b32 v30, 2, v30\ns_lshl_b32 s3, s{sW}, 7\ns_add_u32 s3, s3, {RSA}\nv_add_u32 v30, s3, v30\nv_cndmask_b32 v73, v31, v0, vcc')
        E_(f'v_mov_b32 v{vPa}, 0\ns_and_b32 s56, s2, 1\ns_lshl_b32 s56, s56, 7')
        early = self.p; self.p = save
        cols = [0, 1, 2, 3, 4, 5, 6, 7]; cols.insert(c.c8p, 8)

        def xdma(cc):
            r = []
            if cc == 8: r += L(f's_add_u32 s59, s{sXO}, 1024')
            else:
                if cc: r += L('s_add_u32 s58, s58, 128\ns_and_b32 s58, s58, 0x3ff')
                r += L(f's_add_u32 s59, s{sXO}, s58')
            for i in range(4):
                if cc == 8: r += L(f's_add_u32 m0, s{sWL}, {i*SLOT + 8192 - i*1024}')
                elif i == 0: r += L(f's_add_u32 m0, s{sWL}, {(cc>>1)*SLOT + (cc&1)*4096}')
                r.append(I(f'buffer_load_dwordx4 v{2+i}, {srd(X)}, s59 offen offset:{i*1024} lds', tok=f'x{cc}'))
            return r

        def xread(cc):
            r = [W(f'x{cc}')]
            if cc == 4: r += [I(f'v_add_u32 v{6+k}, {2*SLOT}, v{6+k}') for k in range(4)]
            for ks in range(4):
                s = 4 * cc + ks
                if cc == 8: bs, o = 84 + ks, 8192
                else: bs, o = 6 + ks, ((cc >> 1) & 1) * SLOT + (cc & 1) * 4096
                r.append(I(f'ds_read_b128 v[{vX+4*s}:{vX+4*s+3}], v{bs} offset:{o}', tok=f'xr{cc}'))
            return r

        def xdots(cc):
            r = []
            for k in range(16):
                xr = vX + 16 * cc + k
                if not c.msum: r.append(I(f'v_dot2c_f32_bf16 v{52+(k&3)}, v88, v{xr}'))
                elif k % 4 == 0: r.append(I(f'v_mfma_f32_16x16x32_bf16 v[52:55], v[88:91], v[{xr}:{xr+3}], ' + ('0' if cc == cols[0] and k == 0 else 'v[52:55]')))
                r.append(I(f'v_dot2c_f32_bf16 v{56+(k&3)}, v{xr}, v{xr}'))
            return r

        def mix(main, fill):
            nv = sum(1 for x in main if x.kind in VM_KINDS)
            k = 0; done = 0
            for x in main:
                E_(x)
                if x.kind in VM_KINDS:
                    k += 1; upto = len(fill) * k // nv
                    E_(fill[done:upto]); done = upto
            E_(fill[done:])

        rpl = [I(f'buffer_load_dwordx4 a[{aRP+4*k}:{aRP+4*k+3}], v{v}, {srd(R)}, s{so} offen offset:{o}', tok='rpl')
               for k, (v, R, so, o) in enumerate(((64, QKV, 60, 1152), (65, QKV, 60, 0), (64, QKV, 60, 2304), (64, QKV, 60, 0), (66, W1, 61, 0)))]
        rpst = []
        for k in range(5):
            if k: rpst += L(f's_add_u32 s62, s62, {SLOT}')
            rpst.append(I(f'buffer_store_dwordx4 a[{aRP+4*k}:{aRP+4*k+3}], v67, {srd(WS)}, s62 offen sc1', tok='rpst'))
        self.rpst = rpst
        pf1 = L(f'buffer_load_dword a183, v{vPF}, {srd(W1)}, s{sPF} offen offset:128')
        lag = c.xlag
        self.w1pos = 0
        pend = []
        nA = min(c.nfill, len(early)); rest = early[nA:]
        early_rp = isinstance(c.rpw, int)
        n2 = max(c.rpw, 1) if early_rp else lag
        if early_rp and c.rpw == 0: E_(early[:ne2]); E_(rpl); early = early[ne2:]; nA -= ne2; ne2 = 0
        for n in range(9 + lag):
            issue = xdma(cols[n]) if n < 9 else []
            if n < lag:
                if c.bulk is None: mix(issue, early[ne2 * n // n2: ne2 * (n + 1) // n2] if n < n2 else [])
                else: E_(issue)
                if c.tsp: E_(self.stamp(f'c{n}'))
                if hd2 and n + 1 == min(c.bulk, c.pf0p): E_(hd2); hd2 = []
                if n + 1 == c.pf0p: E_(pf0)
                if n + 1 == c.bulk: E_(early[:nA])
                if early_rp and n + 1 == c.rpw: E_(rpl); E_(self.stamp('rpl') if c.tsp else [])
                if n == lag - 1 and c.bulk is None: E_(early[ne2:nA])
                if c.tsp: E_(self.stamp(f'i{n}'))
                continue
            cc = cols[n - lag]
            if n == lag: E_(self.stamp('xiss'))
            if n in (lag + 1, lag + 2): E_(rest[:len(rest) // 2] if n == lag + 1 else rest[len(rest) // 2:])
            E_(xread(cc))
            if c.tsp and n > lag: E_(self.stamp(f'r{cc}'))
            if n == lag: E_(self.stamp('x8'))
            if n >= 9 and not hasattr(self, 't0done') and n - lag >= 3:
                issue = [W('xr1', 'xr8')] + [x for g_ in self.dma_item(0) for x in g_] + (rpl if c.rpw == 'T0' else []) + (rpst if early_rp else []) + (pf1 if c.pf1 == 0 else []); self.t0done = True
            elif n >= 9 and hasattr(self, 't0done') and not hasattr(self, 't1done') and n - lag >= 5 and not c.t1p:
                issue = [W('xr3')] + [x for g_ in self.dma_item(1) for x in g_] + (rpl if c.rpw == 'T1' else []) + (pf1 if c.pf1 == 1 else []); self.t1done = True
            if n + 1 == c.pf0p: issue = issue + pf0
            if early_rp and n + 1 == c.rpw: issue = issue + rpl
            if issue: mix(issue, pend)
            else: E_(pend)
            if c.tsp: E_(self.stamp(f'd{cc}'))
            pend = xdots(cc)
        E_(self.stamp('x7'))
        E_(pend)
        assert hasattr(self, 't1done') or c.t1p
        if not c.msum: E_('v_add_f32 v52, v52, v53\nv_add_f32 v54, v54, v55')
        E_('v_add_f32 v56, v56, v57\nv_add_f32 v58, v58, v59')
        if not c.msum: E_('v_add_f32 v52, v52, v54\nv_mov_b32 v53, v52')
        E_('v_add_f32 v56, v56, v58\nv_mov_b32 v57, v56')
        if not c.msum: E_('v_permlane32_swap_b32 v52, v53\nv_add_f32 v52, v52, v53')
        inv = 0x3ae38e39
        E_(f'v_mul_f32 v52, {inv}, v52\nv_permlane32_swap_b32 v56, v57\nv_cvt_pk_bf16_f32 v53, v52, v52\nv_and_b32 v53, 0xffff0000, v53\nv_xor_b32 v48, 0x80000000, v53')
        E_('v_mov_b32 v49, v48\nv_mov_b32 v50, v48\nv_mov_b32 v51, v48')
        rs = L(f'v_add_f32 v56, v56, v57\nv_mul_f32 v56, {inv}, v56\nv_fma_f32 v56, -v52, v52, v56\nv_max_f32 v56, 0, v56')
        rs += L(f'v_cvt_pk_bf16_f32 v56, v56, v56\nv_and_b32 v56, 0xffff0000, v56\nv_add_f32 v56, 0x3727c5ac, v56\nv_cvt_pk_bf16_f32 v56, v56, v56\nv_and_b32 v56, 0xffff0000, v56\nv_sqrt_f32 v56, v56')
        rs += L(f'v_cvt_pk_bf16_f32 v56, v56, v56\nv_lshrrev_b32 v{vSD}, 16, v56\nv_and_b32 v56, 0xffff0000, v56\nv_rcp_f32 v{vRS}, v56')
        rs += L(f'v_add_u32 v{vCur}, {self.slot[0]}, v{vPA}\nv_xor_b32 v{vCur2}, 64, v{vCur}\nv_mul_f32 v{vC}, {LOG2E}, v{vRS}')
        E_(self.conv_mf(0)); E_(rs[:6])
        for s in range(c.npre):
            E_(self.conv_mf(s + 1))
            if s < 2: E_(rs[6 + 6 * s: 12 + 6 * s])
            E_(self.conv_cvt(s))
        if c.rpw == 'pre': E_(rpl)

    def step_desc(self, i, idx):
        k = self.kind[i]
        if k in ('P0a', 'P0b'): return idx & 1, idx >> 1
        if k[0] == 'P' or k == 'B8': return idx // 18, idx % 18
        if k[0] == 'U': return idx // 9, idx % 9
        return 0, idx

    def retile(self, gs):
        i, idx = divmod(gs, 36)
        return 20 + idx // 18, 2 * (i - 20) + (idx // 9 & 1), idx % 9

    def reads(self, gs):
        i, idx = divmod(gs, 36)
        if self.c.rt2 and i >= 20:
            ti, mt, s = self.retile(gs)
            b = RING + 4 * (gs % (self.c.D + 2)); r = []
            if gs == 720: r.append(I(f'v_add_u32 v{vCur}, {self.slot[20]}, v{vPU}'))
            elif s == 0: r.append(I(f'v_xor_b32 v{vCur}, {64*(mt ^ self.retile(gs-1)[1])}, v{vCur}'))
            d = self.slot[ti] - self.slot[20]
            assert 0 <= d <= 36864
            return r + [I(f'ds_read_b64_tr_b16 a[{b+2*rd}:{b+2*rd+1}], v{vCur} offset:{d+rd*18432+s*1024}', tok=f'f{gs}') for rd in range(2)]
        k = self.kind[i]; mt, s = self.step_desc(i, idx)
        b = RING + 4 * (gs % (self.c.D + 2))
        r = []; reg = vCur
        if idx == 0 and i > 0:
            src = vPA if k[0] == 'P' else (vPU if k[0] == 'U' else vS)
            r.append(I(f'v_add_u32 v{vCur}, {self.slot[i]}, v{src}'))
            if k == 'P0b': r.append(I(f'v_xor_b32 v{vCur2}, 64, v{vCur}'))
        if k in ('P0a', 'P0b'):
            if mt: reg = vCur2
        elif s == 0 and mt: r.append(I(f'v_xor_b32 v{vCur}, {64*(mt ^ (mt-1))}, v{vCur}'))
        for rd in range(2):
            if k[0] == 'P': o = (s & 1) * 18432 + (s >> 1) * 1024 + rd * 512
            elif k == 'B8': o = (2 * (s & 1) + rd) * 9216 + (s >> 1) * 1024
            elif k[0] == 'U': o = rd * 18432 + s * 1024
            else: o = s * 1024 + rd * 256
            r.append(I(f'ds_read_b64_tr_b16 a[{b+2*rd}:{b+2*rd+1}], v{reg} offset:{o}', tok=f'f{gs}'))
        return r

    def main_steps(self):
        c = self.c; D = c.D
        steps = []
        NS = 22 * 36
        LA = c.npre
        for gs in range(NS):
            i, idx = divmod(gs, 36)
            k = self.kind[i]; mt, s = self.step_desc(i, idx)
            b = RING + 4 * (gs % (D + 2))
            tk = []
            if i < 13:
                xs = s + (18 if k[-1] == 'b' and k[0] == 'P' else 0)
                B = f'v[{vX+4*xs}:{vX+4*xs+3}]' if i < c.xa else f'a[{4*xs}:{4*xs+3}]'
                first = xs == 0; acc = self.acc[(i, mt)]
            elif i == 13:
                B = f'v[{vH+4*s}:{vH+4*s+3}]'; first = s == 0; acc = self.acc[(i, mt)]
            else:
                ti = i
                if c.rt2 and i >= 20: ti, mt, s = self.retile(gs)
                pe, hf, st = self.g2[ti]
                B = f'v[{vH+4*(9*hf+s)}:{vH+4*(9*hf+s)+3}]' if pe == 0 else f'a[{36*st+4*s}:{36*st+4*s+3}]'
                first = (i == 14 and s == 0); acc = GA + 16 * mt
                if pe and mt == 0: tk.append(f'ph{ti}_{s}')
            mf = I(f'v_mfma_f32_32x32x16_bf16 v[{acc}:{acc+15}], a[{b}:{b+3}], {B}, ' + ('0' if first else f'v[{acc}:{acc+15}]'))
            if gs % c.we == 0: tk += [f'f{x}' for x in range(gs, min(gs + c.we, NS))]
            pre = [W(*tk)] if tk else []
            post = []; end = []
            ns = gs + D
            if ns < NS: post += self.reads(ns)
            else:
                kk = ns - NS
                for x in range(c.Ds * kk // D, c.Ds * (kk + 1) // D): post += self.s_reads(x)
            if c.rt2 and i == 20:
                assert not self.bar_need.get(20)
                if ns % 36 == 17: post += self.xs(f'b{i}', [W('T21')] + L('s_barrier'))
            elif ns % 36 == 35:
                nd = list(self.bar_need.get(i, []))
                if i == 21 and c.rt2: nd.append('f773')
                if i < 21: nd.append(f'T{i+1}')
                if i == 20: nd.append(f'f{ns}')
                post += self.xs(f'b{i}', [W(*nd)] + L('s_barrier'))
            if i < 2:
                xs = 18 * i + s
                if mt == 0 and xs + LA < 36: post += self.conv_cvt(xs + LA)
                if mt == 1 and xs + LA + 1 < 36: end = self.conv_mf(xs + LA + 1)
            steps.append(Step(mf, pre, post, c.caps.get(i, c.cap), end))
        return steps

    def epi_G(self, tau, acc):
        h = vH + 8 * tau
        r = [I(f'v_cvt_pk_bf16_f32 v{h+k}, v{acc+2*k}, v{acc+2*k+1}') for k in range(8)]
        r += [I(f'v_pk_max_i16 v{h+k}, v{h+k}, 0') for k in range(8)]
        st = []
        hl = self.c.hlay
        if tau and (hl or tau % 2 == 0): st += L(f's_add_u32 s{sHown}, s{sHown}, {1 << 21 if hl else 4096}')
        for k in range(2):
            st.append(I(f'buffer_store_dwordx4 v[{h+4*k}:{h+4*k+3}], v{vL16}, {srd(WS)}, s{sHown} offen offset:{(0 if hl else (tau&1)*2048)+k*1024} sc1', tok=f'h{tau}'))
        return r, st

    PK = {'Ta': 136, 'Tb': 144, 'Tc': 152, 'Td': 160}

    def epi_Q(self, kind, acc):
        pk = self.PK[kind]
        n = 6 if kind == 'Tb' else 8
        r = [I(f'v_cvt_pk_bf16_f32 v{pk+k}, v{acc+2*k}, v{acc+2*k+1}') for k in range(n)]
        if kind == 'Tb': r += L(f'v_mov_b32 v{pk+6}, 0\nv_mov_b32 v{pk+7}, 0')
        return r

    def pmfma(self, which, P):
        m = self.PK['Ta' if which == 'k' else 'Td']
        B = [m, m + 4, self.PK['Tb'] + (0 if which == 'k' else 4)]
        r = []
        for s in range(3):
            r.append(I(f'v_mfma_f32_32x32x16_bf16 v[{P}:{P+15}], a[{aPHI+4*s}:{aPHI+4*s+3}], v[{B[s]}:{B[s]+3}], ' + ('0' if s == 0 else f'v[{P}:{P+15}]')))
        for s in range(3):
            r.append(I(f'v_mfma_f32_16x16x32_bf16 v[{P+16}:{P+19}], a[{aPHI+12+4*s}:{aPHI+12+4*s+3}], v[{B[s]}:{B[s]+3}], ' + ('0' if s == 0 else f'v[{P+16}:{P+19}]')))
        return r

    def softmax(self, P, EP, PHIo, T, norm_first, keepS=None):
        p = [P + k for k in range(18)]
        mx, mn, s1, s2 = T, T + 1, T + 2, T + 3
        r = []
        a = [f'v_max3_f32 v{mx}, v{p[0]}, v{p[1]}, v{p[2]}'] + [f'v_max3_f32 v{mx}, v{mx}, v{p[k]}, v{p[k+1]}' for k in range(3, 17, 2)] + [f'v_max_f32 v{mx}, v{mx}, v{p[17]}']
        b = [x.replace('max', 'min').replace(f'v{mx}', f'v{mn}') for x in a]
        for x, y in zip(a, b): r += L(x + '\n' + y)
        r[0].gap = 3
        r += L(f'v_mul_f32_e64 v{mx}, -v{vC}, v{mx}\nv_mul_f32 v{mn}, v{vC}, v{mn}')
        for k in range(18):
            r += L(f'v_fma_f32 v{EP+k}, v{p[k]}, v{vC}, v{mx}\nv_fma_f32 v{p[k]}, v{p[k]}, -v{vC}, v{mn}')
            r += L(f'v_exp_f32 v{EP+k}, v{EP+k}\nv_exp_f32 v{p[k]}, v{p[k]}')
            if k == 2:
                r += L(f'v_add_f32 v{s1}, v{EP}, v{EP+1}\nv_add_f32 v{s2}, v{p[0]}, v{p[1]}')
            elif k > 2:
                r += L(f'v_add_f32 v{s1}, v{s1}, v{EP+k-1}\nv_add_f32 v{s2}, v{s2}, v{p[k-1]}')
        r += L(f'v_add_f32 v{s1}, v{s1}, v{EP+17}\nv_add_f32 v{s2}, v{s2}, v{p[17]}')
        if norm_first:
            r += L(f'v_rcp_f32 v{s1}, v{s1}\nv_rcp_f32 v{s2}, v{s2}\nv_mul_f32 v{s1}, v{vRS}, v{s1}\nv_mul_f32 v{s2}, v{vRS}, v{s2}')
            for k in range(0, 18, 2):
                r += L(f'v_mul_f32 v{EP+k}, v{s1}, v{EP+k}\nv_mul_f32 v{EP+k+1}, v{s1}, v{EP+k+1}\nv_cvt_pk_bf16_f32 v{PHIo+k//2}, v{EP+k}, v{EP+k+1}')
        else:
            r += L(f'v_rcp_f32 v{s2}, v{s2}\nv_mul_f32 v{keepS}, 0x358637bd, v{s1}')
            for k in range(0, 18, 2):
                r += L(f'v_cvt_pk_bf16_f32 v{PHIo+k//2}, v{EP+k}, v{EP+k+1}')
            r += L(f'v_mul_f32 v{s2}, v{s1}, v{s2}')
        for k in range(0, 18, 2):
            r += L(f'v_mul_f32 v{p[k]}, v{s2}, v{p[k]}\nv_mul_f32 v{p[k+1]}, v{s2}, v{p[k+1]}\nv_cvt_pk_bf16_f32 v{PHIo+9+k//2}, v{p[k]}, v{p[k+1]}')
        return r

    @staticmethod
    def image_addr(rho, h_, cc, o1, o2, t1, t2, m):
        return (f'v_lshlrev_b32 v{t1}, 6, v{rho}\nv_lshl_add_u32 v{t1}, v{cc}, 4, v{t1}\nv_lshl_add_u32 v{t1}, v{h_}, 3, v{t1}\nv_cmp_gt_u32 s[{m}:{m+1}], 4, v{cc}\nv_add_u32 v{t1}, {E}, v{t1}\n'
                f'v_lshlrev_b32 v{t2}, 5, v{rho}\nv_lshl_add_u32 v{t2}, v{h_}, 4, v{t2}\nv_add_u32 v{t2}, {E2}, v{t2}\n'
                f'v_cndmask_b32 v{o1}, v{t2}, v{t1}, s[{m}:{m+1}]\nv_add_u32 v{t2}, {2688+8}, v{t2}\nv_cndmask_b32 v{o2}, v{t2}, v{t1}, s[{m}:{m+1}]')

    @staticmethod
    def ex_addr(d, t1):
        return (F_TB(t1) + f'\nv_mul_u32_u24 v{d}, 2688, v{t1}\n' + F_HH(t1) + f'\nv_lshl_add_u32 v{d}, v{t1}, 8, v{d}\n' + F_R4(t1) +
                f'\nv_lshl_add_u32 v{d}, v{t1}, 5, v{d}\n' + F_C4(t1) + f'\nv_lshl_add_u32 v{d}, v{t1}, 3, v{d}\nv_add_u32 v{d}, {E2}, v{d}')

    def build_streams(self):
        c = self.c
        P0 = lambda p: 36 * p
        bar = lambda p: 36 * p + 35 - c.D
        self.bar_need = {}
        need = lambda p, t: self.bar_need.setdefault(p, []).append(t)
        S = {}
        pos = {k: self.kind.index(k) for k in RPI}
        m = []
        A = lambda st, x: m.extend((st, [y]) for y in (L(x) if isinstance(x, str) else x))
        G = lambda st, x: m.append((st, glue(L(x) if isinstance(x, str) else x)))
        DL = lambda st: m.append(('deadline', st))
        pd = c.pdist
        items = sorted([i for i in self.loadp if self.loadp[i] >= 0], key=lambda i: (self.loadp[i], 99 if isinstance(i, str) else i))
        first_rp = min(pos.values())
        pg = 99
        for i in items:
            p = self.loadp[i]
            same = [x for x in items if self.loadp[x] == p]
            idx = same.index(i)
            d0 = c.dly if (p - 1) in c.pf.values() else 0
            dend = min(c.dend, c.pfs) if p in c.pf.values() else c.dend
            span = (dend - d0) // len(same)
            if i == first_rp:
                st = P0(p) - pd
                m.append(('after', ('misc', 'rpflag')))
                A(st, f'v_lshrrev_b32 v{vPa}, 1, v{vL16}\ns_lshl_b32 s{sD}, s{sJ}, 9\ns_add_u32 s{sD+4}, s{sD}, {FL_RP}')
                ld, chk = self.poll('rp', WS, vPa, f's{sD+4}', vPo)
                self.defer = (st, ld, P0(p) - 1, chk)
            if i == 'woA': m.append(('after', ('peer', 8)))
            if getattr(self, 'defer', None):
                st, ld, st2, chk = self.defer; self.defer = None
                nset = 4
                blk = m[-nset:] + [(st, [ld])]; del m[-nset:]
                k = len(m)
                while k > 0 and (isinstance(m[k-1][0], str) or m[k-1][0] > st): k -= 1
                m[k:k] = blk
                G(st2, chk)
            grps = self.dma_item(i)
            nd = sum(1 for gg in grps if gg[0].kind == 'dma')
            k = 0
            for gg in grps:
                st = P0(p) + d0 + idx * span + (k * span) // nd
                if gg[0].kind == 'dma': k += 1
                elif k == 0: st = max(st - 6, P0(p) - 4 if idx == 0 else 0)
                else: st = max(st - 1, P0(p))
                m.append((st, gg))
            if idx == len(same) - 1:
                for nm, pp in c.pf.items():
                    if pp != p: continue
                    st = P0(p) + c.pfs
                    if nm[0] == 'P': A(st, f'buffer_load_dword a{182+list(c.pf).index(nm)%2}, v{vPF}, {srd(W1)}, s{sPF} offen offset:{128*int(nm[1])}')
                    elif nm == 'B8':
                        A(st - 8, f'v_lshrrev_b32 v{vCur2}, 5, v{vL16}\nv_mul_u32_u24 v{vCur2}, 1152, v{vCur2}\nv_and_b32 v{vPF}, {OOB}, v{vPF}\nv_or_b32 v{vPF}, v{vPF}, v{vCur2}\nv_and_b32 v{vCur2}, 16, v{vL16}\nv_lshl_add_u32 v{vPF}, v{vCur2}, 3, v{vPF}')
                        A(st - 8, f's_lshr_b32 s{sPF}, s2, 5\ns_lshl2_add_u32 s{sPF}, s{sPF}, s{sW}\ns_lshl_b32 s{sD}, s{sQ}, 7\ns_add_u32 s{sPF}, s{sPF}, s{sD}\ns_mul_i32 s{sPF}, s{sPF}, {9*1152}')
                        A(st - 8, f's_mul_i32 s{sD}, s{sJJ}, {288*1152}\ns_add_u32 s{sD}, s{sD}, s{sPF}\ns_lshl_b32 s{sD+1}, s{sJJ}, 8\ns_add_u32 s{sPF}, s{sPF}, s{sD+1}')
                        A(st, f'buffer_load_dword a{182+list(c.pf).index(nm)%2}, v{vPF}, {srd(W2)}, s{sD} offen offset:896')
                    else:
                        A(st - 4, f's_add_u32 s{sD}, s{sJJ}, {int(nm[1])}\ns_and_b32 s{sD}, s{sD}, 3\ns_mul_i32 s{sD}, s{sD}, {288*1152}\ns_add_u32 s{sD}, s{sD}, s{sPF}')
                        A(st, f'buffer_load_dword a{182+list(c.pf).index(nm)%2}, v{vPF}, {srd(W2)}, s{sD} offen')
            DL((bar(i - 1) - (18 if c.rt2 and i == 21 else 0)) if isinstance(i, int) else bar(21))
        S['dma'] = TimedStream('dma', m)

        def dma_insert(st, groups):
            it = S['dma'].items
            k = 0
            while k < len(it) and (isinstance(it[k][0], str) or it[k][0] <= st): k += 1
            assert it[k-1][0] == 'deadline'
            it[k:k] = [(st, gg) for gg in groups]
        one = lambda x: [[y] for y in (L(x) if isinstance(x, str) else x)]

        m = []
        flagA = (8) // 2
        flg = []
        for n, (s0, s1, acc, key) in enumerate(self.chain):
            k = self.kind[key[0]]
            nxt = [x[0] for x in self.chain[n + 1:] if x[2] == acc]
            st = s1 + 3
            if key in self.tau:
                tau = self.tau[key]
                r, sto = self.epi_G(tau, acc)
                A(st, r)
                dl = nxt[0] - 1 if nxt else 10**9
                dl = min(dl, P0(13) + 2 * tau - 2)
                if key[0] == 1: dl = min(dl, P0(2) + 30)
                DL(max(dl, st)); A(st, sto)
                if tau in (flagA, 8):
                    flg.append(('after', ('epi', f'h{tau}')))
                    flg.append((st + c.hfd, self.xs(f'hf{tau}', glue([W(*[f'h{x}' for x in range(tau + 1)]), self.flag(sFH, 0 if tau == flagA else 32)]))))
            elif k == 'B8':
                mt = key[1]
                if mt == 0:
                    A(st - 12, F_HH(vCur2) + f'\nv_lshlrev_b32 v{vCur2}, {11 if c.ylay else 13}, v{vCur2}\nv_and_b32 v{vW1}, 0x1f0, v{vL16}\nv_add_u32 v{vCur2}, v{vCur2}, v{vW1}')
                    if c.ylay: A(st - 12, f's_lshl4_add_u32 s{sE}, s{sQ}, s{sR}\ns_lshl2_add_u32 s{sE}, s{sE}, s{sW}\ns_lshl3_add_u32 s{sE}, s{sE}, s{sJJ}\ns_lshl_b32 s{sE}, s{sE}, 9\ns_add_u32 s{sE}, s{sE}, {WS_Y8}')
                    else: A(st - 12, f's_lshl2_add_u32 s{sE}, s{sR}, s{sW}\ns_lshl_b32 s{sE}, s{sE}, 7\ns_add_u32 s{sE}, s{sE}, s{sJ}\ns_lshl_b32 s{sE}, s{sE}, 9\ns_add_u32 s{sE}, s{sE}, {WS_Y8}')
                A(st, [I(f'v_cvt_pk_bf16_f32 v{acc+k_}, v{acc+2*k_}, v{acc+2*k_+1}') for k_ in range(8)])
                A(st, [I(f'v_permlane32_swap_b32 v{acc+4*ip+k_}, v{acc+4*ip+2+k_}') for ip in range(2) for k_ in range(2)])
                for ip in range(2):
                    if mt or ip: A(st, f's_add_u32 s{sE}, s{sE}, {1 << 20 if c.ylay else 16384}')
                    A(st, [I(f'buffer_store_dwordx4 v[{acc+4*ip}:{acc+4*ip+3}], v{vCur2}, {srd(WS)}, s{sE} offen sc1', tok='y8st')])
            else:
                A(st, self.epi_Q(k, acc)); DL(nxt[0] - 1)
        S['flg'] = TimedStream('flg', flg)
        S['epi'] = TimedStream('epi', m)

        if c.ys in (1, 2):
            m = []
            nc = 8 if c.ys == 1 else 4
            sts = list(c.ycl) if len(c.ycl) == nc else [c.ycl[0] + c.ycl[1] * k for k in range(nc)]
            st = sts[0]
            A(st - 16, f's_lshl2_add_u32 s84, s{sR}, s{sJJ}\ns_lshl2_add_u32 s84, s84, s{sW}\ns_lshl2_add_u32 s84, s84, s{sQ}\ns_lshl_b32 s84, s84, 13\ns_add_u32 s84, s84, {WS_Y}')
            A(st - 16, [I(f'v_accvgpr_write_b32 a{172+k}, -1') for k in range(4)])
            va = vL16
            if c.ys == 2:
                va = vPo
                assert P0(3) < st - 16 and sts[-1] < P0(c.wop - 1)
                A(st - 16, f's_and_b32 s83, s{sQ}, 1\ns_lshl_b32 s83, s83, 12\ns_add_u32 s84, s84, s83\ns_xor_b32 s83, s{sQ}, s{sW}\ns_lshl_b32 s83, s83, 30\ns_andn2_b32 s83, {OOB}, s83\nv_or_b32 v{va}, s83, v{vL16}')
            for k in range(nc):
                st = sts[k]
                if k == 4: A(st - 2, 's_add_u32 s84, s84, 4096')
                A(st, [I(f'buffer_store_dwordx4 a[172:175], v{va}, {srd(WS)}, s84 offen offset:{1024*(k%4)} sc1', tok='yclr')])
            DL(P0(13) if c.ys == 1 else P0(c.wop - 1))
            S['yclr'] = TimedStream('yclr', m)

        m = []
        for s in range(36):
            st = max(2 * (s - c.npre) + 3, P0(1)) if s < 18 else P0(2)
            A(st, [I(f'v_accvgpr_write_b32 a{4*s+k}, v{vX+4*s+k}') for k in range(4)])
        DL(P0(c.xa) - 2)
        S['accw'] = TimedStream('accw', m)

        m = []
        T = 96
        tb0 = P0(2) + 32
        ld, chk = self.poll('tag', DBG, vPa, 's56', vPo, tag=True)
        A(0, [ld])
        A(0, [I(f'buffer_load_dword a{aWP+k}, v68, {srd(PHI)}, 0 offen offset:{4*k}', tok='wphi') for k in range(2)])
        A(0, [I(f'buffer_load_dwordx4 a[{aWO}:{aWO+3}], v71, {srd(WO)}, 0 offen', tok='wold')])
        A(0, [I(f'ds_write_b32 v30, v{vRS}', tok='rsw')])
        ev = []
        if not isinstance(c.rpw, int): ev.append((c.rps, lambda: A(c.rps, self.rpst)))
        tc_ = min(c.rpf - 8, 40)
        ev.append((tc_, lambda: (G(tc_, chk), A(tc_, f'v_readfirstlane_b32 s{sN}, v{vPo}\nv_readfirstlane_b32 s{sN+1}, v{vPo+1}\nv_accvgpr_write_b32 a{aN}, v{vPo}\nv_accvgpr_write_b32 a{aN+1}, v{vPo+1}'))))
        x = self.flag(63); x.tok = 'rpflag'
        ev.append((c.rpf, lambda: G(c.rpf, [W('rpst'), x])))
        pw = 1

        def wimg():
            st = c.wim
            A(st, [I(f'ds_write_b64 v{69+k}, a[{aWP}:{aWP+1}]', tok='wimg') for k in range(2)])
            A(st, [I(f'buffer_store_dwordx4 a[{aWO}:{aWO+3}], v72, {srd(WS)}, s{sMi} offen sc1', tok='wost')])
            A(st, f'v_mov_b32 v{vPU}, v73')
            need(pw, 'wimg'); need(pw, 'rsw'); DL(bar(pw))
        ev.append((c.wim, wimg))
        assert not isinstance(c.rpw, str) or c.rps < c.wim
        for _, f_ in sorted(ev, key=lambda e: e[0]): f_()
        st = tb0
        A(st, self.ex_addr(T, T + 1) + f'\nv_add_u32 v{T+1}, {E}, v{vS}')
        for s in range(3):
            for k in range(2):
                A(st, [I(f'ds_read_b64_tr_b16 a[{aPHI+4*s+2*k}:{aPHI+4*s+2*k+1}], v{T+1} offset:{1024*s+256*k}', tok='wfr')])
                A(st, [I(f'ds_read_b64_tr_b16 a[{aPHI+12+4*s+2*k}:{aPHI+12+4*s+2*k+1}], v{T} offset:{512*s+128*k}', tok='wfr')])
        need(3, 'wfr'); need(3, 'wost'); DL(bar(3))
        st = bar(3) + 1
        A(st, [self.flag(sMi + 1, v=vPU)])
        t0, t1 = T + 4, T + 5
        A(st, f'v_lshlrev_b32 v{t0}, 4, v0\nv_add_u32 v{t0}, {E}, v{t0}\nv_mov_b32 v{T}, 0\nv_mov_b32 v{T+1}, 0\nv_mov_b32 v{T+2}, 0\nv_mov_b32 v{T+3}, 0')
        A(st, [I(f'ds_write_b128 v{t0}, v[{T}:{T+3}] offset:{4096*k}', tok='zf1') for k in range(3)])
        A(st, F_G(t0) + f'\nv_mul_u32_u24 v{vK}, 1152, v{t0}\nv_lshlrev_b32 v{t0}, 6, v{t0}\nv_and_b32 v{t1}, 0xf0, v{vL16}\nv_xor_b32 v{t0}, v{t0}, v{t1}\nv_add_u32 v{vK}, v{vK}, v{t0}')
        for k in range(1, 9): A(st, f'v_add_u32 v{vK+k}, {k*16*1152 - (k%4)*1024}, v{vK}')
        A(st, f'v_and_b32 v{t0}, 0x3f, v{vPA}\n' + F_R4(t1) + f'\nv_mul_u32_u24 v{t1}, 320, v{t1}\nv_add_u32 v{t0}, v{t0}, v{t1}\n' + F_HH(t1) +
          f'\nv_mul_u32_u24 v{t1}, 9216, v{t1}\nv_add_u32 v{t0}, v{t0}, v{t1}\ns_and_b32 s{sMi}, s{sQ}, 1\ns_lshl_b32 s{sMi}, s{sMi}, 7\ns_xor_b32 s{sMi}, s{sMi}, 128\nv_xor_b32 v{vPU}, s{sMi}, v{t0}')
        t4 = min(s1 for s0, s1, acc, key in self.chain if self.tau.get(key) == 4)
        DL(min(bar(5), t4))
        t0 = 135
        self.vES = 253
        A(max(st, P0(c.xa)), f'v_add_u32 v{self.vES}, {E}, v{vS}')
        need(5, 'zf1'); DL(bar(5))
        lastS = max(pos.values())
        st = max(st, bar(lastS - 1) + 2)
        A(st, f'v_and_b32 v{vS}, 0x1ff, v{vPA}\n' + F_HH(t0) + f'\nv_lshl_add_u32 v{vS}, v{t0}, 9, v{vS}')
        DL(P0(pos['S'] + 1))
        S['misc'] = TimedStream('misc', m)

        m = []
        a0, a1, a2, a3, a4, a5 = range(vAt, vAt + 6)
        PK_ = self.PK
        Pk, EPk, PHk, Tk = 168, 188, 206, 224
        kready = P0(max(pos['Ta'], pos['Tb']) + 1) + 8
        sKL, sKS, sOM, sOX = 57, 58, 59, 3
        park = lambda k, v: f'v_accvgpr_write_b32 a{aPK+k}, v{v}'
        unpark = lambda k, v: f'v_accvgpr_read_b32 v{v}, a{aPK+k}'
        mA = f's[{sAM}:{sAM+1}]'
        st = P0(2)
        m.append(('after', ('misc', 'wost'))); m.append(('after', ('misc', 'rpflag')))
        A(st, f'v_and_b32 v{a2}, 16, v{vL16}\nv_mov_b32 v{a3}, 0x3f80\nv_lshlrev_b32 v{a3}, v{a2}, v{a3}\nv_bfe_u32 v{a2}, v{vL16}, 5, 3')
        for k in range(4): A(st, f'v_cmp_eq_u32 {mA}, {k}, v{a2}\nv_cndmask_b32 v{a4}, 0, v{a3}, {mA}\nv_accvgpr_write_b32 a{aSEL+k}, v{a4}')
        for gp in range(3):
            u, h_, cc = a0, a1, a2
            A(st, F_N(u) + f'\ns_mul_i32 s{sA}, s{sW}, 48\ns_add_u32 s{sA}, s{sA}, {16*gp}\nv_add_u32 v{u}, s{sA}, v{u}\ns_movk_i32 s{sA}, 90\nv_cmp_le_u32 {mA}, s{sA}, v{u}\n' + F_G(a3))
            A(st, f'v_lshrrev_b32 v{a5}, 1, v{a3}\nv_lshl_add_u32 v{a5}, v{a5}, 8, v{u}\ns_movk_i32 s{sA}, 180\nv_cndmask_b32 v{h_}, 0, 1, {mA}\nv_cmp_gt_u32 s[{sA+2}:{sA+3}], s{sA}, v{a5}')
            A(st, f'v_mul_u32_u24 v{a4}, 90, v{h_}\nv_sub_u32 v{u}, v{u}, v{a4}\nv_mul_u32_u24 v{cc}, 3641, v{u}\nv_lshrrev_b32 v{cc}, 16, v{cc}')
            A(st, f'v_mul_u32_u24 v{a4}, 18, v{cc}\nv_sub_u32 v{u}, v{u}, v{a4}\nv_lshl_add_u32 v{u}, v{u}, 1, v{a3}\nv_lshrrev_b32 v{a4}, 3, v{u}\nv_and_b32 v{u}, 7, v{u}\nv_lshl_add_u32 v{u}, v{a4}, 4, v{u}\nv_lshl_add_u32 v{u}, v{h_}, 3, v{u}')
            A(st, self.image_addr(u, h_, cc, a5, u, a3, a4, sAM))
            A(st, f'v_mov_b32 v{a4}, {DUMMY}\nv_cndmask_b32 v{a5}, v{a4}, v{a5}, s[{sA+2}:{sA+3}]\nv_cndmask_b32 v{u}, v{a4}, v{u}, s[{sA+2}:{sA+3}]\n' + park(2 * gp, a5) + '\n' + park(2 * gp + 1, u))
        A(st, F_G(a2) + f'\nv_mul_u32_u24 v{a2}, 3072, v{a2}\nv_and_b32 v{a3}, 0xf0, v{vL16}\nv_add_u32 v{a2}, v{a2}, v{a3}\ns_mul_i32 s{sKL}, s{sW}, 768\ns_sub_u32 s{sA+2}, {148*16}, s{sKL}')
        A(st, f'v_cmp_gt_u32 {mA}, s{sA+2}, v{a3}\nv_mov_b32 v{a5}, {OOB}\ns_mul_i32 s{sA+2}, s{sJ}, 49152\ns_add_u32 s{sKL}, s{sKL}, s{sA+2}\ns_add_u32 s{sKL}, s{sKL}, {WS_KV}\nv_cndmask_b32 v{a3}, v{a5}, v{a2}, {mA}')
        A(st, park(6, a2) + '\n' + park(7, a3))
        A(st, f's_and_b32 s{sA}, s{sW}, 1\ns_lshr_b32 s{sA+1}, s{sW}, 1')
        A(st, F_G(a4) + f'\nv_mul_u32_u24 v{a2}, 288, v{a4}\nv_cmp_eq_u32 {mA}, 0, v{a4}\nv_mov_b32 v{a3}, 1152\n' + F_N(a4) + f'\nv_cndmask_b32 v{a3}, v{a5}, v{a3}, {mA}')
        G(st, f's_cmp_eq_u32 s{sA}, 1\ns_cselect_b64 {mA}, -1, 0')
        A(st, f'v_cndmask_b32 v{a2}, v{a2}, v{a3}, {mA}\nv_cmp_gt_u32 {mA}, 4, v{a4}\nv_lshl_add_u32 v{a2}, v{a4}, 3, v{a2}')
        A(st, f's_lshl4_add_u32 s{sKS}, s{sJ}, s{sR}\ns_mul_i32 s{sKS}, s{sKS}, 3072\ns_mul_i32 s{sA+2}, s{sA+1}, 1440\nv_cndmask_b32 v{a3}, v{a5}, v{a2}, {mA}\ns_add_u32 s{sKS}, s{sKS}, s{sA+2}\ns_add_u32 s{sKS}, s{sKS}, {WS_KV}')
        A(st, park(8, a2) + '\n' + park(9, a3))
        A(st, f'v_bfe_u32 v{a0}, v{vL16}, 6, 3\n' + F_HH(a1) + f'\nv_lshl_add_u32 v{a0}, v{a0}, 2, v{a1}\nv_mul_u32_u24 v{a0}, 232, v{a0}\n' + F_C4(a1) + f'\nv_lshl_add_u32 v{a1}, v{a1}, 3, v{a0}')
        A(st, f's_mul_i32 s{sA+2}, s{sA}, s{sA+1}\ns_mul_i32 s{sA+2}, s{sA+2}, 40\ns_lshl_b32 s{sA+3}, s{sA}, 5\ns_sub_u32 s{sA+3}, s{sA+3}, s{sA+2}')
        A(st, f's_mul_i32 s{sA+2}, s{sA+1}, 48\ns_add_u32 s{sA+3}, s{sA+3}, s{sA+2}\ns_add_u32 s{sA+3}, s{sA+3}, {144 + self.slotS}\nv_add_u32 v{a0}, s{sA+3}, v{a1}')
        A(st, f's_mul_i32 s{sA+2}, s{sA+1}, 72\ns_add_u32 s{sA+2}, s{sA+2}, {self.slotS}\nv_add_u32 v{a1}, s{sA+2}, v{a1}')
        A(st, park(10, a0) + '\n' + park(11, a1))
        A(st, self.ex_addr(a0, a1) + '\n' + park(12, a0))
        A(st, f's_lshl2_add_u32 s{sA}, s{sR}, s{sW}\ns_lshl4_add_u32 s{sOM}, s{sA}, s{sJ}\ns_lshl_b32 s{sOM}, s{sOM}, 11\ns_add_u32 s{sOM}, s{sOM}, {WS_OM}')
        A(st, f's_lshl_b32 s{sA}, s{sA}, 12\ns_lshr_b32 s{sA+2}, s{sJ}, 3\ns_lshl2_add_u32 s{sA+2}, s{sA+2}, s{sJJ}\ns_lshl_b32 s{sA+2}, s{sA+2}, 9\ns_add_u32 s{sA}, s{sA}, s{sA+2}')
        A(st, f's_and_b32 s{sA+2}, s{sQ}, 1\ns_lshl3_add_u32 s{sA}, s{sA+2}, s{sA}\ns_add_u32 s{sOX}, s{sA}, {WS_OX}\nv_and_b32 v{a1}, 0x1f0, v{vL16}\n' + F_HH(a2) + f'\nv_lshl_add_u32 v{a1}, v{a2}, 2, v{a1}\n' + park(13, a1))
        A(st, F_T(a4) + f'\nv_mul_u32_u24 v{a4}, 232, v{a4}\ns_mul_i32 s{sA}, s{sW}, {32*232}\ns_add_u32 s{sA}, s{sA}, {self.slotS}\nv_add_u32 v{a4}, s{sA}, v{a4}\n' + F_HH(a5))
        A(st, f'v_mul_u32_u24 v{a0}, 72, v{a5}\nv_add_u32 v{a0}, v{a0}, v{a4}\nv_lshl_add_u32 v{a1}, v{a5}, 3, v{a4}\nv_lshl_add_u32 v{a2}, v{a5}, 4, v{a4}\nv_lshl_add_u32 v{a3}, v{a5}, 5, v{a4}')
        A(kready, [W('wfr')])
        for x in self.pmfma('k', Pk): A(kready, [x])
        sm = self.softmax(Pk, EPk, PHk, Tk, True)
        tc = PK_['Tc']; tbb = PK_['Tb']; hm = f's[{sHH}:{sHH+1}]'
        wk = [I(f'ds_write_b64 v{a0}, v[{PHk+2*k}:{PHk+2*k+1}] offset:{8*k}', tok='stg') for k in range(9)]
        wv = [[I(f'ds_write_b64 v{a1}, v[{tc}:{tc+1}] offset:144', tok='stg')], [I(f'ds_write_b64 v{a1}, v[{tc+2}:{tc+3}] offset:160', tok='stg')],
              [I(f'ds_write_b64 v{a1}, v[{tc+6}:{tc+7}] offset:200', tok='stg')],
              L(f'v_cndmask_b32 v{a4}, v{vSD}, v{tbb+2}, {hm}\nv_cndmask_b32 v{a5}, v{tc+5}, v{tbb+3}, {hm}') + [I(f'ds_write_b64 v{a3}, v[{a4}:{a5}] offset:184', tok='stg')],
              L(f'v_cndmask_b32 v{tc+5}, v{vSD}, v{tc+5}, {hm}') + [I(f'ds_write_b64 v{a2}, v[{tc+4}:{tc+5}] offset:176', tok='stg')]]
        st = max(bar(c.ps - 1) + 1, P0(pos['Tc'] + 1) + 8)
        if c.stgi:
            n0 = len(sm) - 54 - 12
            A(kready, sm[:n0])
            for n_, x in enumerate(sm[n0:]):
                A(kready, [x])
                if n_ % 5 == 0 and wv: A(st, wv.pop(0))
                if x.op.startswith('v_cvt') and (min(x.wr)[1] - PHk) % 2: A(st, [wk.pop(0)])
            assert not wk and not wv
        else:
            A(kready, sm); A(st, wk)
            for x in wv: A(st, x)
        need(c.ps, 'stg')
        A(st, unpark(10, a0) + '\n' + unpark(11, a1))
        DL(bar(c.ps))
        KA, KB, KD = 188, 204, 168
        st = bar(c.ps) + 1
        rdA = lambda ks: [I(f'ds_read_b64_tr_b16 v[{KA+4*ks+2*rd}:{KA+4*ks+2*rd+1}], v{a0} offset:{ks*7424+rd*464}', tok=f'kva{ks}') for rd in range(2)]
        rdB = lambda x: [I(f'ds_read_b64_tr_b16 v[{KB+4*(x%6)+2*rd}:{KB+4*(x%6)+2*rd+1}], v{a1} offset:{(x%4)*7424+rd*464+32*(x//4)}', tok=f'kvb{x}') for rd in range(2)]
        for ks in range(4): A(st, rdA(ks) + rdB(ks))
        A(st, unpark(8, a2) + '\n' + unpark(9, a3))
        for x in range(12):
            ft, ks = x // 4, x % 4
            mf = I(f'v_mfma_f32_16x16x32_bf16 v[{KD+4*ft}:{KD+4*ft+3}], v[{KA+4*ks}:{KA+4*ks+3}], v[{KB+4*(x%6)}:{KB+4*(x%6)+3}], ' + ('0' if ks == 0 else f'v[{KD+4*ft}:{KD+4*ft+3}]'))
            G(st, [W(f'kvb{x}', f'kva{ks}'), mf])
            if x + 4 < 12: A(st, rdB(x + 4))
        need(c.ps + 1, 'kvb11')
        DL(bar(c.ps + 1))
        x = []
        for ft in range(3):
            x += L(f'v_cvt_pk_bf16_f32 v{KD+4*ft}, v{KD+4*ft}, v{KD+4*ft+1}\nv_cvt_pk_bf16_f32 v{KD+4*ft+1}, v{KD+4*ft+2}, v{KD+4*ft+3}')
        x[4].gap = 1
        for ft in range(3):
            x.append(I(f'buffer_store_dwordx2 v[{KD+4*ft}:{KD+4*ft+1}], v{a2 if ft < 2 else a3}, {srd(WS)}, s{sKS} offen offset:{128*ft} sc1', tok='kvst'))
        A(st, x)
        Pq, EPq, PHq, Tq, SQ = 168, 136, 232, 154, 252
        st = max(st, P0(pos['Td'] + 1) + 8)
        for x in self.pmfma('q', Pq): A(st, [x])
        sm = self.softmax(Pq, EPq, PHq, Tq, False, keepS=SQ)
        KR, IA, vEX, vOA = 200, 212, 254, 255
        pk = c.pk
        if c.kvx:
            A(st, sm); A(st, f'v_mov_b32 v{PHq+18}, 0\nv_mov_b32 v{PHq+19}, 0')
            DL(P0(14) - 1)
            m_att = m; m = []
            f0, f1, f2, span, rgap = c.kvx
            m.append(('after', ('att', 'kvst')))
            G(f0, self.xs('kvfl', [W('kvst'), self.flag(sFKV)]))
            A(f0, f'v_lshrrev_b32 v{a0}, 1, v{vL16}\ns_and_b32 s{sA}, s{sFKV}, 0xfffffe00')
            ld, chk = self.poll('kvf', WS, a0, f's{sA}', a4)
            A(f1, [ld])
            A(f1, '\n'.join([unpark(k, IA + k) for k in range(6)] + [unpark(6, a2), unpark(7, a3), unpark(12, vEX), unpark(13, vOA)]))
            G(f2, chk); st = f2
        else:
            n1 = 70
            A(st, sm[:n1])
            G(st, self.xs('kvfl', [W('kvst'), self.flag(sFKV)]))
            A(st, f'v_lshrrev_b32 v{a0}, 1, v{vL16}\ns_and_b32 s{sA}, s{sFKV}, 0xfffffe00')
            n2 = n1 + c.kvgap
            A(st, sm[n1:n2])
            ld, chk = self.poll('kvf', WS, a0, f's{sA}', a4)
            A(st, [ld]); A(st, sm[n2:])
            A(st, f'v_mov_b32 v{PHq+18}, 0\nv_mov_b32 v{PHq+19}, 0')
            A(st, '\n'.join([unpark(k, IA + k) for k in range(6)] + [unpark(6, a2), unpark(7, a3), unpark(12, vEX), unpark(13, vOA)]))
            G(st, chk); span = 0; rgap = c.krgap
        for i in range(4):
            A(st + span * 3 * i // 12 - 2, f's_add_u32 s{sA+2}, s{sR}, {i}\ns_and_b32 s{sA+2}, s{sA+2}, 3\ns_mul_i32 s{sA+2}, s{sA+2}, 12288\ns_add_u32 s{sA+2}, s{sA+2}, s{sKL}')
            for gp in range(3):
                b = aKV + 4 * (3 * i + gp)
                A(st + span * (3 * i + gp) // 12, [I(f'buffer_load_dwordx4 a[{b}:{b+3}], v{a2 if gp < 2 else a3}, {srd(WS)}, s{sA+2} offen offset:{256*gp} sc1', tok=f'kr{i}')])
        for i in range(4):
            for gp in range(3):
                b = aKV + 4 * (3 * i + gp); d = KR + 4 * gp
                mf = I(f'v_mfma_f32_16x16x32_bf16 v[{d}:{d+3}], a[{aSEL}:{aSEL+3}], a[{b}:{b+3}], ' + ('0' if i == 0 else f'v[{d}:{d+3}]'))
                if i == 0 and gp == 0: mf.gap = 0
                x = glue([W(f'kr{i}'), mf] if gp == 0 else [mf])
                if i == 0 and gp == 0: x[0].gap = rgap
                if gp == 0: x = self.xs(f'kr{i}', x)
                m.append((st, x))
        x = []
        for gp in range(3):
            d = KR + 4 * gp
            x += L(f'v_cvt_pk_bf16_f32 v{d}, v{d}, v{d+1}\nv_cvt_pk_bf16_f32 v{d+1}, v{d+2}, v{d+3}')
        x[0].gap = 1
        for gp in range(3):
            d = KR + 4 * gp
            x += [I(f'ds_write_b64 v{IA+2*gp+k}, v[{d}:{d+1}]', tok='kimg') for k in range(2)]
        A(st, x)
        need(pk, 'kimg')
        DL(bar(pk))
        if c.kvx:
            S['kvx'] = TimedStream('kvx', m); m = m_att
            m.append(('after', ('kvx', 'kimg')))
        OD = 208
        st = bar(pk) + 1
        ofr = lambda x: aPHI + 4 * (x % 6)
        seq = []
        for sg in range(5):
            seq.append(('m', sg, [I(f'ds_read_b64_tr_b16 a[{ofr(2*sg)+2*k}:{ofr(2*sg)+2*k+1}], v{self.vES} offset:{1024*sg+256*k}', tok=f'of{2*sg}') for k in range(2)]))
            seq.append(('x', sg, [I(f'ds_read_b64_tr_b16 a[{ofr(2*sg+1)+2*k}:{ofr(2*sg+1)+2*k+1}], v{vEX} offset:{512*sg+128*k}', tok=f'of{2*sg+1}') for k in range(2)]))
        for x in range(4): A(st, seq[x][2])
        for x in range(10):
            kind, sg, _ = seq[x]
            fr = ofr(x); Bq = PHq + 4 * sg
            if kind == 'm':
                mf = I(f'v_mfma_f32_32x32x16_bf16 v[{OD}:{OD+15}], a[{fr}:{fr+3}], v[{Bq}:{Bq+3}], ' + ('0' if sg == 0 else f'v[{OD}:{OD+15}]'))
            else:
                mf = I(f'v_mfma_f32_16x16x32_bf16 v[{OD+16}:{OD+19}], a[{fr}:{fr+3}], v[{Bq}:{Bq+3}], ' + ('0' if sg == 0 else f'v[{OD+16}:{OD+19}]'))
            G(st, [W(f'of{x}'), mf])
            if x + 4 < 10: A(st, seq[x + 4][2])
        need(pk + 1, 'of9')
        DL(bar(pk + 1))
        X0 = OD + 16
        x = L(f'v_cndmask_b32 v{a3}, v{X0+2}, v{X0}, {hm}\nv_add_f32 v{a3}, v{a3}, v{SQ}\nv_rcp_f32 v{a3}, v{a3}\nv_cndmask_b32 v{X0}, v{X0}, v{X0+2}, {hm}\nv_cndmask_b32 v{X0+1}, v{X0+1}, v{X0+3}, {hm}')
        x[0].gap = 2
        A(st, x)
        for k in range(9):
            A(st, f'v_mul_f32 v{OD+2*k}, v{a3}, v{OD+2*k}\nv_mul_f32 v{OD+2*k+1}, v{a3}, v{OD+2*k+1}\nv_cvt_pk_bf16_f32 v{PHq+k}, v{OD+2*k}, v{OD+2*k+1}')
        A(st, [I(f'buffer_store_dwordx4 v[{PHq+4*k}:{PHq+4*k+3}], v{vL16}, {srd(WS)}, s{sOM} offen offset:{1024*k} sc1', tok='ost') for k in range(2)])
        A(st, [I(f'buffer_store_dword v{PHq+8}, v{vOA}, {srd(WS)}, s{sOX} offen sc1', tok='ost')])
        x = glue([W('ost', 'y8st', *(['yclr'] if c.ys in (1, 2) else [])), self.flag(sFO)])
        x[0].gap = 30
        m.append(('after', ('epi', 'y8st')))
        m.append((st, self.xs('ofl', x)))
        S['att'] = TimedStream('att', m)

        m = []
        pv0, pv1 = vPa, vPo
        st = P0(min(c.woA, c.wop)) - pd - 4
        m.append(('after', ('dma', f'T{first_rp}')))
        A(st, f'v_and_b32 v{vPa}, 0xf8, v{vPa}\ns_and_b32 s{sPe}, s{sQ}, 1\ns_lshl1_add_u32 s{sPe}, s{sJJ}, s{sPe}\ns_lshl_b32 s{sPe}, s{sPe}, 8\ns_add_u32 s{sPe}, s{sPe}, {FL_WO}')
        ld, chk = self.poll('wo', WS, vPa, f's{sPe}', vPo)
        A(st, [ld]); chk[0].gap = pd - 4; G(st + pd, chk)
        assert len(m) == 8
        st = P0(c.hl[0]) - pd
        A(st, f'v_and_b32 v{pv0}, 0x18, v{pv0}\ns_and_b32 s{sPe}, s{sFH}, 0xffffff80')
        ld, chk = self.poll('hA', WS, pv0, f's{sPe}', pv1)
        A(st, [ld])
        hw = 2048 if c.hlay else 18432
        A(st, (f's_lshl4_add_u32 s{sHb}, s{sQ}, s{sR}' if c.hlay == 2 else f's_lshl2_add_u32 s{sHb}, s{sR}, s{sQ}') + f'\ns_lshl4_add_u32 s{sHb}, s{sHb}, s{sW}\ns_mul_i32 s{sHb}, s{sHb}, {hw}\ns_add_u32 s{sHb}, s{sHb}, {WS_H}')
        chk[0].gap = pd - 4
        G(P0(c.hl[0]) - 1, chk)
        for n in range(6):
            i = 16 + n; pe, hf, stt = self.g2[i]
            p = c.hl[n]
            assert p < i and (p >= 12 if stt < 2 else p >= 13) and (n < 4 or p > i - 4)
            if n == 3:
                ld, chk = self.poll('hB', WS, pv0, f's{sPe}', pv1, imm=32)
                A(P0(p) - pd, [ld]); chk[0].gap = pd - 4; G(P0(p) - 1, chk)
            same = [x for x in range(6) if c.hl[x] == p]
            span = 34 // len(same); st0 = P0(p) + 2 + same.index(n) * span
            A(st0 - 3, f's_add_u32 s{sPe2}, s{sJJ}, {pe}\ns_and_b32 s{sPe2}, s{sPe2}, 3\ns_mul_i32 s{sPe2}, s{sPe2}, {4*hw}\ns_add_u32 s{sPe2}, s{sPe2}, s{sHb}')
            if hf: A(st0 - 3, f's_add_u32 s{sPe2}, s{sPe2}, {4 << 21 if c.hlay else 9216}')
            for k in range(9):
                st = st0 + k * span // 9
                if c.hlay:
                    if k and (k + hf) % 2 == 0: A(st - 1, f's_add_u32 s{sPe2}, s{sPe2}, {1 << 21}')
                elif k in (4, 8): A(st - 1, f's_add_u32 s{sPe2}, s{sPe2}, 4096')
                A(st, [I(f'buffer_load_dwordx4 a[{36*stt+4*k}:{36*stt+4*k+3}], v{vL16}, {srd(WS)}, s{sPe2} offen offset:{((k+hf)%2 if c.hlay else k%4)*1024} sc1', tok=f'ph{i}_{k}')])
            DL(P0(i) - 1 - (18 if c.rt2 and i == 21 else 0))
        S['peer'] = TimedStream('peer', m)

        m = []
        sp = soP
        st = bar(pk + 1) + 1
        dma_insert(st, one(f's_lshl_b32 s{sp}, s{sJJ}, 1\ns_and_b32 s{sp+1}, s{sQ}, 1\ns_add_u32 s{sp}, s{sp}, s{sp+1}\ns_mul_i32 s{sp+1}, s{sp}, 82944\ns_mul_i32 s{sp+2}, s{sW}, 2304\ns_add_u32 s{sp+1}, s{sp+1}, s{sp+2}\ns_add_u32 s{sp+1}, s{sp+1}, {WS_WO+2*SLOT}')
                   + one(f's_add_u32 m0, s{sp+2}, {E}')
                   + [glue(L('s_mov_b64 exec, 0xffff') + [I(f'buffer_load_dwordx4 v{vL16}, {srd(WS)}, s{sp+1} offen offset:2048 sc1 lds', tok='woE')] + L('s_mov_b64 exec, -1'))]
                   + one([I(f'buffer_load_dwordx4 v{vL16}, {srd(WS)}, s{sp+1} offen offset:{1024*k} sc1 lds', tok='woE') for k in range(2)]))
        need(21, 'TwoA'); need(21, 'TwoB'); need(21, 'woE')
        vOM, vOX, vXM, vXE, vLA, vLB, vLX, vRF = 32, 33, 34, 35, 36, 37, 38, 40
        self.tv = dict(vOM=vOM, vXM=vXM, vXE=vXE, vLA=vLA, vLB=vLB, vLX=vLX)
        u0, u1, u2 = 46, 47, 39
        st = max(P0(16), st + 12)
        m.append(('after', ('dma', 'woE')))
        A(st, f's_and_b32 s{sp+3}, s{sQ}, 2\ns_lshr_b32 s{sp+4}, s{sW}, 1\ns_add_u32 s{sp+5}, s{sp+3}, s{sp+4}\ns_lshl2_add_u32 s{sp+3}, s{sR}, s{sp+5}\ns_and_b32 s{sp+4}, s{sW}, 1\ns_lshl_b32 s{sp+6}, s{sp+4}, 8')
        A(st, f'v_and_b32 v{u0}, 0xf0, v{vL16}\nv_add_u32 v{u0}, s{sp+6}, v{u0}\n' + F_G(u1) + f'\nv_lshl_add_u32 v{vOX}, v{u1}, 9, v{u0}')
        A(st, f'v_lshrrev_b32 v{u0}, 1, v{vL16}\nv_and_b32 v{u0}, 0x78, v{u0}\ns_lshl_b32 s{sp+7}, s{sp+3}, 7\ns_add_u32 s{sp+7}, s{sp+7}, {FL_O}')
        ld, chk = self.poll('of', WS, u0, f's{sp+7}', 56)
        A(P0(c.po) - pd, [ld])
        st = P0(c.po) - pd
        A(st, f's_lshl_b32 s{sOMc}, s{sp+3}, 15\ns_add_u32 s{sOMc}, s{sOMc}, {WS_OM}\ns_lshl_b32 s{sp+8}, s{sp+3}, 12\ns_add_u32 s{sp+8}, s{sp+8}, {WS_OX}')
        if c.ylay: A(st, f's_and_b32 s{sp+6}, s{sQ}, 1\ns_lshl1_add_u32 s{sp+6}, s{sp+3}, s{sp+6}\ns_lshl_b32 s{sp+6}, s{sp+6}, 11\ns_lshl_b32 s{sp+1}, s{sJJ}, 20\ns_add_u32 s{sp+6}, s{sp+6}, s{sp+1}\ns_add_u32 s{sp+6}, s{sp+6}, {WS_Y8}')
        else: A(st, f's_lshl3_add_u32 s{sp+6}, s{sp+3}, s{sp}\ns_lshl_b32 s{sp+6}, s{sp+6}, 13\ns_add_u32 s{sp+6}, s{sp+6}, {WS_Y8}')
        chk[0].gap = pd - 6
        G(P0(c.po) - 1, chk)
        YB, Y8 = 200, 216
        st = P0(c.po)
        for i in range(4):
            if i == 2 or (i and c.ylay): A(st, f's_add_u32 s{sp+6}, s{sp+6}, {1 << 18 if c.ylay else 4096}')
            A(st + 3 * i, [I(f'buffer_load_dwordx4 v[{YB+4*i}:{YB+4*i+3}], v{vOX}, {srd(WS)}, s{sp+6} offen offset:{0 if c.ylay else (i&1)*2048} sc1', tok=f'y8l{i}')])
        span = (P0(21) + c.oend - (st + 12))
        rest = []
        rest += L(F_N(u0) + f'\nv_mul_u32_u24 v{u0}, 1152, v{u0}\nv_lshl_add_u32 v{vXM}, v{u1}, 4, v{u0}\nv_lshl_add_u32 v{vXE}, v{u1}, 3, v{u0}\nv_mov_b32 v{u0}, {OOB}\nv_cndmask_b32 v{vXE}, v{vXE}, v{u0}, {hm}')
        rest += L(f's_lshr_b32 s{sp+1}, s{sQ}, 1\ns_lshl1_add_u32 s{sp+1}, s{sR}, s{sp+1}\ns_lshl2_add_u32 s{sp+1}, s{sp+1}, s{sW}\ns_mul_i32 s{sp+1}, s{sp+1}, {16*1152}\ns_lshl_b32 s{sp+2}, s{sp}, 7\ns_add_u32 s{sXO}, s{sp+1}, s{sp+2}')
        rest += L(f's_lshl4_add_u32 s{sp+2}, s{sp}, s{sp+1}\ns_add_u32 s{sp+2}, s{sp+2}, 1024')
        XR = 48
        xl_ = [I(f'buffer_load_dwordx4 v[{XR+4*k}:{XR+4*k+3}], v{vXM}, {srd(X)}, s{sXO} offen offset:{64*k}', tok='xres') for k in range(2)]
        xl_ += [I(f'buffer_load_dwordx2 v[{XR+8}:{XR+9}], v{vXE}, {srd(X)}, s{sp+2} offen', tok='xres')]
        if not c.xrs: rest += xl_
        rest += L(f's_lshr_b32 s{sp+1}, s{sQ}, 1\ns_lshl2_add_u32 s{sp+1}, s{sp+1}, s{sW}\ns_lshl_b32 s{sp+1}, s{sp+1}, 6\ns_add_u32 s{sp+1}, s{sp+1}, {RSA}\nv_and_b32 v{u0}, 0xf0, v{vL16}\nv_lshrrev_b32 v{u0}, 2, v{u0}\nv_add_u32 v{u0}, s{sp+1}, v{u0}')
        rest += [I(f'ds_read_b32 v{vRF}, v{u0}', tok='rsr')]
        rest += L(f'v_and_b32 v{vLA}, 0x3c0, v{vL16}\nv_lshrrev_b32 v{vLX}, 2, v{vLA}\nv_bfe_u32 v{u0}, v{vL16}, 4, 1\nv_lshl_add_u32 v{vLA}, v{u0}, 3, v{vLA}\nv_lshl_add_u32 v{vLX}, v{u0}, 3, v{vLX}')
        rest += L(f'v_and_b32 v{u0}, 32, v{vL16}\nv_add_u32 v{vLA}, v{vLA}, v{u0}\n' + F_TB(u0) + f'\nv_lshl_add_u32 v{vLA}, v{u0}, 4, v{vLA}')
        rest += L(f'v_add_u32 v{vLA}, {self.slot["woA"]}, v{vLA}\nv_xor_b32 v{vLB}, 16, v{vLA}\nv_add_u32 v{vLX}, {self.slot["woA"]+4096}, v{vLX}')
        rest += L(self.ident(44, u0))
        rest += L(f'v_mov_b32 v{vRF+1}, v{vRF}\nv_mul_f32 v42, 0xbfb8aa3b, v{vRF}\nv_mul_f32 v43, 0xbfb8aa3b, v{vRF}')
        for i in range(4):
            rest.append(glue([W(f'y8l{i}'), I(f'v_mfma_f32_16x16x32_bf16 v[{Y8}:{Y8+3}], a[{aSEL}:{aSEL+3}], v[{YB+4*i}:{YB+4*i+3}], ' + ('0' if i == 0 else f'v[{Y8}:{Y8+3}]'))]))
        if c.ylay:
            assert c.ys in (0, 3, 4, 5)
            rest += L(f's_lshl2_add_u32 s{sp+1}, s{sR}, s{sJJ}\ns_lshl2_add_u32 s{sE}, s{sp+1}, s{sW}\ns_lshl_b32 s{sE}, s{sE}, 11\ns_lshl_b32 s{sp+6}, s{sQ}, 19\ns_add_u32 s{sE}, s{sE}, s{sp+6}\ns_add_u32 s{sE}, s{sE}, {WS_Y}')
            rest += L(f's_lshl2_add_u32 s{sp+1}, s{sp+1}, s{sp+5}\ns_lshl_b32 s{sYc}, s{sp+1}, 11\ns_add_u32 s{sYc}, s{sYc}, {WS_Y}\ns_lshl_b32 s{sp+7}, s{sp+1}, 7\ns_add_u32 s{sp+7}, s{sp+7}, {FL_Y}\nv_add_u32 v63, {1 << 21}, v{vOX}')
            if c.ys >= 4: rest += L(f'v_add_u32 v62, {2 << 21}, v{vOX}\ns_mov_b32 s74, s{sN}\ns_mov_b32 s75, s{sN}')
        else:
            rest += L(f's_lshl2_add_u32 s{sp+1}, s{sR}, s{sJJ}\ns_lshl2_add_u32 s{sE}, s{sp+1}, s{sW}\ns_lshl2_add_u32 s{sE}, s{sE}, s{sQ}\ns_lshl_b32 s{sE}, s{sE}, 13\ns_add_u32 s{sE}, s{sE}, {WS_Y}')
            rest += L(f's_and_b32 s{sp+6}, s{sQ}, 1\ns_lshl_b32 s{sp+6}, s{sp+6}, 12\ns_add_u32 s{sE+1}, s{sE}, s{sp+6}\ns_xor_b32 s{sE}, s{sE+1}, 4096')
            rest += L(f's_lshl2_add_u32 s{sp+1}, s{sp+1}, s{sp+5}\ns_lshl_b32 s{sYc}, s{sp+1}, 15\ns_add_u32 s{sYc}, s{sYc}, s{sp+6}\ns_add_u32 s{sYc}, s{sYc}, {WS_Y}' + ('' if c.ys == 1 else f'\ns_lshl_b32 s{sp+7}, s{sp+1}, 7\ns_add_u32 s{sp+7}, s{sp+7}, {FL_Y}'))
        rest += [glue(L(f's_lshr_b32 s{sp+1}, s{sQ}, 1\ns_lshr_b32 s{sp+6}, s{sW}, 1\ns_cmp_eq_u32 s{sp+1}, s{sp+6}\ns_cselect_b32 s{sp+6}, {OOB}, 0'))]
        ysz = 6144 if c.ys >= 4 else 4096
        rest += L(f'v_or_b32 v58, s{sp+6}, v{vL16}\ns_mul_i32 s{sp+1}, s{sW}, {ysz}\ns_add_u32 s{sp+1}, s{sp+1}, {self.slot["Y"]}\nv_add_u32 v59, s{sp+1}, v{vL16}')
        rest += L(f's_mul_i32 s{sp+1}, s{sp+5}, {ysz}\ns_add_u32 s{sp+1}, s{sp+1}, {self.slot["Y"]}\nv_add_u32 v60, s{sp+1}, v{vOX}')
        if c.ys not in (1, 5): rest += L(f'v_bfe_u32 v61, v{vL16}, 4, 1\nv_lshl_or_b32 v61, v61, 1, 1\nv_xor_b32 v61, s{sQ}, v61\nv_lshlrev_b32 v61, 3, v61')
        if c.ys in (0, 2, 3): rest += L(f's_xor_b32 s{sp+1}, s{sQ}, 2\ns_lshl_b32 s{sp+1}, s{sp+1}, 3\nv_mov_b32 v62, s{sp+1}')
        rest[-1].tok = 'yadr'
        for k, x in enumerate((1, 3, 2)):
            rest += L(f's_xor_b32 s{sp+1}, s{sQ}, {x + ((12 if c.ys == 5 else 8) if c.ylay and k == 2 else 0)}\ns_lshl_b32 s{sp+1}, s{sp+1}, {19 if c.ylay else 13}\ns_add_u32 s{sT0+k}, s{sYc}, s{sp+1}')
        XU = 64
        sw = [I(f'v_permlane16_swap_b32 v{XR+4*mt+k}, v{XR+4*mt+2+k}') for mt in range(2) for k in range(2)]
        sw[0].gap = 0
        for k in range(10): sw += L(f'v_lshlrev_b32 v{XU+2*k}, 16, v{XR+k}\nv_and_b32 v{XU+2*k+1}, 0xffff0000, v{XR+k}')
        self.xun = []
        if not c.xrs: rest += sw
        else: self.xun = sw
        nr = len(rest); k0 = 0
        for j_ in range(18):
            stj = st + 12 + j_ * span // 18
            if j_ < 16:
                if j_ and j_ % 2 == 0: A(stj, f's_add_u32 s{sOMc}, s{sOMc}, 4096')
                A(stj, [I(f'buffer_load_dwordx4 a[{184+4*j_}:{187+4*j_}], v{vOX}, {srd(WS)}, s{sOMc} offen offset:{(j_&1)*2048} sc1', tok=f'o{j_}')])
            else:
                A(stj, [I(f'buffer_load_dwordx4 a[{184+4*j_}:{187+4*j_}], v{vOX}, {srd(WS)}, s{sp+8} offen offset:{(j_-16)*2048} sc1', tok=f'o{j_}')])
            k1 = min(nr, nr * (j_ + 1) // c.rj)
            for x in rest[k0:k1]: m.append((stj, x if isinstance(x, list) else [x]))
            k0 = k1
            if c.xrs and c.xrs <= j_ < c.xrs + 3: A(stj + span // 36, [xl_[j_ - c.xrs]])
        DL(bar(21) - 2)
        S['prep'] = TimedStream('prep', m)

        m = []
        for mu in range(4):
            a = GA + 16 * mu
            st = P0(21) + 9 * mu + 8 + 3
            if c.rt2 and mu < 2: st = P0(20) + 18 + 9 * mu + 8 + 3
            if mu == 0: m.append(('after', ('prep', 'yadr')))
            if mu == 2:
                ev = []
                if c.xe < 0: ev.append((P0(22) + c.xe, glue([W('yE'), self.flag(sFY, 0)])))
                if c.xpe < 0:
                    self.ypoll = self.poll('yfE', WS, 61, f's{sp+7}', 222, reg2=(226 if c.xp2 else None))
                    ev.append((P0(22) + c.xpe, [self.ypoll[0]]))
                m.extend(sorted(ev, key=lambda x: x[0]))
            if c.ys == 5 or (c.ys == 4 and mu >= 2):
                cv = lambda d, k: I(f'v_cvt_pk_bf16_f32 v{d}, v{a+2*k}, v{a+2*k+1}')
                tg = lambda d: I(f'v_mov_b32 v{d}, s{sN}')
                va, tk = (vL16, 'yE') if mu < 2 else (58, 'yL')
                sto = lambda r_, p_: I(f'buffer_store_dwordx4 v[{r_}:{r_+3}], v{va}, {srd(WS)}, s{sE} offen offset:{1024*p_} sc1', tok=tk)
                lw = lambda r_, g_, p_: [I(f'ds_write_b128 v59, v[{r_}:{r_+3}] offset:{2048*g_+1024*p_}', tok='yown')] if mu >= 2 else []
                nx = L(f's_add_u32 s{sE}, s{sE}, {1 << 21}')
                if mu % 2 == 0:
                    A(st, (nx if mu else []) + [cv(a, 0), cv(a + 1, 1), cv(a + 2, 2), tg(a + 3), sto(a, 0), cv(a + 4, 4), cv(a + 5, 5), cv(a + 10, 3), cv(a + 6, 6), tg(a + 7), sto(a + 4, 1)])
                    A(st, [cv(a + 14, 7), tg(a + 11), tg(a + 15)]); A(max(st, bar(21) + 1) if c.rt2 else st, lw(a, 0, 0) + lw(a + 4, 0, 1))
                else:
                    e = a - 16
                    A(st, nx + [cv(e + 8, 0), cv(e + 9, 1), cv(e + 12, 4), cv(e + 13, 5), sto(e + 8, 0), sto(e + 12, 1), cv(a, 2), cv(a + 1, 3), tg(a + 3), cv(a + 4, 6), cv(a + 5, 7), tg(a + 7)])
                    A(st, L(f's_add_u32 s{sE}, s{sE}, {1 << 21}') + [sto(a, 0), sto(a + 4, 1)] + lw(e + 8, 1, 0) + lw(e + 12, 1, 1) + lw(a, 2, 0) + lw(a + 4, 2, 1))
                continue
            A(st, [I(f'v_cvt_pk_bf16_f32 v{a+k}, v{a+2*k}, v{a+2*k+1}') for k in range(8)])
            if c.ylay and mu: A(st, f's_add_u32 s{sE}, s{sE}, {1 << 21}')
            for p_ in range(2):
                if c.ylay:
                    A(st, [I(f'buffer_store_dwordx4 v[{a+4*p_}:{a+4*p_+3}], v{vL16 if mu < 2 else 58}, {srd(WS)}, s{sE} offen offset:{1024*p_} sc1', tok='yE' if mu < 2 else 'yL')])
                elif mu < 2:
                    A(st, [I(f'buffer_store_dwordx4 v[{a+4*p_}:{a+4*p_+3}], v{vL16}, {srd(WS)}, s{sE} offen offset:{2048*mu+1024*p_} sc1', tok='yE')])
                else:
                    A(st, [I(f'buffer_store_dwordx4 v[{a+4*p_}:{a+4*p_+3}], v58, {srd(WS)}, s{sE+1} offen offset:{2048*(mu-2)+1024*p_} sc1', tok='yL')])
            if mu >= 2:
                A(max(st, bar(21) + 1), [I(f'ds_write_b128 v59, v[{a+4*p_}:{a+4*p_+3}] offset:{2048*(mu-2)+1024*p_}', tok='yown') for p_ in range(2)])
        S['ypk'] = TimedStream('ypk', m)
        return S

    def s_reads(self, x):
        st, lam = x // 5, x % 5
        tv = self.tv
        b = 72 + 4 * (x % 18)
        r = []
        if lam == 0 and st in (8, 16):
            dl = (self.slot['woB'] - self.slot['woA']) if st == 8 else (E - self.slot['woB'])
            r += [I(f'v_add_u32 v{tv[k]}, {dl & 0xffffffff}, v{tv[k]}') for k in ('vLA', 'vLB', 'vLX')]
        o = (st % 8) * 4608
        for rd in range(2):
            if lam < 4: reg, oo = tv['vLB' if lam & 1 else 'vLA'], o + (lam >> 1) * 2048 + rd * 1024
            else: reg, oo = tv['vLX'], o + rd * 256
            r.append(I(f'ds_read_b64_tr_b16 a[{b+2*rd}:{b+2*rd+1}], v{reg} offset:{oo}', tok=f's{x}'))
        return r

    def tail(self, S):
        c = self.c; E_ = self.E; tv = self.tv
        sp = soP
        SA, YE, YL, YO, YA, Y8, XU, TM, OUTR = 84, 104, 120, 128, 200, 216, 64, 160, 180
        vOX = 33
        side = {}
        add = lambda x, lst: side.setdefault(x, []).extend(lst)
        yp = flush(S['ypk'])
        n0 = 1
        for k, x in enumerate(yp): add(n0 + k // c.ypn, [x])
        xb = n0 + len(yp) // c.ypn + 3
        if c.ys >= 4: YL, YO = 232, 244
        tgd = lambda src: c.ys == 5 or (c.ys == 4 and src in (YL, YO))
        add(xb, [W('yown')] + L('s_barrier') + [I(f'ds_read_b128 v[{YO+4*mt}:{YO+4*mt+3}], v60 offset:{2048*mt}', tok='yor') for mt in range(3 if c.ys >= 4 else 2)])
        YS = [YE, YE + 12, YL]
        ytl = lambda k: [I(f'buffer_load_dwordx4 v[{YS[k]+4*g_}:{YS[k]+4*g_+3}], v{(vOX, 63, 62)[g_]}, {srd(WS)}, s{sT0+k} offen sc1', tok=f'yt{k}') for g_ in range(3)]
        fix = lambda src: [I(f'v_mov_b32 v{src+3}, v{src+6}')]
        yld = lambda k: [I(f'buffer_load_dwordx4 v[{YE+8*k+4*mt}:{YE+8*k+4*mt+3}], v{63 if c.ylay and mt else vOX}, {srd(WS)}, s{sT0+k} offen offset:{0 if c.ylay else 2048*mt} sc1', tok=(f'yl{k}' if k < 2 else f'yl2{mt}')) for mt in range(2)]
        for k, x in enumerate(self.xun): add(c.xux + k // 2, [x])
        fl = lambda tk, o: [W(tk), self.flag(sFY, o)]
        if c.ys == 5:
            for n_, x in enumerate(ytl(0) + ytl(1)): add(c.xye + n_, [x])
            for n_, x in enumerate(ytl(2)): add(c.xyl + n_, [x])
            chkE = self.tcheck('ysE', ['yt0', 'yt1'], [YE + 4 * g_ + 3 for g_ in range(6)], ytl(0) + ytl(1) + ytl(2), (sT0, sT0 + 1)) + fix(YE) + fix(YE + 12)
            chkL = self.tcheck('ysL', ['yt2'], [YL + 4 * g_ + 3 for g_ in range(3)], ytl(2), (sT0 + 2,)) + fix(YL)
        elif c.ys == 1:
            for k in range(3):
                for mt in range(2): add((c.xye + 2 * (2 * k + mt)) if k < 2 else c.xyl + 2 * mt, [yld(k)[mt]])
            chkE = self.ycheck('ysE', ['yl0', 'yl1'], YE, 16, yld(0) + yld(1) + yld(2))
            chkL = self.ycheck('ysL', ['yl20', 'yl21'], YL, 8, yld(2))
        else:
            if c.xe >= 0: add(c.xe, fl('yE', 0) + self.stamp('yEf'))
            ldE, chkE = self.ypoll if c.xpe < 0 else self.poll('yfE', WS, 61, f's{sp+7}', 222)
            if c.ys == 4: chkL = self.tcheck('ysL', ['yt2'], [YL + 4 * g_ + 3 for g_ in range(3)], ytl(2), (sT0 + 2,)) + fix(YL)
            elif c.ys != 2:
                add(c.xl, fl('yL', 32) + self.stamp('yLf'))
                ldL, chkL = self.poll('yfL', WS, 62, f's{sp+7}', 224 if c.ys else 222, imm=32)
            else: chkL = self.ycheck('ysL', ['yl20', 'yl21'], YL, 8, yld(2))
            if c.xpe < 0 and c.xp2: assert c.xp2 < c.xyc; add(c.xp2, [self.ld2])
            if c.xpe >= 0: add(c.xpe if c.ys else min(c.xl + 4, 60), [ldE])
            if c.ys:
                add(c.xyc, chkE + self.stamp('yEp'))
                lds_ = yld(0) + yld(1) + (yld(2) if c.ys == 2 else [])
                if c.ys == 4:
                    for k, x in enumerate(ytl(2)): add(max(c.xyc + 4, c.xyl) + k, [x])
                for k, x in enumerate(lds_): add(c.xyc + k, [x])
                if c.ys == 3: add(c.xpl, [ldL])
                if c.ys == 3 and c.xlc < 90: add(c.xlc, chkL + self.stamp('yLp') + yld(2))
        po = lambda src, mt, ab: src + ((0, 2, 4, 8)[2 * mt + ab] if tgd(src) else 4 * mt + 2 * ab)
        es = 12 if c.ys == 5 else 8
        ident_mf = lambda src, mt, ab, first: I(f'v_mfma_f32_4x4x4_16b_bf16 v[{YA+8*mt+4*ab}:{YA+8*mt+4*ab+3}], v[44:45], v[{po(src, mt, ab)}:{po(src, mt, ab)+1}], ' + ('0' if first else f'v[{YA+8*mt+4*ab}:{YA+8*mt+4*ab+3}]'))
        if c.ys >= 4: add(xb + 12, fix(YO))
        if c.ys in (1, 5) and c.xyc < 90:
            for k in range(4): add(c.xyc - 4 + k, [ident_mf(YO, k >> 1, k & 1, True)])
            add(c.xyc, chkE + self.stamp('yEp'))
            for k in range(8): add(min(c.xyc + 1 + k, 89), [ident_mf(YE + es * (k >> 2), (k >> 1) & 1, k & 1, False)])
        for x in range(90):
            st, lam = x // 5, x % 5
            fr = 72 + 4 * (x % 18); acc = SA + 4 * lam
            if x % c.swe == 0: E_(W(f's{min(x + c.swe - 1, 89)}', f'o{min(x + c.swe - 1, 89) // 5}'))
            E_(f'v_mfma_f32_16x16x32_bf16 v[{acc}:{acc+3}], a[{fr}:{fr+3}], a[{184+4*st}:{187+4*st}], ' + ('0' if x < 5 else f'v[{acc}:{acc+3}]'))
            if x + c.Ds < 90: E_(self.s_reads(x + c.Ds))
            E_(side.get(x, []))
        E_(self.stamp('s89'))
        own = [ident_mf(YO, mt, ab, True) for mt in range(2) for ab in range(2)]
        mfE = [ident_mf(YE + es * k, mt, ab, False) for k in range(2) for mt in range(2) for ab in range(2)]
        if not c.ys:
            E_(chkE)
            E_(self.stamp('yEp'))
            E_(yld(0) + yld(1))
            E_(ldL)
        if not (c.ys in (1, 5) and c.xyc < 90): E_(own)
        for k in range(10):
            E_(f'v_pk_mul_f32 v[{SA+2*k}:{SA+2*k+1}], v[{SA+2*k}:{SA+2*k+1}], v[40:41]')
        self.final_a(Y8, TM + 16, SA + 16); self.final_b(Y8, TM + 16, XU + 16, OUTR + 8)
        E_(I(f'buffer_store_dwordx2 v[{OUTR+8}:{OUTR+9}], v{tv["vXE"]}, {srd(OUT)}, s{sp+2} offen{c.osc}', tok='out'))
        if c.ys in (1, 5):
            if c.xyc >= 90: E_(chkE); E_(self.stamp('yEp')); E_(mfE)
            E_(chkL); E_(self.stamp('yLp'))
        elif c.ys in (2, 4):
            E_(mfE); E_(self.stamp('yEd')); E_(chkL); E_(self.stamp('yLp'))
        elif c.ys == 3 and c.xlc < 90: E_(mfE)
        else:
            E_(chkL)
            E_(self.stamp('yLp'))
            E_(yld(2))
            E_(mfE)
        for mt in range(2):
            for ab in range(2): E_(ident_mf(YL, mt, ab, False))
        E_(self.stamp('yld'))
        for mt in range(2):
            for ab in range(2):
                lam = 2 * mt + ab
                self.final_a(YA + 4 * lam, TM + 4 * lam, SA + 4 * lam)
            for ab in range(2):
                lam = 2 * mt + ab
                self.final_b(YA + 4 * lam, TM + 4 * lam, XU + 4 * lam, OUTR + 2 * lam)
            for k in range(2): E_(f'v_permlane16_swap_b32 v{OUTR+4*mt+k}, v{OUTR+4*mt+2+k}')
            E_(I(f'buffer_store_dwordx4 v[{OUTR+4*mt}:{OUTR+4*mt+3}], v{tv["vXM"]}, {srd(OUT)}, s{sXO} offen offset:{64*mt}{c.osc}', tok='out'))
        E_(self.stamp('fin'))

    def final_a(self, y, tm, sa):
        E_ = self.E
        for k in range(2): E_(f'v_pk_mul_f32 v[{tm+2*k}:{tm+2*k+1}], v[{y+2*k}:{y+2*k+1}], v[42:43]')
        for k in range(4): E_(f'v_exp_f32 v{tm+k}, v{tm+k}')
        for k in range(2): E_(f'v_pk_mul_f32 v[{y+2*k}:{y+2*k+1}], v[{y+2*k}:{y+2*k+1}], v[{sa+2*k}:{sa+2*k+1}]')

    def final_b(self, y, tm, xu, outr):
        E_ = self.E
        for k in range(2): E_(f'v_pk_add_f32 v[{tm+2*k}:{tm+2*k+1}], v[{tm+2*k}:{tm+2*k+1}], 1.0 op_sel_hi:[1,0]')
        for k in range(4): E_(f'v_rcp_f32 v{tm+k}, v{tm+k}')
        for k in range(2): E_(f'v_pk_fma_f32 v[{y+2*k}:{y+2*k+1}], v[{y+2*k}:{y+2*k+1}], v[{tm+2*k}:{tm+2*k+1}], v[{xu+2*k}:{xu+2*k+1}]')
        for k in range(2): E_(f'v_cvt_pk_bf16_f32 v{outr+k}, v{y+2*k}, v{y+2*k+1}')

    def build(self):
        c = self.c; E_ = self.E
        assert c.D + 2 <= 8
        self.plan()
        self.prologue()
        S = self.build_streams()
        E_(self.stamp('stat'))
        E_(W('T0', 'zf0')); E_('s_barrier')
        E_(self.stamp('T0'))
        for s in range(c.D): E_(self.reads(s))
        steps = self.main_steps()
        sk = c.skip.split()

        def drop(pred, names=None):
            for nm, st_ in S.items():
                if names and nm not in names: continue
                for it in st_.items:
                    if isinstance(it[0], str): continue
                    it[1][:] = [x for x in it[1] if not pred(x)] or [I('s_nop 0')]
        for nm in sk:
            if nm in S: drop(lambda x: True, [nm])
        if sk:
            drop(lambda x: x.kind == 'label' or x.op.startswith('s_cbranch') or x.op.startswith('v_cmp_ne'))
            self.slow = [x for x in self.slow if x.startswith('SLOW_yf')]
        if 'hst' in sk: drop(lambda x: x.kind == 'vstore', ['epi'])
        if 'peerld' in sk: drop(lambda x: x.kind == 'vload', ['peer'])
        if 'oload' in sk: drop(lambda x: x.kind == 'vload', ['prep'])
        if 'dmaq' in sk: drop(lambda x: x.kind == 'dma', ['dma'])
        if 'attvm' in sk: drop(lambda x: x.kind in ('vstore', 'vload'), ['att'])
        order = [S[k] for k in ('dma', 'flg', 'yclr', 'epi', 'ypk', 'peer', 'kvx', 'misc', 'accw', 'att', 'prep') if k in S]
        self.log = []
        stp = {36 * p: (lambda p=p: self.stamp(f'p{p-1}')) for p in range(1, 4 if c.tsp else 22)}
        if c.tsg:
            stp = {k: v for k, v in stp.items() if k // 36 in (2, 6, 10, 14, 18)}
            for g_ in range(*c.tsg): stp[g_] = (lambda g_=g_: self.stamp(f'{(g_-1)//36}.{(g_-1)%36+1}'))
        body = schedule_timed(steps, order, log=self.log, stamps=stp, ldsb=c.ldsb)
        E_(body)
        for s in order:
            if s.name != 'ypk': assert s.done(), (s.name, s.idx, len(s.items))
        E_(self.stamp('p21'))
        self.tail(S)
        if c.ts:
            E_(W('out')); E_(self.stamp('out')); self.number_stamps()
            if c.tsg: E_(f's_waitcnt lgkmcnt(0)\nv_writelane_b32 v{vONE}, s0, {self.nts}')
            E_(f's_memrealtime s[0:1]\ns_waitcnt lgkmcnt(0)\nv_writelane_b32 v{vONE}, s0, 62')
            E_(f's_lshl_b32 s3, s2, 2\ns_add_u32 s3, s3, s{sW}\ns_lshl_b32 s3, s3, 8\ns_add_u32 s3, s3, {WS_TS}\nv_lshrrev_b32 v25, 2, v{vL16}')
            E_(f'buffer_store_dword v{vONE}, v25, {srd(WS)}, s3 offen')
            if c.dbg is not None:
                names = ['karg', 'xiss', 'x7', 'T0', 'p1', 'p3', 'p5', 'p8', 'p12', 'p15', 'p18', 'p21', 's89', 'yLp', 'out']
                E_(f'v_readlane_b32 s40, v{vONE}, 61\nv_readlane_b32 s41, v{vONE}, 60\nv_readlane_b32 s42, v{vONE}, 62\ns_sub_u32 s42, s42, s41\nv_mov_b32 v26, 0')
                for wd, nm in enumerate(names):
                    E_(f'v_readlane_b32 s43, v{vONE}, {self.notes.index(nm)+1}\ns_sub_u32 s43, s43, s40\nv_writelane_b32 v26, s43, {wd}')
                E_(f'v_writelane_b32 v26, s42, 15\nv_lshlrev_b32 v25, 2, v0\ns_cmp_eq_u32 s2, {c.dbg}\ns_cselect_b32 s44, 0xffff, 0\ns_cmp_eq_u32 s{sW}, 0\ns_cselect_b32 s44, s44, 0\ns_mov_b32 exec_lo, s44\ns_mov_b32 exec_hi, 0')
                E_(f'buffer_store_dword v26, v25, {srd(DBG)}, 0 offen')
        for x in self.p:
            if x.kind == 'vload' and x.wr & {('a', 182), ('a', 183)}: x.wr = set()
        stats = {}
        prog = resolve_waits(self.p, stats, lenient=bool(c.skip))
        prog = pad_hazards(prog, stats)
        self.stats = stats
        self.prog = prog
        return prog

    def text(self):
        hdr = open('cdna_kernels/' + NAME + '.s.ref').read().split('\n')
        top = [x for x in hdr if x.startswith(';') and not x.startswith('; @launch')]
        out = top + ['; @launch grid=(256,1,1) block=(256,1,1) lds=163840',
                     '.amdgcn_target "amdgcn-amd-amdhsa--gfx950"', '.text', f'.globl {NAME}_kernel', '.p2align 8',
                     f'.type {NAME}_kernel,@function', f'{NAME}_kernel:']
        out += [i.text for i in self.prog]
        out += ['L_end:', 's_endpgm'] + self.slow + ['CODE_END:', 's_endpgm']
        out += ['.section .rodata,"a"', '.p2align 6', f'.amdhsa_kernel {NAME}_kernel', '  .amdhsa_next_free_vgpr 512', '  .amdhsa_next_free_sgpr 102',
                '  .amdhsa_accum_offset 256', '  .amdhsa_group_segment_fixed_size 0', '  .amdhsa_kernarg_size 80', '  .amdhsa_user_sgpr_count 2',
                '  .amdhsa_user_sgpr_kernarg_segment_ptr 1', '  .amdhsa_system_sgpr_workgroup_id_x 1', '.end_amdhsa_kernel']
        return '\n'.join(out) + '\n'


class TimedStream:
    def __init__(self, name, items):
        self.name = name; self.items = items; self.idx = 0; self.last_step = -10**9

    def done(self):
        while self.idx < len(self.items) and isinstance(self.items[self.idx][0], str): self.idx += 1
        return self.idx >= len(self.items)

    def next_deadline(self):
        for it in self.items[self.idx:]:
            if it[0] == 'deadline': return it[1]
        return None


def flush(s):
    r = [x for it in s.items[s.idx:] if not isinstance(it[0], str) for x in it[1]]
    s.idx = len(s.items)
    return r


def schedule_timed(steps, streams, log=None, stamps=None, ldsb=0):
    out = []
    bucket = 0
    ldsc = lambda grp: sum((32 if 'b128' in x.op else 16) if x.kind == 'dsw' else (8 if x.kind == 'dsr' else 0) for x in grp)
    byname = {s.name: s for s in streams}
    CAP = {'mfma32': 8, 'mfma16': 4, 'mfma4': 3}

    def passed(ref):
        s = byname[ref[0]]
        if isinstance(ref[1], int): return s.idx >= ref[1]
        return not any((not isinstance(it[0], str)) and any(x.tok == ref[1] for x in it[1]) for it in s.items[s.idx:])

    for g, st in enumerate(steps):
        if stamps and g in stamps: out.extend(stamps[g]())
        out.extend(st.pre)
        used = sum(i.cost for i in st.pre)
        cap = st.cap if st.cap is not None else CAP[st.mf.kind]
        out.append(st.mf); used += st.mf.cost
        forced = 0
        for s in streams:
            while True:
                dl = s.next_deadline()
                if dl is None or dl > g: break
                while s.items[s.idx][0] != 'deadline':
                    it = s.items[s.idx]
                    if it[0] == 'after': assert passed(it[1]), (s.name, it, g)
                    else:
                        assert it[0] <= g, (s.name, it, g)
                        out.extend(it[1]); forced += sum(x.cost for x in it[1])
                    s.idx += 1
                s.idx += 1; s.last_step = g
        used += forced
        out.extend(st.post); used += sum(i.cost for i in st.post)
        nmf = 0
        bucket = min(bucket + ldsb, 2 * ldsb)
        while True:
            pick = None
            for allow_mf in (False, True):
                for s in streams:
                    while s.idx < len(s.items) and (s.items[s.idx][0] == 'deadline' or (s.items[s.idx][0] == 'after' and passed(s.items[s.idx][1]))): s.idx += 1
                    if s.idx >= len(s.items): continue
                    t0, grp = s.items[s.idx]
                    if t0 == 'after' or g < t0: continue
                    if grp[0].gap and g < s.last_step + grp[0].gap: continue
                    if ldsb and ldsc(grp) and bucket < min(ldsc(grp), 2 * ldsb): continue
                    cst = sum(x.cost for x in grp)
                    extra = sum(CAP[x.kind] for x in grp if x.kind in MF_KINDS)
                    if extra:
                        if not allow_mf or nmf >= 2 or st.end: continue
                    else:
                        late = (s.name in ('dma', 'ypk', 'peer', 'kvx') and g >= t0 + 2 and used <= cap) or (cst > 3 and used < cap)
                        if used + cst > cap and not late: continue
                    pick = (s, grp, cst, extra); break
                if pick: break
            if not pick: break
            s, grp, cst, extra = pick
            if extra:
                nmf += 1
                cap = max(cap, used) + extra; used = cap - extra
            out.extend(grp); used += cst; bucket -= ldsc(grp)
            s.idx += 1; s.last_step = g
        if st.end:
            out.extend(st.end); cap = max(cap, used) + sum(CAP[x.kind] for x in st.end); used = cap
        if log is not None: log.append((g, used, cap, forced, {s.name: s.idx for s in streams}))
    return out


if __name__ == '__main__':
    kw = {}
    for a in sys.argv[2:]:
        k, v = a.split('='); kw[k] = eval(v)
    g = Gen(Cfg(**kw)); g.build()
    open(sys.argv[1], 'w').write(g.text())
    print('instrs', len(g.prog), 'est clk', estimate(g.prog), {k: v for k, v in g.stats.items() if k != 'nop_sites'})
    print('period slots', [sum(max(x[1], x[2]) for x in g.log[36*p:36*p+36]) * 4 for p in range(22)])
    print('forced', [(x[0], x[3]) for x in g.log if x[3]])
    print('slots', g.slot, g.slotS, g.loadp)
    for nm in g.log[0][4]:
        print(nm, [g.log[36*p+35][4][nm] for p in range(22)])
```

```python
import sys, os
sys.path.insert(0, os.path.dirname(os.path.abspath(__file__)))
from asmlib import *

NAME = 'recurrent_scan__linear_kernel_hedgehog__dense_activation_relu__prompt'

SLOT = 36864
E = 147456
E2 = E + 5120
RSA = E + 12288
DUMMY = E + 0x3800
OOB = 0x80000000
FL_H, FL_KV, FL_O, FL_RP, FL_WO, FL_Y = 0x0, 0x8000, 0xA000, 0xC000, 0xE000, 0x10000
WS_KV, WS_RP, WS_WO, WS_OM, WS_OX, WS_Y8, WS_Y, WS_H, WS_TS = 0x20000, 0x100000, 0x400000, 0x500000, 0x700000, 0x800000, 0xC00000, 0x1800000, 0x3000000
WS_SIZE = 268435456
RPI = {'Ta': 0, 'Tb': 1, 'Tc': 2, 'Td': 3, 'S': 4}
X, QKV, PHI, WO, W1, W2, OUT, DBG, WS = 4, 8, 12, 16, 20, 24, 28, 32, 36
srd = lambda n: f's[{n}:{n+3}]'
SIZES = {X: 2359296, QKV: 1990656, PHI: 20736, WO: 663552, W1: 5308416, W2: 5308416, OUT: 2359296, DBG: 256, WS: WS_SIZE}
KOFF = {X: 0, QKV: 8, PHI: 16, WO: 24, W1: 40, W2: 48, OUT: 56, DBG: 64, WS: 72}
soP = 40
soPb = [88, 89, 90, 91, 92, 93, 96, 97, 101]
PIMM = [0, 1, 2, 3, 0, 1, 2, 3, 0] + [0, 1, 2, 0, 1, 2, 3, 0, 1]
sN = 94
sD = 49
sMi = 54
sMiM = 58
sA = 60
sAM = 64
sPe = 66
sW, sR, sJ, sQ, sJJ, sWL = 67, 68, 69, 70, 71, 72
sHown, sFH, sFKV, sFO, sFY, sRP, sPF = 73, 74, 75, 76, 77, 78, 79
sPe2, sHb = 80, 81
sE = 82
sXO, sYc, sOMc = 85, 86, 87
sT0, sT1, sT2, sT3 = 90, 91, 92, 93
sHH = 98
sSPIN = 100
vL16 = 1
vK = 2
vW1, vPA, vS, vCur, vF0, vONE, vRS, vC, vSD, vCur2 = 11, 12, 13, 14, 15, 16, 17, 18, 19, 20
vPF, vPo, vPa, vPU = 21, 22, 24, 25
vAt = 26
ACC = (32, 48)
ACC0 = (80, 96)
vH = 64
vX = 112
GA = 136
RING = 144
aPHI = 184
aKV = 208
aSEL = 176
aN = 180
aRP, aWP, aWO, aPK = 208, 228, 232, 236
LOG2E = 0x3fb8aa3b


class Cfg:
    order = ['P0a', 'P0b', 'P1a', 'P1b', 'Ta', 'Tb', 'Tc', 'Td', 'S', 'P2a', 'P2b', 'P3a', 'P3b']
    D = 5
    we = 2
    ps = 8
    pk = 13
    woA = 10
    hl = (13, 14, 15, 16, 17, 18)
    wop = 9
    po = 19
    xlag = 3
    npre = 4
    xa = 5
    Ds = 8
    ts = False
    xrot = 1
    c8p = 2
    rps = 12
    rpf = 24
    pf = {'P2': 3, 'P3': 5, 'B8': 5, 'U0': 6, 'U1': 7, 'U2': 7, 'U3': 8}
    cap = 8
    ys = 4
    ycl = (190, 28)
    xye = 30
    xyl = 50
    xpe = 6
    xpl = 68
    xyc = 40
    hlay = 2
    ylay = 1
    swe = 3
    ypn = 4
    gentle = 1
    xlc = 90
    rt2 = 1
    xp2 = 0
    oend = 18
    rj = 9
    xrs = 15
    xux = 14
    rpo = 4
    tagp = 8
    kvs = 0
    ldsb = 0
    stgi = 0
    pfs = 26
    dly = 6
    dend = 29
    osc = ' sc1'
    caps = {7: 9, 8: 9, 9: 9}
    kvx = (358, 406, 430, 30, 30)
    hfd = 30
    kvgap = 60
    krgap = 16
    msum = 0
    wim = 44
    pf1 = 1
    rpw = 3
    bulk = 2
    pf0p = 2
    t1p = 0
    head = 1
    nfill = 400
    tsx = ''
    tsg = None
    tsp = False
    spin = 20000
    pref = True
    skip = ''
    dbg = None
    xe = 0
    xl = 40
    pdist = 22

    def __init__(self, **kw):
        for k, v in kw.items():
            assert hasattr(self, k), k
            setattr(self, k, v)


def L(text, **kw):
    r = []
    for line in text.split('\n'):
        line = line.strip()
        if line:
            r.append(I(line, **kw)); kw.pop('gap', None)
    return r


def glue(lst):
    for x in lst[1:]: x.glue = True
    return lst


F_T = lambda d: f'v_bfe_u32 v{d}, v{vL16}, 4, 5'
F_HH = lambda d: f'v_lshrrev_b32 v{d}, 9, v{vL16}'
F_N = lambda d: f'v_bfe_u32 v{d}, v{vL16}, 4, 4'
F_G = lambda d: f'v_lshrrev_b32 v{d}, 8, v{vL16}'
F_R4 = lambda d: f'v_bfe_u32 v{d}, v{vL16}, 6, 2'
F_C4 = lambda d: f'v_bfe_u32 v{d}, v{vL16}, 4, 2'
F_TB = lambda d: f'v_bfe_u32 v{d}, v{vL16}, 8, 1'


class Gen:
    def __init__(self, cfg):
        self.c = cfg
        self.p = []
        self.slow = []
        self.nts = 0
        self.notes = []

    def E(self, x, **kw):
        if isinstance(x, str): self.p.extend(L(x, **kw))
        elif isinstance(x, list): self.p.extend(x)
        else: self.p.append(x)

    def stamp(self, name=''):
        if not self.c.ts: return []
        if self.c.tsg:
            r = glue(L(f'v_writelane_b32 v{vONE}, s0, 0\ns_memtime s[0:1]'))
            r[0].comment = name; r[1].kind = 'sctl'; r[1].wr = set()
        else:
            r = glue(L(f's_memtime s[0:1]\ns_waitcnt lgkmcnt(0)\nv_writelane_b32 v{vONE}, s0, 0'))
            r[2].comment = name
        for x in r: x.cost = 0
        return r

    def number_stamps(self):
        for x in self.p:
            if getattr(x, 'comment', None) is not None:
                self.nts += 1; self.notes.append(x.comment); assert self.nts < 59
                x.text = f'v_writelane_b32 v{vONE}, s0, {self.nts - 1 if self.c.tsg else self.nts}'

    def xs(self, name, grp):
        if not self.c.tsx or name not in self.c.tsx.split(): return grp
        g = grp[0].gap
        r = glue(self.stamp('<' + name) + grp + self.stamp(name + '>')); r[0].gap = g; r[0].glue = False
        return r

    def poll(self, name, srdn, vaddr, soff, reg, imm=0, tag=False, reg2=None):
        assert reg % 2 == 0
        ld = f'buffer_load_dwordx2 v[{reg}:{reg+1}], v{vaddr}, {srd(srdn)}, {soff} offen' + (f' offset:{imm}' if imm else '') + ' sc1'
        cmp = f'v_min_u32 v{vaddr}, v{reg}, v{reg+1}\nv_cmp_eq_u32 vcc, 0, v{vaddr}' if tag else f'v_cmp_ne_u64 vcc, s[{sN}:{sN+1}], v[{reg}:{reg+1}]'
        fix = f'v_mov_b32 v{vaddr}, 0\n' if tag else ''
        chk = [W(name)] + L(f'{cmp}\ns_cbranch_vccnz SLOW_{name}\nBACK_{name}:')
        snd = ''
        if reg2:
            self.ld2 = I(ld.replace(f'v[{reg}:{reg+1}]', f'v[{reg2}:{reg2+1}]'), tok=name + '2')
            snd = f's_waitcnt vmcnt(0)\nv_cmp_ne_u64 vcc, s[{sN}:{sN+1}], v[{reg2}:{reg2+1}]\ns_nop 1\ns_cbranch_vccz BACK_{name}\n'
        self.slow.append(f'''SLOW_{name}:
{snd}s_mov_b32 s{sSPIN}, 0
LOOP_{name}:
{fix}{ld}
s_add_u32 s{sSPIN}, s{sSPIN}, 1
s_waitcnt vmcnt(0)
{cmp}
s_nop 1
s_cbranch_vccz BACK_{name}
s_cmp_lt_u32 s{sSPIN}, {self.c.spin}
s_cbranch_scc1 LOOP_{name}
s_branch BACK_{name}''')
        return I(ld, tok=name), self.xs(name, glue(chk))

    def tcheck(self, name, toks, T, lds, so=()):
        mx = ''
        for t, op in ((222, 'min'), (223, 'max')):
            mx += f'v_{op}3_u32 v{t}, v{T[0]}, v{T[1]}, v{T[2]}\n'
            if len(T) > 3: mx += f'v_{op}3_u32 v{t}, v{T[3]}, v{T[4]}, v{t}\nv_{op}_u32 v{t}, v{T[5]}, v{t}\n'
        pre = ''
        if self.c.gentle:
            pre = f'v_mov_b32 v224, {(2 << 21) + 1024 + 1008 + 12}\nPRE_{name}:\n'
            for k in range(2): pre += f'buffer_load_dword v{222+k}, v224, {srd(WS)}, s{so[k % len(so)]} offen sc1\n' if k < len(so) else ''
            pre += f's_add_u32 s{sSPIN}, s{sSPIN}, 1\ns_waitcnt vmcnt(0)\n'
            pre += 'v_cmp_ne_u64 vcc, s[74:75], v[222:223]\n' if len(so) > 1 else 'v_cmp_ne_u32 vcc, s74, v222\n'
            pre += f's_nop 1\ns_cbranch_vccz GO_{name}\ns_cmp_lt_u32 s{sSPIN}, {self.c.spin}\ns_cbranch_scc1 PRE_{name}\nGO_{name}:\n'
        return self.ycheck(name, toks, 0, 0, lds, mx + 'v_cmp_ne_u64 vcc, s[74:75], v[222:223]', pre)

    def ycheck(self, name, toks, r0, n, lds, cond=None, pre=''):
        t = 222
        mx = f'v_max3_u32 v{t}, v{r0}, v{r0+1}, v{r0+2}\nv_max3_u32 v{t+1}, v{r0+3}, v{r0+4}, v{r0+5}\n'
        for k in range(6, n - 1, 2): mx += f'v_max3_u32 v{t+k//2%2}, v{r0+k}, v{r0+k+1}, v{t+k//2%2}\n'
        mx += f'v_max_u32 v{t}, v{t}, v{t+1}\nv_cmp_eq_u32 vcc, -1, v{t}'
        if cond: mx = cond
        ld = pre + '\n'.join(x.text for x in lds)
        self.slow.append(f'''SLOW_{name}:
s_mov_b32 s{sSPIN}, 0
LOOP_{name}:
{ld}
s_add_u32 s{sSPIN}, s{sSPIN}, 1
s_waitcnt vmcnt(0)
{mx}
s_nop 1
s_cbranch_vccz BACK_{name}
s_cmp_lt_u32 s{sSPIN}, {self.c.spin}
s_cbranch_scc1 LOOP_{name}
s_branch BACK_{name}''')
        return [W(*toks)] + L(f'{mx}\ns_cbranch_vccnz SLOW_{name}\nBACK_{name}:')

    @staticmethod
    def flag(s_, o=0, v=vF0):
        return I(f'buffer_store_dwordx2 a[{aN}:{aN+1}], v{v}, {srd(WS)}, s{s_} offen' + (f' offset:{o}' if o else '') + ' sc1', tok='flag')

    def plan(self):
        c = self.c
        self.kind = list(c.order) + ['B8'] + [f'U{u}' for u in range(1, 9)]
        slot = {i: i for i in range(4)}
        loadp = {0: -1, 1: 0 if c.t1p else -1, 2: 0, 3: 1}
        free = []; nxt = 4; stag = None
        lead3 = c.woA >= 19
        for p in range(1, 22):
            free.append(slot[p - 1])
            if p == c.ps: stag = free.pop(0)
            if p == c.ps + 2: free.append(stag)
            lead = 3 if (lead3 and p >= c.ps + 2) else 2
            while nxt <= min(p + lead, 21) and (free or nxt <= p + 2):
                slot[nxt] = free.pop(0); loadp[nxt] = p; nxt += 1
            if p == c.woA: slot['woA'] = free.pop(0); loadp['woA'] = p
            if p == 20: slot['woB'] = free.pop(0); loadp['woB'] = p
            if p == 21: slot['Y'] = free.pop(0)
        assert nxt == 22 and 'woA' in slot
        self.slot = {k: v * SLOT for k, v in slot.items()}
        self.slotS = stag * SLOT
        self.loadp = loadp
        self.tau = {}
        self.hoff = []
        self.acc = {}
        self.chain = []
        fin = {ACC[0]: -2, ACC[1]: -1}
        for i, k in enumerate(self.kind[:14]):
            if k[0] == 'P':
                pr, hf = int(k[1]), k[2] == 'b'
                if pr == 0:
                    assert i == (1 if hf else 0)
                    for mt in range(2): self.acc[(i, mt)] = ACC0[mt]
                    if hf:
                        for mt in range(2): self.chain.append((mt, 72 - 2 + mt, ACC0[mt], (i, mt)))
                elif not hf:
                    assert self.kind[i + 1] == k[:2] + 'b'
                    a0 = min(fin, key=fin.get); a1 = max(fin, key=fin.get)
                    for mt, a in enumerate((a0, a1)):
                        self.acc[(i, mt)] = a; self.acc[(i + 1, mt)] = a
                        fin[a] = 36 * (i + 1) + 18 * mt + 17
                        self.chain.append((36 * i + 18 * mt, fin[a], a, (i + 1, mt)))
                if hf:
                    for mt in range(2):
                        self.tau[(i, mt)] = len(self.hoff); self.hoff.append((64 * pr + 32 * mt, 32))
            elif k == 'B8':
                a0 = min(fin, key=fin.get); a1 = max(fin, key=fin.get)
                for mt, a in enumerate((a0, a1)):
                    self.acc[(i, mt)] = a; self.chain.append((36 * i + 18 * mt, 36 * i + 18 * mt + 17, a, (i, mt)))
            else:
                a = min(fin, key=fin.get); self.acc[(i, 0)] = a; fin[a] = 36 * i + 35
                self.chain.append((36 * i, fin[a], a, (i, 0)))
                if k == 'S':
                    self.tau[(i, 0)] = len(self.hoff); self.hoff.append((256, -256))
        assert len(self.hoff) == 9
        self.g2 = {14: (0, 0, None), 15: (0, 1, None)}
        for n in range(6): self.g2[16 + n] = (1 + n % 3, n // 3, n % 4)

    def dma_item(self, i):
        out = []; tok = f'T{i}'
        kind = self.kind[i] if isinstance(i, int) else i
        sl = self.slot[i]
        m0 = lambda k: L(f's_add_u32 m0, s{sWL}, {sl + k*1024}')
        ld = lambda v, R, so, k, sc='': [I(f'buffer_load_dwordx4 v{v}, {srd(R)}, {so} offen offset:{(k%4)*1024}{sc} lds', tok=tok)]
        one = lambda t: out.extend([x] for x in L(t))
        if kind[0] == 'P':
            cur = int(kind[1]) * 128
            if cur != self.w1pos: one(f'v_add_u32 v{vW1}, {(cur - self.w1pos) & 0xffffffff}, v{vW1}')
            self.w1pos = cur
            for k in range(9):
                im = PIMM[k + (9 if kind[2] == 'b' else 0)]
                if im == 0: out.append(m0(k))
                out.append(ld(vW1, W1, f's{soPb[k] if kind[2] == "b" else soP+k}', im))
        elif kind in RPI or kind in ('woA', 'woB'):
            if kind in RPI: b = lambda k: f's_add_u32 s{sD}, s{sRP}, {RPI[kind]*SLOT + k*1024}'
            else:
                one(f's_lshl_b32 s{sD+1}, s{sJJ}, 1\ns_and_b32 s{sD}, s{sQ}, 1\ns_add_u32 s{sD+1}, s{sD+1}, s{sD}\ns_mul_i32 s{sD+1}, s{sD+1}, 82944\ns_add_u32 s{sD+1}, s{sD+1}, s{sWL}')
                b = lambda k: f's_add_u32 s{sD}, s{sD+1}, {WS_WO + (SLOT if kind == "woB" else 0) + k*1024}'
            for k in range(9):
                if k % 4 == 0: one(b(k)); out.append(m0(k))
                out.append(ld(vL16, WS, f's{sD}', k, ' sc1'))
        elif kind == 'B8':
            one(f's_mul_i32 s{sD+1}, s{sJ}, 36\ns_add_u32 s{sD+1}, s{sD+1}, s{sW}\ns_mul_i32 s{sD+1}, s{sD+1}, 9216\ns_add_u32 s{sD+1}, s{sD+1}, 1024')
            one(f's_and_b32 s{sD}, s{sJJ}, 1\ns_mul_i32 s{sD+2}, s{sD}, {32*1152}\ns_add_u32 s{sD+2}, s{sD+2}, s{sD+1}\ns_mul_i32 s{sD}, s{sD}, {256*1152}\ns_sub_u32 s{sD+1}, s{sD+1}, s{sD}')
            one(f'v_lshrrev_b32 v{vW1}, 7, v{vL16}\nv_mul_u32_u24 v{vW1}, 1152, v{vW1}\nv_bfe_u32 v{vCur2}, v{vL16}, 8, 1\nv_lshl_add_u32 v{vW1}, v{vCur2}, 6, v{vW1}\nv_and_b32 v{vCur2}, 0x70, v{vL16}\nv_xor_b32 v{vW1}, v{vW1}, v{vCur2}')
            for k in range(9):
                a, b = self.hoff[k]
                one(f's_add_u32 s{sD}, s{sD+2 if b == 32 else sD+1}, {(a*1152 - (k%4)*1024) & 0xffffffff}')
                if k % 4 == 0: out.append(m0(k))
                out.append(ld(vW1, W2, f's{sD}', k))
        else:
            pe, hf, _ = self.g2[i]
            one(f's_add_u32 s{sD}, s{sJJ}, {pe}\ns_and_b32 s{sD}, s{sD}, 3\ns_and_b32 s{sD+3}, s{sD}, 1\ns_lshl2_add_u32 s{sD}, s{sQ}, s{sD}\ns_mul_i32 s{sD}, s{sD}, 72\ns_add_u32 s{sD}, s{sD}, s{sW}')
            one(f's_mul_i32 s{sD}, s{sD}, 4608\ns_lshl_b32 s{sD+1}, s{sJJ}, 8\ns_add_u32 s{sD}, s{sD}, s{sD+1}')
            grp = {}
            for k in range(9):
                sg = 9 * hf + k; a, b = self.hoff[sg >> 1]
                grp.setdefault((a + 16 * (sg & 1) - 16 * k, b), []).append(k)
            assert len(grp) <= 3
            reg = {}
            for n, (a, b) in enumerate(grp):
                r = sD + 1 + n if n < 2 else sD + 4
                one(f's_mul_i32 s{r}, s{sD+3}, {(b*1152) & 0xffffffff}\ns_add_u32 s{r}, s{r}, s{sD}')
                if a: one(f's_add_u32 s{r}, s{r}, {(a*1152) & 0xffffffff}')
                for k in grp[(a, b)]: reg[k] = r
            for k in range(9):
                if k % 4 == 0: out.append(m0(k))
                out.append(ld(vK + k, W2, f's{reg[k]}', k))
        return out

    def conv_mf(self, s):
        D = 32 + 8 * (s & 1); xr = vX + 4 * s
        return [I(f'v_mfma_f32_4x4x4_16b_bf16 v[{D+4*k}:{D+4*k+3}], v[60:61], v[{xr+2*k}:{xr+2*k+1}], v[48:51]') for k in range(2)]

    def conv_cvt(self, s):
        D = 32 + 8 * (s & 1); xr = vX + 4 * s
        return [I(f'v_cvt_pk_bf16_f32 v{xr+k}, v{D+2*k}, v{D+2*k+1}') for k in range(4)]

    @staticmethod
    def ident(d, t1):
        return (f'v_and_b32 v{t1}, 16, v{vL16}\nv_mov_b32 v{d}, 0x3f80\nv_lshlrev_b32 v{d}, v{t1}, v{d}\nv_bfe_i32 v{t1}, v{vL16}, 5, 1\n'
                f'v_and_b32 v{d+1}, v{d}, v{t1}\nv_xor_b32 v{d}, v{d}, v{d+1}')

    def prologue(self):
        c = self.c; E_ = self.E
        if c.ts: E_('s_memrealtime s[92:93]\ns_memtime s[96:97]')
        E_('s_cmp_ge_u32 s2, 256\ns_cbranch_scc1 L_end')
        if c.head:
            E_(f's_load_dwordx2 s[{X}:{X+1}], s[0:1], 0\ns_load_dwordx8 s[76:83], s[0:1], 40\ns_load_dwordx8 s[44:51], s[0:1], 8\ns_load_dwordx2 s[{WS}:{WS+1}], s[0:1], {KOFF[WS]}')
        else:
            for R in (X, W1, DBG, QKV, WS, PHI, W2, WO, OUT):
                E_(f's_load_dwordx2 s[{R}:{R+1}], s[0:1], {KOFF[R]}')
        E_(f's_memrealtime s[{sN}:{sN+1}]')
        if c.pref:
            E_('s_getpc_b64 s[40:41]\nPCREF:\ns_mov_b32 s42, CODE_END-PCREF\ns_mov_b32 s43, 0x20000')
            E_('s_lshr_b32 s3, s2, 3\nv_lshlrev_b32 v25, 5, v0\nv_add_u32 v25, s3, v25\nv_lshlrev_b32 v25, 7, v25')
            E_('buffer_load_dword v63, v25, s[40:43], 0 offen', tok='pref')
        l = 25
        E_(f'v_lshrrev_b32 v26, 6, v0\nv_and_b32 v{l}, 63, v0\nv_lshlrev_b32 v{vL16}, 4, v{l}')
        E_(f'v_readfirstlane_b32 s{sW}, v26')
        E_(f's_and_b32 s3, s2, 1\ns_lshl_b32 s3, s3, 3\ns_lshr_b32 s64, s2, 5\ns_add_u32 s{sR}, s64, s3')
        E_(f's_bfe_u32 s{sQ}, s2, 0x20001\ns_bfe_u32 s{sJJ}, s2, 0x20003\ns_lshl2_add_u32 s{sJ}, s{sQ}, s{sJJ}')
        E_(f'v_lshrrev_b32 v26, 3, v{l}\nv_mul_u32_u24 v27, 1152, v26\nv_and_b32 v28, 0x70, v{vL16}\nv_and_b32 v29, 0x30, v{l}\nv_xor_b32 v28, v28, v29')
        E_('v_add_u32 v2, v27, v28\nv_xor_b32 v3, 64, v2\nv_add_u32 v3, 8192, v3\nv_add_u32 v4, 16384, v2\nv_add_u32 v5, 16384, v3')
        E_(f's_mul_i32 s{sWL}, s{sW}, 9216\ns_lshl2_add_u32 s3, s{sR}, s{sW}')
        E_(f's_mul_i32 s{sXO}, s3, 36864')
        sRot = sJJ if c.xrot == 2 else sQ
        E_(f's_lshl_b32 s58, s{sRot}, 8' if c.xrot else 's_mov_b32 s58, 0')
        save = self.p; self.p = []
        for R in SIZES:
            if c.head and R not in (X, WS):
                t_ = 76 + KOFF[R] // 4 - 10 if KOFF[R] >= 40 else 44 + KOFF[R] // 4 - 2
                E_(f's_mov_b64 s[{R}:{R+1}], s[{t_}:{t_+1}]')
            x_ = L(f's_mov_b32 s{R+2}, {SIZES[R]}\ns_mov_b32 s{R+3}, 0x20000')
            if R == X: save.extend(x_)
            else: E_(x_)
        E_(f'v_mov_b32 v31, {OOB}\nv_cmp_gt_u32 vcc, 18, v{l}\nv_mul_u32_u24 v{vPF}, 9216, v{l}\ns_lshl2_add_u32 s64, s64, s{sW}\ns_mul_i32 s{sPF}, s64, {18*9216}\nv_cndmask_b32 v{vPF}, v31, v{vPF}, vcc')
        E_(f's_mul_i32 s63, s{sJ}, 576\ns_and_b32 s65, s{sJJ}, 1\ns_lshl_b32 s57, s65, 6\ns_add_u32 s57, s57, s63\ns_add_u32 s{sPF}, s{sPF}, s57')
        E_(f'v_cmp_gt_u32 vcc, 2, v0\nv_lshlrev_b32 v23, 7, v0\ns_cmp_eq_u32 s2, 0\ns_cselect_b32 s59, 0, {OOB}\nv_cndmask_b32 v23, v31, v23, vcc\nv_or_b32 v23, s59, v23')
        hd2 = self.p; self.p = save
        if not c.head: E_(hd2); hd2 = []
        E_('s_waitcnt lgkmcnt(0)')
        if c.ts: E_(f'v_mov_b32 v{vONE}, 1\nv_writelane_b32 v{vONE}, s92, 60\nv_writelane_b32 v{vONE}, s96, 61')
        E_(self.stamp('karg'))
        pf0 = L(f'buffer_load_dword a182, v{vPF}, {srd(W1)}, s{sPF} offen')
        if c.pf0p == 0: E_(hd2); hd2 = []; E_(pf0)
        tagst = L(f's_or_b32 s{sN}, s{sN}, 1\ns_or_b32 s{sN+1}, s{sN+1}, 0x80000000\nv_mov_b32 v28, s{sN}\nv_mov_b32 v29, s{sN+1}')
        tagst.append(I(f'buffer_store_dwordx2 v[28:29], v23, {srd(DBG)}, 0 offen sc1', tok='tagst'))
        save = self.p; self.p = []
        E_(tagst)
        t, hh, a, b, d = 26, 27, 74, 75, 22
        E_(f'v_lshrrev_b32 v26, 2, v{l}\nv_and_b32 v27, 0x30, v{vL16}\nv_mul_u32_u24 v{a}, 3456, v26\nv_add_u32 v64, v{a}, v27\nv_mul_u32_u24 v{b}, 9216, v26\nv_add_u32 v66, v{b}, v27')
        E_(f'v_mov_b32 v65, 1216\nv_mov_b32 v{b}, 2360\nv_cmp_eq_u32 vcc, 16, v27\ns_mul_i32 s62, s3, 9\nv_add_u32 v67, s62, v26\nv_cndmask_b32 v65, v65, v{b}, vcc\nv_cmp_le_u32 vcc, 32, v27')
        E_(f's_mul_i32 s60, s62, 3456\ns_mul_i32 s61, s{sJ}, 72\nv_cndmask_b32 v65, v65, 64, vcc\nv_add_u32 v65, v65, v{a}\ns_add_u32 s60, s60, s61')
        if c.xrot:
            E_(f's_lshl_b32 s56, s{sRot}, 7\nv_subrev_u32 v{b}, s56, v67\nv_cmp_gt_u32 vcc, 0x200, v67\nv_and_b32 v{b}, 0x1ff, v{b}\ns_nop 0\nv_cndmask_b32 v67, v67, v{b}, vcc')
        E_(f'v_cmp_gt_u32 vcc, 36, v{l}\nv_lshl_add_u32 v67, v67, 6, v27')
        E_(f's_mul_i32 s61, s62, 9216\ns_add_u32 s61, s61, s63\ns_lshl_b32 s65, s65, 9\ns_sub_u32 s61, s61, s65\ns_add_u32 s61, s61, 512')
        for k in range(4): E_(f'v_cndmask_b32 v{64+k}, v31, v{64+k}, vcc')
        E_(f's_mul_i32 s62, s{sJ}, {5*SLOT}\ns_add_u32 s62, s62, {WS_RP}\ns_add_u32 s{sRP}, s62, s{sWL}')
        E_(f's_lshl_b32 s64, s{sJ}, 6\ns_add_u32 s64, s64, s3\ns_lshl3_add_u32 s63, s64, {FL_RP}\ns_lshl3_add_u32 s{sFKV}, s64, {FL_KV}')
        ne2 = len(self.p)
        E_(F_T(t) + '\n' + F_HH(hh))
        E_(f'v_bfe_u32 v{a}, v{t}, 1, 3\nv_xor_b32 v{a}, v{a}, v{hh}\nv_lshlrev_b32 v{a}, 4, v{a}\nv_lshl_add_u32 v{a}, v{t}, 7, v{a}\nv_add_u32 v6, s{sWL}, v{a}')
        E_('v_xor_b32 v7, 32, v6\nv_xor_b32 v8, 64, v6\nv_xor_b32 v9, 96, v6')
        E_(f'v_lshrrev_b32 v{a}, 3, v{t}\nv_mul_u32_u24 v{a}, 35840, v{a}')
        for k in range(4): E_(f'v_add_u32 v{84+k}, v{a}, v{6+k}')
        for k in range(0 if not c.msum else 4, 8): E_(f'v_mov_b32 v{52+k}, 0')
        if c.msum:
            E_(f'v_lshrrev_b32 v88, 2, v{l}\nv_xor_b32 v88, v88, v{l}\nv_bfe_u32 v88, v88, 2, 1\nv_add_u32 v88, -1, v88\nv_and_b32 v88, 0x3f803f80, v88\nv_mov_b32 v89, v88\nv_mov_b32 v90, v88\nv_mov_b32 v91, v88')
        else: E_('v_mov_b32 v88, 0x3f803f80')
        E_(f's_mov_b32 s{sHH}, 0\ns_mov_b32 s{sHH+1}, -1')
        E_(f'v_cmp_eq_u32 vcc, 0, v{l}')
        E_(f'v_lshrrev_b32 v{b}, 3, v{l}\nv_mul_u32_u24 v{b}, 9216, v{b}\nv_cndmask_b32 v{vF0}, v31, v{l}, vcc')
        E_(F_TB(a) + f'\nv_lshl_add_u32 v{b}, v{a}, 6, v{b}\nv_and_b32 v{d}, 0x70, v{vL16}\nv_xor_b32 v{vW1}, v{b}, v{d}')
        E_(f's_mul_i32 s56, s{sW}, {8*9216}\ns_add_u32 s57, s57, s56')
        for g in range(5):
            if g < 4:
                if c.xrot: E_(f's_add_u32 s56, s{sRot}, {g}\ns_and_b32 s56, s56, 3\ns_mul_i32 s56, s56, {128*9216}\ns_add_u32 s56, s56, s57')
                else: E_(f's_add_u32 s56, s57, {g*128*9216}')
            for pb in range(4 * g, min(4 * g + 4, 18)):
                r_ = soP + pb if pb < 9 else soPb[pb - 9]
                E_(f's_add_u32 s{r_}, s{56 if g < 4 else 57}, {(pb % 4 if g < 4 else pb)*32*9216 - PIMM[pb]*1024}')
        E_(F_C4(b) + f'\nv_lshlrev_b32 v{b}, 3, v{b}\nv_lshl_add_u32 v{b}, v{a}, 5, v{b}\n' + F_R4(d))
        E_(f'v_lshl_add_u32 v{a}, v{hh}, 3, v{d}\nv_lshl_add_u32 v{vS}, v{a}, 6, v{b}')
        E_(f'v_lshl_add_u32 v{b}, v{d}, 7, v{b}\nv_lshrrev_b32 v{d}, 1, v{d}\nv_lshl_add_u32 v{b}, v{d}, 6, v{b}\nv_mul_u32_u24 v{a}, 9216, v{hh}\nv_add_u32 v{vPA}, v{a}, v{b}')
        E_(self.ident(60, a))
        E_(f'v_lshlrev_b32 v73, 4, v0\nv_add_u32 v73, {E}, v73\nv_mov_b32 v76, 0\nv_mov_b32 v77, 0\nv_mov_b32 v78, 0\nv_mov_b32 v79, 0')
        E_([I(f'ds_write_b128 v73, v[76:79] offset:{4096*k}', tok='zf0') for k in range(3)])
        E_(f's_lshl2_add_u32 s64, s{sR}, s{sQ}\ns_lshl2_add_u32 s64, s64, s{sW}\ns_lshl4_add_u32 s64, s64, s{sJJ}\ns_lshl_b32 s{sFH}, s64, 3')
        E_(f's_lshl4_add_u32 s64, s3, s{sJ}\ns_lshl3_add_u32 s{sFO}, s64, {FL_O}')
        if c.ys not in (1, 5): E_(f's_lshl2_add_u32 s64, s{sR}, s{sJJ}\ns_lshl2_add_u32 s64, s64, s{sW}\ns_lshl4_add_u32 s64, s64, s{sQ}\ns_lshl3_add_u32 s{sFY}, s64, {FL_Y}')
        if c.hlay == 2: E_(f's_lshl4_add_u32 s64, s{sQ}, s{sR}\ns_lshl2_add_u32 s64, s64, s{sJJ}\ns_lshl2_add_u32 s64, s64, s{sW}\ns_lshl_b32 s64, s64, 11\ns_add_u32 s{sHown}, s64, {WS_H}')
        else: E_(f's_lshl4_add_u32 s64, s{sR}, s{sJ}\ns_lshl2_add_u32 s64, s64, s{sW}\ns_mul_i32 s64, s64, {2048 if c.hlay else 18432}\ns_add_u32 s{sHown}, s64, {WS_H}')
        T = 92
        h_, d_, a5, a, b, o1, o2 = T, T + 1, T + 2, T + 3, T + 4, 69, 70
        m1, m2 = 's[64:65]', 56
        E_(f'v_mul_u32_u24 v{h_}, 729, v0\nv_lshrrev_b32 v{h_}, 16, v{h_}\nv_mul_u32_u24 v{a}, 90, v{h_}\nv_sub_u32 v{a}, v0, v{a}')
        E_(f'v_mul_u32_u24 v{d_}, 205, v{a}\nv_lshrrev_b32 v{d_}, 10, v{d_}\nv_mul_u32_u24 v{b}, 5, v{d_}\nv_sub_u32 v{a5}, v{a}, v{b}')
        E_(f'v_mul_u32_u24 v{a}, 648, v{h_}\nv_mul_u32_u24 v{b}, 36, v{d_}\ns_movk_i32 s56, 180\nv_add_u32 v{a}, v{a}, v{b}\nv_cmp_gt_u32 {m1}, s56, v0\nv_lshl_add_u32 v{a}, v{a5}, 3, v{a}')
        E_(f's_mul_i32 s56, s{sJ}, 1296\nv_add_u32 v{a}, s56, v{a}\nv_cndmask_b32 v68, v31, v{a}, {m1}')
        E_(f'v_mul_u32_u24 v{b}, 18, v{h_}\nv_add_u32 v{d_}, v{b}, v{d_}')
        E_(f'v_and_b32 v{a}, 0x33, v{d_}\nv_and_b32 v{b}, 4, v{d_}\nv_lshl_or_b32 v{a}, v{b}, 1, v{a}\nv_bfe_u32 v{b}, v{d_}, 3, 1\nv_lshl_or_b32 v{a}, v{b}, 2, v{a}')
        E_(self.image_addr(a, h_, a5, o1, o2, T + 5, T + 6, m2))
        E_(f'v_mov_b32 v{b}, {DUMMY}\nv_cndmask_b32 v{o1}, v{b}, v{o1}, {m1}\nv_cndmask_b32 v{o2}, v{b}, v{o2}, {m1}')
        R_, e_, stp, rho, g_, src, dst, x_ = T, T + 1, T + 2, T + 3, T + 4, 71, 72, T + 5
        m2 = 's[56:57]'
        E_(f'v_mul_u32_u24 v{R_}, 7282, v0\nv_lshrrev_b32 v{R_}, 16, v{R_}\nv_mul_u32_u24 v{x_}, 9, v{R_}\nv_sub_u32 v{e_}, v0, v{x_}\ns_lshr_b32 s{sMi+1}, s2, 3\ns_mul_i32 s{sMi}, s{sMi+1}, 18\nv_add_u32 v{R_}, s{sMi}, v{R_}')
        E_(f'v_lshrrev_b32 v{stp}, 5, v{R_}\nv_and_b32 v{rho}, 31, v{R_}\nv_bfe_u32 v{g_}, v{R_}, 2, 2')
        E_(f'v_and_b32 v{x_}, 1, v{g_}\nv_mul_u32_u24 v{src}, 20, v{x_}\nv_lshrrev_b32 v{x_}, 1, v{g_}\nv_lshl_add_u32 v{src}, v{x_}, 3, v{src}\nv_lshrrev_b32 v{x_}, 4, v{rho}\nv_lshl_add_u32 v{src}, v{x_}, 2, v{src}')
        E_(f'v_mad_u32_u24 v{src}, v{stp}, 36, v{src}')
        E_(f'v_lshl_add_u32 v{g_}, v{x_}, 2, v{g_}\nv_and_b32 v{x_}, 1, v{stp}\nv_lshl_add_u32 v{g_}, v{x_}, 3, v{g_}\nv_cmp_le_u32 {m2}, 16, v{stp}\nv_mad_u32_u24 v{g_}, v{g_}, 36, 16')
        E_(f'v_and_b32 v{x_}, 3, v{rho}\nv_cndmask_b32 v{src}, v{src}, v{g_}, {m2}\nv_add_u32 v{src}, v{src}, v{x_}\nv_mul_u32_u24 v{src}, 1152, v{src}')
        E_(f's_and_b32 s{sMi}, s2, 7\ns_lshl_b32 s3, s{sMi}, 7\nv_lshlrev_b32 v{g_}, 4, v{e_}\nv_add_u32 v{g_}, s3, v{g_}\ns_lshl4_add_u32 s3, s{sMi}, 1024\nv_cmp_eq_u32 {m2}, 8, v{e_}\nv_mov_b32 v{x_}, s3')
        E_(f's_movk_i32 s3, 162\nv_cndmask_b32 v{g_}, v{g_}, v{x_}, {m2}\nv_cmp_gt_u32 {m1}, s3, v0\nv_add_u32 v{src}, v{src}, v{g_}')
        E_(f'v_bfe_u32 v{x_}, v{rho}, 2, 1\nv_cndmask_b32 v{src}, v31, v{src}, {m1}')
        E_(f'v_xor_b32 v{x_}, v{x_}, v{e_}\nv_and_b32 v{x_}, 3, v{x_}\nv_lshlrev_b32 v{x_}, 4, v{x_}\nv_lshl_add_u32 v{x_}, v{rho}, 6, v{x_}\nv_lshrrev_b32 v{e_}, 2, v{e_}\nv_lshl_add_u32 v{x_}, v{e_}, 11, v{x_}')
        E_(f'v_lshlrev_b32 v{rho}, 4, v{rho}\nv_add_u32 v{rho}, 4096, v{rho}\nv_cndmask_b32 v{x_}, v{x_}, v{rho}, {m2}\nv_mul_u32_u24 v{stp}, 4608, v{stp}\nv_add_u32 v{x_}, v{x_}, v{stp}')
        E_(f'v_cndmask_b32 v{dst}, v31, v{x_}, {m1}\ns_lshl_b32 s3, s{sMi}, 5\ns_add_u32 s{sMi+1}, s{sMi+1}, s3\ns_lshl3_add_u32 s{sMi+1}, s{sMi+1}, {FL_WO}\ns_mul_i32 s{sMi}, s{sMi}, 82944\ns_add_u32 s{sMi}, s{sMi}, {WS_WO}')
        E_(f'v_cmp_eq_u32 vcc, 0, v0\nv_and_b32 v30, 0x1f0, v{vL16}\nv_lshrrev_b32 v30, 2, v30\ns_lshl_b32 s3, s{sW}, 7\ns_add_u32 s3, s3, {RSA}\nv_add_u32 v30, s3, v30\nv_cndmask_b32 v73, v31, v0, vcc')
        E_(f'v_mov_b32 v{vPa}, 0\ns_and_b32 s56, s2, 1\ns_lshl_b32 s56, s56, 7')
        early = self.p; self.p = save
        cols = [0, 1, 2, 3, 4, 5, 6, 7]; cols.insert(c.c8p, 8)

        def xdma(cc):
            r = []
            if cc == 8: r += L(f's_add_u32 s59, s{sXO}, 1024')
            else:
                if cc: r += L('s_add_u32 s58, s58, 128\ns_and_b32 s58, s58, 0x3ff')
                r += L(f's_add_u32 s59, s{sXO}, s58')
            for i in range(4):
                if cc == 8: r += L(f's_add_u32 m0, s{sWL}, {i*SLOT + 8192 - i*1024}')
                elif i == 0: r += L(f's_add_u32 m0, s{sWL}, {(cc>>1)*SLOT + (cc&1)*4096}')
                r.append(I(f'buffer_load_dwordx4 v{2+i}, {srd(X)}, s59 offen offset:{i*1024} lds', tok=f'x{cc}'))
            return r

        def xread(cc):
            r = [W(f'x{cc}')]
            if cc == 4: r += [I(f'v_add_u32 v{6+k}, {2*SLOT}, v{6+k}') for k in range(4)]
            for ks in range(4):
                s = 4 * cc + ks
                if cc == 8: bs, o = 84 + ks, 8192
                else: bs, o = 6 + ks, ((cc >> 1) & 1) * SLOT + (cc & 1) * 4096
                r.append(I(f'ds_read_b128 v[{vX+4*s}:{vX+4*s+3}], v{bs} offset:{o}', tok=f'xr{cc}'))
            return r

        def xdots(cc):
            r = []
            for k in range(16):
                xr = vX + 16 * cc + k
                if not c.msum: r.append(I(f'v_dot2c_f32_bf16 v{52+(k&3)}, v88, v{xr}'))
                elif k % 4 == 0: r.append(I(f'v_mfma_f32_16x16x32_bf16 v[52:55], v[88:91], v[{xr}:{xr+3}], ' + ('0' if cc == cols[0] and k == 0 else 'v[52:55]')))
                r.append(I(f'v_dot2c_f32_bf16 v{56+(k&3)}, v{xr}, v{xr}'))
            return r

        def mix(main, fill):
            nv = sum(1 for x in main if x.kind in VM_KINDS)
            k = 0; done = 0
            for x in main:
                E_(x)
                if x.kind in VM_KINDS:
                    k += 1; upto = len(fill) * k // nv
                    E_(fill[done:upto]); done = upto
            E_(fill[done:])

        rpl = [I(f'buffer_load_dwordx4 a[{aRP+4*k}:{aRP+4*k+3}], v{v}, {srd(R)}, s{so} offen offset:{o}', tok='rpl')
               for k, (v, R, so, o) in enumerate(((64, QKV, 60, 1152), (65, QKV, 60, 0), (64, QKV, 60, 2304), (64, QKV, 60, 0), (66, W1, 61, 0)))]
        rpst = []
        for k in range(5):
            if k: rpst += L(f's_add_u32 s62, s62, {SLOT}')
            rpst.append(I(f'buffer_store_dwordx4 a[{aRP+4*k}:{aRP+4*k+3}], v67, {srd(WS)}, s62 offen sc1', tok='rpst'))
        self.rpst = rpst
        pf1 = L(f'buffer_load_dword a183, v{vPF}, {srd(W1)}, s{sPF} offen offset:128')
        lag = c.xlag
        self.w1pos = 0
        pend = []
        nA = min(c.nfill, len(early)); rest = early[nA:]
        early_rp = isinstance(c.rpw, int)
        n2 = max(c.rpw, 1) if early_rp else lag
        if early_rp and c.rpw == 0: E_(early[:ne2]); E_(rpl); early = early[ne2:]; nA -= ne2; ne2 = 0
        for n in range(9 + lag):
            issue = xdma(cols[n]) if n < 9 else []
            if n < lag:
                if c.bulk is None: mix(issue, early[ne2 * n // n2: ne2 * (n + 1) // n2] if n < n2 else [])
                else: E_(issue)
                if c.tsp: E_(self.stamp(f'c{n}'))
                if hd2 and n + 1 == min(c.bulk, c.pf0p): E_(hd2); hd2 = []
                if n + 1 == c.pf0p: E_(pf0)
                if n + 1 == c.bulk: E_(early[:nA])
                if early_rp and n + 1 == c.rpw: E_(rpl); E_(self.stamp('rpl') if c.tsp else [])
                if n == lag - 1 and c.bulk is None: E_(early[ne2:nA])
                if c.tsp: E_(self.stamp(f'i{n}'))
                continue
            cc = cols[n - lag]
            if n == lag: E_(self.stamp('xiss'))
            if n in (lag + 1, lag + 2): E_(rest[:len(rest) // 2] if n == lag + 1 else rest[len(rest) // 2:])
            E_(xread(cc))
            if c.tsp and n > lag: E_(self.stamp(f'r{cc}'))
            if n == lag: E_(self.stamp('x8'))
            if n >= 9 and not hasattr(self, 't0done') and n - lag >= 3:
                issue = [W('xr1', 'xr8')] + [x for g_ in self.dma_item(0) for x in g_] + (rpl if c.rpw == 'T0' else []) + (rpst if early_rp and c.rpo == 0 else []) + (pf1 if c.pf1 == 0 else []); self.t0done = True
                if c.rpo == 2: issue = rpst + issue
            elif n >= 9 and hasattr(self, 't0done') and not hasattr(self, 't1done') and n - lag >= 5 and not c.t1p:
                issue = [W('xr3')] + [x for g_ in self.dma_item(1) for x in g_] + (rpl if c.rpw == 'T1' else []) + (pf1 if c.pf1 == 1 else []) + (rpst if c.rpo == 1 else []); self.t1done = True
            if n + 1 == c.pf0p: issue = issue + pf0
            if c.rpo >= 3 and n == c.rpo + 3: issue = issue + rpst
            if c.tagp and n == c.tagp:
                tld, tchk = self.poll('tag', DBG, vPa, 's56', vPo, tag=True)
                issue = issue + [tld]
            if early_rp and n + 1 == c.rpw: issue = issue + rpl
            if issue: mix(issue, pend)
            else: E_(pend)
            if c.tsp: E_(self.stamp(f'd{cc}'))
            pend = xdots(cc)
        E_(self.stamp('x7'))
        if c.tagp:
            assert c.rpo >= 3
            E_(tchk); E_(f'v_readfirstlane_b32 s{sN}, v{vPo}\nv_readfirstlane_b32 s{sN+1}, v{vPo+1}\nv_accvgpr_write_b32 a{aN}, v{vPo}\nv_accvgpr_write_b32 a{aN+1}, v{vPo+1}')
            x = self.flag(63); x.tok = 'rpflag'
            E_(pend[:4]); pend = pend[4:]; E_([W('rpst'), x])
        E_(pend)
        assert hasattr(self, 't1done') or c.t1p
        if not c.msum: E_('v_add_f32 v52, v52, v53\nv_add_f32 v54, v54, v55')
        E_('v_add_f32 v56, v56, v57\nv_add_f32 v58, v58, v59')
        if not c.msum: E_('v_add_f32 v52, v52, v54\nv_mov_b32 v53, v52')
        E_('v_add_f32 v56, v56, v58\nv_mov_b32 v57, v56')
        if not c.msum: E_('v_permlane32_swap_b32 v52, v53\nv_add_f32 v52, v52, v53')
        inv = 0x3ae38e39
        E_(f'v_mul_f32 v52, {inv}, v52\nv_permlane32_swap_b32 v56, v57\nv_cvt_pk_bf16_f32 v53, v52, v52\nv_and_b32 v53, 0xffff0000, v53\nv_xor_b32 v48, 0x80000000, v53')
        E_('v_mov_b32 v49, v48\nv_mov_b32 v50, v48\nv_mov_b32 v51, v48')
        rs = L(f'v_add_f32 v56, v56, v57\nv_mul_f32 v56, {inv}, v56\nv_fma_f32 v56, -v52, v52, v56\nv_max_f32 v56, 0, v56')
        rs += L(f'v_cvt_pk_bf16_f32 v56, v56, v56\nv_and_b32 v56, 0xffff0000, v56\nv_add_f32 v56, 0x3727c5ac, v56\nv_cvt_pk_bf16_f32 v56, v56, v56\nv_and_b32 v56, 0xffff0000, v56\nv_sqrt_f32 v56, v56')
        rs += L(f'v_cvt_pk_bf16_f32 v56, v56, v56\nv_lshrrev_b32 v{vSD}, 16, v56\nv_and_b32 v56, 0xffff0000, v56\nv_rcp_f32 v{vRS}, v56')
        rs += L(f'v_add_u32 v{vCur}, {self.slot[0]}, v{vPA}\nv_xor_b32 v{vCur2}, 64, v{vCur}\nv_mul_f32 v{vC}, {LOG2E}, v{vRS}')
        E_(self.conv_mf(0)); E_(rs[:6])
        for s in range(c.npre):
            E_(self.conv_mf(s + 1))
            if s < 2: E_(rs[6 + 6 * s: 12 + 6 * s])
            E_(self.conv_cvt(s))
        if c.rpw == 'pre': E_(rpl)

    def step_desc(self, i, idx):
        k = self.kind[i]
        if k in ('P0a', 'P0b'): return idx & 1, idx >> 1
        if k[0] == 'P' or k == 'B8': return idx // 18, idx % 18
        if k[0] == 'U': return idx // 9, idx % 9
        return 0, idx

    def retile(self, gs):
        i, idx = divmod(gs, 36)
        return 20 + idx // 18, 2 * (i - 20) + (idx // 9 & 1), idx % 9

    def reads(self, gs):
        i, idx = divmod(gs, 36)
        if self.c.rt2 and i >= 20:
            ti, mt, s = self.retile(gs)
            b = RING + 4 * (gs % (self.c.D + 2)); r = []
            if gs == 720: r.append(I(f'v_add_u32 v{vCur}, {self.slot[20]}, v{vPU}'))
            elif s == 0: r.append(I(f'v_xor_b32 v{vCur}, {64*(mt ^ self.retile(gs-1)[1])}, v{vCur}'))
            d = self.slot[ti] - self.slot[20]
            assert 0 <= d <= 36864
            return r + [I(f'ds_read_b64_tr_b16 a[{b+2*rd}:{b+2*rd+1}], v{vCur} offset:{d+rd*18432+s*1024}', tok=f'f{gs}') for rd in range(2)]
        k = self.kind[i]; mt, s = self.step_desc(i, idx)
        b = RING + 4 * (gs % (self.c.D + 2))
        r = []; reg = vCur
        if idx == 0 and i > 0:
            src = vPA if k[0] == 'P' else (vPU if k[0] == 'U' else vS)
            r.append(I(f'v_add_u32 v{vCur}, {self.slot[i]}, v{src}'))
            if k == 'P0b': r.append(I(f'v_xor_b32 v{vCur2}, 64, v{vCur}'))
        if k in ('P0a', 'P0b'):
            if mt: reg = vCur2
        elif s == 0 and mt: r.append(I(f'v_xor_b32 v{vCur}, {64*(mt ^ (mt-1))}, v{vCur}'))
        for rd in range(2):
            if k[0] == 'P': o = (s & 1) * 18432 + (s >> 1) * 1024 + rd * 512
            elif k == 'B8': o = (2 * (s & 1) + rd) * 9216 + (s >> 1) * 1024
            elif k[0] == 'U': o = rd * 18432 + s * 1024
            else: o = s * 1024 + rd * 256
            r.append(I(f'ds_read_b64_tr_b16 a[{b+2*rd}:{b+2*rd+1}], v{reg} offset:{o}', tok=f'f{gs}'))
        return r

    def main_steps(self):
        c = self.c; D = c.D
        steps = []
        NS = 22 * 36
        LA = c.npre
        for gs in range(NS):
            i, idx = divmod(gs, 36)
            k = self.kind[i]; mt, s = self.step_desc(i, idx)
            b = RING + 4 * (gs % (D + 2))
            tk = []
            if i < 13:
                xs = s + (18 if k[-1] == 'b' and k[0] == 'P' else 0)
                B = f'v[{vX+4*xs}:{vX+4*xs+3}]' if i < c.xa else f'a[{4*xs}:{4*xs+3}]'
                first = xs == 0; acc = self.acc[(i, mt)]
            elif i == 13:
                B = f'v[{vH+4*s}:{vH+4*s+3}]'; first = s == 0; acc = self.acc[(i, mt)]
            else:
                ti = i
                if c.rt2 and i >= 20: ti, mt, s = self.retile(gs)
                pe, hf, st = self.g2[ti]
                B = f'v[{vH+4*(9*hf+s)}:{vH+4*(9*hf+s)+3}]' if pe == 0 else f'a[{36*st+4*s}:{36*st+4*s+3}]'
                first = (i == 14 and s == 0); acc = GA + 16 * mt
                if pe and mt == 0: tk.append(f'ph{ti}_{s}')
            mf = I(f'v_mfma_f32_32x32x16_bf16 v[{acc}:{acc+15}], a[{b}:{b+3}], {B}, ' + ('0' if first else f'v[{acc}:{acc+15}]'))
            if gs % c.we == 0: tk += [f'f{x}' for x in range(gs, min(gs + c.we, NS))]
            pre = [W(*tk)] if tk else []
            post = []; end = []
            ns = gs + D
            if ns < NS: post += self.reads(ns)
            else:
                kk = ns - NS
                for x in range(c.Ds * kk // D, c.Ds * (kk + 1) // D): post += self.s_reads(x)
            if c.rt2 and i == 20:
                assert not self.bar_need.get(20)
                if ns % 36 == 17: post += self.xs(f'b{i}', [W('T21')] + L('s_barrier'))
            elif ns % 36 == 35:
                nd = list(self.bar_need.get(i, []))
                if i == 21 and c.rt2: nd.append('f773')
                if i < 21: nd.append(f'T{i+1}')
                if i == 20: nd.append(f'f{ns}')
                post += self.xs(f'b{i}', [W(*nd)] + L('s_barrier'))
            if i < 2:
                xs = 18 * i + s
                if mt == 0 and xs + LA < 36: post += self.conv_cvt(xs + LA)
                if mt == 1 and xs + LA + 1 < 36: end = self.conv_mf(xs + LA + 1)
            steps.append(Step(mf, pre, post, c.caps.get(i, c.cap), end))
        return steps

    def epi_G(self, tau, acc):
        h = vH + 8 * tau
        r = [I(f'v_cvt_pk_bf16_f32 v{h+k}, v{acc+2*k}, v{acc+2*k+1}') for k in range(8)]
        r += [I(f'v_pk_max_i16 v{h+k}, v{h+k}, 0') for k in range(8)]
        st = []
        hl = self.c.hlay
        if tau and (hl or tau % 2 == 0): st += L(f's_add_u32 s{sHown}, s{sHown}, {1 << 21 if hl else 4096}')
        for k in range(2):
            st.append(I(f'buffer_store_dwordx4 v[{h+4*k}:{h+4*k+3}], v{vL16}, {srd(WS)}, s{sHown} offen offset:{(0 if hl else (tau&1)*2048)+k*1024} sc1', tok=f'h{tau}'))
        return r, st

    PK = {'Ta': 136, 'Tb': 144, 'Tc': 152, 'Td': 160}

    def epi_Q(self, kind, acc):
        pk = self.PK[kind]
        n = 6 if kind == 'Tb' else 8
        r = [I(f'v_cvt_pk_bf16_f32 v{pk+k}, v{acc+2*k}, v{acc+2*k+1}') for k in range(n)]
        if kind == 'Tb': r += L(f'v_mov_b32 v{pk+6}, 0\nv_mov_b32 v{pk+7}, 0')
        return r

    def pmfma(self, which, P):
        m = self.PK['Ta' if which == 'k' else 'Td']
        B = [m, m + 4, self.PK['Tb'] + (0 if which == 'k' else 4)]
        r = []
        for s in range(3):
            r.append(I(f'v_mfma_f32_32x32x16_bf16 v[{P}:{P+15}], a[{aPHI+4*s}:{aPHI+4*s+3}], v[{B[s]}:{B[s]+3}], ' + ('0' if s == 0 else f'v[{P}:{P+15}]')))
        for s in range(3):
            r.append(I(f'v_mfma_f32_16x16x32_bf16 v[{P+16}:{P+19}], a[{aPHI+12+4*s}:{aPHI+12+4*s+3}], v[{B[s]}:{B[s]+3}], ' + ('0' if s == 0 else f'v[{P+16}:{P+19}]')))
        return r

    def softmax(self, P, EP, PHIo, T, norm_first, keepS=None):
        p = [P + k for k in range(18)]
        mx, mn, s1, s2 = T, T + 1, T + 2, T + 3
        r = []
        a = [f'v_max3_f32 v{mx}, v{p[0]}, v{p[1]}, v{p[2]}'] + [f'v_max3_f32 v{mx}, v{mx}, v{p[k]}, v{p[k+1]}' for k in range(3, 17, 2)] + [f'v_max_f32 v{mx}, v{mx}, v{p[17]}']
        b = [x.replace('max', 'min').replace(f'v{mx}', f'v{mn}') for x in a]
        for x, y in zip(a, b): r += L(x + '\n' + y)
        r[0].gap = 3
        r += L(f'v_mul_f32_e64 v{mx}, -v{vC}, v{mx}\nv_mul_f32 v{mn}, v{vC}, v{mn}')
        for k in range(18):
            r += L(f'v_fma_f32 v{EP+k}, v{p[k]}, v{vC}, v{mx}\nv_fma_f32 v{p[k]}, v{p[k]}, -v{vC}, v{mn}')
            r += L(f'v_exp_f32 v{EP+k}, v{EP+k}\nv_exp_f32 v{p[k]}, v{p[k]}')
            if k == 2:
                r += L(f'v_add_f32 v{s1}, v{EP}, v{EP+1}\nv_add_f32 v{s2}, v{p[0]}, v{p[1]}')
            elif k > 2:
                r += L(f'v_add_f32 v{s1}, v{s1}, v{EP+k-1}\nv_add_f32 v{s2}, v{s2}, v{p[k-1]}')
        r += L(f'v_add_f32 v{s1}, v{s1}, v{EP+17}\nv_add_f32 v{s2}, v{s2}, v{p[17]}')
        if norm_first:
            r += L(f'v_rcp_f32 v{s1}, v{s1}\nv_rcp_f32 v{s2}, v{s2}\nv_mul_f32 v{s1}, v{vRS}, v{s1}\nv_mul_f32 v{s2}, v{vRS}, v{s2}')
            for k in range(0, 18, 2):
                r += L(f'v_mul_f32 v{EP+k}, v{s1}, v{EP+k}\nv_mul_f32 v{EP+k+1}, v{s1}, v{EP+k+1}\nv_cvt_pk_bf16_f32 v{PHIo+k//2}, v{EP+k}, v{EP+k+1}')
        else:
            r += L(f'v_rcp_f32 v{s2}, v{s2}\nv_mul_f32 v{keepS}, 0x358637bd, v{s1}')
            for k in range(0, 18, 2):
                r += L(f'v_cvt_pk_bf16_f32 v{PHIo+k//2}, v{EP+k}, v{EP+k+1}')
            r += L(f'v_mul_f32 v{s2}, v{s1}, v{s2}')
        for k in range(0, 18, 2):
            r += L(f'v_mul_f32 v{p[k]}, v{s2}, v{p[k]}\nv_mul_f32 v{p[k+1]}, v{s2}, v{p[k+1]}\nv_cvt_pk_bf16_f32 v{PHIo+9+k//2}, v{p[k]}, v{p[k+1]}')
        return r

    @staticmethod
    def image_addr(rho, h_, cc, o1, o2, t1, t2, m):
        return (f'v_lshlrev_b32 v{t1}, 6, v{rho}\nv_lshl_add_u32 v{t1}, v{cc}, 4, v{t1}\nv_lshl_add_u32 v{t1}, v{h_}, 3, v{t1}\nv_cmp_gt_u32 s[{m}:{m+1}], 4, v{cc}\nv_add_u32 v{t1}, {E}, v{t1}\n'
                f'v_lshlrev_b32 v{t2}, 5, v{rho}\nv_lshl_add_u32 v{t2}, v{h_}, 4, v{t2}\nv_add_u32 v{t2}, {E2}, v{t2}\n'
                f'v_cndmask_b32 v{o1}, v{t2}, v{t1}, s[{m}:{m+1}]\nv_add_u32 v{t2}, {2688+8}, v{t2}\nv_cndmask_b32 v{o2}, v{t2}, v{t1}, s[{m}:{m+1}]')

    @staticmethod
    def ex_addr(d, t1):
        return (F_TB(t1) + f'\nv_mul_u32_u24 v{d}, 2688, v{t1}\n' + F_HH(t1) + f'\nv_lshl_add_u32 v{d}, v{t1}, 8, v{d}\n' + F_R4(t1) +
                f'\nv_lshl_add_u32 v{d}, v{t1}, 5, v{d}\n' + F_C4(t1) + f'\nv_lshl_add_u32 v{d}, v{t1}, 3, v{d}\nv_add_u32 v{d}, {E2}, v{d}')

    def build_streams(self):
        c = self.c
        P0 = lambda p: 36 * p
        bar = lambda p: 36 * p + 35 - c.D
        self.bar_need = {}
        need = lambda p, t: self.bar_need.setdefault(p, []).append(t)
        S = {}
        pos = {k: self.kind.index(k) for k in RPI}
        m = []
        A = lambda st, x: m.extend((st, [y]) for y in (L(x) if isinstance(x, str) else x))
        G = lambda st, x: m.append((st, glue(L(x) if isinstance(x, str) else x)))
        DL = lambda st: m.append(('deadline', st))
        pd = c.pdist
        items = sorted([i for i in self.loadp if self.loadp[i] >= 0], key=lambda i: (self.loadp[i], 99 if isinstance(i, str) else i))
        first_rp = min(pos.values())
        pg = 99
        for i in items:
            p = self.loadp[i]
            same = [x for x in items if self.loadp[x] == p]
            idx = same.index(i)
            d0 = c.dly if (p - 1) in c.pf.values() else 0
            dend = min(c.dend, c.pfs) if p in c.pf.values() else c.dend
            span = (dend - d0) // len(same)
            if i == first_rp:
                st = P0(p) - pd
                if not c.tagp: m.append(('after', ('misc', 'rpflag')))
                A(st, f'v_lshrrev_b32 v{vPa}, 1, v{vL16}\ns_lshl_b32 s{sD}, s{sJ}, 9\ns_add_u32 s{sD+4}, s{sD}, {FL_RP}')
                ld, chk = self.poll('rp', WS, vPa, f's{sD+4}', vPo)
                self.defer = (st, ld, P0(p) - 1, chk)
            if i == 'woA': m.append(('after', ('peer', 8)))
            if getattr(self, 'defer', None):
                st, ld, st2, chk = self.defer; self.defer = None
                nset = 3 if c.tagp else 4
                blk = m[-nset:] + [(st, [ld])]; del m[-nset:]
                k = len(m)
                while k > 0 and (isinstance(m[k-1][0], str) or m[k-1][0] > st): k -= 1
                m[k:k] = blk
                G(st2, chk)
            grps = self.dma_item(i)
            nd = sum(1 for gg in grps if gg[0].kind == 'dma')
            k = 0
            for gg in grps:
                st = P0(p) + d0 + idx * span + (k * span) // nd
                if gg[0].kind == 'dma': k += 1
                elif k == 0: st = max(st - 6, P0(p) - 4 if idx == 0 else 0)
                else: st = max(st - 1, P0(p))
                m.append((st, gg))
            if idx == len(same) - 1:
                for nm, pp in c.pf.items():
                    if pp != p: continue
                    st = P0(p) + c.pfs
                    if nm[0] == 'P': A(st, f'buffer_load_dword a{182+list(c.pf).index(nm)%2}, v{vPF}, {srd(W1)}, s{sPF} offen offset:{128*int(nm[1])}')
                    elif nm == 'B8':
                        A(st - 8, f'v_lshrrev_b32 v{vCur2}, 5, v{vL16}\nv_mul_u32_u24 v{vCur2}, 1152, v{vCur2}\nv_and_b32 v{vPF}, {OOB}, v{vPF}\nv_or_b32 v{vPF}, v{vPF}, v{vCur2}\nv_and_b32 v{vCur2}, 16, v{vL16}\nv_lshl_add_u32 v{vPF}, v{vCur2}, 3, v{vPF}')
                        A(st - 8, f's_lshr_b32 s{sPF}, s2, 5\ns_lshl2_add_u32 s{sPF}, s{sPF}, s{sW}\ns_lshl_b32 s{sD}, s{sQ}, 7\ns_add_u32 s{sPF}, s{sPF}, s{sD}\ns_mul_i32 s{sPF}, s{sPF}, {9*1152}')
                        A(st - 8, f's_mul_i32 s{sD}, s{sJJ}, {288*1152}\ns_add_u32 s{sD}, s{sD}, s{sPF}\ns_lshl_b32 s{sD+1}, s{sJJ}, 8\ns_add_u32 s{sPF}, s{sPF}, s{sD+1}')
                        A(st, f'buffer_load_dword a{182+list(c.pf).index(nm)%2}, v{vPF}, {srd(W2)}, s{sD} offen offset:896')
                    else:
                        A(st - 4, f's_add_u32 s{sD}, s{sJJ}, {int(nm[1])}\ns_and_b32 s{sD}, s{sD}, 3\ns_mul_i32 s{sD}, s{sD}, {288*1152}\ns_add_u32 s{sD}, s{sD}, s{sPF}')
                        A(st, f'buffer_load_dword a{182+list(c.pf).index(nm)%2}, v{vPF}, {srd(W2)}, s{sD} offen')
            DL((bar(i - 1) - (18 if c.rt2 and i == 21 else 0)) if isinstance(i, int) else bar(21))
        S['dma'] = TimedStream('dma', m)

        def dma_insert(st, groups):
            it = S['dma'].items
            k = 0
            while k < len(it) and (isinstance(it[k][0], str) or it[k][0] <= st): k += 1
            assert it[k-1][0] == 'deadline'
            it[k:k] = [(st, gg) for gg in groups]
        one = lambda x: [[y] for y in (L(x) if isinstance(x, str) else x)]

        m = []
        flagA = (8) // 2
        flg = []
        for n, (s0, s1, acc, key) in enumerate(self.chain):
            k = self.kind[key[0]]
            nxt = [x[0] for x in self.chain[n + 1:] if x[2] == acc]
            st = s1 + 3
            if key in self.tau:
                tau = self.tau[key]
                r, sto = self.epi_G(tau, acc)
                A(st, r)
                dl = nxt[0] - 1 if nxt else 10**9
                dl = min(dl, P0(13) + 2 * tau - 2)
                if key[0] == 1: dl = min(dl, P0(2) + 30)
                DL(max(dl, st)); A(st, sto)
                if tau in (flagA, 8):
                    flg.append(('after', ('epi', f'h{tau}')))
                    flg.append((st + c.hfd, self.xs(f'hf{tau}', glue([W(*[f'h{x}' for x in range(tau + 1)]), self.flag(sFH, 0 if tau == flagA else 32)]))))
            elif k == 'B8':
                mt = key[1]
                if mt == 0:
                    A(st - 12, F_HH(vCur2) + f'\nv_lshlrev_b32 v{vCur2}, {11 if c.ylay else 13}, v{vCur2}\nv_and_b32 v{vW1}, 0x1f0, v{vL16}\nv_add_u32 v{vCur2}, v{vCur2}, v{vW1}')
                    if c.ylay: A(st - 12, f's_lshl4_add_u32 s{sE}, s{sQ}, s{sR}\ns_lshl2_add_u32 s{sE}, s{sE}, s{sW}\ns_lshl3_add_u32 s{sE}, s{sE}, s{sJJ}\ns_lshl_b32 s{sE}, s{sE}, 9\ns_add_u32 s{sE}, s{sE}, {WS_Y8}')
                    else: A(st - 12, f's_lshl2_add_u32 s{sE}, s{sR}, s{sW}\ns_lshl_b32 s{sE}, s{sE}, 7\ns_add_u32 s{sE}, s{sE}, s{sJ}\ns_lshl_b32 s{sE}, s{sE}, 9\ns_add_u32 s{sE}, s{sE}, {WS_Y8}')
                A(st, [I(f'v_cvt_pk_bf16_f32 v{acc+k_}, v{acc+2*k_}, v{acc+2*k_+1}') for k_ in range(8)])
                A(st, [I(f'v_permlane32_swap_b32 v{acc+4*ip+k_}, v{acc+4*ip+2+k_}') for ip in range(2) for k_ in range(2)])
                for ip in range(2):
                    if mt or ip: A(st, f's_add_u32 s{sE}, s{sE}, {1 << 20 if c.ylay else 16384}')
                    A(st, [I(f'buffer_store_dwordx4 v[{acc+4*ip}:{acc+4*ip+3}], v{vCur2}, {srd(WS)}, s{sE} offen sc1', tok='y8st')])
            else:
                A(st, self.epi_Q(k, acc)); DL(nxt[0] - 1)
        S['flg'] = TimedStream('flg', flg)
        S['epi'] = TimedStream('epi', m)

        if c.ys in (1, 2):
            m = []
            nc = 8 if c.ys == 1 else 4
            sts = list(c.ycl) if len(c.ycl) == nc else [c.ycl[0] + c.ycl[1] * k for k in range(nc)]
            st = sts[0]
            A(st - 16, f's_lshl2_add_u32 s84, s{sR}, s{sJJ}\ns_lshl2_add_u32 s84, s84, s{sW}\ns_lshl2_add_u32 s84, s84, s{sQ}\ns_lshl_b32 s84, s84, 13\ns_add_u32 s84, s84, {WS_Y}')
            A(st - 16, [I(f'v_accvgpr_write_b32 a{172+k}, -1') for k in range(4)])
            va = vL16
            if c.ys == 2:
                va = vPo
                assert P0(3) < st - 16 and sts[-1] < P0(c.wop - 1)
                A(st - 16, f's_and_b32 s83, s{sQ}, 1\ns_lshl_b32 s83, s83, 12\ns_add_u32 s84, s84, s83\ns_xor_b32 s83, s{sQ}, s{sW}\ns_lshl_b32 s83, s83, 30\ns_andn2_b32 s83, {OOB}, s83\nv_or_b32 v{va}, s83, v{vL16}')
            for k in range(nc):
                st = sts[k]
                if k == 4: A(st - 2, 's_add_u32 s84, s84, 4096')
                A(st, [I(f'buffer_store_dwordx4 a[172:175], v{va}, {srd(WS)}, s84 offen offset:{1024*(k%4)} sc1', tok='yclr')])
            DL(P0(13) if c.ys == 1 else P0(c.wop - 1))
            S['yclr'] = TimedStream('yclr', m)

        m = []
        for s in range(36):
            st = max(2 * (s - c.npre) + 3, P0(1)) if s < 18 else P0(2)
            A(st, [I(f'v_accvgpr_write_b32 a{4*s+k}, v{vX+4*s+k}') for k in range(4)])
        DL(P0(c.xa) - 2)
        S['accw'] = TimedStream('accw', m)

        m = []
        T = 96
        tb0 = P0(2) + 32
        if not c.tagp:
            ld, chk = self.poll('tag', DBG, vPa, 's56', vPo, tag=True)
            A(0, [ld])
        A(0, [I(f'buffer_load_dword a{aWP+k}, v68, {srd(PHI)}, 0 offen offset:{4*k}', tok='wphi') for k in range(2)])
        A(0, [I(f'buffer_load_dwordx4 a[{aWO}:{aWO+3}], v71, {srd(WO)}, 0 offen', tok='wold')])
        A(0, [I(f'ds_write_b32 v30, v{vRS}', tok='rsw')])
        ev = []
        if not isinstance(c.rpw, int): ev.append((c.rps, lambda: A(c.rps, self.rpst)))
        tc_ = min(c.rpf - 8, 40)
        if not c.tagp: ev.append((tc_, lambda: (G(tc_, chk), A(tc_, f'v_readfirstlane_b32 s{sN}, v{vPo}\nv_readfirstlane_b32 s{sN+1}, v{vPo+1}\nv_accvgpr_write_b32 a{aN}, v{vPo}\nv_accvgpr_write_b32 a{aN+1}, v{vPo+1}'))))
        x = self.flag(63); x.tok = 'rpflag'
        if not c.tagp: ev.append((c.rpf, lambda: G(c.rpf, [W('rpst'), x])))
        pw = 1

        def wimg():
            st = c.wim
            A(st, [I(f'ds_write_b64 v{69+k}, a[{aWP}:{aWP+1}]', tok='wimg') for k in range(2)])
            A(st, [I(f'buffer_store_dwordx4 a[{aWO}:{aWO+3}], v72, {srd(WS)}, s{sMi} offen sc1', tok='wost')])
            A(st, f'v_mov_b32 v{vPU}, v73')
            need(pw, 'wimg'); need(pw, 'rsw'); DL(bar(pw))
        ev.append((c.wim, wimg))
        assert not isinstance(c.rpw, str) or c.rps < c.wim
        for _, f_ in sorted(ev, key=lambda e: e[0]): f_()
        st = tb0
        A(st, self.ex_addr(T, T + 1) + f'\nv_add_u32 v{T+1}, {E}, v{vS}')
        for s in range(3):
            for k in range(2):
                A(st, [I(f'ds_read_b64_tr_b16 a[{aPHI+4*s+2*k}:{aPHI+4*s+2*k+1}], v{T+1} offset:{1024*s+256*k}', tok='wfr')])
                A(st, [I(f'ds_read_b64_tr_b16 a[{aPHI+12+4*s+2*k}:{aPHI+12+4*s+2*k+1}], v{T} offset:{512*s+128*k}', tok='wfr')])
        need(3, 'wfr'); need(3, 'wost'); DL(bar(3))
        st = bar(3) + 1
        A(st, [self.flag(sMi + 1, v=vPU)])
        t0, t1 = T + 4, T + 5
        A(st, f'v_lshlrev_b32 v{t0}, 4, v0\nv_add_u32 v{t0}, {E}, v{t0}\nv_mov_b32 v{T}, 0\nv_mov_b32 v{T+1}, 0\nv_mov_b32 v{T+2}, 0\nv_mov_b32 v{T+3}, 0')
        A(st, [I(f'ds_write_b128 v{t0}, v[{T}:{T+3}] offset:{4096*k}', tok='zf1') for k in range(3)])
        A(st, F_G(t0) + f'\nv_mul_u32_u24 v{vK}, 1152, v{t0}\nv_lshlrev_b32 v{t0}, 6, v{t0}\nv_and_b32 v{t1}, 0xf0, v{vL16}\nv_xor_b32 v{t0}, v{t0}, v{t1}\nv_add_u32 v{vK}, v{vK}, v{t0}')
        for k in range(1, 9): A(st, f'v_add_u32 v{vK+k}, {k*16*1152 - (k%4)*1024}, v{vK}')
        A(st, f'v_and_b32 v{t0}, 0x3f, v{vPA}\n' + F_R4(t1) + f'\nv_mul_u32_u24 v{t1}, 320, v{t1}\nv_add_u32 v{t0}, v{t0}, v{t1}\n' + F_HH(t1) +
          f'\nv_mul_u32_u24 v{t1}, 9216, v{t1}\nv_add_u32 v{t0}, v{t0}, v{t1}\ns_and_b32 s{sMi}, s{sQ}, 1\ns_lshl_b32 s{sMi}, s{sMi}, 7\ns_xor_b32 s{sMi}, s{sMi}, 128\nv_xor_b32 v{vPU}, s{sMi}, v{t0}')
        t4 = min(s1 for s0, s1, acc, key in self.chain if self.tau.get(key) == 4)
        DL(min(bar(5), t4))
        t0 = 135
        self.vES = 253
        A(max(st, P0(c.xa)), f'v_add_u32 v{self.vES}, {E}, v{vS}')
        need(5, 'zf1'); DL(bar(5))
        lastS = max(pos.values())
        st = max(st, bar(lastS - 1) + 2)
        A(st, f'v_and_b32 v{vS}, 0x1ff, v{vPA}\n' + F_HH(t0) + f'\nv_lshl_add_u32 v{vS}, v{t0}, 9, v{vS}')
        DL(P0(pos['S'] + 1))
        S['misc'] = TimedStream('misc', m)

        m = []
        a0, a1, a2, a3, a4, a5 = range(vAt, vAt + 6)
        PK_ = self.PK
        Pk, EPk, PHk, Tk = 168, 188, 206, 224
        kready = P0(max(pos['Ta'], pos['Tb']) + 1) + 8
        sKL, sKS, sOM, sOX = 57, 58, 59, 3
        park = lambda k, v: f'v_accvgpr_write_b32 a{aPK+k}, v{v}'
        unpark = lambda k, v: f'v_accvgpr_read_b32 v{v}, a{aPK+k}'
        mA = f's[{sAM}:{sAM+1}]'
        st = P0(2)
        m.append(('after', ('misc', 'wost'))); m.append(('after', ('misc', 'rpflag')))
        A(st, f'v_and_b32 v{a2}, 16, v{vL16}\nv_mov_b32 v{a3}, 0x3f80\nv_lshlrev_b32 v{a3}, v{a2}, v{a3}\nv_bfe_u32 v{a2}, v{vL16}, 5, 3')
        for k in range(4): A(st, f'v_cmp_eq_u32 {mA}, {k}, v{a2}\nv_cndmask_b32 v{a4}, 0, v{a3}, {mA}\nv_accvgpr_write_b32 a{aSEL+k}, v{a4}')
        for gp in range(3):
            u, h_, cc = a0, a1, a2
            A(st, F_N(u) + f'\ns_mul_i32 s{sA}, s{sW}, 48\ns_add_u32 s{sA}, s{sA}, {16*gp}\nv_add_u32 v{u}, s{sA}, v{u}\ns_movk_i32 s{sA}, 90\nv_cmp_le_u32 {mA}, s{sA}, v{u}\n' + F_G(a3))
            A(st, f'v_lshrrev_b32 v{a5}, 1, v{a3}\nv_lshl_add_u32 v{a5}, v{a5}, 8, v{u}\ns_movk_i32 s{sA}, 180\nv_cndmask_b32 v{h_}, 0, 1, {mA}\nv_cmp_gt_u32 s[{sA+2}:{sA+3}], s{sA}, v{a5}')
            A(st, f'v_mul_u32_u24 v{a4}, 90, v{h_}\nv_sub_u32 v{u}, v{u}, v{a4}\nv_mul_u32_u24 v{cc}, 3641, v{u}\nv_lshrrev_b32 v{cc}, 16, v{cc}')
            A(st, f'v_mul_u32_u24 v{a4}, 18, v{cc}\nv_sub_u32 v{u}, v{u}, v{a4}\nv_lshl_add_u32 v{u}, v{u}, 1, v{a3}\nv_lshrrev_b32 v{a4}, 3, v{u}\nv_and_b32 v{u}, 7, v{u}\nv_lshl_add_u32 v{u}, v{a4}, 4, v{u}\nv_lshl_add_u32 v{u}, v{h_}, 3, v{u}')
            A(st, self.image_addr(u, h_, cc, a5, u, a3, a4, sAM))
            A(st, f'v_mov_b32 v{a4}, {DUMMY}\nv_cndmask_b32 v{a5}, v{a4}, v{a5}, s[{sA+2}:{sA+3}]\nv_cndmask_b32 v{u}, v{a4}, v{u}, s[{sA+2}:{sA+3}]\n' + park(2 * gp, a5) + '\n' + park(2 * gp + 1, u))
        A(st, F_G(a2) + f'\nv_mul_u32_u24 v{a2}, 3072, v{a2}\nv_and_b32 v{a3}, 0xf0, v{vL16}\nv_add_u32 v{a2}, v{a2}, v{a3}\ns_mul_i32 s{sKL}, s{sW}, 768\ns_sub_u32 s{sA+2}, {148*16}, s{sKL}')
        A(st, f'v_cmp_gt_u32 {mA}, s{sA+2}, v{a3}\nv_mov_b32 v{a5}, {OOB}\ns_mul_i32 s{sA+2}, s{sJ}, 49152\ns_add_u32 s{sKL}, s{sKL}, s{sA+2}\ns_add_u32 s{sKL}, s{sKL}, {WS_KV}\nv_cndmask_b32 v{a3}, v{a5}, v{a2}, {mA}')
        A(st, park(6, a2) + '\n' + park(7, a3))
        A(st, f's_and_b32 s{sA}, s{sW}, 1\ns_lshr_b32 s{sA+1}, s{sW}, 1')
        A(st, F_G(a4) + f'\nv_mul_u32_u24 v{a2}, 288, v{a4}\nv_cmp_eq_u32 {mA}, 0, v{a4}\nv_mov_b32 v{a3}, 1152\n' + F_N(a4) + f'\nv_cndmask_b32 v{a3}, v{a5}, v{a3}, {mA}')
        G(st, f's_cmp_eq_u32 s{sA}, 1\ns_cselect_b64 {mA}, -1, 0')
        A(st, f'v_cndmask_b32 v{a2}, v{a2}, v{a3}, {mA}\nv_cmp_gt_u32 {mA}, 4, v{a4}\nv_lshl_add_u32 v{a2}, v{a4}, 3, v{a2}')
        A(st, f's_lshl4_add_u32 s{sKS}, s{sJ}, s{sR}\ns_mul_i32 s{sKS}, s{sKS}, 3072\ns_mul_i32 s{sA+2}, s{sA+1}, 1440\nv_cndmask_b32 v{a3}, v{a5}, v{a2}, {mA}\ns_add_u32 s{sKS}, s{sKS}, s{sA+2}\ns_add_u32 s{sKS}, s{sKS}, {WS_KV}')
        A(st, park(8, a2) + '\n' + park(9, a3))
        A(st, f'v_bfe_u32 v{a0}, v{vL16}, 6, 3\n' + F_HH(a1) + f'\nv_lshl_add_u32 v{a0}, v{a0}, 2, v{a1}\nv_mul_u32_u24 v{a0}, 232, v{a0}\n' + F_C4(a1) + f'\nv_lshl_add_u32 v{a1}, v{a1}, 3, v{a0}')
        A(st, f's_mul_i32 s{sA+2}, s{sA}, s{sA+1}\ns_mul_i32 s{sA+2}, s{sA+2}, 40\ns_lshl_b32 s{sA+3}, s{sA}, 5\ns_sub_u32 s{sA+3}, s{sA+3}, s{sA+2}')
        A(st, f's_mul_i32 s{sA+2}, s{sA+1}, 48\ns_add_u32 s{sA+3}, s{sA+3}, s{sA+2}\ns_add_u32 s{sA+3}, s{sA+3}, {144 + self.slotS}\nv_add_u32 v{a0}, s{sA+3}, v{a1}')
        A(st, f's_mul_i32 s{sA+2}, s{sA+1}, 72\ns_add_u32 s{sA+2}, s{sA+2}, {self.slotS}\nv_add_u32 v{a1}, s{sA+2}, v{a1}')
        A(st, park(10, a0) + '\n' + park(11, a1))
        A(st, self.ex_addr(a0, a1) + '\n' + park(12, a0))
        A(st, f's_lshl2_add_u32 s{sA}, s{sR}, s{sW}\ns_lshl4_add_u32 s{sOM}, s{sA}, s{sJ}\ns_lshl_b32 s{sOM}, s{sOM}, 11\ns_add_u32 s{sOM}, s{sOM}, {WS_OM}')
        A(st, f's_lshl_b32 s{sA}, s{sA}, 12\ns_lshr_b32 s{sA+2}, s{sJ}, 3\ns_lshl2_add_u32 s{sA+2}, s{sA+2}, s{sJJ}\ns_lshl_b32 s{sA+2}, s{sA+2}, 9\ns_add_u32 s{sA}, s{sA}, s{sA+2}')
        A(st, f's_and_b32 s{sA+2}, s{sQ}, 1\ns_lshl3_add_u32 s{sA}, s{sA+2}, s{sA}\ns_add_u32 s{sOX}, s{sA}, {WS_OX}\nv_and_b32 v{a1}, 0x1f0, v{vL16}\n' + F_HH(a2) + f'\nv_lshl_add_u32 v{a1}, v{a2}, 2, v{a1}\n' + park(13, a1))
        A(st, F_T(a4) + f'\nv_mul_u32_u24 v{a4}, 232, v{a4}\ns_mul_i32 s{sA}, s{sW}, {32*232}\ns_add_u32 s{sA}, s{sA}, {self.slotS}\nv_add_u32 v{a4}, s{sA}, v{a4}\n' + F_HH(a5))
        A(st, f'v_mul_u32_u24 v{a0}, 72, v{a5}\nv_add_u32 v{a0}, v{a0}, v{a4}\nv_lshl_add_u32 v{a1}, v{a5}, 3, v{a4}\nv_lshl_add_u32 v{a2}, v{a5}, 4, v{a4}\nv_lshl_add_u32 v{a3}, v{a5}, 5, v{a4}')
        A(kready, [W('wfr')])
        for x in self.pmfma('k', Pk): A(kready, [x])
        sm = self.softmax(Pk, EPk, PHk, Tk, True)
        tc = PK_['Tc']; tbb = PK_['Tb']; hm = f's[{sHH}:{sHH+1}]'
        wk = [I(f'ds_write_b64 v{a0}, v[{PHk+2*k}:{PHk+2*k+1}] offset:{8*k}', tok='stg') for k in range(9)]
        wv = [[I(f'ds_write_b64 v{a1}, v[{tc}:{tc+1}] offset:144', tok='stg')], [I(f'ds_write_b64 v{a1}, v[{tc+2}:{tc+3}] offset:160', tok='stg')],
              [I(f'ds_write_b64 v{a1}, v[{tc+6}:{tc+7}] offset:200', tok='stg')],
              L(f'v_cndmask_b32 v{a4}, v{vSD}, v{tbb+2}, {hm}\nv_cndmask_b32 v{a5}, v{tc+5}, v{tbb+3}, {hm}') + [I(f'ds_write_b64 v{a3}, v[{a4}:{a5}] offset:184', tok='stg')],
              L(f'v_cndmask_b32 v{tc+5}, v{vSD}, v{tc+5}, {hm}') + [I(f'ds_write_b64 v{a2}, v[{tc+4}:{tc+5}] offset:176', tok='stg')]]
        st = max(bar(c.ps - 1) + 1, P0(pos['Tc'] + 1) + 8)
        if c.stgi:
            n0 = len(sm) - 54 - 12
            A(kready, sm[:n0])
            for n_, x in enumerate(sm[n0:]):
                A(kready, [x])
                if n_ % 5 == 0 and wv: A(st, wv.pop(0))
                if x.op.startswith('v_cvt') and (min(x.wr)[1] - PHk) % 2: A(st, [wk.pop(0)])
            assert not wk and not wv
        else:
            A(kready, sm); A(st, wk)
            for x in wv: A(st, x)
        need(c.ps, 'stg')
        A(st, unpark(10, a0) + '\n' + unpark(11, a1))
        DL(bar(c.ps))
        KA, KB, KD = 188, 204, 168
        st = bar(c.ps) + 1
        rdA = lambda ks: [I(f'ds_read_b64_tr_b16 v[{KA+4*ks+2*rd}:{KA+4*ks+2*rd+1}], v{a0} offset:{ks*7424+rd*464}', tok=f'kva{ks}') for rd in range(2)]
        rdB = lambda x: [I(f'ds_read_b64_tr_b16 v[{KB+4*(x%6)+2*rd}:{KB+4*(x%6)+2*rd+1}], v{a1} offset:{(x%4)*7424+rd*464+32*(x//4)}', tok=f'kvb{x}') for rd in range(2)]
        for ks in range(4): A(st, rdA(ks) + rdB(ks))
        A(st, unpark(8, a2) + '\n' + unpark(9, a3))
        for x in range(12):
            ft, ks = x // 4, x % 4
            mf = I(f'v_mfma_f32_16x16x32_bf16 v[{KD+4*ft}:{KD+4*ft+3}], v[{KA+4*ks}:{KA+4*ks+3}], v[{KB+4*(x%6)}:{KB+4*(x%6)+3}], ' + ('0' if ks == 0 else f'v[{KD+4*ft}:{KD+4*ft+3}]'))
            G(st, [W(f'kvb{x}', f'kva{ks}'), mf])
            if x + 4 < 12: A(st, rdB(x + 4))
        need(c.ps + 1, 'kvb11')
        DL(bar(c.ps + 1))
        x = []
        for ft in range(3):
            x += L(f'v_cvt_pk_bf16_f32 v{KD+4*ft}, v{KD+4*ft}, v{KD+4*ft+1}\nv_cvt_pk_bf16_f32 v{KD+4*ft+1}, v{KD+4*ft+2}, v{KD+4*ft+3}')
        x[4].gap = 1
        for ft in range(3):
            x.append(I(f'buffer_store_dwordx2 v[{KD+4*ft}:{KD+4*ft+1}], v{a2 if ft < 2 else a3}, {srd(WS)}, s{sKS} offen offset:{128*ft} sc1', tok='kvst'))
        A(st, x)
        Pq, EPq, PHq, Tq, SQ = 168, 136, 232, 154, 252
        st = max(st, P0(pos['Td'] + 1) + 8)
        for x in self.pmfma('q', Pq): A(st, [x])
        sm = self.softmax(Pq, EPq, PHq, Tq, False, keepS=SQ)
        KR, IA, vEX, vOA = 200, 212, 254, 255
        pk = c.pk
        if c.kvx:
            A(st, sm); A(st, f'v_mov_b32 v{PHq+18}, 0\nv_mov_b32 v{PHq+19}, 0')
            DL(P0(14) - 1)
            m_att = m; m = []
            f0, f1, f2, span, rgap = c.kvx
            m.append(('after', ('att', 'kvst')))
            G(f0, self.xs('kvfl', [W('kvst'), self.flag(sFKV)]))
            A(f0, f'v_lshrrev_b32 v{a0}, 1, v{vL16}\ns_and_b32 s{sA}, s{sFKV}, 0xfffffe00')
            ld, chk = self.poll('kvf', WS, a0, f's{sA}', a4)
            A(f1, [ld])
            A(f1, '\n'.join([unpark(k, IA + k) for k in range(6)] + [unpark(6, a2), unpark(7, a3), unpark(12, vEX), unpark(13, vOA)]))
            G(f2, chk); st = f2
        else:
            n1 = 70
            A(st, sm[:n1])
            G(st, self.xs('kvfl', [W('kvst'), self.flag(sFKV)]))
            A(st, f'v_lshrrev_b32 v{a0}, 1, v{vL16}\ns_and_b32 s{sA}, s{sFKV}, 0xfffffe00')
            n2 = n1 + c.kvgap
            A(st, sm[n1:n2])
            ld, chk = self.poll('kvf', WS, a0, f's{sA}', a4)
            A(st, [ld]); A(st, sm[n2:])
            A(st, f'v_mov_b32 v{PHq+18}, 0\nv_mov_b32 v{PHq+19}, 0')
            A(st, '\n'.join([unpark(k, IA + k) for k in range(6)] + [unpark(6, a2), unpark(7, a3), unpark(12, vEX), unpark(13, vOA)]))
            G(st, chk); span = 0; rgap = c.krgap
        for i in range(4):
            A(st + span * 3 * i // 12 - 2, f's_add_u32 s{sA+2}, s{sR}, {i}\ns_and_b32 s{sA+2}, s{sA+2}, 3\ns_mul_i32 s{sA+2}, s{sA+2}, 12288\ns_add_u32 s{sA+2}, s{sA+2}, s{sKL}')
            for gp in range(3):
                b = aKV + 4 * (3 * i + gp)
                A(st + span * (3 * i + gp) // 12, [I(f'buffer_load_dwordx4 a[{b}:{b+3}], v{a2 if gp < 2 else a3}, {srd(WS)}, s{sA+2} offen offset:{256*gp} sc1', tok=f'kr{i}')])
        for i in range(4):
            for gp in range(3):
                b = aKV + 4 * (3 * i + gp); d = KR + 4 * gp
                mf = I(f'v_mfma_f32_16x16x32_bf16 v[{d}:{d+3}], a[{aSEL}:{aSEL+3}], a[{b}:{b+3}], ' + ('0' if i == 0 else f'v[{d}:{d+3}]'))
                if i == 0 and gp == 0: mf.gap = 0
                x = glue([W(f'kr{i}'), mf] if gp == 0 else [mf])
                x[0].gap = rgap if i == 0 and gp == 0 else c.kvs
                if gp == 0: x = self.xs(f'kr{i}', x)
                m.append((st, x))
        x = []
        for gp in range(3):
            d = KR + 4 * gp
            x += L(f'v_cvt_pk_bf16_f32 v{d}, v{d}, v{d+1}\nv_cvt_pk_bf16_f32 v{d+1}, v{d+2}, v{d+3}')
        x[0].gap = 1
        for gp in range(3):
            d = KR + 4 * gp
            x += [I(f'ds_write_b64 v{IA+2*gp+k}, v[{d}:{d+1}]', tok='kimg', gap=min(c.kvs, 1)) for k in range(2)]
        A(st, x)
        need(pk, 'kimg')
        DL(bar(pk))
        if c.kvx:
            S['kvx'] = TimedStream('kvx', m); m = m_att
            m.append(('after', ('kvx', 'kimg')))
        OD = 208
        st = bar(pk) + 1
        ofr = lambda x: aPHI + 4 * (x % 6)
        seq = []
        for sg in range(5):
            seq.append(('m', sg, [I(f'ds_read_b64_tr_b16 a[{ofr(2*sg)+2*k}:{ofr(2*sg)+2*k+1}], v{self.vES} offset:{1024*sg+256*k}', tok=f'of{2*sg}') for k in range(2)]))
            seq.append(('x', sg, [I(f'ds_read_b64_tr_b16 a[{ofr(2*sg+1)+2*k}:{ofr(2*sg+1)+2*k+1}], v{vEX} offset:{512*sg+128*k}', tok=f'of{2*sg+1}') for k in range(2)]))
        for x in range(4): A(st, seq[x][2])
        for x in range(10):
            kind, sg, _ = seq[x]
            fr = ofr(x); Bq = PHq + 4 * sg
            if kind == 'm':
                mf = I(f'v_mfma_f32_32x32x16_bf16 v[{OD}:{OD+15}], a[{fr}:{fr+3}], v[{Bq}:{Bq+3}], ' + ('0' if sg == 0 else f'v[{OD}:{OD+15}]'))
            else:
                mf = I(f'v_mfma_f32_16x16x32_bf16 v[{OD+16}:{OD+19}], a[{fr}:{fr+3}], v[{Bq}:{Bq+3}], ' + ('0' if sg == 0 else f'v[{OD+16}:{OD+19}]'))
            G(st, [W(f'of{x}'), mf])
            if x + 4 < 10: A(st, seq[x + 4][2])
        need(pk + 1, 'of9')
        DL(bar(pk + 1))
        X0 = OD + 16
        x = L(f'v_cndmask_b32 v{a3}, v{X0+2}, v{X0}, {hm}\nv_add_f32 v{a3}, v{a3}, v{SQ}\nv_rcp_f32 v{a3}, v{a3}\nv_cndmask_b32 v{X0}, v{X0}, v{X0+2}, {hm}\nv_cndmask_b32 v{X0+1}, v{X0+1}, v{X0+3}, {hm}')
        x[0].gap = 2
        A(st, x)
        for k in range(9):
            A(st, f'v_mul_f32 v{OD+2*k}, v{a3}, v{OD+2*k}\nv_mul_f32 v{OD+2*k+1}, v{a3}, v{OD+2*k+1}\nv_cvt_pk_bf16_f32 v{PHq+k}, v{OD+2*k}, v{OD+2*k+1}')
        A(st, [I(f'buffer_store_dwordx4 v[{PHq+4*k}:{PHq+4*k+3}], v{vL16}, {srd(WS)}, s{sOM} offen offset:{1024*k} sc1', tok='ost') for k in range(2)])
        A(st, [I(f'buffer_store_dword v{PHq+8}, v{vOA}, {srd(WS)}, s{sOX} offen sc1', tok='ost')])
        x = glue([W('ost', 'y8st', *(['yclr'] if c.ys in (1, 2) else [])), self.flag(sFO)])
        x[0].gap = 30
        m.append(('after', ('epi', 'y8st')))
        m.append((st, self.xs('ofl', x)))
        S['att'] = TimedStream('att', m)

        m = []
        pv0, pv1 = vPa, vPo
        st = P0(min(c.woA, c.wop)) - pd - 4
        m.append(('after', ('dma', f'T{first_rp}')))
        A(st, f'v_and_b32 v{vPa}, 0xf8, v{vPa}\ns_and_b32 s{sPe}, s{sQ}, 1\ns_lshl1_add_u32 s{sPe}, s{sJJ}, s{sPe}\ns_lshl_b32 s{sPe}, s{sPe}, 8\ns_add_u32 s{sPe}, s{sPe}, {FL_WO}')
        ld, chk = self.poll('wo', WS, vPa, f's{sPe}', vPo)
        A(st, [ld]); chk[0].gap = pd - 4; G(st + pd, chk)
        assert len(m) == 8
        st = P0(c.hl[0]) - pd
        A(st, f'v_and_b32 v{pv0}, 0x18, v{pv0}\ns_and_b32 s{sPe}, s{sFH}, 0xffffff80')
        ld, chk = self.poll('hA', WS, pv0, f's{sPe}', pv1)
        A(st, [ld])
        hw = 2048 if c.hlay else 18432
        A(st, (f's_lshl4_add_u32 s{sHb}, s{sQ}, s{sR}' if c.hlay == 2 else f's_lshl2_add_u32 s{sHb}, s{sR}, s{sQ}') + f'\ns_lshl4_add_u32 s{sHb}, s{sHb}, s{sW}\ns_mul_i32 s{sHb}, s{sHb}, {hw}\ns_add_u32 s{sHb}, s{sHb}, {WS_H}')
        chk[0].gap = pd - 4
        G(P0(c.hl[0]) - 1, chk)
        for n in range(6):
            i = 16 + n; pe, hf, stt = self.g2[i]
            p = c.hl[n]
            assert p < i and (p >= 12 if stt < 2 else p >= 13) and (n < 4 or p > i - 4)
            if n == 3:
                ld, chk = self.poll('hB', WS, pv0, f's{sPe}', pv1, imm=32)
                A(P0(p) - pd, [ld]); chk[0].gap = pd - 4; G(P0(p) - 1, chk)
            same = [x for x in range(6) if c.hl[x] == p]
            span = 34 // len(same); st0 = P0(p) + 2 + same.index(n) * span
            A(st0 - 3, f's_add_u32 s{sPe2}, s{sJJ}, {pe}\ns_and_b32 s{sPe2}, s{sPe2}, 3\ns_mul_i32 s{sPe2}, s{sPe2}, {4*hw}\ns_add_u32 s{sPe2}, s{sPe2}, s{sHb}')
            if hf: A(st0 - 3, f's_add_u32 s{sPe2}, s{sPe2}, {4 << 21 if c.hlay else 9216}')
            for k in range(9):
                st = st0 + k * span // 9
                if c.hlay:
                    if k and (k + hf) % 2 == 0: A(st - 1, f's_add_u32 s{sPe2}, s{sPe2}, {1 << 21}')
                elif k in (4, 8): A(st - 1, f's_add_u32 s{sPe2}, s{sPe2}, 4096')
                A(st, [I(f'buffer_load_dwordx4 a[{36*stt+4*k}:{36*stt+4*k+3}], v{vL16}, {srd(WS)}, s{sPe2} offen offset:{((k+hf)%2 if c.hlay else k%4)*1024} sc1', tok=f'ph{i}_{k}')])
            DL(P0(i) - 1 - (18 if c.rt2 and i == 21 else 0))
        S['peer'] = TimedStream('peer', m)

        m = []
        sp = soP
        st = bar(pk + 1) + 1
        dma_insert(st, one(f's_lshl_b32 s{sp}, s{sJJ}, 1\ns_and_b32 s{sp+1}, s{sQ}, 1\ns_add_u32 s{sp}, s{sp}, s{sp+1}\ns_mul_i32 s{sp+1}, s{sp}, 82944\ns_mul_i32 s{sp+2}, s{sW}, 2304\ns_add_u32 s{sp+1}, s{sp+1}, s{sp+2}\ns_add_u32 s{sp+1}, s{sp+1}, {WS_WO+2*SLOT}')
                   + one(f's_add_u32 m0, s{sp+2}, {E}')
                   + [glue(L('s_mov_b64 exec, 0xffff') + [I(f'buffer_load_dwordx4 v{vL16}, {srd(WS)}, s{sp+1} offen offset:2048 sc1 lds', tok='woE')] + L('s_mov_b64 exec, -1'))]
                   + one([I(f'buffer_load_dwordx4 v{vL16}, {srd(WS)}, s{sp+1} offen offset:{1024*k} sc1 lds', tok='woE') for k in range(2)]))
        need(21, 'TwoA'); need(21, 'TwoB'); need(21, 'woE')
        vOM, vOX, vXM, vXE, vLA, vLB, vLX, vRF = 32, 33, 34, 35, 36, 37, 38, 40
        self.tv = dict(vOM=vOM, vXM=vXM, vXE=vXE, vLA=vLA, vLB=vLB, vLX=vLX)
        u0, u1, u2 = 46, 47, 39
        st = max(P0(16), st + 12)
        m.append(('after', ('dma', 'woE')))
        A(st, f's_and_b32 s{sp+3}, s{sQ}, 2\ns_lshr_b32 s{sp+4}, s{sW}, 1\ns_add_u32 s{sp+5}, s{sp+3}, s{sp+4}\ns_lshl2_add_u32 s{sp+3}, s{sR}, s{sp+5}\ns_and_b32 s{sp+4}, s{sW}, 1\ns_lshl_b32 s{sp+6}, s{sp+4}, 8')
        A(st, f'v_and_b32 v{u0}, 0xf0, v{vL16}\nv_add_u32 v{u0}, s{sp+6}, v{u0}\n' + F_G(u1) + f'\nv_lshl_add_u32 v{vOX}, v{u1}, 9, v{u0}')
        A(st, f'v_lshrrev_b32 v{u0}, 1, v{vL16}\nv_and_b32 v{u0}, 0x78, v{u0}\ns_lshl_b32 s{sp+7}, s{sp+3}, 7\ns_add_u32 s{sp+7}, s{sp+7}, {FL_O}')
        ld, chk = self.poll('of', WS, u0, f's{sp+7}', 56)
        A(P0(c.po) - pd, [ld])
        st = P0(c.po) - pd
        A(st, f's_lshl_b32 s{sOMc}, s{sp+3}, 15\ns_add_u32 s{sOMc}, s{sOMc}, {WS_OM}\ns_lshl_b32 s{sp+8}, s{sp+3}, 12\ns_add_u32 s{sp+8}, s{sp+8}, {WS_OX}')
        if c.ylay: A(st, f's_and_b32 s{sp+6}, s{sQ}, 1\ns_lshl1_add_u32 s{sp+6}, s{sp+3}, s{sp+6}\ns_lshl_b32 s{sp+6}, s{sp+6}, 11\ns_lshl_b32 s{sp+1}, s{sJJ}, 20\ns_add_u32 s{sp+6}, s{sp+6}, s{sp+1}\ns_add_u32 s{sp+6}, s{sp+6}, {WS_Y8}')
        else: A(st, f's_lshl3_add_u32 s{sp+6}, s{sp+3}, s{sp}\ns_lshl_b32 s{sp+6}, s{sp+6}, 13\ns_add_u32 s{sp+6}, s{sp+6}, {WS_Y8}')
        chk[0].gap = pd - 6
        G(P0(c.po) - 1, chk)
        YB, Y8 = 200, 216
        st = P0(c.po)
        for i in range(4):
            if i == 2 or (i and c.ylay): A(st, f's_add_u32 s{sp+6}, s{sp+6}, {1 << 18 if c.ylay else 4096}')
            A(st + 3 * i, [I(f'buffer_load_dwordx4 v[{YB+4*i}:{YB+4*i+3}], v{vOX}, {srd(WS)}, s{sp+6} offen offset:{0 if c.ylay else (i&1)*2048} sc1', tok=f'y8l{i}')])
        span = (P0(21) + c.oend - (st + 12))
        rest = []
        rest += L(F_N(u0) + f'\nv_mul_u32_u24 v{u0}, 1152, v{u0}\nv_lshl_add_u32 v{vXM}, v{u1}, 4, v{u0}\nv_lshl_add_u32 v{vXE}, v{u1}, 3, v{u0}\nv_mov_b32 v{u0}, {OOB}\nv_cndmask_b32 v{vXE}, v{vXE}, v{u0}, {hm}')
        rest += L(f's_lshr_b32 s{sp+1}, s{sQ}, 1\ns_lshl1_add_u32 s{sp+1}, s{sR}, s{sp+1}\ns_lshl2_add_u32 s{sp+1}, s{sp+1}, s{sW}\ns_mul_i32 s{sp+1}, s{sp+1}, {16*1152}\ns_lshl_b32 s{sp+2}, s{sp}, 7\ns_add_u32 s{sXO}, s{sp+1}, s{sp+2}')
        rest += L(f's_lshl4_add_u32 s{sp+2}, s{sp}, s{sp+1}\ns_add_u32 s{sp+2}, s{sp+2}, 1024')
        XR = 48
        xl_ = [I(f'buffer_load_dwordx4 v[{XR+4*k}:{XR+4*k+3}], v{vXM}, {srd(X)}, s{sXO} offen offset:{64*k}', tok='xres') for k in range(2)]
        xl_ += [I(f'buffer_load_dwordx2 v[{XR+8}:{XR+9}], v{vXE}, {srd(X)}, s{sp+2} offen', tok='xres')]
        if not c.xrs: rest += xl_
        rest += L(f's_lshr_b32 s{sp+1}, s{sQ}, 1\ns_lshl2_add_u32 s{sp+1}, s{sp+1}, s{sW}\ns_lshl_b32 s{sp+1}, s{sp+1}, 6\ns_add_u32 s{sp+1}, s{sp+1}, {RSA}\nv_and_b32 v{u0}, 0xf0, v{vL16}\nv_lshrrev_b32 v{u0}, 2, v{u0}\nv_add_u32 v{u0}, s{sp+1}, v{u0}')
        rest += [I(f'ds_read_b32 v{vRF}, v{u0}', tok='rsr')]
        rest += L(f'v_and_b32 v{vLA}, 0x3c0, v{vL16}\nv_lshrrev_b32 v{vLX}, 2, v{vLA}\nv_bfe_u32 v{u0}, v{vL16}, 4, 1\nv_lshl_add_u32 v{vLA}, v{u0}, 3, v{vLA}\nv_lshl_add_u32 v{vLX}, v{u0}, 3, v{vLX}')
        rest += L(f'v_and_b32 v{u0}, 32, v{vL16}\nv_add_u32 v{vLA}, v{vLA}, v{u0}\n' + F_TB(u0) + f'\nv_lshl_add_u32 v{vLA}, v{u0}, 4, v{vLA}')
        rest += L(f'v_add_u32 v{vLA}, {self.slot["woA"]}, v{vLA}\nv_xor_b32 v{vLB}, 16, v{vLA}\nv_add_u32 v{vLX}, {self.slot["woA"]+4096}, v{vLX}')
        rest += L(self.ident(44, u0))
        rest += L(f'v_mov_b32 v{vRF+1}, v{vRF}\nv_mul_f32 v42, 0xbfb8aa3b, v{vRF}\nv_mul_f32 v43, 0xbfb8aa3b, v{vRF}')
        for i in range(4):
            rest.append(glue([W(f'y8l{i}'), I(f'v_mfma_f32_16x16x32_bf16 v[{Y8}:{Y8+3}], a[{aSEL}:{aSEL+3}], v[{YB+4*i}:{YB+4*i+3}], ' + ('0' if i == 0 else f'v[{Y8}:{Y8+3}]'))]))
        if c.ylay:
            assert c.ys in (0, 3, 4, 5)
            rest += L(f's_lshl2_add_u32 s{sp+1}, s{sR}, s{sJJ}\ns_lshl2_add_u32 s{sE}, s{sp+1}, s{sW}\ns_lshl_b32 s{sE}, s{sE}, 11\ns_lshl_b32 s{sp+6}, s{sQ}, 19\ns_add_u32 s{sE}, s{sE}, s{sp+6}\ns_add_u32 s{sE}, s{sE}, {WS_Y}')
            rest += L(f's_lshl2_add_u32 s{sp+1}, s{sp+1}, s{sp+5}\ns_lshl_b32 s{sYc}, s{sp+1}, 11\ns_add_u32 s{sYc}, s{sYc}, {WS_Y}\ns_lshl_b32 s{sp+7}, s{sp+1}, 7\ns_add_u32 s{sp+7}, s{sp+7}, {FL_Y}\nv_add_u32 v63, {1 << 21}, v{vOX}')
            if c.ys >= 4: rest += L(f'v_add_u32 v62, {2 << 21}, v{vOX}\ns_mov_b32 s74, s{sN}\ns_mov_b32 s75, s{sN}')
        else:
            rest += L(f's_lshl2_add_u32 s{sp+1}, s{sR}, s{sJJ}\ns_lshl2_add_u32 s{sE}, s{sp+1}, s{sW}\ns_lshl2_add_u32 s{sE}, s{sE}, s{sQ}\ns_lshl_b32 s{sE}, s{sE}, 13\ns_add_u32 s{sE}, s{sE}, {WS_Y}')
            rest += L(f's_and_b32 s{sp+6}, s{sQ}, 1\ns_lshl_b32 s{sp+6}, s{sp+6}, 12\ns_add_u32 s{sE+1}, s{sE}, s{sp+6}\ns_xor_b32 s{sE}, s{sE+1}, 4096')
            rest += L(f's_lshl2_add_u32 s{sp+1}, s{sp+1}, s{sp+5}\ns_lshl_b32 s{sYc}, s{sp+1}, 15\ns_add_u32 s{sYc}, s{sYc}, s{sp+6}\ns_add_u32 s{sYc}, s{sYc}, {WS_Y}' + ('' if c.ys == 1 else f'\ns_lshl_b32 s{sp+7}, s{sp+1}, 7\ns_add_u32 s{sp+7}, s{sp+7}, {FL_Y}'))
        rest += [glue(L(f's_lshr_b32 s{sp+1}, s{sQ}, 1\ns_lshr_b32 s{sp+6}, s{sW}, 1\ns_cmp_eq_u32 s{sp+1}, s{sp+6}\ns_cselect_b32 s{sp+6}, {OOB}, 0'))]
        ysz = 6144 if c.ys >= 4 else 4096
        rest += L(f'v_or_b32 v58, s{sp+6}, v{vL16}\ns_mul_i32 s{sp+1}, s{sW}, {ysz}\ns_add_u32 s{sp+1}, s{sp+1}, {self.slot["Y"]}\nv_add_u32 v59, s{sp+1}, v{vL16}')
        rest += L(f's_mul_i32 s{sp+1}, s{sp+5}, {ysz}\ns_add_u32 s{sp+1}, s{sp+1}, {self.slot["Y"]}\nv_add_u32 v60, s{sp+1}, v{vOX}')
        if c.ys not in (1, 5): rest += L(f'v_bfe_u32 v61, v{vL16}, 4, 1\nv_lshl_or_b32 v61, v61, 1, 1\nv_xor_b32 v61, s{sQ}, v61\nv_lshlrev_b32 v61, 3, v61')
        if c.ys in (0, 2, 3): rest += L(f's_xor_b32 s{sp+1}, s{sQ}, 2\ns_lshl_b32 s{sp+1}, s{sp+1}, 3\nv_mov_b32 v62, s{sp+1}')
        rest[-1].tok = 'yadr'
        for k, x in enumerate((1, 3, 2)):
            rest += L(f's_xor_b32 s{sp+1}, s{sQ}, {x + ((12 if c.ys == 5 else 8) if c.ylay and k == 2 else 0)}\ns_lshl_b32 s{sp+1}, s{sp+1}, {19 if c.ylay else 13}\ns_add_u32 s{sT0+k}, s{sYc}, s{sp+1}')
        XU = 64
        sw = [I(f'v_permlane16_swap_b32 v{XR+4*mt+k}, v{XR+4*mt+2+k}') for mt in range(2) for k in range(2)]
        sw[0].gap = 0
        for k in range(10): sw += L(f'v_lshlrev_b32 v{XU+2*k}, 16, v{XR+k}\nv_and_b32 v{XU+2*k+1}, 0xffff0000, v{XR+k}')
        self.xun = []
        if not c.xrs: rest += sw
        else: self.xun = sw
        nr = len(rest); k0 = 0
        for j_ in range(18):
            stj = st + 12 + j_ * span // 18
            if j_ < 16:
                if j_ and j_ % 2 == 0: A(stj, f's_add_u32 s{sOMc}, s{sOMc}, 4096')
                A(stj, [I(f'buffer_load_dwordx4 a[{184+4*j_}:{187+4*j_}], v{vOX}, {srd(WS)}, s{sOMc} offen offset:{(j_&1)*2048} sc1', tok=f'o{j_}')])
            else:
                A(stj, [I(f'buffer_load_dwordx4 a[{184+4*j_}:{187+4*j_}], v{vOX}, {srd(WS)}, s{sp+8} offen offset:{(j_-16)*2048} sc1', tok=f'o{j_}')])
            k1 = min(nr, nr * (j_ + 1) // c.rj)
            for x in rest[k0:k1]: m.append((stj, x if isinstance(x, list) else [x]))
            k0 = k1
            if c.xrs and c.xrs <= j_ < c.xrs + 3: A(stj + span // 36, [xl_[j_ - c.xrs]])
        DL(bar(21) - 2)
        S['prep'] = TimedStream('prep', m)

        m = []
        for mu in range(4):
            a = GA + 16 * mu
            st = P0(21) + 9 * mu + 8 + 3
            if c.rt2 and mu < 2: st = P0(20) + 18 + 9 * mu + 8 + 3
            if mu == 0: m.append(('after', ('prep', 'yadr')))
            if mu == 2:
                ev = []
                if c.xe < 0: ev.append((P0(22) + c.xe, glue([W('yE'), self.flag(sFY, 0)])))
                if c.xpe < 0:
                    self.ypoll = self.poll('yfE', WS, 61, f's{sp+7}', 222, reg2=(226 if c.xp2 else None))
                    ev.append((P0(22) + c.xpe, [self.ypoll[0]]))
                m.extend(sorted(ev, key=lambda x: x[0]))
            if c.ys == 5 or (c.ys == 4 and mu >= 2):
                cv = lambda d, k: I(f'v_cvt_pk_bf16_f32 v{d}, v{a+2*k}, v{a+2*k+1}')
                tg = lambda d: I(f'v_mov_b32 v{d}, s{sN}')
                va, tk = (vL16, 'yE') if mu < 2 else (58, 'yL')
                sto = lambda r_, p_: I(f'buffer_store_dwordx4 v[{r_}:{r_+3}], v{va}, {srd(WS)}, s{sE} offen offset:{1024*p_} sc1', tok=tk)
                lw = lambda r_, g_, p_: [I(f'ds_write_b128 v59, v[{r_}:{r_+3}] offset:{2048*g_+1024*p_}', tok='yown')] if mu >= 2 else []
                nx = L(f's_add_u32 s{sE}, s{sE}, {1 << 21}')
                if mu % 2 == 0:
                    A(st, (nx if mu else []) + [cv(a, 0), cv(a + 1, 1), cv(a + 2, 2), tg(a + 3), sto(a, 0), cv(a + 4, 4), cv(a + 5, 5), cv(a + 10, 3), cv(a + 6, 6), tg(a + 7), sto(a + 4, 1)])
                    A(st, [cv(a + 14, 7), tg(a + 11), tg(a + 15)]); A(max(st, bar(21) + 1) if c.rt2 else st, lw(a, 0, 0) + lw(a + 4, 0, 1))
                else:
                    e = a - 16
                    A(st, nx + [cv(e + 8, 0), cv(e + 9, 1), cv(e + 12, 4), cv(e + 13, 5), sto(e + 8, 0), sto(e + 12, 1), cv(a, 2), cv(a + 1, 3), tg(a + 3), cv(a + 4, 6), cv(a + 5, 7), tg(a + 7)])
                    A(st, L(f's_add_u32 s{sE}, s{sE}, {1 << 21}') + [sto(a, 0), sto(a + 4, 1)] + lw(e + 8, 1, 0) + lw(e + 12, 1, 1) + lw(a, 2, 0) + lw(a + 4, 2, 1))
                continue
            A(st, [I(f'v_cvt_pk_bf16_f32 v{a+k}, v{a+2*k}, v{a+2*k+1}') for k in range(8)])
            if c.ylay and mu: A(st, f's_add_u32 s{sE}, s{sE}, {1 << 21}')
            for p_ in range(2):
                if c.ylay:
                    A(st, [I(f'buffer_store_dwordx4 v[{a+4*p_}:{a+4*p_+3}], v{vL16 if mu < 2 else 58}, {srd(WS)}, s{sE} offen offset:{1024*p_} sc1', tok='yE' if mu < 2 else 'yL')])
                elif mu < 2:
                    A(st, [I(f'buffer_store_dwordx4 v[{a+4*p_}:{a+4*p_+3}], v{vL16}, {srd(WS)}, s{sE} offen offset:{2048*mu+1024*p_} sc1', tok='yE')])
                else:
                    A(st, [I(f'buffer_store_dwordx4 v[{a+4*p_}:{a+4*p_+3}], v58, {srd(WS)}, s{sE+1} offen offset:{2048*(mu-2)+1024*p_} sc1', tok='yL')])
            if mu >= 2:
                A(max(st, bar(21) + 1), [I(f'ds_write_b128 v59, v[{a+4*p_}:{a+4*p_+3}] offset:{2048*(mu-2)+1024*p_}', tok='yown') for p_ in range(2)])
        S['ypk'] = TimedStream('ypk', m)
        return S

    def s_reads(self, x):
        st, lam = x // 5, x % 5
        tv = self.tv
        b = 72 + 4 * (x % 18)
        r = []
        if lam == 0 and st in (8, 16):
            dl = (self.slot['woB'] - self.slot['woA']) if st == 8 else (E - self.slot['woB'])
            r += [I(f'v_add_u32 v{tv[k]}, {dl & 0xffffffff}, v{tv[k]}') for k in ('vLA', 'vLB', 'vLX')]
        o = (st % 8) * 4608
        for rd in range(2):
            if lam < 4: reg, oo = tv['vLB' if lam & 1 else 'vLA'], o + (lam >> 1) * 2048 + rd * 1024
            else: reg, oo = tv['vLX'], o + rd * 256
            r.append(I(f'ds_read_b64_tr_b16 a[{b+2*rd}:{b+2*rd+1}], v{reg} offset:{oo}', tok=f's{x}'))
        return r

    def tail(self, S):
        c = self.c; E_ = self.E; tv = self.tv
        sp = soP
        SA, YE, YL, YO, YA, Y8, XU, TM, OUTR = 84, 104, 120, 128, 200, 216, 64, 160, 180
        vOX = 33
        side = {}
        add = lambda x, lst: side.setdefault(x, []).extend(lst)
        yp = flush(S['ypk'])
        n0 = 1
        for k, x in enumerate(yp): add(n0 + k // c.ypn, [x])
        xb = n0 + len(yp) // c.ypn + 3
        if c.ys >= 4: YL, YO = 232, 244
        tgd = lambda src: c.ys == 5 or (c.ys == 4 and src in (YL, YO))
        add(xb, [W('yown')] + L('s_barrier') + [I(f'ds_read_b128 v[{YO+4*mt}:{YO+4*mt+3}], v60 offset:{2048*mt}', tok='yor') for mt in range(3 if c.ys >= 4 else 2)])
        YS = [YE, YE + 12, YL]
        ytl = lambda k: [I(f'buffer_load_dwordx4 v[{YS[k]+4*g_}:{YS[k]+4*g_+3}], v{(vOX, 63, 62)[g_]}, {srd(WS)}, s{sT0+k} offen sc1', tok=f'yt{k}') for g_ in range(3)]
        fix = lambda src: [I(f'v_mov_b32 v{src+3}, v{src+6}')]
        yld = lambda k: [I(f'buffer_load_dwordx4 v[{YE+8*k+4*mt}:{YE+8*k+4*mt+3}], v{63 if c.ylay and mt else vOX}, {srd(WS)}, s{sT0+k} offen offset:{0 if c.ylay else 2048*mt} sc1', tok=(f'yl{k}' if k < 2 else f'yl2{mt}')) for mt in range(2)]
        for k, x in enumerate(self.xun): add(c.xux + k // 2, [x])
        fl = lambda tk, o: [W(tk), self.flag(sFY, o)]
        if c.ys == 5:
            for n_, x in enumerate(ytl(0) + ytl(1)): add(c.xye + n_, [x])
            for n_, x in enumerate(ytl(2)): add(c.xyl + n_, [x])
            chkE = self.tcheck('ysE', ['yt0', 'yt1'], [YE + 4 * g_ + 3 for g_ in range(6)], ytl(0) + ytl(1) + ytl(2), (sT0, sT0 + 1)) + fix(YE) + fix(YE + 12)
            chkL = self.tcheck('ysL', ['yt2'], [YL + 4 * g_ + 3 for g_ in range(3)], ytl(2), (sT0 + 2,)) + fix(YL)
        elif c.ys == 1:
            for k in range(3):
                for mt in range(2): add((c.xye + 2 * (2 * k + mt)) if k < 2 else c.xyl + 2 * mt, [yld(k)[mt]])
            chkE = self.ycheck('ysE', ['yl0', 'yl1'], YE, 16, yld(0) + yld(1) + yld(2))
            chkL = self.ycheck('ysL', ['yl20', 'yl21'], YL, 8, yld(2))
        else:
            if c.xe >= 0: add(c.xe, fl('yE', 0) + self.stamp('yEf'))
            ldE, chkE = self.ypoll if c.xpe < 0 else self.poll('yfE', WS, 61, f's{sp+7}', 222)
            if c.ys == 4: chkL = self.tcheck('ysL', ['yt2'], [YL + 4 * g_ + 3 for g_ in range(3)], ytl(2), (sT0 + 2,)) + fix(YL)
            elif c.ys != 2:
                add(c.xl, fl('yL', 32) + self.stamp('yLf'))
                ldL, chkL = self.poll('yfL', WS, 62, f's{sp+7}', 224 if c.ys else 222, imm=32)
            else: chkL = self.ycheck('ysL', ['yl20', 'yl21'], YL, 8, yld(2))
            if c.xpe < 0 and c.xp2: assert c.xp2 < c.xyc; add(c.xp2, [self.ld2])
            if c.xpe >= 0: add(c.xpe if c.ys else min(c.xl + 4, 60), [ldE])
            if c.ys:
                add(c.xyc, chkE + self.stamp('yEp'))
                lds_ = yld(0) + yld(1) + (yld(2) if c.ys == 2 else [])
                if c.ys == 4:
                    for k, x in enumerate(ytl(2)): add(max(c.xyc + 4, c.xyl) + k, [x])
                for k, x in enumerate(lds_): add(c.xyc + k, [x])
                if c.ys == 3: add(c.xpl, [ldL])
                if c.ys == 3 and c.xlc < 90: add(c.xlc, chkL + self.stamp('yLp') + yld(2))
        po = lambda src, mt, ab: src + ((0, 2, 4, 8)[2 * mt + ab] if tgd(src) else 4 * mt + 2 * ab)
        es = 12 if c.ys == 5 else 8
        ident_mf = lambda src, mt, ab, first: I(f'v_mfma_f32_4x4x4_16b_bf16 v[{YA+8*mt+4*ab}:{YA+8*mt+4*ab+3}], v[44:45], v[{po(src, mt, ab)}:{po(src, mt, ab)+1}], ' + ('0' if first else f'v[{YA+8*mt+4*ab}:{YA+8*mt+4*ab+3}]'))
        if c.ys >= 4: add(xb + 12, fix(YO))
        if c.ys in (1, 5) and c.xyc < 90:
            for k in range(4): add(c.xyc - 4 + k, [ident_mf(YO, k >> 1, k & 1, True)])
            add(c.xyc, chkE + self.stamp('yEp'))
            for k in range(8): add(min(c.xyc + 1 + k, 89), [ident_mf(YE + es * (k >> 2), (k >> 1) & 1, k & 1, False)])
        for x in range(90):
            st, lam = x // 5, x % 5
            fr = 72 + 4 * (x % 18); acc = SA + 4 * lam
            if x % c.swe == 0: E_(W(f's{min(x + c.swe - 1, 89)}', f'o{min(x + c.swe - 1, 89) // 5}'))
            E_(f'v_mfma_f32_16x16x32_bf16 v[{acc}:{acc+3}], a[{fr}:{fr+3}], a[{184+4*st}:{187+4*st}], ' + ('0' if x < 5 else f'v[{acc}:{acc+3}]'))
            if x + c.Ds < 90: E_(self.s_reads(x + c.Ds))
            E_(side.get(x, []))
        E_(self.stamp('s89'))
        own = [ident_mf(YO, mt, ab, True) for mt in range(2) for ab in range(2)]
        mfE = [ident_mf(YE + es * k, mt, ab, False) for k in range(2) for mt in range(2) for ab in range(2)]
        if not c.ys:
            E_(chkE)
            E_(self.stamp('yEp'))
            E_(yld(0) + yld(1))
            E_(ldL)
        if not (c.ys in (1, 5) and c.xyc < 90): E_(own)
        for k in range(10):
            E_(f'v_pk_mul_f32 v[{SA+2*k}:{SA+2*k+1}], v[{SA+2*k}:{SA+2*k+1}], v[40:41]')
        self.final_a(Y8, TM + 16, SA + 16); self.final_b(Y8, TM + 16, XU + 16, OUTR + 8)
        E_(I(f'buffer_store_dwordx2 v[{OUTR+8}:{OUTR+9}], v{tv["vXE"]}, {srd(OUT)}, s{sp+2} offen{c.osc}', tok='out'))
        if c.ys in (1, 5):
            if c.xyc >= 90: E_(chkE); E_(self.stamp('yEp')); E_(mfE)
            E_(chkL); E_(self.stamp('yLp'))
        elif c.ys in (2, 4):
            E_(mfE); E_(self.stamp('yEd')); E_(chkL); E_(self.stamp('yLp'))
        elif c.ys == 3 and c.xlc < 90: E_(mfE)
        else:
            E_(chkL)
            E_(self.stamp('yLp'))
            E_(yld(2))
            E_(mfE)
        for mt in range(2):
            for ab in range(2): E_(ident_mf(YL, mt, ab, False))
        E_(self.stamp('yld'))
        for mt in range(2):
            for ab in range(2):
                lam = 2 * mt + ab
                self.final_a(YA + 4 * lam, TM + 4 * lam, SA + 4 * lam)
            for ab in range(2):
                lam = 2 * mt + ab
                self.final_b(YA + 4 * lam, TM + 4 * lam, XU + 4 * lam, OUTR + 2 * lam)
            for k in range(2): E_(f'v_permlane16_swap_b32 v{OUTR+4*mt+k}, v{OUTR+4*mt+2+k}')
            E_(I(f'buffer_store_dwordx4 v[{OUTR+4*mt}:{OUTR+4*mt+3}], v{tv["vXM"]}, {srd(OUT)}, s{sXO} offen offset:{64*mt}{c.osc}', tok='out'))
        E_(self.stamp('fin'))

    def final_a(self, y, tm, sa):
        E_ = self.E
        for k in range(2): E_(f'v_pk_mul_f32 v[{tm+2*k}:{tm+2*k+1}], v[{y+2*k}:{y+2*k+1}], v[42:43]')
        for k in range(4): E_(f'v_exp_f32 v{tm+k}, v{tm+k}')
        for k in range(2): E_(f'v_pk_mul_f32 v[{y+2*k}:{y+2*k+1}], v[{y+2*k}:{y+2*k+1}], v[{sa+2*k}:{sa+2*k+1}]')

    def final_b(self, y, tm, xu, outr):
        E_ = self.E
        for k in range(2): E_(f'v_pk_add_f32 v[{tm+2*k}:{tm+2*k+1}], v[{tm+2*k}:{tm+2*k+1}], 1.0 op_sel_hi:[1,0]')
        for k in range(4): E_(f'v_rcp_f32 v{tm+k}, v{tm+k}')
        for k in range(2): E_(f'v_pk_fma_f32 v[{y+2*k}:{y+2*k+1}], v[{y+2*k}:{y+2*k+1}], v[{tm+2*k}:{tm+2*k+1}], v[{xu+2*k}:{xu+2*k+1}]')
        for k in range(2): E_(f'v_cvt_pk_bf16_f32 v{outr+k}, v{y+2*k}, v{y+2*k+1}')

    def build(self):
        c = self.c; E_ = self.E
        assert c.D + 2 <= 8
        self.plan()
        self.prologue()
        S = self.build_streams()
        E_(self.stamp('stat'))
        E_(W('T0', 'zf0')); E_('s_barrier')
        E_(self.stamp('T0'))
        for s in range(c.D): E_(self.reads(s))
        steps = self.main_steps()
        sk = c.skip.split()

        def drop(pred, names=None):
            for nm, st_ in S.items():
                if names and nm not in names: continue
                for it in st_.items:
                    if isinstance(it[0], str): continue
                    it[1][:] = [x for x in it[1] if not pred(x)] or [I('s_nop 0')]
        for nm in sk:
            if nm in S: drop(lambda x: True, [nm])
        if sk:
            drop(lambda x: x.kind == 'label' or x.op.startswith('s_cbranch') or x.op.startswith('v_cmp_ne'))
            self.slow = [x for x in self.slow if x.startswith('SLOW_yf')]
        if 'hst' in sk: drop(lambda x: x.kind == 'vstore', ['epi'])
        if 'peerld' in sk: drop(lambda x: x.kind == 'vload', ['peer'])
        if 'oload' in sk: drop(lambda x: x.kind == 'vload', ['prep'])
        if 'dmaq' in sk: drop(lambda x: x.kind == 'dma', ['dma'])
        if 'attvm' in sk: drop(lambda x: x.kind in ('vstore', 'vload'), ['att'])
        order = [S[k] for k in ('dma', 'flg', 'yclr', 'epi', 'ypk', 'peer', 'kvx', 'misc', 'accw', 'att', 'prep') if k in S]
        self.log = []
        stp = {36 * p: (lambda p=p: self.stamp(f'p{p-1}')) for p in range(1, 4 if c.tsp else 22)}
        if c.tsg:
            stp = {k: v for k, v in stp.items() if k // 36 in (2, 6, 10, 14, 18)}
            for g_ in range(*c.tsg): stp[g_] = (lambda g_=g_: self.stamp(f'{(g_-1)//36}.{(g_-1)%36+1}'))
        body = schedule_timed(steps, order, log=self.log, stamps=stp, ldsb=c.ldsb)
        E_(body)
        for s in order:
            if s.name != 'ypk': assert s.done(), (s.name, s.idx, len(s.items))
        E_(self.stamp('p21'))
        self.tail(S)
        if c.ts:
            E_(W('out')); E_(self.stamp('out')); self.number_stamps()
            if c.tsg: E_(f's_waitcnt lgkmcnt(0)\nv_writelane_b32 v{vONE}, s0, {self.nts}')
            E_(f's_memrealtime s[0:1]\ns_waitcnt lgkmcnt(0)\nv_writelane_b32 v{vONE}, s0, 62')
            E_(f's_lshl_b32 s3, s2, 2\ns_add_u32 s3, s3, s{sW}\ns_lshl_b32 s3, s3, 8\ns_add_u32 s3, s3, {WS_TS}\nv_lshrrev_b32 v25, 2, v{vL16}')
            E_(f'buffer_store_dword v{vONE}, v25, {srd(WS)}, s3 offen')
            if c.dbg is not None:
                names = ['karg', 'xiss', 'x7', 'T0', 'p1', 'p3', 'p5', 'p8', 'p12', 'p15', 'p18', 'p21', 's89', 'yLp', 'out']
                E_(f'v_readlane_b32 s40, v{vONE}, 61\nv_readlane_b32 s41, v{vONE}, 60\nv_readlane_b32 s42, v{vONE}, 62\ns_sub_u32 s42, s42, s41\nv_mov_b32 v26, 0')
                for wd, nm in enumerate(names):
                    E_(f'v_readlane_b32 s43, v{vONE}, {self.notes.index(nm)+1}\ns_sub_u32 s43, s43, s40\nv_writelane_b32 v26, s43, {wd}')
                E_(f'v_writelane_b32 v26, s42, 15\nv_lshlrev_b32 v25, 2, v0\ns_cmp_eq_u32 s2, {c.dbg}\ns_cselect_b32 s44, 0xffff, 0\ns_cmp_eq_u32 s{sW}, 0\ns_cselect_b32 s44, s44, 0\ns_mov_b32 exec_lo, s44\ns_mov_b32 exec_hi, 0')
                E_(f'buffer_store_dword v26, v25, {srd(DBG)}, 0 offen')
        for x in self.p:
            if x.kind == 'vload' and x.wr & {('a', 182), ('a', 183)}: x.wr = set()
        stats = {}
        prog = resolve_waits(self.p, stats, lenient=bool(c.skip))
        prog = pad_hazards(prog, stats)
        self.stats = stats
        self.prog = prog
        return prog

    def text(self):
        hdr = open('cdna_kernels/' + NAME + '.s.ref').read().split('\n')
        top = [x for x in hdr if x.startswith(';') and not x.startswith('; @launch')]
        out = top + ['; @launch grid=(256,1,1) block=(256,1,1) lds=163840',
                     '.amdgcn_target "amdgcn-amd-amdhsa--gfx950"', '.text', f'.globl {NAME}_kernel', '.p2align 8',
                     f'.type {NAME}_kernel,@function', f'{NAME}_kernel:']
        out += [i.text for i in self.prog]
        out += ['L_end:', 's_endpgm'] + self.slow + ['CODE_END:', 's_endpgm']
        out += ['.section .rodata,"a"', '.p2align 6', f'.amdhsa_kernel {NAME}_kernel', '  .amdhsa_next_free_vgpr 512', '  .amdhsa_next_free_sgpr 102',
                '  .amdhsa_accum_offset 256', '  .amdhsa_group_segment_fixed_size 0', '  .amdhsa_kernarg_size 80', '  .amdhsa_user_sgpr_count 2',
                '  .amdhsa_user_sgpr_kernarg_segment_ptr 1', '  .amdhsa_system_sgpr_workgroup_id_x 1', '.end_amdhsa_kernel']
        return '\n'.join(out) + '\n'


class TimedStream:
    def __init__(self, name, items):
        self.name = name; self.items = items; self.idx = 0; self.last_step = -10**9

    def done(self):
        while self.idx < len(self.items) and isinstance(self.items[self.idx][0], str): self.idx += 1
        return self.idx >= len(self.items)

    def next_deadline(self):
        for it in self.items[self.idx:]:
            if it[0] == 'deadline': return it[1]
        return None


def flush(s):
    r = [x for it in s.items[s.idx:] if not isinstance(it[0], str) for x in it[1]]
    s.idx = len(s.items)
    return r


def schedule_timed(steps, streams, log=None, stamps=None, ldsb=0):
    out = []
    bucket = 0
    ldsc = lambda grp: sum((32 if 'b128' in x.op else 16) if x.kind == 'dsw' else (8 if x.kind == 'dsr' else 0) for x in grp)
    byname = {s.name: s for s in streams}
    CAP = {'mfma32': 8, 'mfma16': 4, 'mfma4': 3}

    def passed(ref):
        s = byname[ref[0]]
        if isinstance(ref[1], int): return s.idx >= ref[1]
        return not any((not isinstance(it[0], str)) and any(x.tok == ref[1] for x in it[1]) for it in s.items[s.idx:])

    for g, st in enumerate(steps):
        if stamps and g in stamps: out.extend(stamps[g]())
        out.extend(st.pre)
        used = sum(i.cost for i in st.pre)
        cap = st.cap if st.cap is not None else CAP[st.mf.kind]
        out.append(st.mf); used += st.mf.cost
        forced = 0
        for s in streams:
            while True:
                dl = s.next_deadline()
                if dl is None or dl > g: break
                while s.items[s.idx][0] != 'deadline':
                    it = s.items[s.idx]
                    if it[0] == 'after': assert passed(it[1]), (s.name, it, g)
                    else:
                        assert it[0] <= g, (s.name, it, g)
                        out.extend(it[1]); forced += sum(x.cost for x in it[1])
                    s.idx += 1
                s.idx += 1; s.last_step = g
        used += forced
        out.extend(st.post); used += sum(i.cost for i in st.post)
        nmf = 0
        bucket = min(bucket + ldsb, 2 * ldsb)
        while True:
            pick = None
            for allow_mf in (False, True):
                for s in streams:
                    while s.idx < len(s.items) and (s.items[s.idx][0] == 'deadline' or (s.items[s.idx][0] == 'after' and passed(s.items[s.idx][1]))): s.idx += 1
                    if s.idx >= len(s.items): continue
                    t0, grp = s.items[s.idx]
                    if t0 == 'after' or g < t0: continue
                    if grp[0].gap and g < s.last_step + grp[0].gap: continue
                    if ldsb and ldsc(grp) and bucket < min(ldsc(grp), 2 * ldsb): continue
                    cst = sum(x.cost for x in grp)
                    extra = sum(CAP[x.kind] for x in grp if x.kind in MF_KINDS)
                    if extra:
                        if not allow_mf or nmf >= 2 or st.end: continue
                    else:
                        late = (s.name in ('dma', 'ypk', 'peer', 'kvx') and g >= t0 + 2 and used <= cap) or (cst > 3 and used < cap)
                        if used + cst > cap and not late: continue
                    pick = (s, grp, cst, extra); break
                if pick: break
            if not pick: break
            s, grp, cst, extra = pick
            if extra:
                nmf += 1
                cap = max(cap, used) + extra; used = cap - extra
            out.extend(grp); used += cst; bucket -= ldsc(grp)
            s.idx += 1; s.last_step = g
        if st.end:
            out.extend(st.end); cap = max(cap, used) + sum(CAP[x.kind] for x in st.end); used = cap
        if log is not None: log.append((g, used, cap, forced, {s.name: s.idx for s in streams}))
    return out


if __name__ == '__main__':
    kw = {}
    for a in sys.argv[2:]:
        k, v = a.split('='); kw[k] = eval(v)
    g = Gen(Cfg(**kw)); g.build()
    open(sys.argv[1], 'w').write(g.text())
    print('instrs', len(g.prog), 'est clk', estimate(g.prog), {k: v for k, v in g.stats.items() if k != 'nop_sites'})
    print('period slots', [sum(max(x[1], x[2]) for x in g.log[36*p:36*p+36]) * 4 for p in range(22)])
    print('forced', [(x[0], x[3]) for x in g.log if x[3]])
    print('slots', g.slot, g.slotS, g.loadp)
    for nm in g.log[0][4]:
        print(nm, [g.log[36*p+35][4][nm] for p in range(22)])
```

```python
import sys, os
sys.path.insert(0, os.path.dirname(os.path.abspath(__file__)))
from asmlib import *

NAME = 'recurrent_scan__linear_kernel_hedgehog__dense_activation_relu__prompt'

SLOT = 36864
E = 147456
E2 = E + 5120
RSA = E + 12288
DUMMY = E + 0x3800
OOB = 0x80000000
FL_H, FL_KV, FL_O, FL_RP, FL_WO, FL_Y = 0x0, 0x8000, 0xA000, 0xC000, 0xE000, 0x10000
WS_KV, WS_RP, WS_WO, WS_OM, WS_OX, WS_Y8, WS_Y, WS_H, WS_TS = 0x20000, 0x100000, 0x400000, 0x500000, 0x700000, 0x800000, 0xC00000, 0x1800000, 0x3000000
WS_SIZE = 268435456
RPI = {'Ta': 0, 'Tb': 1, 'Tc': 2, 'Td': 3, 'S': 4}
X, QKV, PHI, WO, W1, W2, OUT, DBG, WS = 4, 8, 12, 16, 20, 24, 28, 32, 36
srd = lambda n: f's[{n}:{n+3}]'
SIZES = {X: 2359296, QKV: 1990656, PHI: 20736, WO: 663552, W1: 5308416, W2: 5308416, OUT: 2359296, DBG: 256, WS: WS_SIZE}
KOFF = {X: 0, QKV: 8, PHI: 16, WO: 24, W1: 40, W2: 48, OUT: 56, DBG: 64, WS: 72}
soP = 40
soPb = [88, 89, 90, 91, 92, 93, 96, 97, 101]
PIMM = [0, 1, 2, 3, 0, 1, 2, 3, 0] + [0, 1, 2, 0, 1, 2, 3, 0, 1]
sN = 94
sD = 49
sMi = 54
sMiM = 58
sA = 60
sAM = 64
sPe = 66
sW, sR, sJ, sQ, sJJ, sWL = 67, 68, 69, 70, 71, 72
sHown, sFH, sFKV, sFO, sFY, sRP, sPF = 73, 74, 75, 76, 77, 78, 79
sPe2, sHb = 80, 81
sE = 82
sXO, sYc, sOMc = 85, 86, 87
sT0, sT1, sT2, sT3 = 90, 91, 92, 93
sHH = 98
sSPIN = 100
vL16 = 1
vK = 2
vW1, vPA, vS, vCur, vF0, vONE, vRS, vC, vSD, vCur2 = 11, 12, 13, 14, 15, 16, 17, 18, 19, 20
vPF, vPo, vPa, vPU = 21, 22, 24, 25
vAt = 26
ACC = (32, 48)
ACC0 = (80, 96)
vH = 64
vX = 112
GA = 136
RING = 144
aPHI = 184
aKV = 208
aSEL = 176
aN = 180
aRP, aWP, aWO, aPK = 208, 228, 232, 236
LOG2E = 0x3fb8aa3b


class Cfg:
    order = ['P0a', 'P0b', 'P1a', 'P1b', 'Ta', 'Tb', 'Tc', 'Td', 'S', 'P2a', 'P2b', 'P3a', 'P3b']
    D = 5
    we = 2
    ps = 8
    pk = 13
    woA = 10
    hl = (13, 14, 15, 16, 17, 18)
    wop = 9
    po = 19
    xlag = 3
    npre = 6
    xa = 5
    Ds = 8
    ts = False
    xrot = 1
    c8p = 2
    rps = 12
    rpf = 24
    pf = {'P2': 3, 'P3': 5, 'B8': 5, 'U0': 6, 'U1': 7, 'U2': 7, 'U3': 8}
    cap = 8
    ys = 4
    ycl = (190, 28)
    xye = 30
    xyl = 50
    xpe = 6
    xpl = 68
    xyc = 40
    hlay = 2
    ylay = 1
    swe = 3
    ypn = 4
    gentle = 1
    xlc = 90
    rt2 = 1
    xp2 = 0
    oend = 18
    rj = 9
    xrs = 15
    xux = 14
    rpo = 3
    tagp = 7
    t0n = 8
    t1n = 11
    kvs = 0
    ldsb = 0
    stgi = 0
    pfs = 26
    dly = 6
    dend = 29
    osc = ' sc1'
    caps = {7: 9, 8: 9, 9: 9}
    kvx = (358, 406, 430, 30, 30)
    hfd = 30
    kvgap = 60
    krgap = 16
    msum = 0
    wim = 44
    pf1 = 1
    rpw = 3
    bulk = 3
    pf0p = 2
    t1p = 0
    head = 1
    nfill = 400
    tsx = ''
    tsg = None
    tsp = False
    spin = 20000
    pref = True
    skip = ''
    dbg = None
    xe = 0
    xl = 40
    pdist = 22

    def __init__(self, **kw):
        for k, v in kw.items():
            assert hasattr(self, k), k
            setattr(self, k, v)


def L(text, **kw):
    r = []
    for line in text.split('\n'):
        line = line.strip()
        if line:
            r.append(I(line, **kw)); kw.pop('gap', None)
    return r


def glue(lst):
    for x in lst[1:]: x.glue = True
    return lst


F_T = lambda d: f'v_bfe_u32 v{d}, v{vL16}, 4, 5'
F_HH = lambda d: f'v_lshrrev_b32 v{d}, 9, v{vL16}'
F_N = lambda d: f'v_bfe_u32 v{d}, v{vL16}, 4, 4'
F_G = lambda d: f'v_lshrrev_b32 v{d}, 8, v{vL16}'
F_R4 = lambda d: f'v_bfe_u32 v{d}, v{vL16}, 6, 2'
F_C4 = lambda d: f'v_bfe_u32 v{d}, v{vL16}, 4, 2'
F_TB = lambda d: f'v_bfe_u32 v{d}, v{vL16}, 8, 1'


class Gen:
    def __init__(self, cfg):
        self.c = cfg
        self.p = []
        self.slow = []
        self.nts = 0
        self.notes = []

    def E(self, x, **kw):
        if isinstance(x, str): self.p.extend(L(x, **kw))
        elif isinstance(x, list): self.p.extend(x)
        else: self.p.append(x)

    def stamp(self, name=''):
        if not self.c.ts: return []
        if self.c.tsg:
            r = glue(L(f'v_writelane_b32 v{vONE}, s0, 0\ns_memtime s[0:1]'))
            r[0].comment = name; r[1].kind = 'sctl'; r[1].wr = set()
        else:
            r = glue(L(f's_memtime s[0:1]\ns_waitcnt lgkmcnt(0)\nv_writelane_b32 v{vONE}, s0, 0'))
            r[2].comment = name
        for x in r: x.cost = 0
        return r

    def number_stamps(self):
        for x in self.p:
            if getattr(x, 'comment', None) is not None:
                self.nts += 1; self.notes.append(x.comment); assert self.nts < 59
                x.text = f'v_writelane_b32 v{vONE}, s0, {self.nts - 1 if self.c.tsg else self.nts}'

    def xs(self, name, grp):
        if not self.c.tsx or name not in self.c.tsx.split(): return grp
        g = grp[0].gap
        r = glue(self.stamp('<' + name) + grp + self.stamp(name + '>')); r[0].gap = g; r[0].glue = False
        return r

    def poll(self, name, srdn, vaddr, soff, reg, imm=0, tag=False, reg2=None):
        assert reg % 2 == 0
        ld = f'buffer_load_dwordx2 v[{reg}:{reg+1}], v{vaddr}, {srd(srdn)}, {soff} offen' + (f' offset:{imm}' if imm else '') + ' sc1'
        cmp = f'v_min_u32 v{vaddr}, v{reg}, v{reg+1}\nv_cmp_eq_u32 vcc, 0, v{vaddr}' if tag else f'v_cmp_ne_u64 vcc, s[{sN}:{sN+1}], v[{reg}:{reg+1}]'
        fix = f'v_mov_b32 v{vaddr}, 0\n' if tag else ''
        chk = [W(name)] + L(f'{cmp}\ns_cbranch_vccnz SLOW_{name}\nBACK_{name}:')
        snd = ''
        if reg2:
            self.ld2 = I(ld.replace(f'v[{reg}:{reg+1}]', f'v[{reg2}:{reg2+1}]'), tok=name + '2')
            snd = f's_waitcnt vmcnt(0)\nv_cmp_ne_u64 vcc, s[{sN}:{sN+1}], v[{reg2}:{reg2+1}]\ns_nop 1\ns_cbranch_vccz BACK_{name}\n'
        self.slow.append(f'''SLOW_{name}:
{snd}s_mov_b32 s{sSPIN}, 0
LOOP_{name}:
{fix}{ld}
s_add_u32 s{sSPIN}, s{sSPIN}, 1
s_waitcnt vmcnt(0)
{cmp}
s_nop 1
s_cbranch_vccz BACK_{name}
s_cmp_lt_u32 s{sSPIN}, {self.c.spin}
s_cbranch_scc1 LOOP_{name}
s_branch BACK_{name}''')
        return I(ld, tok=name), self.xs(name, glue(chk))

    def tcheck(self, name, toks, T, lds, so=()):
        mx = ''
        for t, op in ((222, 'min'), (223, 'max')):
            mx += f'v_{op}3_u32 v{t}, v{T[0]}, v{T[1]}, v{T[2]}\n'
            if len(T) > 3: mx += f'v_{op}3_u32 v{t}, v{T[3]}, v{T[4]}, v{t}\nv_{op}_u32 v{t}, v{T[5]}, v{t}\n'
        pre = ''
        if self.c.gentle:
            pre = f'v_mov_b32 v224, {(2 << 21) + 1024 + 1008 + 12}\nPRE_{name}:\n'
            for k in range(2): pre += f'buffer_load_dword v{222+k}, v224, {srd(WS)}, s{so[k % len(so)]} offen sc1\n' if k < len(so) else ''
            pre += f's_add_u32 s{sSPIN}, s{sSPIN}, 1\ns_waitcnt vmcnt(0)\n'
            pre += 'v_cmp_ne_u64 vcc, s[74:75], v[222:223]\n' if len(so) > 1 else 'v_cmp_ne_u32 vcc, s74, v222\n'
            pre += f's_nop 1\ns_cbranch_vccz GO_{name}\ns_cmp_lt_u32 s{sSPIN}, {self.c.spin}\ns_cbranch_scc1 PRE_{name}\nGO_{name}:\n'
        return self.ycheck(name, toks, 0, 0, lds, mx + 'v_cmp_ne_u64 vcc, s[74:75], v[222:223]', pre)

    def ycheck(self, name, toks, r0, n, lds, cond=None, pre=''):
        t = 222
        mx = f'v_max3_u32 v{t}, v{r0}, v{r0+1}, v{r0+2}\nv_max3_u32 v{t+1}, v{r0+3}, v{r0+4}, v{r0+5}\n'
        for k in range(6, n - 1, 2): mx += f'v_max3_u32 v{t+k//2%2}, v{r0+k}, v{r0+k+1}, v{t+k//2%2}\n'
        mx += f'v_max_u32 v{t}, v{t}, v{t+1}\nv_cmp_eq_u32 vcc, -1, v{t}'
        if cond: mx = cond
        ld = pre + '\n'.join(x.text for x in lds)
        self.slow.append(f'''SLOW_{name}:
s_mov_b32 s{sSPIN}, 0
LOOP_{name}:
{ld}
s_add_u32 s{sSPIN}, s{sSPIN}, 1
s_waitcnt vmcnt(0)
{mx}
s_nop 1
s_cbranch_vccz BACK_{name}
s_cmp_lt_u32 s{sSPIN}, {self.c.spin}
s_cbranch_scc1 LOOP_{name}
s_branch BACK_{name}''')
        return [W(*toks)] + L(f'{mx}\ns_cbranch_vccnz SLOW_{name}\nBACK_{name}:')

    @staticmethod
    def flag(s_, o=0, v=vF0):
        return I(f'buffer_store_dwordx2 a[{aN}:{aN+1}], v{v}, {srd(WS)}, s{s_} offen' + (f' offset:{o}' if o else '') + ' sc1', tok='flag')

    def plan(self):
        c = self.c
        self.kind = list(c.order) + ['B8'] + [f'U{u}' for u in range(1, 9)]
        slot = {i: i for i in range(4)}
        loadp = {0: -1, 1: 0 if c.t1p else -1, 2: 0, 3: 1}
        free = []; nxt = 4; stag = None
        lead3 = c.woA >= 19
        for p in range(1, 22):
            free.append(slot[p - 1])
            if p == c.ps: stag = free.pop(0)
            if p == c.ps + 2: free.append(stag)
            lead = 3 if (lead3 and p >= c.ps + 2) else 2
            while nxt <= min(p + lead, 21) and (free or nxt <= p + 2):
                slot[nxt] = free.pop(0); loadp[nxt] = p; nxt += 1
            if p == c.woA: slot['woA'] = free.pop(0); loadp['woA'] = p
            if p == 20: slot['woB'] = free.pop(0); loadp['woB'] = p
            if p == 21: slot['Y'] = free.pop(0)
        assert nxt == 22 and 'woA' in slot
        self.slot = {k: v * SLOT for k, v in slot.items()}
        self.slotS = stag * SLOT
        self.loadp = loadp
        self.tau = {}
        self.hoff = []
        self.acc = {}
        self.chain = []
        fin = {ACC[0]: -2, ACC[1]: -1}
        for i, k in enumerate(self.kind[:14]):
            if k[0] == 'P':
                pr, hf = int(k[1]), k[2] == 'b'
                if pr == 0:
                    assert i == (1 if hf else 0)
                    for mt in range(2): self.acc[(i, mt)] = ACC0[mt]
                    if hf:
                        for mt in range(2): self.chain.append((mt, 72 - 2 + mt, ACC0[mt], (i, mt)))
                elif not hf:
                    assert self.kind[i + 1] == k[:2] + 'b'
                    a0 = min(fin, key=fin.get); a1 = max(fin, key=fin.get)
                    for mt, a in enumerate((a0, a1)):
                        self.acc[(i, mt)] = a; self.acc[(i + 1, mt)] = a
                        fin[a] = 36 * (i + 1) + 18 * mt + 17
                        self.chain.append((36 * i + 18 * mt, fin[a], a, (i + 1, mt)))
                if hf:
                    for mt in range(2):
                        self.tau[(i, mt)] = len(self.hoff); self.hoff.append((64 * pr + 32 * mt, 32))
            elif k == 'B8':
                a0 = min(fin, key=fin.get); a1 = max(fin, key=fin.get)
                for mt, a in enumerate((a0, a1)):
                    self.acc[(i, mt)] = a; self.chain.append((36 * i + 18 * mt, 36 * i + 18 * mt + 17, a, (i, mt)))
            else:
                a = min(fin, key=fin.get); self.acc[(i, 0)] = a; fin[a] = 36 * i + 35
                self.chain.append((36 * i, fin[a], a, (i, 0)))
                if k == 'S':
                    self.tau[(i, 0)] = len(self.hoff); self.hoff.append((256, -256))
        assert len(self.hoff) == 9
        self.g2 = {14: (0, 0, None), 15: (0, 1, None)}
        for n in range(6): self.g2[16 + n] = (1 + n % 3, n // 3, n % 4)

    def dma_item(self, i):
        out = []; tok = f'T{i}'
        kind = self.kind[i] if isinstance(i, int) else i
        sl = self.slot[i]
        m0 = lambda k: L(f's_add_u32 m0, s{sWL}, {sl + k*1024}')
        ld = lambda v, R, so, k, sc='': [I(f'buffer_load_dwordx4 v{v}, {srd(R)}, {so} offen offset:{(k%4)*1024}{sc} lds', tok=tok)]
        one = lambda t: out.extend([x] for x in L(t))
        if kind[0] == 'P':
            cur = int(kind[1]) * 128
            if cur != self.w1pos: one(f'v_add_u32 v{vW1}, {(cur - self.w1pos) & 0xffffffff}, v{vW1}')
            self.w1pos = cur
            for k in range(9):
                im = PIMM[k + (9 if kind[2] == 'b' else 0)]
                if im == 0: out.append(m0(k))
                out.append(ld(vW1, W1, f's{soPb[k] if kind[2] == "b" else soP+k}', im))
        elif kind in RPI or kind in ('woA', 'woB'):
            if kind in RPI: b = lambda k: f's_add_u32 s{sD}, s{sRP}, {RPI[kind]*SLOT + k*1024}'
            else:
                one(f's_lshl_b32 s{sD+1}, s{sJJ}, 1\ns_and_b32 s{sD}, s{sQ}, 1\ns_add_u32 s{sD+1}, s{sD+1}, s{sD}\ns_mul_i32 s{sD+1}, s{sD+1}, 82944\ns_add_u32 s{sD+1}, s{sD+1}, s{sWL}')
                b = lambda k: f's_add_u32 s{sD}, s{sD+1}, {WS_WO + (SLOT if kind == "woB" else 0) + k*1024}'
            for k in range(9):
                if k % 4 == 0: one(b(k)); out.append(m0(k))
                out.append(ld(vL16, WS, f's{sD}', k, ' sc1'))
        elif kind == 'B8':
            one(f's_mul_i32 s{sD+1}, s{sJ}, 36\ns_add_u32 s{sD+1}, s{sD+1}, s{sW}\ns_mul_i32 s{sD+1}, s{sD+1}, 9216\ns_add_u32 s{sD+1}, s{sD+1}, 1024')
            one(f's_and_b32 s{sD}, s{sJJ}, 1\ns_mul_i32 s{sD+2}, s{sD}, {32*1152}\ns_add_u32 s{sD+2}, s{sD+2}, s{sD+1}\ns_mul_i32 s{sD}, s{sD}, {256*1152}\ns_sub_u32 s{sD+1}, s{sD+1}, s{sD}')
            one(f'v_lshrrev_b32 v{vW1}, 7, v{vL16}\nv_mul_u32_u24 v{vW1}, 1152, v{vW1}\nv_bfe_u32 v{vCur2}, v{vL16}, 8, 1\nv_lshl_add_u32 v{vW1}, v{vCur2}, 6, v{vW1}\nv_and_b32 v{vCur2}, 0x70, v{vL16}\nv_xor_b32 v{vW1}, v{vW1}, v{vCur2}')
            for k in range(9):
                a, b = self.hoff[k]
                one(f's_add_u32 s{sD}, s{sD+2 if b == 32 else sD+1}, {(a*1152 - (k%4)*1024) & 0xffffffff}')
                if k % 4 == 0: out.append(m0(k))
                out.append(ld(vW1, W2, f's{sD}', k))
        else:
            pe, hf, _ = self.g2[i]
            one(f's_add_u32 s{sD}, s{sJJ}, {pe}\ns_and_b32 s{sD}, s{sD}, 3\ns_and_b32 s{sD+3}, s{sD}, 1\ns_lshl2_add_u32 s{sD}, s{sQ}, s{sD}\ns_mul_i32 s{sD}, s{sD}, 72\ns_add_u32 s{sD}, s{sD}, s{sW}')
            one(f's_mul_i32 s{sD}, s{sD}, 4608\ns_lshl_b32 s{sD+1}, s{sJJ}, 8\ns_add_u32 s{sD}, s{sD}, s{sD+1}')
            grp = {}
            for k in range(9):
                sg = 9 * hf + k; a, b = self.hoff[sg >> 1]
                grp.setdefault((a + 16 * (sg & 1) - 16 * k, b), []).append(k)
            assert len(grp) <= 3
            reg = {}
            for n, (a, b) in enumerate(grp):
                r = sD + 1 + n if n < 2 else sD + 4
                one(f's_mul_i32 s{r}, s{sD+3}, {(b*1152) & 0xffffffff}\ns_add_u32 s{r}, s{r}, s{sD}')
                if a: one(f's_add_u32 s{r}, s{r}, {(a*1152) & 0xffffffff}')
                for k in grp[(a, b)]: reg[k] = r
            for k in range(9):
                if k % 4 == 0: out.append(m0(k))
                out.append(ld(vK + k, W2, f's{reg[k]}', k))
        return out

    def conv_mf(self, s):
        D = 32 + 8 * (s & 1); xr = vX + 4 * s
        return [I(f'v_mfma_f32_4x4x4_16b_bf16 v[{D+4*k}:{D+4*k+3}], v[60:61], v[{xr+2*k}:{xr+2*k+1}], v[48:51]') for k in range(2)]

    def conv_cvt(self, s):
        D = 32 + 8 * (s & 1); xr = vX + 4 * s
        return [I(f'v_cvt_pk_bf16_f32 v{xr+k}, v{D+2*k}, v{D+2*k+1}') for k in range(4)]

    @staticmethod
    def ident(d, t1):
        return (f'v_and_b32 v{t1}, 16, v{vL16}\nv_mov_b32 v{d}, 0x3f80\nv_lshlrev_b32 v{d}, v{t1}, v{d}\nv_bfe_i32 v{t1}, v{vL16}, 5, 1\n'
                f'v_and_b32 v{d+1}, v{d}, v{t1}\nv_xor_b32 v{d}, v{d}, v{d+1}')

    def prologue(self):
        c = self.c; E_ = self.E
        if c.ts: E_('s_memrealtime s[92:93]\ns_memtime s[96:97]')
        E_('s_cmp_ge_u32 s2, 256\ns_cbranch_scc1 L_end')
        if c.head:
            E_(f's_load_dwordx2 s[{X}:{X+1}], s[0:1], 0\ns_load_dwordx8 s[76:83], s[0:1], 40\ns_load_dwordx8 s[44:51], s[0:1], 8\ns_load_dwordx2 s[{WS}:{WS+1}], s[0:1], {KOFF[WS]}')
        else:
            for R in (X, W1, DBG, QKV, WS, PHI, W2, WO, OUT):
                E_(f's_load_dwordx2 s[{R}:{R+1}], s[0:1], {KOFF[R]}')
        E_(f's_memrealtime s[{sN}:{sN+1}]')
        if c.pref:
            E_('s_getpc_b64 s[40:41]\nPCREF:\ns_mov_b32 s42, CODE_END-PCREF\ns_mov_b32 s43, 0x20000')
            E_('s_lshr_b32 s3, s2, 3\nv_lshlrev_b32 v25, 5, v0\nv_add_u32 v25, s3, v25\nv_lshlrev_b32 v25, 7, v25')
            E_('buffer_load_dword v63, v25, s[40:43], 0 offen', tok='pref')
        l = 25
        E_(f'v_lshrrev_b32 v26, 6, v0\nv_and_b32 v{l}, 63, v0\nv_lshlrev_b32 v{vL16}, 4, v{l}')
        E_(f'v_readfirstlane_b32 s{sW}, v26')
        E_(f's_and_b32 s3, s2, 1\ns_lshl_b32 s3, s3, 3\ns_lshr_b32 s64, s2, 5\ns_add_u32 s{sR}, s64, s3')
        E_(f's_bfe_u32 s{sQ}, s2, 0x20001\ns_bfe_u32 s{sJJ}, s2, 0x20003\ns_lshl2_add_u32 s{sJ}, s{sQ}, s{sJJ}')
        E_(f'v_lshrrev_b32 v26, 3, v{l}\nv_mul_u32_u24 v27, 1152, v26\nv_and_b32 v28, 0x70, v{vL16}\nv_and_b32 v29, 0x30, v{l}\nv_xor_b32 v28, v28, v29')
        E_('v_add_u32 v2, v27, v28\nv_xor_b32 v3, 64, v2\nv_add_u32 v3, 8192, v3\nv_add_u32 v4, 16384, v2\nv_add_u32 v5, 16384, v3')
        E_(f's_mul_i32 s{sWL}, s{sW}, 9216\ns_lshl2_add_u32 s3, s{sR}, s{sW}')
        E_(f's_mul_i32 s{sXO}, s3, 36864')
        sRot = sJJ if c.xrot == 2 else sQ
        E_(f's_lshl_b32 s58, s{sRot}, 8' if c.xrot else 's_mov_b32 s58, 0')
        save = self.p; self.p = []
        for R in SIZES:
            if c.head and R not in (X, WS):
                t_ = 76 + KOFF[R] // 4 - 10 if KOFF[R] >= 40 else 44 + KOFF[R] // 4 - 2
                E_(f's_mov_b64 s[{R}:{R+1}], s[{t_}:{t_+1}]')
            x_ = L(f's_mov_b32 s{R+2}, {SIZES[R]}\ns_mov_b32 s{R+3}, 0x20000')
            if R == X: save.extend(x_)
            else: E_(x_)
        E_(f'v_mov_b32 v31, {OOB}\nv_cmp_gt_u32 vcc, 18, v{l}\nv_mul_u32_u24 v{vPF}, 9216, v{l}\ns_lshl2_add_u32 s64, s64, s{sW}\ns_mul_i32 s{sPF}, s64, {18*9216}\nv_cndmask_b32 v{vPF}, v31, v{vPF}, vcc')
        E_(f's_mul_i32 s63, s{sJ}, 576\ns_and_b32 s65, s{sJJ}, 1\ns_lshl_b32 s57, s65, 6\ns_add_u32 s57, s57, s63\ns_add_u32 s{sPF}, s{sPF}, s57')
        E_(f'v_cmp_gt_u32 vcc, 2, v0\nv_lshlrev_b32 v23, 7, v0\ns_cmp_eq_u32 s2, 0\ns_cselect_b32 s59, 0, {OOB}\nv_cndmask_b32 v23, v31, v23, vcc\nv_or_b32 v23, s59, v23')
        hd2 = self.p; self.p = save
        if not c.head: E_(hd2); hd2 = []
        E_('s_waitcnt lgkmcnt(0)')
        if c.ts: E_(f'v_mov_b32 v{vONE}, 1\nv_writelane_b32 v{vONE}, s92, 60\nv_writelane_b32 v{vONE}, s96, 61')
        E_(self.stamp('karg'))
        pf0 = L(f'buffer_load_dword a182, v{vPF}, {srd(W1)}, s{sPF} offen')
        if c.pf0p == 0: E_(hd2); hd2 = []; E_(pf0)
        tagst = L(f's_or_b32 s{sN}, s{sN}, 1\ns_or_b32 s{sN+1}, s{sN+1}, 0x80000000\nv_mov_b32 v28, s{sN}\nv_mov_b32 v29, s{sN+1}')
        tagst.append(I(f'buffer_store_dwordx2 v[28:29], v23, {srd(DBG)}, 0 offen sc1', tok='tagst'))
        save = self.p; self.p = []
        E_(tagst)
        t, hh, a, b, d = 26, 27, 74, 75, 22
        E_(f'v_lshrrev_b32 v26, 2, v{l}\nv_and_b32 v27, 0x30, v{vL16}\nv_mul_u32_u24 v{a}, 3456, v26\nv_add_u32 v64, v{a}, v27\nv_mul_u32_u24 v{b}, 9216, v26\nv_add_u32 v66, v{b}, v27')
        E_(f'v_mov_b32 v65, 1216\nv_mov_b32 v{b}, 2360\nv_cmp_eq_u32 vcc, 16, v27\ns_mul_i32 s62, s3, 9\nv_add_u32 v67, s62, v26\nv_cndmask_b32 v65, v65, v{b}, vcc\nv_cmp_le_u32 vcc, 32, v27')
        E_(f's_mul_i32 s60, s62, 3456\ns_mul_i32 s61, s{sJ}, 72\nv_cndmask_b32 v65, v65, 64, vcc\nv_add_u32 v65, v65, v{a}\ns_add_u32 s60, s60, s61')
        if c.xrot:
            E_(f's_lshl_b32 s56, s{sRot}, 7\nv_subrev_u32 v{b}, s56, v67\nv_cmp_gt_u32 vcc, 0x200, v67\nv_and_b32 v{b}, 0x1ff, v{b}\ns_nop 0\nv_cndmask_b32 v67, v67, v{b}, vcc')
        E_(f'v_cmp_gt_u32 vcc, 36, v{l}\nv_lshl_add_u32 v67, v67, 6, v27')
        E_(f's_mul_i32 s61, s62, 9216\ns_add_u32 s61, s61, s63\ns_lshl_b32 s65, s65, 9\ns_sub_u32 s61, s61, s65\ns_add_u32 s61, s61, 512')
        for k in range(4): E_(f'v_cndmask_b32 v{64+k}, v31, v{64+k}, vcc')
        E_(f's_mul_i32 s62, s{sJ}, {5*SLOT}\ns_add_u32 s62, s62, {WS_RP}\ns_add_u32 s{sRP}, s62, s{sWL}')
        E_(f's_lshl_b32 s64, s{sJ}, 6\ns_add_u32 s64, s64, s3\ns_lshl3_add_u32 s63, s64, {FL_RP}\ns_lshl3_add_u32 s{sFKV}, s64, {FL_KV}')
        ne2 = len(self.p)
        E_(F_T(t) + '\n' + F_HH(hh))
        E_(f'v_bfe_u32 v{a}, v{t}, 1, 3\nv_xor_b32 v{a}, v{a}, v{hh}\nv_lshlrev_b32 v{a}, 4, v{a}\nv_lshl_add_u32 v{a}, v{t}, 7, v{a}\nv_add_u32 v6, s{sWL}, v{a}')
        E_('v_xor_b32 v7, 32, v6\nv_xor_b32 v8, 64, v6\nv_xor_b32 v9, 96, v6')
        E_(f'v_lshrrev_b32 v{a}, 3, v{t}\nv_mul_u32_u24 v{a}, 35840, v{a}')
        for k in range(4): E_(f'v_add_u32 v{84+k}, v{a}, v{6+k}')
        for k in range(0 if not c.msum else 4, 8): E_(f'v_mov_b32 v{52+k}, 0')
        if c.msum:
            E_(f'v_lshrrev_b32 v88, 2, v{l}\nv_xor_b32 v88, v88, v{l}\nv_bfe_u32 v88, v88, 2, 1\nv_add_u32 v88, -1, v88\nv_and_b32 v88, 0x3f803f80, v88\nv_mov_b32 v89, v88\nv_mov_b32 v90, v88\nv_mov_b32 v91, v88')
        else: E_('v_mov_b32 v88, 0x3f803f80')
        E_(f's_mov_b32 s{sHH}, 0\ns_mov_b32 s{sHH+1}, -1')
        E_(f'v_cmp_eq_u32 vcc, 0, v{l}')
        E_(f'v_lshrrev_b32 v{b}, 3, v{l}\nv_mul_u32_u24 v{b}, 9216, v{b}\nv_cndmask_b32 v{vF0}, v31, v{l}, vcc')
        E_(F_TB(a) + f'\nv_lshl_add_u32 v{b}, v{a}, 6, v{b}\nv_and_b32 v{d}, 0x70, v{vL16}\nv_xor_b32 v{vW1}, v{b}, v{d}')
        E_(f's_mul_i32 s56, s{sW}, {8*9216}\ns_add_u32 s57, s57, s56')
        for g in range(5):
            if g < 4:
                if c.xrot: E_(f's_add_u32 s56, s{sRot}, {g}\ns_and_b32 s56, s56, 3\ns_mul_i32 s56, s56, {128*9216}\ns_add_u32 s56, s56, s57')
                else: E_(f's_add_u32 s56, s57, {g*128*9216}')
            for pb in range(4 * g, min(4 * g + 4, 18)):
                r_ = soP + pb if pb < 9 else soPb[pb - 9]
                E_(f's_add_u32 s{r_}, s{56 if g < 4 else 57}, {(pb % 4 if g < 4 else pb)*32*9216 - PIMM[pb]*1024}')
        E_(F_C4(b) + f'\nv_lshlrev_b32 v{b}, 3, v{b}\nv_lshl_add_u32 v{b}, v{a}, 5, v{b}\n' + F_R4(d))
        E_(f'v_lshl_add_u32 v{a}, v{hh}, 3, v{d}\nv_lshl_add_u32 v{vS}, v{a}, 6, v{b}')
        E_(f'v_lshl_add_u32 v{b}, v{d}, 7, v{b}\nv_lshrrev_b32 v{d}, 1, v{d}\nv_lshl_add_u32 v{b}, v{d}, 6, v{b}\nv_mul_u32_u24 v{a}, 9216, v{hh}\nv_add_u32 v{vPA}, v{a}, v{b}')
        E_(self.ident(60, a))
        E_(f'v_lshlrev_b32 v73, 4, v0\nv_add_u32 v73, {E}, v73\nv_mov_b32 v76, 0\nv_mov_b32 v77, 0\nv_mov_b32 v78, 0\nv_mov_b32 v79, 0')
        E_([I(f'ds_write_b128 v73, v[76:79] offset:{4096*k}', tok='zf0') for k in range(3)])
        E_(f's_lshl2_add_u32 s64, s{sR}, s{sQ}\ns_lshl2_add_u32 s64, s64, s{sW}\ns_lshl4_add_u32 s64, s64, s{sJJ}\ns_lshl_b32 s{sFH}, s64, 3')
        E_(f's_lshl4_add_u32 s64, s3, s{sJ}\ns_lshl3_add_u32 s{sFO}, s64, {FL_O}')
        if c.ys not in (1, 5): E_(f's_lshl2_add_u32 s64, s{sR}, s{sJJ}\ns_lshl2_add_u32 s64, s64, s{sW}\ns_lshl4_add_u32 s64, s64, s{sQ}\ns_lshl3_add_u32 s{sFY}, s64, {FL_Y}')
        if c.hlay == 2: E_(f's_lshl4_add_u32 s64, s{sQ}, s{sR}\ns_lshl2_add_u32 s64, s64, s{sJJ}\ns_lshl2_add_u32 s64, s64, s{sW}\ns_lshl_b32 s64, s64, 11\ns_add_u32 s{sHown}, s64, {WS_H}')
        else: E_(f's_lshl4_add_u32 s64, s{sR}, s{sJ}\ns_lshl2_add_u32 s64, s64, s{sW}\ns_mul_i32 s64, s64, {2048 if c.hlay else 18432}\ns_add_u32 s{sHown}, s64, {WS_H}')
        T = 92
        h_, d_, a5, a, b, o1, o2 = T, T + 1, T + 2, T + 3, T + 4, 69, 70
        m1, m2 = 's[64:65]', 56
        E_(f'v_mul_u32_u24 v{h_}, 729, v0\nv_lshrrev_b32 v{h_}, 16, v{h_}\nv_mul_u32_u24 v{a}, 90, v{h_}\nv_sub_u32 v{a}, v0, v{a}')
        E_(f'v_mul_u32_u24 v{d_}, 205, v{a}\nv_lshrrev_b32 v{d_}, 10, v{d_}\nv_mul_u32_u24 v{b}, 5, v{d_}\nv_sub_u32 v{a5}, v{a}, v{b}')
        E_(f'v_mul_u32_u24 v{a}, 648, v{h_}\nv_mul_u32_u24 v{b}, 36, v{d_}\ns_movk_i32 s56, 180\nv_add_u32 v{a}, v{a}, v{b}\nv_cmp_gt_u32 {m1}, s56, v0\nv_lshl_add_u32 v{a}, v{a5}, 3, v{a}')
        E_(f's_mul_i32 s56, s{sJ}, 1296\nv_add_u32 v{a}, s56, v{a}\nv_cndmask_b32 v68, v31, v{a}, {m1}')
        E_(f'v_mul_u32_u24 v{b}, 18, v{h_}\nv_add_u32 v{d_}, v{b}, v{d_}')
        E_(f'v_and_b32 v{a}, 0x33, v{d_}\nv_and_b32 v{b}, 4, v{d_}\nv_lshl_or_b32 v{a}, v{b}, 1, v{a}\nv_bfe_u32 v{b}, v{d_}, 3, 1\nv_lshl_or_b32 v{a}, v{b}, 2, v{a}')
        E_(self.image_addr(a, h_, a5, o1, o2, T + 5, T + 6, m2))
        E_(f'v_mov_b32 v{b}, {DUMMY}\nv_cndmask_b32 v{o1}, v{b}, v{o1}, {m1}\nv_cndmask_b32 v{o2}, v{b}, v{o2}, {m1}')
        R_, e_, stp, rho, g_, src, dst, x_ = T, T + 1, T + 2, T + 3, T + 4, 71, 72, T + 5
        m2 = 's[56:57]'
        E_(f'v_mul_u32_u24 v{R_}, 7282, v0\nv_lshrrev_b32 v{R_}, 16, v{R_}\nv_mul_u32_u24 v{x_}, 9, v{R_}\nv_sub_u32 v{e_}, v0, v{x_}\ns_lshr_b32 s{sMi+1}, s2, 3\ns_mul_i32 s{sMi}, s{sMi+1}, 18\nv_add_u32 v{R_}, s{sMi}, v{R_}')
        E_(f'v_lshrrev_b32 v{stp}, 5, v{R_}\nv_and_b32 v{rho}, 31, v{R_}\nv_bfe_u32 v{g_}, v{R_}, 2, 2')
        E_(f'v_and_b32 v{x_}, 1, v{g_}\nv_mul_u32_u24 v{src}, 20, v{x_}\nv_lshrrev_b32 v{x_}, 1, v{g_}\nv_lshl_add_u32 v{src}, v{x_}, 3, v{src}\nv_lshrrev_b32 v{x_}, 4, v{rho}\nv_lshl_add_u32 v{src}, v{x_}, 2, v{src}')
        E_(f'v_mad_u32_u24 v{src}, v{stp}, 36, v{src}')
        E_(f'v_lshl_add_u32 v{g_}, v{x_}, 2, v{g_}\nv_and_b32 v{x_}, 1, v{stp}\nv_lshl_add_u32 v{g_}, v{x_}, 3, v{g_}\nv_cmp_le_u32 {m2}, 16, v{stp}\nv_mad_u32_u24 v{g_}, v{g_}, 36, 16')
        E_(f'v_and_b32 v{x_}, 3, v{rho}\nv_cndmask_b32 v{src}, v{src}, v{g_}, {m2}\nv_add_u32 v{src}, v{src}, v{x_}\nv_mul_u32_u24 v{src}, 1152, v{src}')
        E_(f's_and_b32 s{sMi}, s2, 7\ns_lshl_b32 s3, s{sMi}, 7\nv_lshlrev_b32 v{g_}, 4, v{e_}\nv_add_u32 v{g_}, s3, v{g_}\ns_lshl4_add_u32 s3, s{sMi}, 1024\nv_cmp_eq_u32 {m2}, 8, v{e_}\nv_mov_b32 v{x_}, s3')
        E_(f's_movk_i32 s3, 162\nv_cndmask_b32 v{g_}, v{g_}, v{x_}, {m2}\nv_cmp_gt_u32 {m1}, s3, v0\nv_add_u32 v{src}, v{src}, v{g_}')
        E_(f'v_bfe_u32 v{x_}, v{rho}, 2, 1\nv_cndmask_b32 v{src}, v31, v{src}, {m1}')
        E_(f'v_xor_b32 v{x_}, v{x_}, v{e_}\nv_and_b32 v{x_}, 3, v{x_}\nv_lshlrev_b32 v{x_}, 4, v{x_}\nv_lshl_add_u32 v{x_}, v{rho}, 6, v{x_}\nv_lshrrev_b32 v{e_}, 2, v{e_}\nv_lshl_add_u32 v{x_}, v{e_}, 11, v{x_}')
        E_(f'v_lshlrev_b32 v{rho}, 4, v{rho}\nv_add_u32 v{rho}, 4096, v{rho}\nv_cndmask_b32 v{x_}, v{x_}, v{rho}, {m2}\nv_mul_u32_u24 v{stp}, 4608, v{stp}\nv_add_u32 v{x_}, v{x_}, v{stp}')
        E_(f'v_cndmask_b32 v{dst}, v31, v{x_}, {m1}\ns_lshl_b32 s3, s{sMi}, 5\ns_add_u32 s{sMi+1}, s{sMi+1}, s3\ns_lshl3_add_u32 s{sMi+1}, s{sMi+1}, {FL_WO}\ns_mul_i32 s{sMi}, s{sMi}, 82944\ns_add_u32 s{sMi}, s{sMi}, {WS_WO}')
        E_(f'v_cmp_eq_u32 vcc, 0, v0\nv_and_b32 v30, 0x1f0, v{vL16}\nv_lshrrev_b32 v30, 2, v30\ns_lshl_b32 s3, s{sW}, 7\ns_add_u32 s3, s3, {RSA}\nv_add_u32 v30, s3, v30\nv_cndmask_b32 v73, v31, v0, vcc')
        E_(f'v_mov_b32 v{vPa}, 0\ns_and_b32 s56, s2, 1\ns_lshl_b32 s56, s56, 7')
        early = self.p; self.p = save
        cols = [0, 1, 2, 3, 4, 5, 6, 7]; cols.insert(c.c8p, 8)

        def xdma(cc):
            r = []
            if cc == 8: r += L(f's_add_u32 s59, s{sXO}, 1024')
            else:
                if cc: r += L('s_add_u32 s58, s58, 128\ns_and_b32 s58, s58, 0x3ff')
                r += L(f's_add_u32 s59, s{sXO}, s58')
            for i in range(4):
                if cc == 8: r += L(f's_add_u32 m0, s{sWL}, {i*SLOT + 8192 - i*1024}')
                elif i == 0: r += L(f's_add_u32 m0, s{sWL}, {(cc>>1)*SLOT + (cc&1)*4096}')
                r.append(I(f'buffer_load_dwordx4 v{2+i}, {srd(X)}, s59 offen offset:{i*1024} lds', tok=f'x{cc}'))
            return r

        def xread(cc):
            r = [W(f'x{cc}')]
            if cc == 4: r += [I(f'v_add_u32 v{6+k}, {2*SLOT}, v{6+k}') for k in range(4)]
            for ks in range(4):
                s = 4 * cc + ks
                if cc == 8: bs, o = 84 + ks, 8192
                else: bs, o = 6 + ks, ((cc >> 1) & 1) * SLOT + (cc & 1) * 4096
                r.append(I(f'ds_read_b128 v[{vX+4*s}:{vX+4*s+3}], v{bs} offset:{o}', tok=f'xr{cc}'))
            return r

        def xdots(cc):
            r = []
            for k in range(16):
                xr = vX + 16 * cc + k
                if not c.msum: r.append(I(f'v_dot2c_f32_bf16 v{52+(k&3)}, v88, v{xr}'))
                elif k % 4 == 0: r.append(I(f'v_mfma_f32_16x16x32_bf16 v[52:55], v[88:91], v[{xr}:{xr+3}], ' + ('0' if cc == cols[0] and k == 0 else 'v[52:55]')))
                r.append(I(f'v_dot2c_f32_bf16 v{56+(k&3)}, v{xr}, v{xr}'))
            return r

        def mix(main, fill):
            nv = sum(1 for x in main if x.kind in VM_KINDS)
            k = 0; done = 0
            for x in main:
                E_(x)
                if x.kind in VM_KINDS:
                    k += 1; upto = len(fill) * k // nv
                    E_(fill[done:upto]); done = upto
            E_(fill[done:])

        rpl = [I(f'buffer_load_dwordx4 a[{aRP+4*k}:{aRP+4*k+3}], v{v}, {srd(R)}, s{so} offen offset:{o}', tok='rpl')
               for k, (v, R, so, o) in enumerate(((64, QKV, 60, 1152), (65, QKV, 60, 0), (64, QKV, 60, 2304), (64, QKV, 60, 0), (66, W1, 61, 0)))]
        rpst = []
        for k in range(5):
            if k: rpst += L(f's_add_u32 s62, s62, {SLOT}')
            rpst.append(I(f'buffer_store_dwordx4 a[{aRP+4*k}:{aRP+4*k+3}], v67, {srd(WS)}, s62 offen sc1', tok='rpst'))
        self.rpst = rpst
        pf1 = L(f'buffer_load_dword a183, v{vPF}, {srd(W1)}, s{sPF} offen offset:128')
        lag = c.xlag
        self.w1pos = 0
        pend = []
        nA = min(max(c.nfill, ne2), len(early)); rest = early[nA:]; self.dbgn = (ne2, len(early))
        early_rp = isinstance(c.rpw, int)
        n2 = max(c.rpw, 1) if early_rp else lag
        if early_rp and c.rpw == 0: E_(early[:ne2]); E_(rpl); early = early[ne2:]; nA -= ne2; ne2 = 0
        for n in range(9 + lag):
            issue = xdma(cols[n]) if n < 9 else []
            if n < lag:
                if c.bulk is None: mix(issue, early[ne2 * n // n2: ne2 * (n + 1) // n2] if n < n2 else [])
                else: E_(issue)
                if c.tsp: E_(self.stamp(f'c{n}'))
                if hd2 and n + 1 == min(c.bulk, c.pf0p): E_(hd2); hd2 = []
                if n + 1 == c.pf0p: E_(pf0)
                if n + 1 == c.bulk: E_(early[:nA])
                if early_rp and n + 1 == c.rpw: E_(rpl); E_(self.stamp('rpl') if c.tsp else [])
                if n == lag - 1 and c.bulk is None: E_(early[ne2:nA])
                if c.tsp: E_(self.stamp(f'i{n}'))
                continue
            cc = cols[n - lag]
            if n == lag: E_(self.stamp('xiss'))
            if n in (lag + 1, lag + 2): E_(rest[:len(rest) // 2] if n == lag + 1 else rest[len(rest) // 2:])
            E_(xread(cc))
            if c.tsp and n > lag: E_(self.stamp(f'r{cc}'))
            if n == lag: E_(self.stamp('x8'))
            if n >= c.t0n and not hasattr(self, 't0done') and n - lag >= 3:
                issue = issue + [W('xr1', 'xr8')] + [x for g_ in self.dma_item(0) for x in g_] + (rpl if c.rpw == 'T0' else []) + (rpst if early_rp and c.rpo == 0 else []) + (pf1 if c.pf1 == 0 else []); self.t0done = True
                if c.rpo == 2: issue = rpst + issue
            elif n >= c.t1n and hasattr(self, 't0done') and not hasattr(self, 't1done') and n - lag >= 5 and not c.t1p:
                issue = issue + [W('xr3')] + [x for g_ in self.dma_item(1) for x in g_] + (rpl if c.rpw == 'T1' else []) + (pf1 if c.pf1 == 1 else []) + (rpst if c.rpo == 1 else []); self.t1done = True
            if n + 1 == c.pf0p: issue = issue + pf0
            if c.rpo >= 3 and n == c.rpo + 3: issue = issue + rpst
            if c.tagp and n == c.tagp:
                tld, tchk = self.poll('tag', DBG, vPa, 's56', vPo, tag=True)
                issue = issue + [tld]
            if early_rp and n + 1 == c.rpw: issue = issue + rpl
            if issue: mix(issue, pend)
            else: E_(pend)
            if c.tsp: E_(self.stamp(f'd{cc}'))
            pend = xdots(cc)
        E_(self.stamp('x7'))
        if c.tagp:
            assert c.rpo >= 3
            E_(tchk); E_(f'v_readfirstlane_b32 s{sN}, v{vPo}\nv_readfirstlane_b32 s{sN+1}, v{vPo+1}\nv_accvgpr_write_b32 a{aN}, v{vPo}\nv_accvgpr_write_b32 a{aN+1}, v{vPo+1}')
            x = self.flag(63); x.tok = 'rpflag'
            E_(pend[:4]); pend = pend[4:]; E_([W('rpst'), x])
        t1g = []
        if c.t1n >= 12 and not c.t1p:
            t1g = [list(g_) for g_ in self.dma_item(1)] + [pf1]; t1g[0] = [W('xr3')] + t1g[0]; self.t1done = True
            if c.t1n == 12: mix([x for g_ in t1g for x in g_], pend); pend = []; t1g = []
        E_(pend)
        assert hasattr(self, 't1done') or c.t1p
        if not c.msum: E_('v_add_f32 v52, v52, v53\nv_add_f32 v54, v54, v55')
        E_('v_add_f32 v56, v56, v57\nv_add_f32 v58, v58, v59')
        if not c.msum: E_('v_add_f32 v52, v52, v54\nv_mov_b32 v53, v52')
        E_('v_add_f32 v56, v56, v58\nv_mov_b32 v57, v56')
        if not c.msum: E_('v_permlane32_swap_b32 v52, v53\nv_add_f32 v52, v52, v53')
        inv = 0x3ae38e39
        E_(f'v_mul_f32 v52, {inv}, v52\nv_permlane32_swap_b32 v56, v57\nv_cvt_pk_bf16_f32 v53, v52, v52\nv_and_b32 v53, 0xffff0000, v53\nv_xor_b32 v48, 0x80000000, v53')
        E_('v_mov_b32 v49, v48\nv_mov_b32 v50, v48\nv_mov_b32 v51, v48')
        rs = L(f'v_add_f32 v56, v56, v57\nv_mul_f32 v56, {inv}, v56\nv_fma_f32 v56, -v52, v52, v56\nv_max_f32 v56, 0, v56')
        rs += L(f'v_cvt_pk_bf16_f32 v56, v56, v56\nv_and_b32 v56, 0xffff0000, v56\nv_add_f32 v56, 0x3727c5ac, v56\nv_cvt_pk_bf16_f32 v56, v56, v56\nv_and_b32 v56, 0xffff0000, v56\nv_sqrt_f32 v56, v56')
        rs += L(f'v_cvt_pk_bf16_f32 v56, v56, v56\nv_lshrrev_b32 v{vSD}, 16, v56\nv_and_b32 v56, 0xffff0000, v56\nv_rcp_f32 v{vRS}, v56')
        rs += L(f'v_add_u32 v{vCur}, {self.slot[0]}, v{vPA}\nv_xor_b32 v{vCur2}, 64, v{vCur}\nv_mul_f32 v{vC}, {LOG2E}, v{vRS}')
        E_(self.conv_mf(0)); E_(rs[:6])
        for s in range(c.npre):
            E_(self.conv_mf(s + 1))
            if s < 2: E_(rs[6 + 6 * s: 12 + 6 * s])
            for g_ in t1g[len(t1g) * s // c.npre: len(t1g) * (s + 1) // c.npre]: E_(g_)
            E_(self.conv_cvt(s))
        if c.rpw == 'pre': E_(rpl)

    def step_desc(self, i, idx):
        k = self.kind[i]
        if k in ('P0a', 'P0b'): return idx & 1, idx >> 1
        if k[0] == 'P' or k == 'B8': return idx // 18, idx % 18
        if k[0] == 'U': return idx // 9, idx % 9
        return 0, idx

    def retile(self, gs):
        i, idx = divmod(gs, 36)
        return 20 + idx // 18, 2 * (i - 20) + (idx // 9 & 1), idx % 9

    def reads(self, gs):
        i, idx = divmod(gs, 36)
        if self.c.rt2 and i >= 20:
            ti, mt, s = self.retile(gs)
            b = RING + 4 * (gs % (self.c.D + 2)); r = []
            if gs == 720: r.append(I(f'v_add_u32 v{vCur}, {self.slot[20]}, v{vPU}'))
            elif s == 0: r.append(I(f'v_xor_b32 v{vCur}, {64*(mt ^ self.retile(gs-1)[1])}, v{vCur}'))
            d = self.slot[ti] - self.slot[20]
            assert 0 <= d <= 36864
            return r + [I(f'ds_read_b64_tr_b16 a[{b+2*rd}:{b+2*rd+1}], v{vCur} offset:{d+rd*18432+s*1024}', tok=f'f{gs}') for rd in range(2)]
        k = self.kind[i]; mt, s = self.step_desc(i, idx)
        b = RING + 4 * (gs % (self.c.D + 2))
        r = []; reg = vCur
        if idx == 0 and i > 0:
            src = vPA if k[0] == 'P' else (vPU if k[0] == 'U' else vS)
            r.append(I(f'v_add_u32 v{vCur}, {self.slot[i]}, v{src}'))
            if k == 'P0b': r.append(I(f'v_xor_b32 v{vCur2}, 64, v{vCur}'))
        if k in ('P0a', 'P0b'):
            if mt: reg = vCur2
        elif s == 0 and mt: r.append(I(f'v_xor_b32 v{vCur}, {64*(mt ^ (mt-1))}, v{vCur}'))
        for rd in range(2):
            if k[0] == 'P': o = (s & 1) * 18432 + (s >> 1) * 1024 + rd * 512
            elif k == 'B8': o = (2 * (s & 1) + rd) * 9216 + (s >> 1) * 1024
            elif k[0] == 'U': o = rd * 18432 + s * 1024
            else: o = s * 1024 + rd * 256
            r.append(I(f'ds_read_b64_tr_b16 a[{b+2*rd}:{b+2*rd+1}], v{reg} offset:{o}', tok=f'f{gs}'))
        return r

    def main_steps(self):
        c = self.c; D = c.D
        steps = []
        NS = 22 * 36
        LA = c.npre
        for gs in range(NS):
            i, idx = divmod(gs, 36)
            k = self.kind[i]; mt, s = self.step_desc(i, idx)
            b = RING + 4 * (gs % (D + 2))
            tk = []
            if i < 13:
                xs = s + (18 if k[-1] == 'b' and k[0] == 'P' else 0)
                B = f'v[{vX+4*xs}:{vX+4*xs+3}]' if i < c.xa else f'a[{4*xs}:{4*xs+3}]'
                first = xs == 0; acc = self.acc[(i, mt)]
            elif i == 13:
                B = f'v[{vH+4*s}:{vH+4*s+3}]'; first = s == 0; acc = self.acc[(i, mt)]
            else:
                ti = i
                if c.rt2 and i >= 20: ti, mt, s = self.retile(gs)
                pe, hf, st = self.g2[ti]
                B = f'v[{vH+4*(9*hf+s)}:{vH+4*(9*hf+s)+3}]' if pe == 0 else f'a[{36*st+4*s}:{36*st+4*s+3}]'
                first = (i == 14 and s == 0); acc = GA + 16 * mt
                if pe and mt == 0: tk.append(f'ph{ti}_{s}')
            mf = I(f'v_mfma_f32_32x32x16_bf16 v[{acc}:{acc+15}], a[{b}:{b+3}], {B}, ' + ('0' if first else f'v[{acc}:{acc+15}]'))
            if gs % c.we == 0: tk += [f'f{x}' for x in range(gs, min(gs + c.we, NS))]
            pre = [W(*tk)] if tk else []
            post = []; end = []
            ns = gs + D
            if ns < NS: post += self.reads(ns)
            else:
                kk = ns - NS
                for x in range(c.Ds * kk // D, c.Ds * (kk + 1) // D): post += self.s_reads(x)
            if c.rt2 and i == 20:
                assert not self.bar_need.get(20)
                if ns % 36 == 17: post += self.xs(f'b{i}', [W('T21')] + L('s_barrier'))
            elif ns % 36 == 35:
                nd = list(self.bar_need.get(i, []))
                if i == 21 and c.rt2: nd.append('f773')
                if i < 21: nd.append(f'T{i+1}')
                if i == 20: nd.append(f'f{ns}')
                post += self.xs(f'b{i}', [W(*nd)] + L('s_barrier'))
            if i < 2:
                xs = 18 * i + s
                if mt == 0 and xs + LA < 36: post += self.conv_cvt(xs + LA)
                if mt == 1 and xs + LA + 1 < 36: end = self.conv_mf(xs + LA + 1)
            steps.append(Step(mf, pre, post, c.caps.get(i, c.cap), end))
        return steps

    def epi_G(self, tau, acc):
        h = vH + 8 * tau
        r = [I(f'v_cvt_pk_bf16_f32 v{h+k}, v{acc+2*k}, v{acc+2*k+1}') for k in range(8)]
        r += [I(f'v_pk_max_i16 v{h+k}, v{h+k}, 0') for k in range(8)]
        st = []
        hl = self.c.hlay
        if tau and (hl or tau % 2 == 0): st += L(f's_add_u32 s{sHown}, s{sHown}, {1 << 21 if hl else 4096}')
        for k in range(2):
            st.append(I(f'buffer_store_dwordx4 v[{h+4*k}:{h+4*k+3}], v{vL16}, {srd(WS)}, s{sHown} offen offset:{(0 if hl else (tau&1)*2048)+k*1024} sc1', tok=f'h{tau}'))
        return r, st

    PK = {'Ta': 136, 'Tb': 144, 'Tc': 152, 'Td': 160}

    def epi_Q(self, kind, acc):
        pk = self.PK[kind]
        n = 6 if kind == 'Tb' else 8
        r = [I(f'v_cvt_pk_bf16_f32 v{pk+k}, v{acc+2*k}, v{acc+2*k+1}') for k in range(n)]
        if kind == 'Tb': r += L(f'v_mov_b32 v{pk+6}, 0\nv_mov_b32 v{pk+7}, 0')
        return r

    def pmfma(self, which, P):
        m = self.PK['Ta' if which == 'k' else 'Td']
        B = [m, m + 4, self.PK['Tb'] + (0 if which == 'k' else 4)]
        r = []
        for s in range(3):
            r.append(I(f'v_mfma_f32_32x32x16_bf16 v[{P}:{P+15}], a[{aPHI+4*s}:{aPHI+4*s+3}], v[{B[s]}:{B[s]+3}], ' + ('0' if s == 0 else f'v[{P}:{P+15}]')))
        for s in range(3):
            r.append(I(f'v_mfma_f32_16x16x32_bf16 v[{P+16}:{P+19}], a[{aPHI+12+4*s}:{aPHI+12+4*s+3}], v[{B[s]}:{B[s]+3}], ' + ('0' if s == 0 else f'v[{P+16}:{P+19}]')))
        return r

    def softmax(self, P, EP, PHIo, T, norm_first, keepS=None):
        p = [P + k for k in range(18)]
        mx, mn, s1, s2 = T, T + 1, T + 2, T + 3
        r = []
        a = [f'v_max3_f32 v{mx}, v{p[0]}, v{p[1]}, v{p[2]}'] + [f'v_max3_f32 v{mx}, v{mx}, v{p[k]}, v{p[k+1]}' for k in range(3, 17, 2)] + [f'v_max_f32 v{mx}, v{mx}, v{p[17]}']
        b = [x.replace('max', 'min').replace(f'v{mx}', f'v{mn}') for x in a]
        for x, y in zip(a, b): r += L(x + '\n' + y)
        r[0].gap = 3
        r += L(f'v_mul_f32_e64 v{mx}, -v{vC}, v{mx}\nv_mul_f32 v{mn}, v{vC}, v{mn}')
        for k in range(18):
            r += L(f'v_fma_f32 v{EP+k}, v{p[k]}, v{vC}, v{mx}\nv_fma_f32 v{p[k]}, v{p[k]}, -v{vC}, v{mn}')
            r += L(f'v_exp_f32 v{EP+k}, v{EP+k}\nv_exp_f32 v{p[k]}, v{p[k]}')
            if k == 2:
                r += L(f'v_add_f32 v{s1}, v{EP}, v{EP+1}\nv_add_f32 v{s2}, v{p[0]}, v{p[1]}')
            elif k > 2:
                r += L(f'v_add_f32 v{s1}, v{s1}, v{EP+k-1}\nv_add_f32 v{s2}, v{s2}, v{p[k-1]}')
        r += L(f'v_add_f32 v{s1}, v{s1}, v{EP+17}\nv_add_f32 v{s2}, v{s2}, v{p[17]}')
        if norm_first:
            r += L(f'v_rcp_f32 v{s1}, v{s1}\nv_rcp_f32 v{s2}, v{s2}\nv_mul_f32 v{s1}, v{vRS}, v{s1}\nv_mul_f32 v{s2}, v{vRS}, v{s2}')
            for k in range(0, 18, 2):
                r += L(f'v_mul_f32 v{EP+k}, v{s1}, v{EP+k}\nv_mul_f32 v{EP+k+1}, v{s1}, v{EP+k+1}\nv_cvt_pk_bf16_f32 v{PHIo+k//2}, v{EP+k}, v{EP+k+1}')
        else:
            r += L(f'v_rcp_f32 v{s2}, v{s2}\nv_mul_f32 v{keepS}, 0x358637bd, v{s1}')
            for k in range(0, 18, 2):
                r += L(f'v_cvt_pk_bf16_f32 v{PHIo+k//2}, v{EP+k}, v{EP+k+1}')
            r += L(f'v_mul_f32 v{s2}, v{s1}, v{s2}')
        for k in range(0, 18, 2):
            r += L(f'v_mul_f32 v{p[k]}, v{s2}, v{p[k]}\nv_mul_f32 v{p[k+1]}, v{s2}, v{p[k+1]}\nv_cvt_pk_bf16_f32 v{PHIo+9+k//2}, v{p[k]}, v{p[k+1]}')
        return r

    @staticmethod
    def image_addr(rho, h_, cc, o1, o2, t1, t2, m):
        return (f'v_lshlrev_b32 v{t1}, 6, v{rho}\nv_lshl_add_u32 v{t1}, v{cc}, 4, v{t1}\nv_lshl_add_u32 v{t1}, v{h_}, 3, v{t1}\nv_cmp_gt_u32 s[{m}:{m+1}], 4, v{cc}\nv_add_u32 v{t1}, {E}, v{t1}\n'
                f'v_lshlrev_b32 v{t2}, 5, v{rho}\nv_lshl_add_u32 v{t2}, v{h_}, 4, v{t2}\nv_add_u32 v{t2}, {E2}, v{t2}\n'
                f'v_cndmask_b32 v{o1}, v{t2}, v{t1}, s[{m}:{m+1}]\nv_add_u32 v{t2}, {2688+8}, v{t2}\nv_cndmask_b32 v{o2}, v{t2}, v{t1}, s[{m}:{m+1}]')

    @staticmethod
    def ex_addr(d, t1):
        return (F_TB(t1) + f'\nv_mul_u32_u24 v{d}, 2688, v{t1}\n' + F_HH(t1) + f'\nv_lshl_add_u32 v{d}, v{t1}, 8, v{d}\n' + F_R4(t1) +
                f'\nv_lshl_add_u32 v{d}, v{t1}, 5, v{d}\n' + F_C4(t1) + f'\nv_lshl_add_u32 v{d}, v{t1}, 3, v{d}\nv_add_u32 v{d}, {E2}, v{d}')

    def build_streams(self):
        c = self.c
        P0 = lambda p: 36 * p
        bar = lambda p: 36 * p + 35 - c.D
        self.bar_need = {}
        need = lambda p, t: self.bar_need.setdefault(p, []).append(t)
        S = {}
        pos = {k: self.kind.index(k) for k in RPI}
        m = []
        A = lambda st, x: m.extend((st, [y]) for y in (L(x) if isinstance(x, str) else x))
        G = lambda st, x: m.append((st, glue(L(x) if isinstance(x, str) else x)))
        DL = lambda st: m.append(('deadline', st))
        pd = c.pdist
        items = sorted([i for i in self.loadp if self.loadp[i] >= 0], key=lambda i: (self.loadp[i], 99 if isinstance(i, str) else i))
        first_rp = min(pos.values())
        pg = 99
        for i in items:
            p = self.loadp[i]
            same = [x for x in items if self.loadp[x] == p]
            idx = same.index(i)
            d0 = c.dly if (p - 1) in c.pf.values() else 0
            dend = min(c.dend, c.pfs) if p in c.pf.values() else c.dend
            span = (dend - d0) // len(same)
            if i == first_rp:
                st = P0(p) - pd
                if not c.tagp: m.append(('after', ('misc', 'rpflag')))
                A(st, f'v_lshrrev_b32 v{vPa}, 1, v{vL16}\ns_lshl_b32 s{sD}, s{sJ}, 9\ns_add_u32 s{sD+4}, s{sD}, {FL_RP}')
                ld, chk = self.poll('rp', WS, vPa, f's{sD+4}', vPo)
                self.defer = (st, ld, P0(p) - 1, chk)
            if i == 'woA': m.append(('after', ('peer', 8)))
            if getattr(self, 'defer', None):
                st, ld, st2, chk = self.defer; self.defer = None
                nset = 3 if c.tagp else 4
                blk = m[-nset:] + [(st, [ld])]; del m[-nset:]
                k = len(m)
                while k > 0 and (isinstance(m[k-1][0], str) or m[k-1][0] > st): k -= 1
                m[k:k] = blk
                G(st2, chk)
            grps = self.dma_item(i)
            nd = sum(1 for gg in grps if gg[0].kind == 'dma')
            k = 0
            for gg in grps:
                st = P0(p) + d0 + idx * span + (k * span) // nd
                if gg[0].kind == 'dma': k += 1
                elif k == 0: st = max(st - 6, P0(p) - 4 if idx == 0 else 0)
                else: st = max(st - 1, P0(p))
                m.append((st, gg))
            if idx == len(same) - 1:
                for nm, pp in c.pf.items():
                    if pp != p: continue
                    st = P0(p) + c.pfs
                    if nm[0] == 'P': A(st, f'buffer_load_dword a{182+list(c.pf).index(nm)%2}, v{vPF}, {srd(W1)}, s{sPF} offen offset:{128*int(nm[1])}')
                    elif nm == 'B8':
                        A(st - 8, f'v_lshrrev_b32 v{vCur2}, 5, v{vL16}\nv_mul_u32_u24 v{vCur2}, 1152, v{vCur2}\nv_and_b32 v{vPF}, {OOB}, v{vPF}\nv_or_b32 v{vPF}, v{vPF}, v{vCur2}\nv_and_b32 v{vCur2}, 16, v{vL16}\nv_lshl_add_u32 v{vPF}, v{vCur2}, 3, v{vPF}')
                        A(st - 8, f's_lshr_b32 s{sPF}, s2, 5\ns_lshl2_add_u32 s{sPF}, s{sPF}, s{sW}\ns_lshl_b32 s{sD}, s{sQ}, 7\ns_add_u32 s{sPF}, s{sPF}, s{sD}\ns_mul_i32 s{sPF}, s{sPF}, {9*1152}')
                        A(st - 8, f's_mul_i32 s{sD}, s{sJJ}, {288*1152}\ns_add_u32 s{sD}, s{sD}, s{sPF}\ns_lshl_b32 s{sD+1}, s{sJJ}, 8\ns_add_u32 s{sPF}, s{sPF}, s{sD+1}')
                        A(st, f'buffer_load_dword a{182+list(c.pf).index(nm)%2}, v{vPF}, {srd(W2)}, s{sD} offen offset:896')
                    else:
                        A(st - 4, f's_add_u32 s{sD}, s{sJJ}, {int(nm[1])}\ns_and_b32 s{sD}, s{sD}, 3\ns_mul_i32 s{sD}, s{sD}, {288*1152}\ns_add_u32 s{sD}, s{sD}, s{sPF}')
                        A(st, f'buffer_load_dword a{182+list(c.pf).index(nm)%2}, v{vPF}, {srd(W2)}, s{sD} offen')
            DL((bar(i - 1) - (18 if c.rt2 and i == 21 else 0)) if isinstance(i, int) else bar(21))
        S['dma'] = TimedStream('dma', m)

        def dma_insert(st, groups):
            it = S['dma'].items
            k = 0
            while k < len(it) and (isinstance(it[k][0], str) or it[k][0] <= st): k += 1
            assert it[k-1][0] == 'deadline'
            it[k:k] = [(st, gg) for gg in groups]
        one = lambda x: [[y] for y in (L(x) if isinstance(x, str) else x)]

        m = []
        flagA = (8) // 2
        flg = []
        for n, (s0, s1, acc, key) in enumerate(self.chain):
            k = self.kind[key[0]]
            nxt = [x[0] for x in self.chain[n + 1:] if x[2] == acc]
            st = s1 + 3
            if key in self.tau:
                tau = self.tau[key]
                r, sto = self.epi_G(tau, acc)
                A(st, r)
                dl = nxt[0] - 1 if nxt else 10**9
                dl = min(dl, P0(13) + 2 * tau - 2)
                if key[0] == 1: dl = min(dl, P0(2) + 30)
                DL(max(dl, st)); A(st, sto)
                if tau in (flagA, 8):
                    flg.append(('after', ('epi', f'h{tau}')))
                    flg.append((st + c.hfd, self.xs(f'hf{tau}', glue([W(*[f'h{x}' for x in range(tau + 1)]), self.flag(sFH, 0 if tau == flagA else 32)]))))
            elif k == 'B8':
                mt = key[1]
                if mt == 0:
                    A(st - 12, F_HH(vCur2) + f'\nv_lshlrev_b32 v{vCur2}, {11 if c.ylay else 13}, v{vCur2}\nv_and_b32 v{vW1}, 0x1f0, v{vL16}\nv_add_u32 v{vCur2}, v{vCur2}, v{vW1}')
                    if c.ylay: A(st - 12, f's_lshl4_add_u32 s{sE}, s{sQ}, s{sR}\ns_lshl2_add_u32 s{sE}, s{sE}, s{sW}\ns_lshl3_add_u32 s{sE}, s{sE}, s{sJJ}\ns_lshl_b32 s{sE}, s{sE}, 9\ns_add_u32 s{sE}, s{sE}, {WS_Y8}')
                    else: A(st - 12, f's_lshl2_add_u32 s{sE}, s{sR}, s{sW}\ns_lshl_b32 s{sE}, s{sE}, 7\ns_add_u32 s{sE}, s{sE}, s{sJ}\ns_lshl_b32 s{sE}, s{sE}, 9\ns_add_u32 s{sE}, s{sE}, {WS_Y8}')
                A(st, [I(f'v_cvt_pk_bf16_f32 v{acc+k_}, v{acc+2*k_}, v{acc+2*k_+1}') for k_ in range(8)])
                A(st, [I(f'v_permlane32_swap_b32 v{acc+4*ip+k_}, v{acc+4*ip+2+k_}') for ip in range(2) for k_ in range(2)])
                for ip in range(2):
                    if mt or ip: A(st, f's_add_u32 s{sE}, s{sE}, {1 << 20 if c.ylay else 16384}')
                    A(st, [I(f'buffer_store_dwordx4 v[{acc+4*ip}:{acc+4*ip+3}], v{vCur2}, {srd(WS)}, s{sE} offen sc1', tok='y8st')])
            else:
                A(st, self.epi_Q(k, acc)); DL(nxt[0] - 1)
        S['flg'] = TimedStream('flg', flg)
        S['epi'] = TimedStream('epi', m)

        if c.ys in (1, 2):
            m = []
            nc = 8 if c.ys == 1 else 4
            sts = list(c.ycl) if len(c.ycl) == nc else [c.ycl[0] + c.ycl[1] * k for k in range(nc)]
            st = sts[0]
            A(st - 16, f's_lshl2_add_u32 s84, s{sR}, s{sJJ}\ns_lshl2_add_u32 s84, s84, s{sW}\ns_lshl2_add_u32 s84, s84, s{sQ}\ns_lshl_b32 s84, s84, 13\ns_add_u32 s84, s84, {WS_Y}')
            A(st - 16, [I(f'v_accvgpr_write_b32 a{172+k}, -1') for k in range(4)])
            va = vL16
            if c.ys == 2:
                va = vPo
                assert P0(3) < st - 16 and sts[-1] < P0(c.wop - 1)
                A(st - 16, f's_and_b32 s83, s{sQ}, 1\ns_lshl_b32 s83, s83, 12\ns_add_u32 s84, s84, s83\ns_xor_b32 s83, s{sQ}, s{sW}\ns_lshl_b32 s83, s83, 30\ns_andn2_b32 s83, {OOB}, s83\nv_or_b32 v{va}, s83, v{vL16}')
            for k in range(nc):
                st = sts[k]
                if k == 4: A(st - 2, 's_add_u32 s84, s84, 4096')
                A(st, [I(f'buffer_store_dwordx4 a[172:175], v{va}, {srd(WS)}, s84 offen offset:{1024*(k%4)} sc1', tok='yclr')])
            DL(P0(13) if c.ys == 1 else P0(c.wop - 1))
            S['yclr'] = TimedStream('yclr', m)

        m = []
        for s in range(36):
            st = max(2 * (s - c.npre) + 3, P0(1)) if s < 18 else P0(2)
            A(st, [I(f'v_accvgpr_write_b32 a{4*s+k}, v{vX+4*s+k}') for k in range(4)])
        DL(P0(c.xa) - 2)
        S['accw'] = TimedStream('accw', m)

        m = []
        T = 96
        tb0 = P0(2) + 32
        if not c.tagp:
            ld, chk = self.poll('tag', DBG, vPa, 's56', vPo, tag=True)
            A(0, [ld])
        A(0, [I(f'buffer_load_dword a{aWP+k}, v68, {srd(PHI)}, 0 offen offset:{4*k}', tok='wphi') for k in range(2)])
        A(0, [I(f'buffer_load_dwordx4 a[{aWO}:{aWO+3}], v71, {srd(WO)}, 0 offen', tok='wold')])
        A(0, [I(f'ds_write_b32 v30, v{vRS}', tok='rsw')])
        ev = []
        if not isinstance(c.rpw, int): ev.append((c.rps, lambda: A(c.rps, self.rpst)))
        tc_ = min(c.rpf - 8, 40)
        if not c.tagp: ev.append((tc_, lambda: (G(tc_, chk), A(tc_, f'v_readfirstlane_b32 s{sN}, v{vPo}\nv_readfirstlane_b32 s{sN+1}, v{vPo+1}\nv_accvgpr_write_b32 a{aN}, v{vPo}\nv_accvgpr_write_b32 a{aN+1}, v{vPo+1}'))))
        x = self.flag(63); x.tok = 'rpflag'
        if not c.tagp: ev.append((c.rpf, lambda: G(c.rpf, [W('rpst'), x])))
        pw = 1

        def wimg():
            st = c.wim
            A(st, [I(f'ds_write_b64 v{69+k}, a[{aWP}:{aWP+1}]', tok='wimg') for k in range(2)])
            A(st, [I(f'buffer_store_dwordx4 a[{aWO}:{aWO+3}], v72, {srd(WS)}, s{sMi} offen sc1', tok='wost')])
            A(st, f'v_mov_b32 v{vPU}, v73')
            need(pw, 'wimg'); need(pw, 'rsw'); DL(bar(pw))
        ev.append((c.wim, wimg))
        assert not isinstance(c.rpw, str) or c.rps < c.wim
        for _, f_ in sorted(ev, key=lambda e: e[0]): f_()
        st = tb0
        A(st, self.ex_addr(T, T + 1) + f'\nv_add_u32 v{T+1}, {E}, v{vS}')
        for s in range(3):
            for k in range(2):
                A(st, [I(f'ds_read_b64_tr_b16 a[{aPHI+4*s+2*k}:{aPHI+4*s+2*k+1}], v{T+1} offset:{1024*s+256*k}', tok='wfr')])
                A(st, [I(f'ds_read_b64_tr_b16 a[{aPHI+12+4*s+2*k}:{aPHI+12+4*s+2*k+1}], v{T} offset:{512*s+128*k}', tok='wfr')])
        need(3, 'wfr'); need(3, 'wost'); DL(bar(3))
        st = bar(3) + 1
        A(st, [self.flag(sMi + 1, v=vPU)])
        t0, t1 = T + 4, T + 5
        A(st, f'v_lshlrev_b32 v{t0}, 4, v0\nv_add_u32 v{t0}, {E}, v{t0}\nv_mov_b32 v{T}, 0\nv_mov_b32 v{T+1}, 0\nv_mov_b32 v{T+2}, 0\nv_mov_b32 v{T+3}, 0')
        A(st, [I(f'ds_write_b128 v{t0}, v[{T}:{T+3}] offset:{4096*k}', tok='zf1') for k in range(3)])
        A(st, F_G(t0) + f'\nv_mul_u32_u24 v{vK}, 1152, v{t0}\nv_lshlrev_b32 v{t0}, 6, v{t0}\nv_and_b32 v{t1}, 0xf0, v{vL16}\nv_xor_b32 v{t0}, v{t0}, v{t1}\nv_add_u32 v{vK}, v{vK}, v{t0}')
        for k in range(1, 9): A(st, f'v_add_u32 v{vK+k}, {k*16*1152 - (k%4)*1024}, v{vK}')
        A(st, f'v_and_b32 v{t0}, 0x3f, v{vPA}\n' + F_R4(t1) + f'\nv_mul_u32_u24 v{t1}, 320, v{t1}\nv_add_u32 v{t0}, v{t0}, v{t1}\n' + F_HH(t1) +
          f'\nv_mul_u32_u24 v{t1}, 9216, v{t1}\nv_add_u32 v{t0}, v{t0}, v{t1}\ns_and_b32 s{sMi}, s{sQ}, 1\ns_lshl_b32 s{sMi}, s{sMi}, 7\ns_xor_b32 s{sMi}, s{sMi}, 128\nv_xor_b32 v{vPU}, s{sMi}, v{t0}')
        t4 = min(s1 for s0, s1, acc, key in self.chain if self.tau.get(key) == 4)
        DL(min(bar(5), t4))
        t0 = 135
        self.vES = 253
        A(max(st, P0(c.xa)), f'v_add_u32 v{self.vES}, {E}, v{vS}')
        need(5, 'zf1'); DL(bar(5))
        lastS = max(pos.values())
        st = max(st, bar(lastS - 1) + 2)
        A(st, f'v_and_b32 v{vS}, 0x1ff, v{vPA}\n' + F_HH(t0) + f'\nv_lshl_add_u32 v{vS}, v{t0}, 9, v{vS}')
        DL(P0(pos['S'] + 1))
        S['misc'] = TimedStream('misc', m)

        m = []
        a0, a1, a2, a3, a4, a5 = range(vAt, vAt + 6)
        PK_ = self.PK
        Pk, EPk, PHk, Tk = 168, 188, 206, 224
        kready = P0(max(pos['Ta'], pos['Tb']) + 1) + 8
        sKL, sKS, sOM, sOX = 57, 58, 59, 3
        park = lambda k, v: f'v_accvgpr_write_b32 a{aPK+k}, v{v}'
        unpark = lambda k, v: f'v_accvgpr_read_b32 v{v}, a{aPK+k}'
        mA = f's[{sAM}:{sAM+1}]'
        st = P0(2)
        m.append(('after', ('misc', 'wost'))); m.append(('after', ('misc', 'rpflag')))
        A(st, f'v_and_b32 v{a2}, 16, v{vL16}\nv_mov_b32 v{a3}, 0x3f80\nv_lshlrev_b32 v{a3}, v{a2}, v{a3}\nv_bfe_u32 v{a2}, v{vL16}, 5, 3')
        for k in range(4): A(st, f'v_cmp_eq_u32 {mA}, {k}, v{a2}\nv_cndmask_b32 v{a4}, 0, v{a3}, {mA}\nv_accvgpr_write_b32 a{aSEL+k}, v{a4}')
        for gp in range(3):
            u, h_, cc = a0, a1, a2
            A(st, F_N(u) + f'\ns_mul_i32 s{sA}, s{sW}, 48\ns_add_u32 s{sA}, s{sA}, {16*gp}\nv_add_u32 v{u}, s{sA}, v{u}\ns_movk_i32 s{sA}, 90\nv_cmp_le_u32 {mA}, s{sA}, v{u}\n' + F_G(a3))
            A(st, f'v_lshrrev_b32 v{a5}, 1, v{a3}\nv_lshl_add_u32 v{a5}, v{a5}, 8, v{u}\ns_movk_i32 s{sA}, 180\nv_cndmask_b32 v{h_}, 0, 1, {mA}\nv_cmp_gt_u32 s[{sA+2}:{sA+3}], s{sA}, v{a5}')
            A(st, f'v_mul_u32_u24 v{a4}, 90, v{h_}\nv_sub_u32 v{u}, v{u}, v{a4}\nv_mul_u32_u24 v{cc}, 3641, v{u}\nv_lshrrev_b32 v{cc}, 16, v{cc}')
            A(st, f'v_mul_u32_u24 v{a4}, 18, v{cc}\nv_sub_u32 v{u}, v{u}, v{a4}\nv_lshl_add_u32 v{u}, v{u}, 1, v{a3}\nv_lshrrev_b32 v{a4}, 3, v{u}\nv_and_b32 v{u}, 7, v{u}\nv_lshl_add_u32 v{u}, v{a4}, 4, v{u}\nv_lshl_add_u32 v{u}, v{h_}, 3, v{u}')
            A(st, self.image_addr(u, h_, cc, a5, u, a3, a4, sAM))
            A(st, f'v_mov_b32 v{a4}, {DUMMY}\nv_cndmask_b32 v{a5}, v{a4}, v{a5}, s[{sA+2}:{sA+3}]\nv_cndmask_b32 v{u}, v{a4}, v{u}, s[{sA+2}:{sA+3}]\n' + park(2 * gp, a5) + '\n' + park(2 * gp + 1, u))
        A(st, F_G(a2) + f'\nv_mul_u32_u24 v{a2}, 3072, v{a2}\nv_and_b32 v{a3}, 0xf0, v{vL16}\nv_add_u32 v{a2}, v{a2}, v{a3}\ns_mul_i32 s{sKL}, s{sW}, 768\ns_sub_u32 s{sA+2}, {148*16}, s{sKL}')
        A(st, f'v_cmp_gt_u32 {mA}, s{sA+2}, v{a3}\nv_mov_b32 v{a5}, {OOB}\ns_mul_i32 s{sA+2}, s{sJ}, 49152\ns_add_u32 s{sKL}, s{sKL}, s{sA+2}\ns_add_u32 s{sKL}, s{sKL}, {WS_KV}\nv_cndmask_b32 v{a3}, v{a5}, v{a2}, {mA}')
        A(st, park(6, a2) + '\n' + park(7, a3))
        A(st, f's_and_b32 s{sA}, s{sW}, 1\ns_lshr_b32 s{sA+1}, s{sW}, 1')
        A(st, F_G(a4) + f'\nv_mul_u32_u24 v{a2}, 288, v{a4}\nv_cmp_eq_u32 {mA}, 0, v{a4}\nv_mov_b32 v{a3}, 1152\n' + F_N(a4) + f'\nv_cndmask_b32 v{a3}, v{a5}, v{a3}, {mA}')
        G(st, f's_cmp_eq_u32 s{sA}, 1\ns_cselect_b64 {mA}, -1, 0')
        A(st, f'v_cndmask_b32 v{a2}, v{a2}, v{a3}, {mA}\nv_cmp_gt_u32 {mA}, 4, v{a4}\nv_lshl_add_u32 v{a2}, v{a4}, 3, v{a2}')
        A(st, f's_lshl4_add_u32 s{sKS}, s{sJ}, s{sR}\ns_mul_i32 s{sKS}, s{sKS}, 3072\ns_mul_i32 s{sA+2}, s{sA+1}, 1440\nv_cndmask_b32 v{a3}, v{a5}, v{a2}, {mA}\ns_add_u32 s{sKS}, s{sKS}, s{sA+2}\ns_add_u32 s{sKS}, s{sKS}, {WS_KV}')
        A(st, park(8, a2) + '\n' + park(9, a3))
        A(st, f'v_bfe_u32 v{a0}, v{vL16}, 6, 3\n' + F_HH(a1) + f'\nv_lshl_add_u32 v{a0}, v{a0}, 2, v{a1}\nv_mul_u32_u24 v{a0}, 232, v{a0}\n' + F_C4(a1) + f'\nv_lshl_add_u32 v{a1}, v{a1}, 3, v{a0}')
        A(st, f's_mul_i32 s{sA+2}, s{sA}, s{sA+1}\ns_mul_i32 s{sA+2}, s{sA+2}, 40\ns_lshl_b32 s{sA+3}, s{sA}, 5\ns_sub_u32 s{sA+3}, s{sA+3}, s{sA+2}')
        A(st, f's_mul_i32 s{sA+2}, s{sA+1}, 48\ns_add_u32 s{sA+3}, s{sA+3}, s{sA+2}\ns_add_u32 s{sA+3}, s{sA+3}, {144 + self.slotS}\nv_add_u32 v{a0}, s{sA+3}, v{a1}')
        A(st, f's_mul_i32 s{sA+2}, s{sA+1}, 72\ns_add_u32 s{sA+2}, s{sA+2}, {self.slotS}\nv_add_u32 v{a1}, s{sA+2}, v{a1}')
        A(st, park(10, a0) + '\n' + park(11, a1))
        A(st, self.ex_addr(a0, a1) + '\n' + park(12, a0))
        A(st, f's_lshl2_add_u32 s{sA}, s{sR}, s{sW}\ns_lshl4_add_u32 s{sOM}, s{sA}, s{sJ}\ns_lshl_b32 s{sOM}, s{sOM}, 11\ns_add_u32 s{sOM}, s{sOM}, {WS_OM}')
        A(st, f's_lshl_b32 s{sA}, s{sA}, 12\ns_lshr_b32 s{sA+2}, s{sJ}, 3\ns_lshl2_add_u32 s{sA+2}, s{sA+2}, s{sJJ}\ns_lshl_b32 s{sA+2}, s{sA+2}, 9\ns_add_u32 s{sA}, s{sA}, s{sA+2}')
        A(st, f's_and_b32 s{sA+2}, s{sQ}, 1\ns_lshl3_add_u32 s{sA}, s{sA+2}, s{sA}\ns_add_u32 s{sOX}, s{sA}, {WS_OX}\nv_and_b32 v{a1}, 0x1f0, v{vL16}\n' + F_HH(a2) + f'\nv_lshl_add_u32 v{a1}, v{a2}, 2, v{a1}\n' + park(13, a1))
        A(st, F_T(a4) + f'\nv_mul_u32_u24 v{a4}, 232, v{a4}\ns_mul_i32 s{sA}, s{sW}, {32*232}\ns_add_u32 s{sA}, s{sA}, {self.slotS}\nv_add_u32 v{a4}, s{sA}, v{a4}\n' + F_HH(a5))
        A(st, f'v_mul_u32_u24 v{a0}, 72, v{a5}\nv_add_u32 v{a0}, v{a0}, v{a4}\nv_lshl_add_u32 v{a1}, v{a5}, 3, v{a4}\nv_lshl_add_u32 v{a2}, v{a5}, 4, v{a4}\nv_lshl_add_u32 v{a3}, v{a5}, 5, v{a4}')
        A(kready, [W('wfr')])
        for x in self.pmfma('k', Pk): A(kready, [x])
        sm = self.softmax(Pk, EPk, PHk, Tk, True)
        tc = PK_['Tc']; tbb = PK_['Tb']; hm = f's[{sHH}:{sHH+1}]'
        wk = [I(f'ds_write_b64 v{a0}, v[{PHk+2*k}:{PHk+2*k+1}] offset:{8*k}', tok='stg') for k in range(9)]
        wv = [[I(f'ds_write_b64 v{a1}, v[{tc}:{tc+1}] offset:144', tok='stg')], [I(f'ds_write_b64 v{a1}, v[{tc+2}:{tc+3}] offset:160', tok='stg')],
              [I(f'ds_write_b64 v{a1}, v[{tc+6}:{tc+7}] offset:200', tok='stg')],
              L(f'v_cndmask_b32 v{a4}, v{vSD}, v{tbb+2}, {hm}\nv_cndmask_b32 v{a5}, v{tc+5}, v{tbb+3}, {hm}') + [I(f'ds_write_b64 v{a3}, v[{a4}:{a5}] offset:184', tok='stg')],
              L(f'v_cndmask_b32 v{tc+5}, v{vSD}, v{tc+5}, {hm}') + [I(f'ds_write_b64 v{a2}, v[{tc+4}:{tc+5}] offset:176', tok='stg')]]
        st = max(bar(c.ps - 1) + 1, P0(pos['Tc'] + 1) + 8)
        if c.stgi:
            n0 = len(sm) - 54 - 12
            A(kready, sm[:n0])
            for n_, x in enumerate(sm[n0:]):
                A(kready, [x])
                if n_ % 5 == 0 and wv: A(st, wv.pop(0))
                if x.op.startswith('v_cvt') and (min(x.wr)[1] - PHk) % 2: A(st, [wk.pop(0)])
            assert not wk and not wv
        else:
            A(kready, sm); A(st, wk)
            for x in wv: A(st, x)
        need(c.ps, 'stg')
        A(st, unpark(10, a0) + '\n' + unpark(11, a1))
        DL(bar(c.ps))
        KA, KB, KD = 188, 204, 168
        st = bar(c.ps) + 1
        rdA = lambda ks: [I(f'ds_read_b64_tr_b16 v[{KA+4*ks+2*rd}:{KA+4*ks+2*rd+1}], v{a0} offset:{ks*7424+rd*464}', tok=f'kva{ks}') for rd in range(2)]
        rdB = lambda x: [I(f'ds_read_b64_tr_b16 v[{KB+4*(x%6)+2*rd}:{KB+4*(x%6)+2*rd+1}], v{a1} offset:{(x%4)*7424+rd*464+32*(x//4)}', tok=f'kvb{x}') for rd in range(2)]
        for ks in range(4): A(st, rdA(ks) + rdB(ks))
        A(st, unpark(8, a2) + '\n' + unpark(9, a3))
        for x in range(12):
            ft, ks = x // 4, x % 4
            mf = I(f'v_mfma_f32_16x16x32_bf16 v[{KD+4*ft}:{KD+4*ft+3}], v[{KA+4*ks}:{KA+4*ks+3}], v[{KB+4*(x%6)}:{KB+4*(x%6)+3}], ' + ('0' if ks == 0 else f'v[{KD+4*ft}:{KD+4*ft+3}]'))
            G(st, [W(f'kvb{x}', f'kva{ks}'), mf])
            if x + 4 < 12: A(st, rdB(x + 4))
        need(c.ps + 1, 'kvb11')
        DL(bar(c.ps + 1))
        x = []
        for ft in range(3):
            x += L(f'v_cvt_pk_bf16_f32 v{KD+4*ft}, v{KD+4*ft}, v{KD+4*ft+1}\nv_cvt_pk_bf16_f32 v{KD+4*ft+1}, v{KD+4*ft+2}, v{KD+4*ft+3}')
        x[4].gap = 1
        for ft in range(3):
            x.append(I(f'buffer_store_dwordx2 v[{KD+4*ft}:{KD+4*ft+1}], v{a2 if ft < 2 else a3}, {srd(WS)}, s{sKS} offen offset:{128*ft} sc1', tok='kvst'))
        A(st, x)
        Pq, EPq, PHq, Tq, SQ = 168, 136, 232, 154, 252
        st = max(st, P0(pos['Td'] + 1) + 8)
        for x in self.pmfma('q', Pq): A(st, [x])
        sm = self.softmax(Pq, EPq, PHq, Tq, False, keepS=SQ)
        KR, IA, vEX, vOA = 200, 212, 254, 255
        pk = c.pk
        if c.kvx:
            A(st, sm); A(st, f'v_mov_b32 v{PHq+18}, 0\nv_mov_b32 v{PHq+19}, 0')
            DL(P0(14) - 1)
            m_att = m; m = []
            f0, f1, f2, span, rgap = c.kvx
            m.append(('after', ('att', 'kvst')))
            G(f0, self.xs('kvfl', [W('kvst'), self.flag(sFKV)]))
            A(f0, f'v_lshrrev_b32 v{a0}, 1, v{vL16}\ns_and_b32 s{sA}, s{sFKV}, 0xfffffe00')
            ld, chk = self.poll('kvf', WS, a0, f's{sA}', a4)
            A(f1, [ld])
            A(f1, '\n'.join([unpark(k, IA + k) for k in range(6)] + [unpark(6, a2), unpark(7, a3), unpark(12, vEX), unpark(13, vOA)]))
            G(f2, chk); st = f2
        else:
            n1 = 70
            A(st, sm[:n1])
            G(st, self.xs('kvfl', [W('kvst'), self.flag(sFKV)]))
            A(st, f'v_lshrrev_b32 v{a0}, 1, v{vL16}\ns_and_b32 s{sA}, s{sFKV}, 0xfffffe00')
            n2 = n1 + c.kvgap
            A(st, sm[n1:n2])
            ld, chk = self.poll('kvf', WS, a0, f's{sA}', a4)
            A(st, [ld]); A(st, sm[n2:])
            A(st, f'v_mov_b32 v{PHq+18}, 0\nv_mov_b32 v{PHq+19}, 0')
            A(st, '\n'.join([unpark(k, IA + k) for k in range(6)] + [unpark(6, a2), unpark(7, a3), unpark(12, vEX), unpark(13, vOA)]))
            G(st, chk); span = 0; rgap = c.krgap
        for i in range(4):
            A(st + span * 3 * i // 12 - 2, f's_add_u32 s{sA+2}, s{sR}, {i}\ns_and_b32 s{sA+2}, s{sA+2}, 3\ns_mul_i32 s{sA+2}, s{sA+2}, 12288\ns_add_u32 s{sA+2}, s{sA+2}, s{sKL}')
            for gp in range(3):
                b = aKV + 4 * (3 * i + gp)
                A(st + span * (3 * i + gp) // 12, [I(f'buffer_load_dwordx4 a[{b}:{b+3}], v{a2 if gp < 2 else a3}, {srd(WS)}, s{sA+2} offen offset:{256*gp} sc1', tok=f'kr{i}')])
        for i in range(4):
            for gp in range(3):
                b = aKV + 4 * (3 * i + gp); d = KR + 4 * gp
                mf = I(f'v_mfma_f32_16x16x32_bf16 v[{d}:{d+3}], a[{aSEL}:{aSEL+3}], a[{b}:{b+3}], ' + ('0' if i == 0 else f'v[{d}:{d+3}]'))
                if i == 0 and gp == 0: mf.gap = 0
                x = glue([W(f'kr{i}'), mf] if gp == 0 else [mf])
                x[0].gap = rgap if i == 0 and gp == 0 else c.kvs
                if gp == 0: x = self.xs(f'kr{i}', x)
                m.append((st, x))
        x = []
        for gp in range(3):
            d = KR + 4 * gp
            x += L(f'v_cvt_pk_bf16_f32 v{d}, v{d}, v{d+1}\nv_cvt_pk_bf16_f32 v{d+1}, v{d+2}, v{d+3}')
        x[0].gap = 1
        for gp in range(3):
            d = KR + 4 * gp
            x += [I(f'ds_write_b64 v{IA+2*gp+k}, v[{d}:{d+1}]', tok='kimg', gap=min(c.kvs, 1)) for k in range(2)]
        A(st, x)
        need(pk, 'kimg')
        DL(bar(pk))
        if c.kvx:
            S['kvx'] = TimedStream('kvx', m); m = m_att
            m.append(('after', ('kvx', 'kimg')))
        OD = 208
        st = bar(pk) + 1
        ofr = lambda x: aPHI + 4 * (x % 6)
        seq = []
        for sg in range(5):
            seq.append(('m', sg, [I(f'ds_read_b64_tr_b16 a[{ofr(2*sg)+2*k}:{ofr(2*sg)+2*k+1}], v{self.vES} offset:{1024*sg+256*k}', tok=f'of{2*sg}') for k in range(2)]))
            seq.append(('x', sg, [I(f'ds_read_b64_tr_b16 a[{ofr(2*sg+1)+2*k}:{ofr(2*sg+1)+2*k+1}], v{vEX} offset:{512*sg+128*k}', tok=f'of{2*sg+1}') for k in range(2)]))
        for x in range(4): A(st, seq[x][2])
        for x in range(10):
            kind, sg, _ = seq[x]
            fr = ofr(x); Bq = PHq + 4 * sg
            if kind == 'm':
                mf = I(f'v_mfma_f32_32x32x16_bf16 v[{OD}:{OD+15}], a[{fr}:{fr+3}], v[{Bq}:{Bq+3}], ' + ('0' if sg == 0 else f'v[{OD}:{OD+15}]'))
            else:
                mf = I(f'v_mfma_f32_16x16x32_bf16 v[{OD+16}:{OD+19}], a[{fr}:{fr+3}], v[{Bq}:{Bq+3}], ' + ('0' if sg == 0 else f'v[{OD+16}:{OD+19}]'))
            G(st, [W(f'of{x}'), mf])
            if x + 4 < 10: A(st, seq[x + 4][2])
        need(pk + 1, 'of9')
        DL(bar(pk + 1))
        X0 = OD + 16
        x = L(f'v_cndmask_b32 v{a3}, v{X0+2}, v{X0}, {hm}\nv_add_f32 v{a3}, v{a3}, v{SQ}\nv_rcp_f32 v{a3}, v{a3}\nv_cndmask_b32 v{X0}, v{X0}, v{X0+2}, {hm}\nv_cndmask_b32 v{X0+1}, v{X0+1}, v{X0+3}, {hm}')
        x[0].gap = 2
        A(st, x)
        for k in range(9):
            A(st, f'v_mul_f32 v{OD+2*k}, v{a3}, v{OD+2*k}\nv_mul_f32 v{OD+2*k+1}, v{a3}, v{OD+2*k+1}\nv_cvt_pk_bf16_f32 v{PHq+k}, v{OD+2*k}, v{OD+2*k+1}')
        A(st, [I(f'buffer_store_dwordx4 v[{PHq+4*k}:{PHq+4*k+3}], v{vL16}, {srd(WS)}, s{sOM} offen offset:{1024*k} sc1', tok='ost') for k in range(2)])
        A(st, [I(f'buffer_store_dword v{PHq+8}, v{vOA}, {srd(WS)}, s{sOX} offen sc1', tok='ost')])
        x = glue([W('ost', 'y8st', *(['yclr'] if c.ys in (1, 2) else [])), self.flag(sFO)])
        x[0].gap = 30
        m.append(('after', ('epi', 'y8st')))
        m.append((st, self.xs('ofl', x)))
        S['att'] = TimedStream('att', m)

        m = []
        pv0, pv1 = vPa, vPo
        st = P0(min(c.woA, c.wop)) - pd - 4
        m.append(('after', ('dma', f'T{first_rp}')))
        A(st, f'v_and_b32 v{vPa}, 0xf8, v{vPa}\ns_and_b32 s{sPe}, s{sQ}, 1\ns_lshl1_add_u32 s{sPe}, s{sJJ}, s{sPe}\ns_lshl_b32 s{sPe}, s{sPe}, 8\ns_add_u32 s{sPe}, s{sPe}, {FL_WO}')
        ld, chk = self.poll('wo', WS, vPa, f's{sPe}', vPo)
        A(st, [ld]); chk[0].gap = pd - 4; G(st + pd, chk)
        assert len(m) == 8
        st = P0(c.hl[0]) - pd
        A(st, f'v_and_b32 v{pv0}, 0x18, v{pv0}\ns_and_b32 s{sPe}, s{sFH}, 0xffffff80')
        ld, chk = self.poll('hA', WS, pv0, f's{sPe}', pv1)
        A(st, [ld])
        hw = 2048 if c.hlay else 18432
        A(st, (f's_lshl4_add_u32 s{sHb}, s{sQ}, s{sR}' if c.hlay == 2 else f's_lshl2_add_u32 s{sHb}, s{sR}, s{sQ}') + f'\ns_lshl4_add_u32 s{sHb}, s{sHb}, s{sW}\ns_mul_i32 s{sHb}, s{sHb}, {hw}\ns_add_u32 s{sHb}, s{sHb}, {WS_H}')
        chk[0].gap = pd - 4
        G(P0(c.hl[0]) - 1, chk)
        for n in range(6):
            i = 16 + n; pe, hf, stt = self.g2[i]
            p = c.hl[n]
            assert p < i and (p >= 12 if stt < 2 else p >= 13) and (n < 4 or p > i - 4)
            if n == 3:
                ld, chk = self.poll('hB', WS, pv0, f's{sPe}', pv1, imm=32)
                A(P0(p) - pd, [ld]); chk[0].gap = pd - 4; G(P0(p) - 1, chk)
            same = [x for x in range(6) if c.hl[x] == p]
            span = 34 // len(same); st0 = P0(p) + 2 + same.index(n) * span
            A(st0 - 3, f's_add_u32 s{sPe2}, s{sJJ}, {pe}\ns_and_b32 s{sPe2}, s{sPe2}, 3\ns_mul_i32 s{sPe2}, s{sPe2}, {4*hw}\ns_add_u32 s{sPe2}, s{sPe2}, s{sHb}')
            if hf: A(st0 - 3, f's_add_u32 s{sPe2}, s{sPe2}, {4 << 21 if c.hlay else 9216}')
            for k in range(9):
                st = st0 + k * span // 9
                if c.hlay:
                    if k and (k + hf) % 2 == 0: A(st - 1, f's_add_u32 s{sPe2}, s{sPe2}, {1 << 21}')
                elif k in (4, 8): A(st - 1, f's_add_u32 s{sPe2}, s{sPe2}, 4096')
                A(st, [I(f'buffer_load_dwordx4 a[{36*stt+4*k}:{36*stt+4*k+3}], v{vL16}, {srd(WS)}, s{sPe2} offen offset:{((k+hf)%2 if c.hlay else k%4)*1024} sc1', tok=f'ph{i}_{k}')])
            DL(P0(i) - 1 - (18 if c.rt2 and i == 21 else 0))
        S['peer'] = TimedStream('peer', m)

        m = []
        sp = soP
        st = bar(pk + 1) + 1
        dma_insert(st, one(f's_lshl_b32 s{sp}, s{sJJ}, 1\ns_and_b32 s{sp+1}, s{sQ}, 1\ns_add_u32 s{sp}, s{sp}, s{sp+1}\ns_mul_i32 s{sp+1}, s{sp}, 82944\ns_mul_i32 s{sp+2}, s{sW}, 2304\ns_add_u32 s{sp+1}, s{sp+1}, s{sp+2}\ns_add_u32 s{sp+1}, s{sp+1}, {WS_WO+2*SLOT}')
                   + one(f's_add_u32 m0, s{sp+2}, {E}')
                   + [glue(L('s_mov_b64 exec, 0xffff') + [I(f'buffer_load_dwordx4 v{vL16}, {srd(WS)}, s{sp+1} offen offset:2048 sc1 lds', tok='woE')] + L('s_mov_b64 exec, -1'))]
                   + one([I(f'buffer_load_dwordx4 v{vL16}, {srd(WS)}, s{sp+1} offen offset:{1024*k} sc1 lds', tok='woE') for k in range(2)]))
        need(21, 'TwoA'); need(21, 'TwoB'); need(21, 'woE')
        vOM, vOX, vXM, vXE, vLA, vLB, vLX, vRF = 32, 33, 34, 35, 36, 37, 38, 40
        self.tv = dict(vOM=vOM, vXM=vXM, vXE=vXE, vLA=vLA, vLB=vLB, vLX=vLX)
        u0, u1, u2 = 46, 47, 39
        st = max(P0(16), st + 12)
        m.append(('after', ('dma', 'woE')))
        A(st, f's_and_b32 s{sp+3}, s{sQ}, 2\ns_lshr_b32 s{sp+4}, s{sW}, 1\ns_add_u32 s{sp+5}, s{sp+3}, s{sp+4}\ns_lshl2_add_u32 s{sp+3}, s{sR}, s{sp+5}\ns_and_b32 s{sp+4}, s{sW}, 1\ns_lshl_b32 s{sp+6}, s{sp+4}, 8')
        A(st, f'v_and_b32 v{u0}, 0xf0, v{vL16}\nv_add_u32 v{u0}, s{sp+6}, v{u0}\n' + F_G(u1) + f'\nv_lshl_add_u32 v{vOX}, v{u1}, 9, v{u0}')
        A(st, f'v_lshrrev_b32 v{u0}, 1, v{vL16}\nv_and_b32 v{u0}, 0x78, v{u0}\ns_lshl_b32 s{sp+7}, s{sp+3}, 7\ns_add_u32 s{sp+7}, s{sp+7}, {FL_O}')
        ld, chk = self.poll('of', WS, u0, f's{sp+7}', 56)
        A(P0(c.po) - pd, [ld])
        st = P0(c.po) - pd
        A(st, f's_lshl_b32 s{sOMc}, s{sp+3}, 15\ns_add_u32 s{sOMc}, s{sOMc}, {WS_OM}\ns_lshl_b32 s{sp+8}, s{sp+3}, 12\ns_add_u32 s{sp+8}, s{sp+8}, {WS_OX}')
        if c.ylay: A(st, f's_and_b32 s{sp+6}, s{sQ}, 1\ns_lshl1_add_u32 s{sp+6}, s{sp+3}, s{sp+6}\ns_lshl_b32 s{sp+6}, s{sp+6}, 11\ns_lshl_b32 s{sp+1}, s{sJJ}, 20\ns_add_u32 s{sp+6}, s{sp+6}, s{sp+1}\ns_add_u32 s{sp+6}, s{sp+6}, {WS_Y8}')
        else: A(st, f's_lshl3_add_u32 s{sp+6}, s{sp+3}, s{sp}\ns_lshl_b32 s{sp+6}, s{sp+6}, 13\ns_add_u32 s{sp+6}, s{sp+6}, {WS_Y8}')
        chk[0].gap = pd - 6
        G(P0(c.po) - 1, chk)
        YB, Y8 = 200, 216
        st = P0(c.po)
        for i in range(4):
            if i == 2 or (i and c.ylay): A(st, f's_add_u32 s{sp+6}, s{sp+6}, {1 << 18 if c.ylay else 4096}')
            A(st + 3 * i, [I(f'buffer_load_dwordx4 v[{YB+4*i}:{YB+4*i+3}], v{vOX}, {srd(WS)}, s{sp+6} offen offset:{0 if c.ylay else (i&1)*2048} sc1', tok=f'y8l{i}')])
        span = (P0(21) + c.oend - (st + 12))
        rest = []
        rest += L(F_N(u0) + f'\nv_mul_u32_u24 v{u0}, 1152, v{u0}\nv_lshl_add_u32 v{vXM}, v{u1}, 4, v{u0}\nv_lshl_add_u32 v{vXE}, v{u1}, 3, v{u0}\nv_mov_b32 v{u0}, {OOB}\nv_cndmask_b32 v{vXE}, v{vXE}, v{u0}, {hm}')
        rest += L(f's_lshr_b32 s{sp+1}, s{sQ}, 1\ns_lshl1_add_u32 s{sp+1}, s{sR}, s{sp+1}\ns_lshl2_add_u32 s{sp+1}, s{sp+1}, s{sW}\ns_mul_i32 s{sp+1}, s{sp+1}, {16*1152}\ns_lshl_b32 s{sp+2}, s{sp}, 7\ns_add_u32 s{sXO}, s{sp+1}, s{sp+2}')
        rest += L(f's_lshl4_add_u32 s{sp+2}, s{sp}, s{sp+1}\ns_add_u32 s{sp+2}, s{sp+2}, 1024')
        XR = 48
        xl_ = [I(f'buffer_load_dwordx4 v[{XR+4*k}:{XR+4*k+3}], v{vXM}, {srd(X)}, s{sXO} offen offset:{64*k}', tok='xres') for k in range(2)]
        xl_ += [I(f'buffer_load_dwordx2 v[{XR+8}:{XR+9}], v{vXE}, {srd(X)}, s{sp+2} offen', tok='xres')]
        if not c.xrs: rest += xl_
        rest += L(f's_lshr_b32 s{sp+1}, s{sQ}, 1\ns_lshl2_add_u32 s{sp+1}, s{sp+1}, s{sW}\ns_lshl_b32 s{sp+1}, s{sp+1}, 6\ns_add_u32 s{sp+1}, s{sp+1}, {RSA}\nv_and_b32 v{u0}, 0xf0, v{vL16}\nv_lshrrev_b32 v{u0}, 2, v{u0}\nv_add_u32 v{u0}, s{sp+1}, v{u0}')
        rest += [I(f'ds_read_b32 v{vRF}, v{u0}', tok='rsr')]
        rest += L(f'v_and_b32 v{vLA}, 0x3c0, v{vL16}\nv_lshrrev_b32 v{vLX}, 2, v{vLA}\nv_bfe_u32 v{u0}, v{vL16}, 4, 1\nv_lshl_add_u32 v{vLA}, v{u0}, 3, v{vLA}\nv_lshl_add_u32 v{vLX}, v{u0}, 3, v{vLX}')
        rest += L(f'v_and_b32 v{u0}, 32, v{vL16}\nv_add_u32 v{vLA}, v{vLA}, v{u0}\n' + F_TB(u0) + f'\nv_lshl_add_u32 v{vLA}, v{u0}, 4, v{vLA}')
        rest += L(f'v_add_u32 v{vLA}, {self.slot["woA"]}, v{vLA}\nv_xor_b32 v{vLB}, 16, v{vLA}\nv_add_u32 v{vLX}, {self.slot["woA"]+4096}, v{vLX}')
        rest += L(self.ident(44, u0))
        rest += L(f'v_mov_b32 v{vRF+1}, v{vRF}\nv_mul_f32 v42, 0xbfb8aa3b, v{vRF}\nv_mul_f32 v43, 0xbfb8aa3b, v{vRF}')
        for i in range(4):
            rest.append(glue([W(f'y8l{i}'), I(f'v_mfma_f32_16x16x32_bf16 v[{Y8}:{Y8+3}], a[{aSEL}:{aSEL+3}], v[{YB+4*i}:{YB+4*i+3}], ' + ('0' if i == 0 else f'v[{Y8}:{Y8+3}]'))]))
        if c.ylay:
            assert c.ys in (0, 3, 4, 5)
            rest += L(f's_lshl2_add_u32 s{sp+1}, s{sR}, s{sJJ}\ns_lshl2_add_u32 s{sE}, s{sp+1}, s{sW}\ns_lshl_b32 s{sE}, s{sE}, 11\ns_lshl_b32 s{sp+6}, s{sQ}, 19\ns_add_u32 s{sE}, s{sE}, s{sp+6}\ns_add_u32 s{sE}, s{sE}, {WS_Y}')
            rest += L(f's_lshl2_add_u32 s{sp+1}, s{sp+1}, s{sp+5}\ns_lshl_b32 s{sYc}, s{sp+1}, 11\ns_add_u32 s{sYc}, s{sYc}, {WS_Y}\ns_lshl_b32 s{sp+7}, s{sp+1}, 7\ns_add_u32 s{sp+7}, s{sp+7}, {FL_Y}\nv_add_u32 v63, {1 << 21}, v{vOX}')
            if c.ys >= 4: rest += L(f'v_add_u32 v62, {2 << 21}, v{vOX}\ns_mov_b32 s74, s{sN}\ns_mov_b32 s75, s{sN}')
        else:
            rest += L(f's_lshl2_add_u32 s{sp+1}, s{sR}, s{sJJ}\ns_lshl2_add_u32 s{sE}, s{sp+1}, s{sW}\ns_lshl2_add_u32 s{sE}, s{sE}, s{sQ}\ns_lshl_b32 s{sE}, s{sE}, 13\ns_add_u32 s{sE}, s{sE}, {WS_Y}')
            rest += L(f's_and_b32 s{sp+6}, s{sQ}, 1\ns_lshl_b32 s{sp+6}, s{sp+6}, 12\ns_add_u32 s{sE+1}, s{sE}, s{sp+6}\ns_xor_b32 s{sE}, s{sE+1}, 4096')
            rest += L(f's_lshl2_add_u32 s{sp+1}, s{sp+1}, s{sp+5}\ns_lshl_b32 s{sYc}, s{sp+1}, 15\ns_add_u32 s{sYc}, s{sYc}, s{sp+6}\ns_add_u32 s{sYc}, s{sYc}, {WS_Y}' + ('' if c.ys == 1 else f'\ns_lshl_b32 s{sp+7}, s{sp+1}, 7\ns_add_u32 s{sp+7}, s{sp+7}, {FL_Y}'))
        rest += [glue(L(f's_lshr_b32 s{sp+1}, s{sQ}, 1\ns_lshr_b32 s{sp+6}, s{sW}, 1\ns_cmp_eq_u32 s{sp+1}, s{sp+6}\ns_cselect_b32 s{sp+6}, {OOB}, 0'))]
        ysz = 6144 if c.ys >= 4 else 4096
        rest += L(f'v_or_b32 v58, s{sp+6}, v{vL16}\ns_mul_i32 s{sp+1}, s{sW}, {ysz}\ns_add_u32 s{sp+1}, s{sp+1}, {self.slot["Y"]}\nv_add_u32 v59, s{sp+1}, v{vL16}')
        rest += L(f's_mul_i32 s{sp+1}, s{sp+5}, {ysz}\ns_add_u32 s{sp+1}, s{sp+1}, {self.slot["Y"]}\nv_add_u32 v60, s{sp+1}, v{vOX}')
        if c.ys not in (1, 5): rest += L(f'v_bfe_u32 v61, v{vL16}, 4, 1\nv_lshl_or_b32 v61, v61, 1, 1\nv_xor_b32 v61, s{sQ}, v61\nv_lshlrev_b32 v61, 3, v61')
        if c.ys in (0, 2, 3): rest += L(f's_xor_b32 s{sp+1}, s{sQ}, 2\ns_lshl_b32 s{sp+1}, s{sp+1}, 3\nv_mov_b32 v62, s{sp+1}')
        rest[-1].tok = 'yadr'
        for k, x in enumerate((1, 3, 2)):
            rest += L(f's_xor_b32 s{sp+1}, s{sQ}, {x + ((12 if c.ys == 5 else 8) if c.ylay and k == 2 else 0)}\ns_lshl_b32 s{sp+1}, s{sp+1}, {19 if c.ylay else 13}\ns_add_u32 s{sT0+k}, s{sYc}, s{sp+1}')
        XU = 64
        sw = [I(f'v_permlane16_swap_b32 v{XR+4*mt+k}, v{XR+4*mt+2+k}') for mt in range(2) for k in range(2)]
        sw[0].gap = 0
        for k in range(10): sw += L(f'v_lshlrev_b32 v{XU+2*k}, 16, v{XR+k}\nv_and_b32 v{XU+2*k+1}, 0xffff0000, v{XR+k}')
        self.xun = []
        if not c.xrs: rest += sw
        else: self.xun = sw
        nr = len(rest); k0 = 0
        for j_ in range(18):
            stj = st + 12 + j_ * span // 18
            if j_ < 16:
                if j_ and j_ % 2 == 0: A(stj, f's_add_u32 s{sOMc}, s{sOMc}, 4096')
                A(stj, [I(f'buffer_load_dwordx4 a[{184+4*j_}:{187+4*j_}], v{vOX}, {srd(WS)}, s{sOMc} offen offset:{(j_&1)*2048} sc1', tok=f'o{j_}')])
            else:
                A(stj, [I(f'buffer_load_dwordx4 a[{184+4*j_}:{187+4*j_}], v{vOX}, {srd(WS)}, s{sp+8} offen offset:{(j_-16)*2048} sc1', tok=f'o{j_}')])
            k1 = min(nr, nr * (j_ + 1) // c.rj)
            for x in rest[k0:k1]: m.append((stj, x if isinstance(x, list) else [x]))
            k0 = k1
            if c.xrs and c.xrs <= j_ < c.xrs + 3: A(stj + span // 36, [xl_[j_ - c.xrs]])
        DL(bar(21) - 2)
        S['prep'] = TimedStream('prep', m)

        m = []
        for mu in range(4):
            a = GA + 16 * mu
            st = P0(21) + 9 * mu + 8 + 3
            if c.rt2 and mu < 2: st = P0(20) + 18 + 9 * mu + 8 + 3
            if mu == 0: m.append(('after', ('prep', 'yadr')))
            if mu == 2:
                ev = []
                if c.xe < 0: ev.append((P0(22) + c.xe, glue([W('yE'), self.flag(sFY, 0)])))
                if c.xpe < 0:
                    self.ypoll = self.poll('yfE', WS, 61, f's{sp+7}', 222, reg2=(226 if c.xp2 else None))
                    ev.append((P0(22) + c.xpe, [self.ypoll[0]]))
                m.extend(sorted(ev, key=lambda x: x[0]))
            if c.ys == 5 or (c.ys == 4 and mu >= 2):
                cv = lambda d, k: I(f'v_cvt_pk_bf16_f32 v{d}, v{a+2*k}, v{a+2*k+1}')
                tg = lambda d: I(f'v_mov_b32 v{d}, s{sN}')
                va, tk = (vL16, 'yE') if mu < 2 else (58, 'yL')
                sto = lambda r_, p_: I(f'buffer_store_dwordx4 v[{r_}:{r_+3}], v{va}, {srd(WS)}, s{sE} offen offset:{1024*p_} sc1', tok=tk)
                lw = lambda r_, g_, p_: [I(f'ds_write_b128 v59, v[{r_}:{r_+3}] offset:{2048*g_+1024*p_}', tok='yown')] if mu >= 2 else []
                nx = L(f's_add_u32 s{sE}, s{sE}, {1 << 21}')
                if mu % 2 == 0:
                    A(st, (nx if mu else []) + [cv(a, 0), cv(a + 1, 1), cv(a + 2, 2), tg(a + 3), sto(a, 0), cv(a + 4, 4), cv(a + 5, 5), cv(a + 10, 3), cv(a + 6, 6), tg(a + 7), sto(a + 4, 1)])
                    A(st, [cv(a + 14, 7), tg(a + 11), tg(a + 15)]); A(max(st, bar(21) + 1) if c.rt2 else st, lw(a, 0, 0) + lw(a + 4, 0, 1))
                else:
                    e = a - 16
                    A(st, nx + [cv(e + 8, 0), cv(e + 9, 1), cv(e + 12, 4), cv(e + 13, 5), sto(e + 8, 0), sto(e + 12, 1), cv(a, 2), cv(a + 1, 3), tg(a + 3), cv(a + 4, 6), cv(a + 5, 7), tg(a + 7)])
                    A(st, L(f's_add_u32 s{sE}, s{sE}, {1 << 21}') + [sto(a, 0), sto(a + 4, 1)] + lw(e + 8, 1, 0) + lw(e + 12, 1, 1) + lw(a, 2, 0) + lw(a + 4, 2, 1))
                continue
            A(st, [I(f'v_cvt_pk_bf16_f32 v{a+k}, v{a+2*k}, v{a+2*k+1}') for k in range(8)])
            if c.ylay and mu: A(st, f's_add_u32 s{sE}, s{sE}, {1 << 21}')
            for p_ in range(2):
                if c.ylay:
                    A(st, [I(f'buffer_store_dwordx4 v[{a+4*p_}:{a+4*p_+3}], v{vL16 if mu < 2 else 58}, {srd(WS)}, s{sE} offen offset:{1024*p_} sc1', tok='yE' if mu < 2 else 'yL')])
                elif mu < 2:
                    A(st, [I(f'buffer_store_dwordx4 v[{a+4*p_}:{a+4*p_+3}], v{vL16}, {srd(WS)}, s{sE} offen offset:{2048*mu+1024*p_} sc1', tok='yE')])
                else:
                    A(st, [I(f'buffer_store_dwordx4 v[{a+4*p_}:{a+4*p_+3}], v58, {srd(WS)}, s{sE+1} offen offset:{2048*(mu-2)+1024*p_} sc1', tok='yL')])
            if mu >= 2:
                A(max(st, bar(21) + 1), [I(f'ds_write_b128 v59, v[{a+4*p_}:{a+4*p_+3}] offset:{2048*(mu-2)+1024*p_}', tok='yown') for p_ in range(2)])
        S['ypk'] = TimedStream('ypk', m)
        return S

    def s_reads(self, x):
        st, lam = x // 5, x % 5
        tv = self.tv
        b = 72 + 4 * (x % 18)
        r = []
        if lam == 0 and st in (8, 16):
            dl = (self.slot['woB'] - self.slot['woA']) if st == 8 else (E - self.slot['woB'])
            r += [I(f'v_add_u32 v{tv[k]}, {dl & 0xffffffff}, v{tv[k]}') for k in ('vLA', 'vLB', 'vLX')]
        o = (st % 8) * 4608
        for rd in range(2):
            if lam < 4: reg, oo = tv['vLB' if lam & 1 else 'vLA'], o + (lam >> 1) * 2048 + rd * 1024
            else: reg, oo = tv['vLX'], o + rd * 256
            r.append(I(f'ds_read_b64_tr_b16 a[{b+2*rd}:{b+2*rd+1}], v{reg} offset:{oo}', tok=f's{x}'))
        return r

    def tail(self, S):
        c = self.c; E_ = self.E; tv = self.tv
        sp = soP
        SA, YE, YL, YO, YA, Y8, XU, TM, OUTR = 84, 104, 120, 128, 200, 216, 64, 160, 180
        vOX = 33
        side = {}
        add = lambda x, lst: side.setdefault(x, []).extend(lst)
        yp = flush(S['ypk'])
        n0 = 1
        for k, x in enumerate(yp): add(n0 + k // c.ypn, [x])
        xb = n0 + len(yp) // c.ypn + 3
        if c.ys >= 4: YL, YO = 232, 244
        tgd = lambda src: c.ys == 5 or (c.ys == 4 and src in (YL, YO))
        add(xb, [W('yown')] + L('s_barrier') + [I(f'ds_read_b128 v[{YO+4*mt}:{YO+4*mt+3}], v60 offset:{2048*mt}', tok='yor') for mt in range(3 if c.ys >= 4 else 2)])
        YS = [YE, YE + 12, YL]
        ytl = lambda k: [I(f'buffer_load_dwordx4 v[{YS[k]+4*g_}:{YS[k]+4*g_+3}], v{(vOX, 63, 62)[g_]}, {srd(WS)}, s{sT0+k} offen sc1', tok=f'yt{k}') for g_ in range(3)]
        fix = lambda src: [I(f'v_mov_b32 v{src+3}, v{src+6}')]
        yld = lambda k: [I(f'buffer_load_dwordx4 v[{YE+8*k+4*mt}:{YE+8*k+4*mt+3}], v{63 if c.ylay and mt else vOX}, {srd(WS)}, s{sT0+k} offen offset:{0 if c.ylay else 2048*mt} sc1', tok=(f'yl{k}' if k < 2 else f'yl2{mt}')) for mt in range(2)]
        for k, x in enumerate(self.xun): add(c.xux + k // 2, [x])
        fl = lambda tk, o: [W(tk), self.flag(sFY, o)]
        if c.ys == 5:
            for n_, x in enumerate(ytl(0) + ytl(1)): add(c.xye + n_, [x])
            for n_, x in enumerate(ytl(2)): add(c.xyl + n_, [x])
            chkE = self.tcheck('ysE', ['yt0', 'yt1'], [YE + 4 * g_ + 3 for g_ in range(6)], ytl(0) + ytl(1) + ytl(2), (sT0, sT0 + 1)) + fix(YE) + fix(YE + 12)
            chkL = self.tcheck('ysL', ['yt2'], [YL + 4 * g_ + 3 for g_ in range(3)], ytl(2), (sT0 + 2,)) + fix(YL)
        elif c.ys == 1:
            for k in range(3):
                for mt in range(2): add((c.xye + 2 * (2 * k + mt)) if k < 2 else c.xyl + 2 * mt, [yld(k)[mt]])
            chkE = self.ycheck('ysE', ['yl0', 'yl1'], YE, 16, yld(0) + yld(1) + yld(2))
            chkL = self.ycheck('ysL', ['yl20', 'yl21'], YL, 8, yld(2))
        else:
            if c.xe >= 0: add(c.xe, fl('yE', 0) + self.stamp('yEf'))
            ldE, chkE = self.ypoll if c.xpe < 0 else self.poll('yfE', WS, 61, f's{sp+7}', 222)
            if c.ys == 4: chkL = self.tcheck('ysL', ['yt2'], [YL + 4 * g_ + 3 for g_ in range(3)], ytl(2), (sT0 + 2,)) + fix(YL)
            elif c.ys != 2:
                add(c.xl, fl('yL', 32) + self.stamp('yLf'))
                ldL, chkL = self.poll('yfL', WS, 62, f's{sp+7}', 224 if c.ys else 222, imm=32)
            else: chkL = self.ycheck('ysL', ['yl20', 'yl21'], YL, 8, yld(2))
            if c.xpe < 0 and c.xp2: assert c.xp2 < c.xyc; add(c.xp2, [self.ld2])
            if c.xpe >= 0: add(c.xpe if c.ys else min(c.xl + 4, 60), [ldE])
            if c.ys:
                add(c.xyc, chkE + self.stamp('yEp'))
                lds_ = yld(0) + yld(1) + (yld(2) if c.ys == 2 else [])
                if c.ys == 4:
                    for k, x in enumerate(ytl(2)): add(max(c.xyc + 4, c.xyl) + k, [x])
                for k, x in enumerate(lds_): add(c.xyc + k, [x])
                if c.ys == 3: add(c.xpl, [ldL])
                if c.ys == 3 and c.xlc < 90: add(c.xlc, chkL + self.stamp('yLp') + yld(2))
        po = lambda src, mt, ab: src + ((0, 2, 4, 8)[2 * mt + ab] if tgd(src) else 4 * mt + 2 * ab)
        es = 12 if c.ys == 5 else 8
        ident_mf = lambda src, mt, ab, first: I(f'v_mfma_f32_4x4x4_16b_bf16 v[{YA+8*mt+4*ab}:{YA+8*mt+4*ab+3}], v[44:45], v[{po(src, mt, ab)}:{po(src, mt, ab)+1}], ' + ('0' if first else f'v[{YA+8*mt+4*ab}:{YA+8*mt+4*ab+3}]'))
        if c.ys >= 4: add(xb + 12, fix(YO))
        if c.ys in (1, 5) and c.xyc < 90:
            for k in range(4): add(c.xyc - 4 + k, [ident_mf(YO, k >> 1, k & 1, True)])
            add(c.xyc, chkE + self.stamp('yEp'))
            for k in range(8): add(min(c.xyc + 1 + k, 89), [ident_mf(YE + es * (k >> 2), (k >> 1) & 1, k & 1, False)])
        for x in range(90):
            st, lam = x // 5, x % 5
            fr = 72 + 4 * (x % 18); acc = SA + 4 * lam
            if x % c.swe == 0: E_(W(f's{min(x + c.swe - 1, 89)}', f'o{min(x + c.swe - 1, 89) // 5}'))
            E_(f'v_mfma_f32_16x16x32_bf16 v[{acc}:{acc+3}], a[{fr}:{fr+3}], a[{184+4*st}:{187+4*st}], ' + ('0' if x < 5 else f'v[{acc}:{acc+3}]'))
            if x + c.Ds < 90: E_(self.s_reads(x + c.Ds))
            E_(side.get(x, []))
        E_(self.stamp('s89'))
        own = [ident_mf(YO, mt, ab, True) for mt in range(2) for ab in range(2)]
        mfE = [ident_mf(YE + es * k, mt, ab, False) for k in range(2) for mt in range(2) for ab in range(2)]
        if not c.ys:
            E_(chkE)
            E_(self.stamp('yEp'))
            E_(yld(0) + yld(1))
            E_(ldL)
        if not (c.ys in (1, 5) and c.xyc < 90): E_(own)
        for k in range(10):
            E_(f'v_pk_mul_f32 v[{SA+2*k}:{SA+2*k+1}], v[{SA+2*k}:{SA+2*k+1}], v[40:41]')
        self.final_a(Y8, TM + 16, SA + 16); self.final_b(Y8, TM + 16, XU + 16, OUTR + 8)
        E_(I(f'buffer_store_dwordx2 v[{OUTR+8}:{OUTR+9}], v{tv["vXE"]}, {srd(OUT)}, s{sp+2} offen{c.osc}', tok='out'))
        if c.ys in (1, 5):
            if c.xyc >= 90: E_(chkE); E_(self.stamp('yEp')); E_(mfE)
            E_(chkL); E_(self.stamp('yLp'))
        elif c.ys in (2, 4):
            E_(mfE); E_(self.stamp('yEd')); E_(chkL); E_(self.stamp('yLp'))
        elif c.ys == 3 and c.xlc < 90: E_(mfE)
        else:
            E_(chkL)
            E_(self.stamp('yLp'))
            E_(yld(2))
            E_(mfE)
        for mt in range(2):
            for ab in range(2): E_(ident_mf(YL, mt, ab, False))
        E_(self.stamp('yld'))
        for mt in range(2):
            for ab in range(2):
                lam = 2 * mt + ab
                self.final_a(YA + 4 * lam, TM + 4 * lam, SA + 4 * lam)
            for ab in range(2):
                lam = 2 * mt + ab
                self.final_b(YA + 4 * lam, TM + 4 * lam, XU + 4 * lam, OUTR + 2 * lam)
            for k in range(2): E_(f'v_permlane16_swap_b32 v{OUTR+4*mt+k}, v{OUTR+4*mt+2+k}')
            E_(I(f'buffer_store_dwordx4 v[{OUTR+4*mt}:{OUTR+4*mt+3}], v{tv["vXM"]}, {srd(OUT)}, s{sXO} offen offset:{64*mt}{c.osc}', tok='out'))
        E_(self.stamp('fin'))

    def final_a(self, y, tm, sa):
        E_ = self.E
        for k in range(2): E_(f'v_pk_mul_f32 v[{tm+2*k}:{tm+2*k+1}], v[{y+2*k}:{y+2*k+1}], v[42:43]')
        for k in range(4): E_(f'v_exp_f32 v{tm+k}, v{tm+k}')
        for k in range(2): E_(f'v_pk_mul_f32 v[{y+2*k}:{y+2*k+1}], v[{y+2*k}:{y+2*k+1}], v[{sa+2*k}:{sa+2*k+1}]')

    def final_b(self, y, tm, xu, outr):
        E_ = self.E
        for k in range(2): E_(f'v_pk_add_f32 v[{tm+2*k}:{tm+2*k+1}], v[{tm+2*k}:{tm+2*k+1}], 1.0 op_sel_hi:[1,0]')
        for k in range(4): E_(f'v_rcp_f32 v{tm+k}, v{tm+k}')
        for k in range(2): E_(f'v_pk_fma_f32 v[{y+2*k}:{y+2*k+1}], v[{y+2*k}:{y+2*k+1}], v[{tm+2*k}:{tm+2*k+1}], v[{xu+2*k}:{xu+2*k+1}]')
        for k in range(2): E_(f'v_cvt_pk_bf16_f32 v{outr+k}, v{y+2*k}, v{y+2*k+1}')

    def build(self):
        c = self.c; E_ = self.E
        assert c.D + 2 <= 8
        self.plan()
        self.prologue()
        S = self.build_streams()
        E_(self.stamp('stat'))
        E_(W('T0', 'zf0')); E_('s_barrier')
        E_(self.stamp('T0'))
        for s in range(c.D): E_(self.reads(s))
        steps = self.main_steps()
        sk = c.skip.split()

        def drop(pred, names=None):
            for nm, st_ in S.items():
                if names and nm not in names: continue
                for it in st_.items:
                    if isinstance(it[0], str): continue
                    it[1][:] = [x for x in it[1] if not pred(x)] or [I('s_nop 0')]
        for nm in sk:
            if nm in S: drop(lambda x: True, [nm])
        if sk:
            drop(lambda x: x.kind == 'label' or x.op.startswith('s_cbranch') or x.op.startswith('v_cmp_ne'))
            self.slow = [x for x in self.slow if x.startswith('SLOW_yf')]
        if 'hst' in sk: drop(lambda x: x.kind == 'vstore', ['epi'])
        if 'peerld' in sk: drop(lambda x: x.kind == 'vload', ['peer'])
        if 'oload' in sk: drop(lambda x: x.kind == 'vload', ['prep'])
        if 'dmaq' in sk: drop(lambda x: x.kind == 'dma', ['dma'])
        if 'attvm' in sk: drop(lambda x: x.kind in ('vstore', 'vload'), ['att'])
        order = [S[k] for k in ('dma', 'flg', 'yclr', 'epi', 'ypk', 'peer', 'kvx', 'misc', 'accw', 'att', 'prep') if k in S]
        self.log = []
        stp = {36 * p: (lambda p=p: self.stamp(f'p{p-1}')) for p in range(1, 4 if c.tsp else 22)}
        if c.tsg:
            stp = {k: v for k, v in stp.items() if k // 36 in (2, 6, 10, 14, 18)}
            for g_ in range(*c.tsg): stp[g_] = (lambda g_=g_: self.stamp(f'{(g_-1)//36}.{(g_-1)%36+1}'))
        body = schedule_timed(steps, order, log=self.log, stamps=stp, ldsb=c.ldsb)
        E_(body)
        for s in order:
            if s.name != 'ypk': assert s.done(), (s.name, s.idx, len(s.items))
        E_(self.stamp('p21'))
        self.tail(S)
        if c.ts:
            E_(W('out')); E_(self.stamp('out')); self.number_stamps()
            if c.tsg: E_(f's_waitcnt lgkmcnt(0)\nv_writelane_b32 v{vONE}, s0, {self.nts}')
            E_(f's_memrealtime s[0:1]\ns_waitcnt lgkmcnt(0)\nv_writelane_b32 v{vONE}, s0, 62')
            E_(f's_lshl_b32 s3, s2, 2\ns_add_u32 s3, s3, s{sW}\ns_lshl_b32 s3, s3, 8\ns_add_u32 s3, s3, {WS_TS}\nv_lshrrev_b32 v25, 2, v{vL16}')
            E_(f'buffer_store_dword v{vONE}, v25, {srd(WS)}, s3 offen')
            if c.dbg is not None:
                names = ['karg', 'xiss', 'x7', 'T0', 'p1', 'p3', 'p5', 'p8', 'p12', 'p15', 'p18', 'p21', 's89', 'yLp', 'out']
                E_(f'v_readlane_b32 s40, v{vONE}, 61\nv_readlane_b32 s41, v{vONE}, 60\nv_readlane_b32 s42, v{vONE}, 62\ns_sub_u32 s42, s42, s41\nv_mov_b32 v26, 0')
                for wd, nm in enumerate(names):
                    E_(f'v_readlane_b32 s43, v{vONE}, {self.notes.index(nm)+1}\ns_sub_u32 s43, s43, s40\nv_writelane_b32 v26, s43, {wd}')
                E_(f'v_writelane_b32 v26, s42, 15\nv_lshlrev_b32 v25, 2, v0\ns_cmp_eq_u32 s2, {c.dbg}\ns_cselect_b32 s44, 0xffff, 0\ns_cmp_eq_u32 s{sW}, 0\ns_cselect_b32 s44, s44, 0\ns_mov_b32 exec_lo, s44\ns_mov_b32 exec_hi, 0')
                E_(f'buffer_store_dword v26, v25, {srd(DBG)}, 0 offen')
        for x in self.p:
            if x.kind == 'vload' and x.wr & {('a', 182), ('a', 183)}: x.wr = set()
        stats = {}
        prog = resolve_waits(self.p, stats, lenient=bool(c.skip))
        prog = pad_hazards(prog, stats)
        self.stats = stats
        self.prog = prog
        return prog

    def text(self):
        hdr = open('cdna_kernels/' + NAME + '.s.ref').read().split('\n')
        top = [x for x in hdr if x.startswith(';') and not x.startswith('; @launch')]
        out = top + ['; @launch grid=(256,1,1) block=(256,1,1) lds=163840',
                     '.amdgcn_target "amdgcn-amd-amdhsa--gfx950"', '.text', f'.globl {NAME}_kernel', '.p2align 8',
                     f'.type {NAME}_kernel,@function', f'{NAME}_kernel:']
        out += [i.text for i in self.prog]
        out += ['L_end:', 's_endpgm'] + self.slow + ['CODE_END:', 's_endpgm']
        out += ['.section .rodata,"a"', '.p2align 6', f'.amdhsa_kernel {NAME}_kernel', '  .amdhsa_next_free_vgpr 512', '  .amdhsa_next_free_sgpr 102',
                '  .amdhsa_accum_offset 256', '  .amdhsa_group_segment_fixed_size 0', '  .amdhsa_kernarg_size 80', '  .amdhsa_user_sgpr_count 2',
                '  .amdhsa_user_sgpr_kernarg_segment_ptr 1', '  .amdhsa_system_sgpr_workgroup_id_x 1', '.end_amdhsa_kernel']
        return '\n'.join(out) + '\n'


class TimedStream:
    def __init__(self, name, items):
        self.name = name; self.items = items; self.idx = 0; self.last_step = -10**9

    def done(self):
        while self.idx < len(self.items) and isinstance(self.items[self.idx][0], str): self.idx += 1
        return self.idx >= len(self.items)

    def next_deadline(self):
        for it in self.items[self.idx:]:
            if it[0] == 'deadline': return it[1]
        return None


def flush(s):
    r = [x for it in s.items[s.idx:] if not isinstance(it[0], str) for x in it[1]]
    s.idx = len(s.items)
    return r


def schedule_timed(steps, streams, log=None, stamps=None, ldsb=0):
    out = []
    bucket = 0
    ldsc = lambda grp: sum((32 if 'b128' in x.op else 16) if x.kind == 'dsw' else (8 if x.kind == 'dsr' else 0) for x in grp)
    byname = {s.name: s for s in streams}
    CAP = {'mfma32': 8, 'mfma16': 4, 'mfma4': 3}

    def passed(ref):
        s = byname[ref[0]]
        if isinstance(ref[1], int): return s.idx >= ref[1]
        return not any((not isinstance(it[0], str)) and any(x.tok == ref[1] for x in it[1]) for it in s.items[s.idx:])

    for g, st in enumerate(steps):
        if stamps and g in stamps: out.extend(stamps[g]())
        out.extend(st.pre)
        used = sum(i.cost for i in st.pre)
        cap = st.cap if st.cap is not None else CAP[st.mf.kind]
        out.append(st.mf); used += st.mf.cost
        forced = 0
        for s in streams:
            while True:
                dl = s.next_deadline()
                if dl is None or dl > g: break
                while s.items[s.idx][0] != 'deadline':
                    it = s.items[s.idx]
                    if it[0] == 'after': assert passed(it[1]), (s.name, it, g)
                    else:
                        assert it[0] <= g, (s.name, it, g)
                        out.extend(it[1]); forced += sum(x.cost for x in it[1])
                    s.idx += 1
                s.idx += 1; s.last_step = g
        used += forced
        out.extend(st.post); used += sum(i.cost for i in st.post)
        nmf = 0
        bucket = min(bucket + ldsb, 2 * ldsb)
        while True:
            pick = None
            for allow_mf in (False, True):
                for s in streams:
                    while s.idx < len(s.items) and (s.items[s.idx][0] == 'deadline' or (s.items[s.idx][0] == 'after' and passed(s.items[s.idx][1]))): s.idx += 1
                    if s.idx >= len(s.items): continue
                    t0, grp = s.items[s.idx]
                    if t0 == 'after' or g < t0: continue
                    if grp[0].gap and g < s.last_step + grp[0].gap: continue
                    if ldsb and ldsc(grp) and bucket < min(ldsc(grp), 2 * ldsb): continue
                    cst = sum(x.cost for x in grp)
                    extra = sum(CAP[x.kind] for x in grp if x.kind in MF_KINDS)
                    if extra:
                        if not allow_mf or nmf >= 2 or st.end: continue
                    else:
                        late = (s.name in ('dma', 'ypk', 'peer', 'kvx') and g >= t0 + 2 and used <= cap) or (cst > 3 and used < cap)
                        if used + cst > cap and not late: continue
                    pick = (s, grp, cst, extra); break
                if pick: break
            if not pick: break
            s, grp, cst, extra = pick
            if extra:
                nmf += 1
                cap = max(cap, used) + extra; used = cap - extra
            out.extend(grp); used += cst; bucket -= ldsc(grp)
            s.idx += 1; s.last_step = g
        if st.end:
            out.extend(st.end); cap = max(cap, used) + sum(CAP[x.kind] for x in st.end); used = cap
        if log is not None: log.append((g, used, cap, forced, {s.name: s.idx for s in streams}))
    return out


if __name__ == '__main__':
    kw = {}
    for a in sys.argv[2:]:
        k, v = a.split('='); kw[k] = eval(v)
    g = Gen(Cfg(**kw)); g.build()
    open(sys.argv[1], 'w').write(g.text())
    print('instrs', len(g.prog), 'est clk', estimate(g.prog), {k: v for k, v in g.stats.items() if k != 'nop_sites'})
    print('period slots', [sum(max(x[1], x[2]) for x in g.log[36*p:36*p+36]) * 4 for p in range(22)])
    print('forced', [(x[0], x[3]) for x in g.log if x[3]])
    print('slots', g.slot, g.slotS, g.loadp)
    for nm in g.log[0][4]:
        print(nm, [g.log[36*p+35][4][nm] for p in range(22)])
```

```python
import re, sys, time
import numpy as np
from asmlib import *

U = np.uint32


def bf16_round(f):
    u = np.ascontiguousarray(f, dtype=np.float32).view(U)
    r = ((u + U(0x7fff) + ((u >> U(16)) & U(1))) >> U(16)).astype(U)
    nan = np.isnan(f)
    if nan.any(): r = np.where(nan, U(0x7fc0), r)
    return r


def bf2f(u16):
    return (u16.astype(U) << U(16)).view(np.float32)


class Sim:
    def __init__(self, prog, bufs, nwg=256, seed=0, check=True, wsmax=0x3100000):
        self.prog = prog; self.nwg = nwg; NW = self.NW = nwg * 4
        rng = np.random.default_rng(seed)
        self.V = rng.integers(0, 2**32, (512, NW, 64), dtype=U)
        self.S = rng.integers(0, 2**32, (128, NW), dtype=U)
        self.lds = rng.integers(0, 2**32, (nwg, 40960), dtype=U)
        self.V[0] = (np.arange(NW)[:, None] % 4) * 64 + np.arange(64)[None, :]
        self.S[2] = np.arange(NW) // 4
        self.exec = np.ones((NW, 64), bool)
        self.scc = np.zeros(NW, bool)
        self.bufs = bufs
        self.wg = (np.arange(NW) // 4)[:, None]
        self.wid = np.arange(NW)
        self.lane = np.arange(64)[None, :]
        self.check = check
        self.vm = []; self.lg = []
        self.epoch = 0
        n = 40960
        self.w_wave = np.full(n, -1, np.int8); self.w_op = np.full(n, -1, np.int32)
        self.r_ep = np.full((4, n), -1, np.int32); self.r_op = np.full((4, n), -1, np.int32)
        self.op_ret = {}
        nd = wsmax // 4
        self.wprod = np.full(nd, -1, np.int16); self.wret = np.full(nd, 2**30, np.int32); self.wiss = np.zeros(nd, np.int32)
        self.known = np.zeros((NW, NW), np.int32)
        self.polled = {}; self.ys = 0
        self.snap = {}
        self.clr = {}
        self.conf = {}
        self.slowpolls = []
        self.errors = []
        l = np.arange(64)
        self.idx = 0

    def err(self, msg):
        self.errors.append((self.idx, self.prog[self.idx].text, msg))
        if len(self.errors) <= 30: print('ERR', self.idx, self.prog[self.idx].text, '::', msg)

    def reg(self, o):
        m = re.match(r'^(v|a)(\d+)$', o)
        return int(m.group(2)) + (256 if m.group(1) == 'a' else 0)

    def rng_(self, o):
        m = re.match(r'^(v|a|s)\[(\d+):(\d+)\]$', o)
        if m: return int(m.group(2)) + (256 if m.group(1) == 'a' else 0), int(m.group(3)) - int(m.group(2)) + 1
        m = re.match(r'^(v|a|s)(\d+)$', o)
        return int(m.group(2)) + (256 if m.group(1) == 'a' else 0), 1

    def const(self, o):
        if re.match(r'^-?\d+\.\d+$', o): return np.float32(float(o)).view(U)
        return U(int(o, 0) & 0xffffffff)

    def sval(self, o):
        if o == 'm0': return self.S[124]
        if o[0] == 's' and o[1:].isdigit(): return self.S[int(o[1:])]
        if o.startswith('CODE_END'): return np.full(self.NW, 65536, U)
        return np.full(self.NW, self.const(o), U)

    def sset(self, o, v):
        if o == 'm0': self.S[124] = v
        else: self.S[int(o[1:])] = v

    def vu(self, o):
        if o[0] in 'va' and o[1:].isdigit(): return self.V[self.reg(o)]
        if o[0] == 's' and o[1:].isdigit(): return self.S[int(o[1:])][:, None]
        return self.const(o)

    def vf(self, o):
        neg = o.startswith('-') and not o[1].isdigit()
        if neg: o = o[1:]
        x = np.asarray(self.vu(o)).view(np.float32)
        return -x if neg else x

    def vset(self, o, val):
        r = self.reg(o) if isinstance(o, str) else o
        val = np.asarray(val)
        if val.dtype == np.float32: val = val.view(U)
        if self.exec_all: self.V[r] = val
        else: self.V[r] = np.where(self.exec, val, self.V[r])

    def mask_get(self, o):
        b = 106 if o == 'vcc' else self.rng_(o)[0]
        lo = (self.S[b][:, None] >> np.arange(32, dtype=U)[None, :]) & 1
        hi = (self.S[b + 1][:, None] >> np.arange(32, dtype=U)[None, :]) & 1
        return np.concatenate([lo, hi], 1).astype(bool)

    def mask_set(self, o, m):
        b = 106 if o == 'vcc' else self.rng_(o)[0]
        m = m & self.exec
        w = (U(1) << np.arange(32, dtype=U))[None, :]
        self.S[b] = (m[:, :32] * w).sum(1, dtype=np.uint64).astype(U)
        self.S[b + 1] = (m[:, 32:] * w).sum(1, dtype=np.uint64).astype(U)

    def gaddr(self, ops, mods, nbytes):
        va, R, so = ops
        b = self.rng_(R)[0]
        hi = self.S[b + 1]
        if int(hi[0]) == 0xc0de: return None, None, None
        slot = int(hi[0]) - 16
        assert (hi == hi[0]).all() and 0 <= slot < 10 and (self.S[b] == 0).all(), 'bad srd'
        assert (self.S[b + 3] == 0x20000).all()
        nrec = int(self.S[b + 2][0])
        m = re.search(r'offset:(\d+)', mods); imm = int(m.group(1)) if m else 0
        voff = self.V[self.reg(va)].astype(np.int64) + imm
        tot = voff + self.sval(so).astype(np.int64)[:, None]
        ok = (voff + nbytes <= nrec) & self.exec
        bad = ok & (tot + nbytes > nrec)
        if bad.any(): self.err(f'global OOB via soffset max={tot[bad].max()} nrec={nrec}')
        amb = (~ok) & self.exec & (voff < 0x40000000)
        if amb.any(): self.err(f'unintended voffset OOB {voff[amb].max()} nrec={nrec}')
        if (tot[ok] % 4).any(): self.err('misaligned global')
        ok &= ~bad
        return slot, np.where(ok, tot, 0) // 4, ok

    def lds_rd_check(self, dw):
        if not self.check: return
        for w in range(4):
            a = dw[w].ravel()
            ww = self.w_wave[a]; wo = self.w_op[a]
            for op in np.unique(wo):
                sel = wo == op
                if op < 0:
                    continue
                ret = self.op_ret.get(int(op))
                if ret is None: self.err(f'LDS read of unretired write op{op} {self.prog[op].text}')
                elif ret >= self.epoch and (ww[sel] != w).any(): self.err(f'LDS read without barrier, writer op{op} {self.prog[op].text}')
            self.r_ep[w, a] = self.epoch; self.r_op[w, a] = self.idx

    def lds_wr_check(self, dw, act, data, dma):
        if not self.check: return
        for w in range(4):
            a = dw[w][act[w]].ravel(); d = data[w][act[w]].ravel()
            keep = (a < (0x24000 + 0x3800) // 4) | (a >= (0x24000 + 0x3810) // 4)
            a = a[keep]; d = d[keep]
            for w2 in range(4):
                ro = self.r_op[w2, a]
                for op in np.unique(ro):
                    if op < 0: continue
                    ret = self.op_ret.get(int(op))
                    if w2 == w:
                        if dma and ret is None: self.err(f'DMA over own unretired read op{op} {self.prog[op].text}')
                    else:
                        ep = self.r_ep[w2, a][ro == op].max()
                        if ep >= self.epoch: self.err(f'LDS WAR without barrier vs op{op} {self.prog[op].text}')
                        elif not dma and (ret is None or ret >= self.epoch): self.err(f'LDS WAR (unretired read) vs op{op} {self.prog[op].text}')
            wo = self.w_op[a]; ww = self.w_wave[a]
            for op in np.unique(wo):
                if op < 0: continue
                sel = (wo == op)
                ret = self.op_ret.get(int(op))
                other = sel & (ww != w)
                if op == self.idx:
                    if (self.lds[0, a[other]] != d[other]).any(): self.err('same-op WAW with different data')
                    continue
                if other.any() and (ret is None or ret >= self.epoch):
                    if (self.lds[0, a[other]] != d[other]).any(): self.err(f'LDS WAW without barrier vs op{op} {self.prog[op].text}')
                own = sel & (ww == w)
                if own.any() and ret is None and (dma or self.prog[op].kind == 'dma'): self.err(f'own WAW unordered vs op{op} {self.prog[op].text}')
            self.lds[0, a] = d
            self.w_wave[a] = w; self.w_op[a] = self.idx

    def retire(self, q, n):
        while len(q) > n:
            op, info = q.pop(0)
            self.op_ret[op] = self.epoch
            if info is not None:
                self.wret[info] = self.idx

    G128 = [np.r_[0:4, 12:16, 20:28], np.r_[4:12, 16:20, 28:32]]

    def bankconf(self, ins, a):
        ex = self.exec[0]
        nd = a.shape[1]
        if nd == 4: grp = [self.G128[0], self.G128[1], self.G128[0] + 32, self.G128[1] + 32]
        elif nd == 2: grp = [np.arange(32), np.arange(32, 64)]
        else: grp = [np.arange(64)]
        extra = 0
        for g in grp:
            x = np.unique(a[g][ex[g]].ravel())
            if x.size: extra += np.bincount(x % 64).max() - 1
        k = (ins.op, re.sub(r'\d+', '', str(ins.tok)))
        c = self.conf.setdefault(k, [0, 0]); c[0] += 1; c[1] += extra

    def mat(self, r, n=4):
        x = self.V[r:r + n]
        lo = (x << U(16)).view(np.float32); hi = (x & U(0xffff0000)).view(np.float32)
        return np.stack([lo, hi], -1).transpose(1, 2, 0, 3).reshape(self.NW, 64, 2 * n)

    def run(self, stop=None, hooks=None):
        t0 = time.time()
        for idx, ins in enumerate(self.prog):
            self.idx = idx
            if hooks and idx in hooks: hooks[idx](self)
            if stop is not None and idx >= stop: break
            self.exec_all = bool(self.exec.all())
            self.step(ins)
        print('sim done', time.time() - t0, 's; errors', len(self.errors))

    def step(self, ins):
        t = ins.text.strip()
        if ins.kind == 'label': return
        parts = t.split(None, 1); op = parts[0].replace('_e64', '')
        rest = parts[1] if len(parts) > 1 else ''
        if op.startswith('s_waitcnt'):
            m = re.search(r'vmcnt\((\d+)\)', t)
            if m: self.retire(self.vm, int(m.group(1)))
            m = re.search(r'lgkmcnt\((\d+)\)', t)
            if m: self.retire(self.lg, int(m.group(1)))
            return
        mm = re.search(r'\s(op_sel\S*.*)$', rest)
        pkmods = ''
        if mm: pkmods = mm.group(1); rest = rest[:mm.start()]
        ops = [o.strip() for o in rest.split(',')] if rest else []
        mods = ''
        if ops:
            lp = ops[-1].split(None, 1); ops[-1] = lp[0]; mods = lp[1] if len(lp) > 1 else ''
        V = self.V; S = self.S; vu = self.vu; vf = self.vf; vs = self.vset
        with np.errstate(all='ignore'):
            if op == 's_barrier':
                self.epoch += 1
                self.known[self.wid, self.wid] = self.idx
                k4 = self.known.reshape(self.nwg, 4, self.NW).max(1)
                self.known[:] = np.repeat(k4, 4, axis=0)
            elif op in ('s_nop', 's_setprio'): pass
            elif op == 's_cbranch_scc1': assert not self.scc.any()
            elif op == 's_cbranch_vccnz':
                nm = ops[0][5:]
                if nm.startswith('ys'):
                    if (S[106] | S[107]).any(): self.err('y data not stored in program order')
                    return
                slot, a, ldi = self.polled[nm]
                if (S[106] | S[107]).any():
                    self.slowpolls.append(nm)
                    k = self.idx - 1
                    while not self.prog[k].op.startswith('v_cmp'): k -= 1
                    assert nm != 'tag'
                    seq = [ldi, self.prog[k]]
                    for x in seq: self.step(x)
                    self.vm.pop()
                    if (S[106] | S[107]).any(): self.err('poll not satisfied in program order')
                ua = np.unique(a, axis=0, return_inverse=True)
                for n_, row in enumerate(ua[0]):
                    kk = None
                    for dw in np.unique(row):
                        for by in (0,):
                            sn = self.snap.get((slot, int(dw) * 4 + by))
                            if sn is None: self.err('polled flag never stored'); continue
                            kk = sn if kk is None else np.maximum(kk, sn)
                    sel = np.nonzero(ua[1].ravel() == n_)[0]
                    if kk is not None: self.known[sel] = np.maximum(self.known[sel], kk[None, :])
            elif op.startswith('s_load_dwordx'):
                b = self.rng_(ops[0])[0]
                for k in range(int(op[13:]) // 2): S[b + 2 * k] = 0; S[b + 2 * k + 1] = 16 + int(ops[2]) // 8 + k
            elif op == 's_mov_b64' and ops[0] != 'exec':
                b = self.rng_(ops[0])[0]; a = self.rng_(ops[1])[0]; S[b] = S[a].copy(); S[b + 1] = S[a + 1].copy()
            elif op == 's_getpc_b64':
                b = self.rng_(ops[0])[0]; S[b] = 0; S[b + 1] = 0xc0de
            elif op in ('s_memtime', 's_memrealtime'):
                b = self.rng_(ops[0])[0]; S[b] = self.idx + 2 * self.wid; S[b + 1] = 5
            elif op == 's_mov_b32' and ops[0].startswith('exec_'):
                v = int(ops[1], 0) & 0xffffffff; o = 32 if ops[0] == 'exec_hi' else 0
                self.exec = self.exec.copy(); self.exec[:, o:o + 32] = np.array([(v >> k) & 1 for k in range(32)], bool)
            elif op in ('s_mov_b32', 's_movk_i32'): self.sset(ops[0], self.sval(ops[1]))
            elif op == 's_mov_b64':
                assert ops[0] == 'exec'
                v = int(ops[1], 0) & (2**64 - 1)
                self.exec = np.tile(np.array([(v >> k) & 1 for k in range(64)], bool), (self.NW, 1))
            elif op == 's_cselect_b64':
                b = self.rng_(ops[0])[0]
                v = np.where(self.scc, self.sval(ops[1]), self.sval(ops[2])); S[b] = v; S[b + 1] = v
            elif op == 's_cselect_b32': self.sset(ops[0], np.where(self.scc, self.sval(ops[1]), self.sval(ops[2])))
            elif op.startswith('s_cmp'):
                a, b = self.sval(ops[0]), self.sval(ops[1])
                self.scc = {'ge': a >= b, 'eq': a == b, 'lt': a < b}[op.split('_')[2]]
            elif op.startswith('s_'):
                a, b = self.sval(ops[1]), self.sval(ops[2])
                if op in ('s_add_u32', 's_add_i32'): r = a + b
                elif op == 's_sub_u32': r = a - b
                elif op == 's_mul_i32': r = a * b
                elif op == 's_and_b32': r = a & b
                elif op == 's_xor_b32': r = a ^ b
                elif op == 's_andn2_b32': r = a & ~b
                elif op == 's_or_b32': r = a | b
                elif re.match(r's_lshl\d_add_u32', op): r = (a << U(int(op[6]))) + b
                elif op == 's_lshl_b32': r = a << (b & U(31))
                elif op == 's_lshr_b32': r = a >> (b & U(31))
                elif op == 's_min_u32': r = np.minimum(a, b)
                elif op == 's_bfe_u32': r = (a >> (b & U(31))) & ((U(1) << ((b >> U(16)) & U(31))) - U(1))
                else: raise ValueError(t)
                self.sset(ops[0], r.astype(U))
            elif op.startswith('v_mfma') and '4x4x4' in op:
                assert self.exec_all
                d, nd = self.rng_(ops[0])
                A = self.mat(self.rng_(ops[1])[0], 2).reshape(self.NW, 16, 4, 4)
                B = self.mat(self.rng_(ops[2])[0], 2).reshape(self.NW, 16, 4, 4)
                D = np.einsum('wbik,wbjk->iwbj', A, B).reshape(4, self.NW, 64).astype(np.float32)
                if ops[3] != '0':
                    c = self.rng_(ops[3])[0]; D = D + V[c:c + nd].view(np.float32)
                V[d:d + nd] = np.ascontiguousarray(D).view(U)
            elif op.startswith('v_mfma'):
                assert self.exec_all
                d, nd = self.rng_(ops[0])
                A = self.mat(self.rng_(ops[1])[0]); B = self.mat(self.rng_(ops[2])[0])
                n = 32 if '32x32' in op else 16
                kg = 64 // n
                A = A.reshape(self.NW, kg, n, 8).transpose(0, 2, 1, 3).reshape(self.NW, n, kg * 8)
                B = B.reshape(self.NW, kg, n, 8).transpose(0, 1, 3, 2).reshape(self.NW, kg * 8, n)
                D = np.matmul(A, B)
                if n == 32: D = D.reshape(self.NW, 4, 2, 4, 32).transpose(1, 3, 0, 2, 4).reshape(16, self.NW, 64)
                else: D = D.reshape(self.NW, 4, 4, 16).transpose(2, 0, 1, 3).reshape(4, self.NW, 64)
                if ops[3] != '0':
                    c = self.rng_(ops[3])[0]; D = D + V[c:c + nd].view(np.float32)
                V[d:d + nd] = np.ascontiguousarray(D).view(U)
            elif op.startswith('ds_read'):
                d, nd = self.rng_(ops[0])
                m = re.search(r'offset:(\d+)', mods); imm = int(m.group(1)) if m else 0
                a = V[self.reg(ops[1])].astype(np.int64) + imm
                if (a + 4 * nd > 163840).any(): self.err('LDS OOB read')
                if (a % (4 * min(nd, 2) if nd < 4 else 16)).any(): self.err('LDS misaligned read')
                a = (a // 4)[..., None] + np.arange(nd)
                self.bankconf(ins, a[0])
                self.lds_rd_check(a[:4])
                x = self.lds[self.wg[..., None], a]
                if 'tr_b16' in op:
                    assert self.exec_all
                    e = np.stack([x & U(0xffff), x >> U(16)], -1).reshape(self.NW, 4, 4, 4, 4)
                    e = e.transpose(0, 1, 3, 4, 2).reshape(self.NW, 64, 4)
                    x = np.stack([e[..., 0] | (e[..., 1] << U(16)), e[..., 2] | (e[..., 3] << U(16))], -1)
                for k in range(nd): vs(d + k, x[..., k])
                self.lg.append((self.idx, None))
            elif op.startswith('ds_write'):
                s, ns = self.rng_(ops[1])
                m = re.search(r'offset:(\d+)', mods); imm = int(m.group(1)) if m else 0
                a = V[self.reg(ops[0])].astype(np.int64) + imm
                if (a + 4 * ns > 163840).any(): self.err('LDS OOB write')
                if (a % (4 * ns)).any(): self.err('LDS misaligned write')
                a = (a // 4)[..., None] + np.arange(ns)
                self.bankconf(ins, a[0])
                data = V[s:s + ns].transpose(1, 2, 0)
                self.lds_wr_check(a[:4], self.exec[:4], data[:4], False)
                wg = np.broadcast_to(self.wg[..., None], a.shape)
                self.lds[wg[self.exec], a[self.exec]] = data[self.exec]
                self.lg.append((self.idx, None))
            elif op.startswith('buffer_load'):
                lds = ins.kind == 'dma'
                n = {'dword': 1, 'dwordx2': 2, 'dwordx4': 4}[op.split('_')[2]]
                slot, a, ok = self.gaddr(ops[-3:], mods, 4 * n)
                if slot is None:
                    self.vm.append((self.idx, None)); return
                a = a[..., None] + np.arange(n)
                x = np.where(ok[..., None], self.bufs[slot][a], U(0))
                if slot == 8:
                    assert 'sc1' in mods and ok.all()
                    self.polled[ins.tok] = (slot, a[..., 0], ins)
                if slot == 9 and self.check:
                    assert 'sc1' in mods
                    if a[ok].max() < 0x20000 // 4:
                        assert ok.all()
                        self.polled[ins.tok] = (slot, a[..., 0], ins)
                    else:
                        okk = np.broadcast_to(ok[..., None], a.shape)
                        cons = np.broadcast_to(self.wid[:, None, None], a.shape)[okk]
                        aa = a[okk]; pr = self.wprod[aa]
                        un = pr < 0
                        if un.any(): self.err(f'load of unwritten ws {un.sum()}')
                        bad = (~un) & (self.known[cons, pr] <= self.wret[aa])
                        if bad.any() and not ins.tok.startswith('yt'): self.err(f'hand-off not covered by a checked flag: {bad.sum()}')
                if lds:
                    m = re.search(r'offset:(\d+)', mods); imm = int(m.group(1)) if m else 0
                    la = (S[124].astype(np.int64)[:, None] + imm + 16 * self.lane) // 4
                    if (la * 4 + 16 > 163840)[self.exec].any(): self.err('DMA LDS OOB')
                    la = la[..., None] + np.arange(4)
                    self.lds_wr_check(la[:4], self.exec[:4], x[:4], True)
                    wg = np.broadcast_to(self.wg[..., None], la.shape)
                    self.lds[wg[self.exec], la[self.exec]] = x[self.exec]
                else:
                    d, nd = self.rng_(ops[0])
                    for k in range(nd): vs(d + k, x[..., k])
                self.vm.append((self.idx, None))
            elif op == 'buffer_store_byte':
                va, R, so = ops[-3:]
                b = self.rng_(R)[0]; slot = int(S[b + 1][0]) - 16
                assert slot == 8 and 'sc1' in mods and so == '0'
                voff = V[self.reg(va)].astype(np.int64)
                ok = (voff < 256) & self.exec
                if ((~ok) & self.exec & (voff < 0x40000000)).any(): self.err('byte store OOB')
                self.bufs[8].view(np.uint8)[voff[ok]] = (V[self.reg(ops[0])][ok] & 255).astype(np.uint8)
                self.known[self.wid, self.wid] = self.idx
                for w, l_ in zip(*np.nonzero(ok)): self.snap[(8, int(voff[w, l_]))] = self.known[w].copy()
                self.vm.append((self.idx, None))
            elif op.startswith('buffer_store'):
                s, ns = self.rng_(ops[0])
                slot, a, ok = self.gaddr(ops[-3:], mods, 4 * ns)
                assert slot >= 7
                a = a[..., None] + np.arange(ns)
                data = V[s:s + ns].transpose(1, 2, 0)
                self.bufs[slot][a[ok]] = data[ok]
                info = None
                if slot == 9:
                    info = a[ok].ravel()
                    if ins.tok in ('yE', 'yL') and self.ys and (ins.tok == 'yL' or self.ys >= 8):
                        pr = np.broadcast_to(self.wid[:, None, None], a.shape)[ok].ravel()
                        if (self.wprod[info] != pr).any() or (self.wret[info] >= self.idx).any(): self.err('y region not cleared')
                        self.vm.append((self.idx, None)); return
                    if ins.tok == 'yclr':
                        self.ys += 1
                        if (data != U(0xffffffff)).any(): self.err('clear pattern')
                    self.wprod[info] = np.broadcast_to(self.wid[:, None, None], a.shape)[ok].ravel()
                    self.wret[info] = 2**30; self.wiss[info] = self.idx
                    if 'sc1' not in mods and info.size and info.max() < 0x3000000 // 4: self.err('ws store without sc1')
                    if info.size and info.max() < 0x20000 // 4:
                        self.known[self.wid, self.wid] = self.idx
                        for w, l_ in zip(*np.nonzero(ok)):
                            dw = int(a[w, l_, 0])
                            assert (9, dw * 4) not in self.snap and ns == 2 and dw % 2 == 0
                            self.snap[(9, dw * 4)] = self.known[w].copy()
                if slot == 8:
                    for w, l_ in zip(*np.nonzero(ok)): self.snap[(8, int(a[w, l_, 0]) * 4)] = self.known[w].copy()
                self.vm.append((self.idx, info))
            elif op == 'buffer_atomic_add':
                slot, a, ok = self.gaddr(ops[-3:], mods, 4)
                np.add.at(self.bufs[slot], a[ok], V[self.reg(ops[0])][ok])
                self.vm.append((self.idx, None))
            elif op == 'v_readfirstlane_b32': self.sset(ops[0], V[self.reg(ops[1])][:, 0])
            elif op == 'v_writelane_b32': V[self.reg(ops[0])][:, int(ops[2])] = self.sval(ops[1])
            elif op in ('v_mov_b32', 'v_accvgpr_read_b32', 'v_accvgpr_write_b32'):
                vs(ops[0], np.broadcast_to(vu(ops[1]), (self.NW, 64)).copy())
            elif op == 'v_cmp_ne_u64':
                b = self.rng_(ops[1])[0]; v = self.rng_(ops[2])[0]
                self.mask_set(ops[0], (V[v] != S[b][:, None]) | (V[v + 1] != S[b + 1][:, None]))
            elif op.startswith('v_cmp'):
                a, b = vu(ops[1]), vu(ops[2])
                r = {'eq': a == b, 'ne': a != b, 'gt': a > b, 'le': a <= b, 'lt': a < b, 'ge': a >= b}[op.split('_')[2]]
                self.mask_set(ops[0], np.broadcast_to(r, (self.NW, 64)))
            elif op == 'v_cndmask_b32': vs(ops[0], np.where(self.mask_get(ops[3]), vu(ops[2]), vu(ops[1])).astype(U))
            elif op == 'v_permlane32_swap_b32':
                a, b = self.reg(ops[0]), self.reg(ops[1])
                tmp = V[a][:, 32:].copy(); V[a][:, 32:] = V[b][:, :32]; V[b][:, :32] = tmp
            elif op == 'v_permlane16_swap_b32':
                a, b = self.reg(ops[0]), self.reg(ops[1])
                for h in (0, 32):
                    tmp = V[a][:, h + 16:h + 32].copy(); V[a][:, h + 16:h + 32] = V[b][:, h:h + 16]; V[b][:, h:h + 16] = tmp
            elif op == 'v_cvt_pk_bf16_f32':
                vs(ops[0], bf16_round(vf(ops[1])) | (bf16_round(vf(ops[2])) << U(16)))
            elif op == 'v_pk_max_i16':
                assert ops[2] == '0'
                x = vu(ops[1])
                vs(ops[0], np.where(x & U(0x8000), U(0), x & U(0xffff)) | np.where(x & U(0x80000000), U(0), x & U(0xffff0000)))
            elif op == 'v_dot2c_f32_bf16':
                a, b = np.asarray(vu(ops[1])), np.asarray(vu(ops[2]))
                f = lambda x: ((x << U(16)).view(np.float32), (x & U(0xffff0000)).view(np.float32))
                (al, ah), (bl, bh) = f(a), f(b)
                vs(ops[0], (vf(ops[0]) + al * bl + ah * bh).astype(np.float32))
            elif op.startswith('v_pk_') and op.endswith('f32'):
                d = self.rng_(ops[0])[0]
                def g(o, k):
                    if o[0] == 'v': return V[self.rng_(o)[0] + k].view(np.float32)
                    assert pkmods == 'op_sel_hi:[1,0]'
                    return np.float32(float(o))
                r = []
                for k in range(2):
                    if 'mul' in op: r.append(g(ops[1], k) * g(ops[2], k))
                    elif 'add' in op: r.append(g(ops[1], k) + g(ops[2], k))
                    else: r.append(g(ops[1], k) * g(ops[2], k) + g(ops[3], k))
                vs(d, r[0]); vs(d + 1, r[1])
            elif op.endswith('_f32'):
                x = [vf(o) for o in ops[1:]]
                r = {'v_add_f32': lambda: x[0] + x[1], 'v_mul_f32': lambda: x[0] * x[1], 'v_max_f32': lambda: np.maximum(x[0], x[1]),
                     'v_min_f32': lambda: np.minimum(x[0], x[1]), 'v_fma_f32': lambda: (x[0].astype(np.float64) * x[1] + x[2]).astype(np.float32),
                     'v_max3_f32': lambda: np.maximum(np.maximum(x[0], x[1]), x[2]), 'v_min3_f32': lambda: np.minimum(np.minimum(x[0], x[1]), x[2]),
                     'v_exp_f32': lambda: np.exp2(x[0]), 'v_rcp_f32': lambda: np.float32(1) / x[0], 'v_sqrt_f32': lambda: np.sqrt(x[0]),
                     'v_sub_f32': lambda: x[0] - x[1]}[op]()
                vs(ops[0], np.broadcast_to(r.astype(np.float32), (self.NW, 64)))
            else:
                x = [np.asarray(vu(o)) for o in ops[1:]]
                m24 = U(0xffffff)
                r = {'v_and_b32': lambda: x[0] & x[1], 'v_or_b32': lambda: x[0] | x[1], 'v_xor_b32': lambda: x[0] ^ x[1],
                     'v_add_u32': lambda: x[0] + x[1], 'v_sub_u32': lambda: x[0] - x[1], 'v_subrev_u32': lambda: x[1] - x[0],
                     'v_lshlrev_b32': lambda: x[1] << (x[0] & U(31)), 'v_lshrrev_b32': lambda: x[1] >> (x[0] & U(31)),
                     'v_mul_u32_u24': lambda: (x[0] & m24) * (x[1] & m24), 'v_lshl_add_u32': lambda: (x[0] << x[1]) + x[2],
                     'v_lshl_or_b32': lambda: (x[0] << x[1]) | x[2], 'v_and_or_b32': lambda: (x[0] & x[1]) | x[2],
                     'v_mad_u32_u24': lambda: (x[0] & m24) * (x[1] & m24) + x[2],
                     'v_bfe_i32': lambda: ((x[0] << (U(32) - x[1] - x[2])).astype(U).view(np.int32) >> (32 - int(x[2]))).view(U),
                     'v_min_u32': lambda: np.minimum(x[0], x[1]), 'v_min3_u32': lambda: np.minimum(np.minimum(x[0], x[1]), x[2]), 'v_max_u32': lambda: np.maximum(x[0], x[1]), 'v_max3_u32': lambda: np.maximum(np.maximum(x[0], x[1]), x[2]), 'v_bfe_u32': lambda: (x[0] >> x[1]) & ((U(1) << x[2]) - U(1))}[op]()
                vs(ops[0], np.broadcast_to(r.astype(U), (self.NW, 64)))


def bf(x): return bf2f(bf16_round(x))


def make_inputs(seed):
    rng = np.random.default_rng(seed)
    rn = lambda sh, sc: bf(bf(rng.standard_normal(sh).astype(np.float32)) * np.float32(sc))
    x = rn((2048, 576), 0.05); wqkv = rn((576, 1728), 0.2); wphi = bf(rn((32, 18, 18), 0.2) * np.float32(18 ** -0.5))
    wo = rn((576, 576), 0.05); bx = rn((2048, 576), 0.05); w1 = rn((576, 4608), 0.05); w2 = rn((4608, 576), 0.05)
    return [x, wqkv, wphi, wo, bx, w1, w2]


def pack(a):
    u = bf16_round(a).astype(np.uint16).ravel()
    return u.view(U).copy()


def emu(inp):
    x, wqkv, wphi, wo, _, w1, w2 = inp
    R = {}
    m = x.mean(-1, keepdims=True); v = (x * x).mean(-1, keepdims=True) - m * m
    mb = bf(m); sd = bf(np.sqrt(bf(bf(v) + np.float32(1e-5)))); rs = 1 / sd
    d = bf(x - mb)
    R['d'] = d; R['rs'] = rs
    h = bf(np.maximum(d @ w1, 0)); R['h'] = h
    R['yp'] = np.stack([bf(h[:, q * 1152:(q + 1) * 1152] @ w2[q * 1152:(q + 1) * 1152, :512]) for q in range(4)])
    R['y8'] = np.stack([bf(h[:, j * 288:(j + 1) * 288] @ w2[j * 288:(j + 1) * 288, 512:]) for j in range(16)])
    y = np.concatenate([R['yp'].sum(0), R['y8'].sum(0)], -1) * rs
    qkv = bf(d @ wqkv).reshape(2048, 3, 32, 18).transpose(1, 2, 0, 3)
    sm = lambda p: np.exp(p - p.max(-1, keepdims=True)) / np.exp(p - p.max(-1, keepdims=True)).sum(-1, keepdims=True)
    pq = (qkv[0] @ wphi) * rs; pk = (qkv[1] @ wphi) * rs
    phq = bf(np.concatenate([sm(pq), sm(-pq)], -1)); phk = bf(np.concatenate([sm(pk), sm(-pk)], -1) * rs)
    v1 = np.concatenate([qkv[2], np.broadcast_to(sd, (32, 2048, 1))], -1)
    R['kvp'] = bf(np.einsum('hrsf,hrsd->rhfd', phk.reshape(32, 16, 128, 36), v1.reshape(32, 16, 128, 19)))
    kv = bf(R['kvp'].sum(0))
    nd = phq @ kv
    o = bf(nd[..., :18] / (nd[..., 18:] + 1e-6)).transpose(1, 0, 2).reshape(2048, 576); R['o'] = o
    s = o @ wo
    R['out'] = bf(x + s * y / (1 + np.exp(-y)))
    return R


def ref_torchlike(inp):
    x, wqkv, wphi, wo, _, w1, w2 = inp
    m = bf(x.mean(-1, keepdims=True)); v = bf(x.var(-1, keepdims=True))
    xn = bf(bf(x - m) / bf(np.sqrt(bf(v + np.float32(1e-5)))))
    qkv = bf(xn @ wqkv).reshape(2048, 3, 32, 18).transpose(1, 2, 0, 3)
    sm = lambda p: bf(np.exp(p - p.max(-1, keepdims=True)) / np.exp(p - p.max(-1, keepdims=True)).sum(-1, keepdims=True))
    pq = bf(qkv[0] @ wphi); pk = bf(qkv[1] @ wphi)
    phq = np.concatenate([sm(pq), sm(-pq)], -1); phk = np.concatenate([sm(pk), sm(-pk)], -1)
    kv = bf(phk.transpose(0, 2, 1) @ qkv[2]); z = bf(phk.sum(1))
    num = bf(phq @ kv); den = bf(bf(np.einsum('hqf,hf->hq', phq, z))[..., None] + np.float32(1e-6))
    o = bf(num / den).transpose(1, 0, 2).reshape(2048, 576)
    s = bf(o @ wo)
    y = bf(np.maximum(bf(xn @ w1), 0) @ w2)
    g = bf(y / (1 + np.exp(-y)))
    return bf(x + bf(s * g))


def unpack_ws(ws, hoff, c=None):
    from kern2 import WS_H, WS_KV, WS_OM, WS_OX, WS_Y, WS_Y8
    R = {}
    b16 = lambda off, n: bf2f(ws[off // 4: off // 4 + n].view(np.uint16))
    hh = b16(WS_H, 1024 * 4608).reshape(16, 16, 4, 9, 2, 2, 32, 2, 4)
    if c.hlay == 1: hh = hh.reshape(9, 16, 16, 4, 2, 2, 32, 2, 4).transpose(1, 2, 3, 0, 4, 5, 6, 7, 8)
    if c.hlay == 2: hh = hh.reshape(9, 4, 16, 4, 4, 1024).transpose(2, 1, 3, 4, 0, 5).reshape(16, 16, 4, 9, 2, 2, 32, 2, 4)
    hh = hh.transpose(0, 2, 6, 1, 3, 4, 7, 5, 8).reshape(2048, 16, 9, 32)
    h = np.zeros((2048, 4608), np.float32)
    for j in range(16):
        for tau in range(9):
            o = 288 * j + hoff[tau][0] + hoff[tau][1] * (j & 1)
            h[:, o:o + 32] = hh[:, j, tau]
    R['h'] = h
    kv = b16(WS_KV, 256 * 768).reshape(16, 16, 1536)[:, :, :1440].reshape(16, 16, 2, 5, 36, 4)
    kv = kv.transpose(1, 0, 2, 4, 3, 5).reshape(16, 16, 2, 36, 20)
    A = kv[:, :, 0, :, :19]
    B = np.concatenate([kv[:, :, 1, :, 18:20], kv[:, :, 1, :, :16], kv[:, :, 1, :, 16:17]], -1)
    R['kvp'] = np.stack([A, B], 2).reshape(16, 32, 36, 19)
    om = b16(WS_OM, 64 * 16 * 512).reshape(64, 16, 2, 2, 32, 8)
    ox = b16(WS_OX, 64 * 1024).reshape(64, 2, 4, 32, 2, 4)
    o = np.zeros((64, 32, 16, 36), np.float32)
    mm = om.transpose(0, 4, 1, 3, 2, 5).reshape(64, 32, 16, 2, 16)
    o[..., 0:16] = mm[..., 0, :]; o[..., 20:36] = mm[..., 1, :]
    o[..., 16:20] = ox.transpose(0, 3, 1, 4, 2, 5).reshape(64, 32, 16, 4)
    R['o'] = o.reshape(2048, 576)
    y = b16(WS_Y, 1024 * 2048).reshape(16, 4, 4, 4, 2, 2, 2, 2, 32, 2, 4).copy()
    if c.ylay:
        y = y.reshape(2, 2, 4, 16, 4, 4, 1024).transpose(3, 4, 5, 2, 0, 1, 6).copy()
        y[:, :, :, 0::2] = y[:, :, :, 0::2, ::-1].copy()
        y = y.reshape(16, 4, 4, 4, 2, 2, 2, 2, 32, 2, 4)
    for q in range(4):
        for w in range(4):
            if (q >> 1) == (w >> 1): y[:, :, w, q, q & 1] = np.inf
    R['yp'] = y.transpose(3, 0, 2, 8, 1, 4, 5, 6, 9, 7, 10).reshape(4, 2048, 512)
    R['noyp'] = c.ys >= 4
    y8 = b16(WS_Y8, 64 * 8 * 16 * 128).reshape(64, 8, 16, 32, 8)
    if c.ylay: y8 = y8.reshape(4, 4, 64, 2, 4, 32, 8).transpose(2, 0, 3, 1, 4, 5, 6).reshape(64, 8, 16, 32, 8)
    R['y8'] = y8.transpose(2, 0, 3, 1, 4).reshape(16, 2048, 64)
    return R


def compare(R, G):
    for k in ('h', 'kvp', 'o', 'yp', 'y8', 'out', 'ref'):
        if k not in R or (k == 'yp' and G.get('noyp')): continue
        a, b = R[k], G['out' if k == 'ref' else k]
        ok = ~np.isinf(b)
        a = a[ok]; b = b[ok]
        d = a - b
        print(f'{k:4s} relL2={np.sqrt((d*d).sum()/(a*a).sum()):.5f} maxabs={np.abs(d).max():.5f} ref_rms={np.sqrt((a*a).mean()):.4f} nan={np.isnan(b).sum()}')


if __name__ == '__main__':
    from kern2 import Gen, Cfg
    kw = {}
    for a in sys.argv[1:]:
        k, v = a.split('='); kw[k] = eval(v)
    g = Gen(Cfg(**kw)); prog = g.build()
    inp = make_inputs(0)
    rng = np.random.default_rng(5)
    bufs = [pack(a) for a in inp] + [rng.integers(0, 2**32, 2048 * 288, dtype=U), np.zeros(64, U), rng.integers(0, 2**32, 0x3100000 // 4, dtype=U)]
    bufs[9][:0x20000 // 4:2] = 7; bufs[9][1:0x20000 // 4:2] = 0x80000005
    s = Sim(prog, bufs)
    s.run()
    print('slow polls', s.slowpolls)
    print('lds conflicts', {k: v for k, v in s.conf.items() if v[1]})
    G = unpack_ws(bufs[9], g.hoff, g.c); G['out'] = bf2f(bufs[7].view(np.uint16)).reshape(2048, 576)
    R = emu(inp); R['ref'] = ref_torchlike(inp)
    compare(R, G)
    np.savez('simdump.npz', **{'G' + k: v for k, v in G.items()}, **{'R' + k: v for k, v in R.items()})
```
